```python
import torch

def _softmax(x, axis=-1):
    return torch.softmax(x, dim=axis)
def _gelu(x):
    return torch.nn.functional.gelu(x, approximate="tanh")
def _silu(x):
    return torch.nn.functional.silu(x)
def _sigmoid(x):
    return torch.sigmoid(x)
def _layernorm(x, axis=-1, eps=1e-5):
    m = x.mean(dim=axis, keepdim=True)
    v = x.var(dim=axis, keepdim=True, unbiased=False)
    return (x - m) / torch.sqrt(v + eps)
def _scatter_add(tgt, idx, src, axis=0):
    return tgt.clone().index_add_(axis, idx, src)
def _segment_sum(src, seg, n):
    out = torch.zeros((n,) + src.shape[1:], dtype=src.dtype)
    return out.index_add_(0, seg, src)
def _pad(x, pw):
    flat = tuple(v for pair in reversed(pw) for v in pair)
    return torch.nn.functional.pad(x, flat)

kernel_name = 'interleave_layers__spectral_fnet__swiglu_ffn__prompt'

def setup_inputs():

    _w = (lambda a: (lambda t: t.to(torch.bfloat16) if t.is_floating_point() else t)(torch.as_tensor(a)))
    def _A_setup():
        B, S, D = 1, 2048, 640
        ns = torch.arange(S)[:, None] * torch.arange(S)[None, :]
        nd = torch.arange(D)[:, None] * torch.arange(D)[None, :]
        Ws_re = torch.cos(-2.0 * torch.pi * ns / S).to(float)
        Ws_im = torch.sin(-2.0 * torch.pi * ns / S).to(float)
        Wd_re = torch.cos(-2.0 * torch.pi * nd / D).to(float)
        Wd_im = torch.sin(-2.0 * torch.pi * nd / D).to(float)
        return {
            "x": _w((lambda *s: torch.randn(*s, dtype=torch.bfloat16) * 0.05)(B, S, D)),
            "dft_seq_re": _w(Ws_re),
            "dft_seq_im": _w(Ws_im),
            "dft_hid_re": _w(Wd_re),
            "dft_hid_im": _w(Wd_im),
        }
    _A_in = _A_setup()

    def _B_setup():
        B, S, D, F = 1, 2048, 640, 1728
        return {
            "x": _w((lambda *s: torch.randn(*s, dtype=torch.bfloat16) * 0.05)(B, S, D)),
            "w_gate": _w((lambda *s: torch.randn(*s, dtype=torch.bfloat16) * 0.4)(D, F)),
            "w_up": _w((lambda *s: torch.randn(*s, dtype=torch.bfloat16) * 0.4)(D, F)),
            "w_down": _w((lambda *s: torch.randn(*s, dtype=torch.bfloat16) * 0.4)(F, D)),
        }
    _B_in = _B_setup()

    return {
        "A_x": _A_in["x"],
        "A_dft_seq_re": _A_in["dft_seq_re"],
        "A_dft_seq_im": _A_in["dft_seq_im"],
        "A_dft_hid_re": _A_in["dft_hid_re"],
        "A_dft_hid_im": _A_in["dft_hid_im"],
        "B_x": _B_in["x"],
        "B_w_gate": _B_in["w_gate"],
        "B_w_up": _B_in["w_up"],
        "B_w_down": _B_in["w_down"],
    }

def reference(A_x, A_dft_seq_re, A_dft_seq_im, A_dft_hid_re, A_dft_hid_im, B_x, B_w_gate, B_w_up, B_w_down):
    def _A_ref(x, dft_seq_re, dft_seq_im, dft_hid_re, dft_hid_im):
        a = torch.einsum("bsd,ed->bse", x, dft_hid_re)
        b = torch.einsum("bsd,ed->bse", x, dft_hid_im)
        y = torch.einsum("ts,bse->bte", dft_seq_re, a) - torch.einsum("ts,bse->bte", dft_seq_im, b)
        return y

    def _B_ref(x, w_gate, w_up, w_down):
        g = _silu(x @ w_gate)
        u = x @ w_up
        return (g * u) @ w_down

    x = A_x
    x = x + _A_ref(_layernorm(x, axis=-1), A_dft_seq_re, A_dft_seq_im, A_dft_hid_re, A_dft_hid_im)
    x = x + _B_ref(_layernorm(x, axis=-1), B_w_gate, B_w_up, B_w_down)
    x = x + _A_ref(_layernorm(x, axis=-1), A_dft_seq_re, A_dft_seq_im, A_dft_hid_re, A_dft_hid_im)
    x = x + _B_ref(_layernorm(x, axis=-1), B_w_gate, B_w_up, B_w_down)
    return x
```

```python
NAME = 'interleave_layers__spectral_fnet__swiglu_ffn__prompt'
HEADER_COMMENT = """; Kernarg layout for this problem (96 bytes, ptrs only, base s[0:1]):
"""
KA = dict(x=0, sre=8, sim=16, hre=24, him=32, bx=40, wg=48, wu=56, wd=64, out=72, dbg=80, ws=88)

class Kernel:
    def __init__(self, name, vgpr=256, sgpr=102, accum=None):
        self.name = name
        self.lines = []
        self.vgpr = vgpr
        self.sgpr = sgpr
        self.accum = accum
        self._lab = 0
    def __call__(self, s):
        for l in s.strip('\n').split('\n'):
            l = l.strip()
            if not l: continue
            if l.endswith(':'):
                self.lines.append(l)
            else:
                self.lines.append('    ' + l)
    def label(self, base='L'):
        self._lab += 1
        return f'{base}_{self.name}_{self._lab}'
    def text(self):
        n = self.name
        out = [f'.globl {n}', '.p2align 8', f'.type {n},@function', f'{n}:']
        out += self.lines
        return '\n'.join(out) + '\n'
    def desc(self):
        acc = self.accum if self.accum is not None else min(256, (self.vgpr + 3)//4*4)
        return f""".p2align 6
.amdhsa_kernel {self.name}
  .amdhsa_next_free_vgpr {self.vgpr}
  .amdhsa_next_free_sgpr {self.sgpr}
  .amdhsa_accum_offset {acc}
  .amdhsa_group_segment_fixed_size 0
  .amdhsa_kernarg_size 96
  .amdhsa_user_sgpr_count 2
  .amdhsa_user_sgpr_kernarg_segment_ptr 1
  .amdhsa_system_sgpr_workgroup_id_x 1
.end_amdhsa_kernel
"""

def build(kernels, launches, extra_text='', single=False):
    s = HEADER_COMMENT
    if single:
        (k, g, b, lds), = launches
        s += f'; @launch grid=({g},1,1) block=({b},1,1) lds={lds}\n'
    else:
        for (k, g, b, lds) in launches:
            s += f'; @launch kernel={k} grid=({g},1,1) block=({b},1,1) lds={lds}\n'
    s += '.amdgcn_target "amdgcn-amd-amdhsa--gfx950"\n.text\n'
    for k in kernels:
        s += k.text()
    s += extra_text
    s += '.section .rodata,"a"\n'
    for k in kernels:
        s += k.desc()
    return s
```

```python
import sys
from asmlib import *
S, D, F = 2048, 640, 1728
WS_WGT = 0
WS_WUT = WS_WGT + F*D*2
WS_WDT = WS_WUT + F*D*2
WS_XN  = WS_WDT + F*D*2
WS_AB  = WS_XN + S*D*2
WS_X1  = WS_AB + D*2*S*2
WS_X2  = WS_X1 + S*D*2
WS_X3  = WS_X2 + S*D*2
WS_H   = WS_X3 + S*D*2
WS_END = WS_H + S*F*2

def srd(k, d, arg, off, nbytes):
    k(f's_load_dwordx2 s[{d}:{d+1}], s[0:1], {KA[arg]}')
    k('s_waitcnt lgkmcnt(0)')
    if off:
        k(f's_add_u32 s{d}, s{d}, {off}')
        k(f's_addc_u32 s{d+1}, s{d+1}, 0')
    k(f's_mov_b32 s{d+2}, {nbytes}')
    k(f's_mov_b32 s{d+3}, 0x00020000')

def k_transpose(name, src, dstoff, R, C):
    k = Kernel(name, vgpr=16, sgpr=32)
    srd(k, 4, src, 0, R*C*2)
    srd(k, 8, 'ws', dstoff, R*C*2)
    magic = -(-(1 << 32)//R)
    k(f"""
    s_lshl_b32 s3, s2, 8
    v_add_u32 v1, s3, v0
    s_mov_b32 s12, {magic}
    v_mul_hi_u32 v2, v1, s12      ; c = idx / R
    s_mov_b32 s13, {R}
    v_mul_lo_u32 v3, v2, s13
    v_sub_u32 v3, v1, v3          ; r
    s_mov_b32 s14, {C}
    v_mul_lo_u32 v4, v3, s14
    v_add_u32 v4, v4, v2
    v_lshlrev_b32 v4, 1, v4
    v_lshlrev_b32 v5, 1, v1
    buffer_load_ushort v6, v4, s[4:7], 0 offen
    s_waitcnt vmcnt(0)
    buffer_store_short v6, v5, s[8:11], 0 offen
    s_endpgm
    """)
    return k, (name, R*C//256, 256, 0)

def k_ln(name, srcarg, srcoff):
    k = Kernel(name, vgpr=32, sgpr=32)
    k(f's_cmp_ge_u32 s2, {S}')
    k(f's_cbranch_scc1 END_{name}')
    srd(k, 4, srcarg, srcoff, S*D*2)
    srd(k, 8, 'ws', WS_XN, S*D*2)
    k(f's_mul_i32 s3, s2, {D*2}')
    k('v_lshlrev_b32 v1, 2, v0')
    k('v_add_u32 v1, s3, v1')
    for i in range(5):
        k(f'buffer_load_dword v{2+i}, v1, s[4:7], 0 offen offset:{i*256}')
    k('s_waitcnt vmcnt(0)')
    for i in range(5):
        k(f'v_lshlrev_b32 v{8+2*i}, 16, v{2+i}')
        k(f'v_and_b32 v{9+2*i}, 0xffff0000, v{2+i}')
    def wavesum(r):
        for m in [1,2,4,8,16,32]:
            k(f'v_xor_b32 v20, {m}, v0')
            k('v_lshlrev_b32 v20, 2, v20')
            k(f'ds_bpermute_b32 v21, v20, v{r}')
            k('s_waitcnt lgkmcnt(0)')
            k(f'v_add_f32 v{r}, v{r}, v21')
    k('v_mov_b32 v18, 0')
    for i in range(10): k(f'v_add_f32 v18, v18, v{8+i}')
    wavesum(18)
    k(f'v_mul_f32 v18, {1.0/D!r}, v18')
    k('v_mov_b32 v19, 0')
    for i in range(10):
        k(f'v_sub_f32 v{8+i}, v{8+i}, v18')
        k(f'v_fmac_f32 v19, v{8+i}, v{8+i}')
    wavesum(19)
    k(f'v_mul_f32 v19, {1.0/D!r}, v19')
    k('v_add_f32 v19, 0x3727c5ac, v19')
    k('v_rsq_f32 v19, v19')
    k('s_nop 1')
    for i in range(10): k(f'v_mul_f32 v{8+i}, v{8+i}, v19')
    for i in range(5):
        k(f'v_cvt_pk_bf16_f32 v{2+i}, v{8+2*i}, v{9+2*i}')
        k(f'buffer_store_dword v{2+i}, v1, s[8:11], 0 offen offset:{i*256}')
    k(f'END_{name}:')
    k('s_endpgm')
    return k, (name, S, 64, 0)

def gemm_loop(k, sA, lda, sB, ldb, K, acc, aoff=0, boff=0):
    k(f'v_mul_u32_u24 v14, {lda}, v10')
    k('v_add_u32 v14, v14, v12')
    k(f'v_add_u32 v14, {aoff}, v14')
    k(f'v_add_u32 v15, {16*lda}, v14')
    k(f'v_mul_u32_u24 v16, {ldb}, v11')
    k('v_add_u32 v16, v16, v12')
    k(f'v_add_u32 v16, {boff}, v16')
    k(f'v_add_u32 v17, {16*ldb}, v16')
    k('s_mov_b32 s30, 0')
    L = k.label()
    k(f'{L}:')
    k(f'buffer_load_dwordx4 v[20:23], v14, s[{sA}:{sA+3}], s30 offen')
    k(f'buffer_load_dwordx4 v[24:27], v15, s[{sA}:{sA+3}], s30 offen')
    k(f'buffer_load_dwordx4 v[28:31], v16, s[{sB}:{sB+3}], s30 offen')
    k(f'buffer_load_dwordx4 v[32:35], v17, s[{sB}:{sB+3}], s30 offen')
    k('s_waitcnt vmcnt(0)')
    for mi in range(2):
        for ni in range(2):
            a = acc + (mi*2+ni)*4
            k(f'v_mfma_f32_16x16x32_bf16 v[{a}:{a+3}], v[{28+4*ni}:{31+4*ni}], v[{20+4*mi}:{23+4*mi}], v[{a}:{a+3}]')
    k('s_add_u32 s30, s30, 64')
    k(f's_cmp_lt_u32 s30, {K*2}')
    k(f's_cbranch_scc1 {L}')

def gemm_pro(k, name, M, N):
    nt = N//32
    k(f's_cmp_ge_u32 s2, {M//32*nt}')
    k(f's_cbranch_scc1 END_{name}')
    magic = -(-(1 << 32)//nt)
    k(f's_mul_hi_u32 s20, s2, {magic}')
    k(f's_mul_i32 s21, s20, {nt}')
    k('s_sub_u32 s21, s2, s21')
    k('s_lshl_b32 s20, s20, 5')
    k('s_lshl_b32 s21, s21, 5')
    k('v_and_b32 v1, 15, v0')
    k('v_add_u32 v10, s20, v1')
    k('v_add_u32 v11, s21, v1')
    k('v_lshrrev_b32 v2, 4, v0')
    k('v_lshlrev_b32 v12, 4, v2')
    for i in range(40, 72): k(f'v_mov_b32 v{i}, 0')

def out_addr(k, ldc, coff=0):
    k(f'v_mul_u32_u24 v3, {ldc}, v10')
    k('v_lshlrev_b32 v4, 3, v2')
    k('v_add_u32 v3, v3, v4')
    k('s_lshl_b32 s22, s21, 1')
    k('v_add_u32 v3, s22, v3')
    k(f'v_add_u32 v3, {coff}, v3')
    k(f'v_add_u32 v5, {16*ldc}, v3')

def store_tiles(k, sC, acc, resid=None):
    for mi in range(2):
        for ni in range(2):
            a = acc + (mi*2+ni)*4
            ad = 3 if mi == 0 else 5
            if resid is not None:
                k(f'buffer_load_dwordx2 v[6:7], v{ad}, s[{resid}:{resid+3}], 0 offen offset:{ni*32}')
                k('s_waitcnt vmcnt(0)')
                k('v_lshlrev_b32 v8, 16, v6'); k(f'v_add_f32 v{a}, v{a}, v8')
                k('v_and_b32 v8, 0xffff0000, v6'); k(f'v_add_f32 v{a+1}, v{a+1}, v8')
                k('v_lshlrev_b32 v8, 16, v7'); k(f'v_add_f32 v{a+2}, v{a+2}, v8')
                k('v_and_b32 v8, 0xffff0000, v7'); k(f'v_add_f32 v{a+3}, v{a+3}, v8')
            k(f'v_cvt_pk_bf16_f32 v{a}, v{a}, v{a+1}')
            k(f'v_cvt_pk_bf16_f32 v{a+1}, v{a+2}, v{a+3}')
            k(f'buffer_store_dwordx2 v[{a}:{a+1}], v{ad}, s[{sC}:{sC+3}], 0 offen offset:{ni*32}')

def k_g1(name):
    k = Kernel(name, vgpr=80, sgpr=40)
    gemm_pro(k, name, D, S)
    srd(k, 4, 'hre', 0, D*D*2); srd(k, 8, 'him', 0, D*D*2)
    srd(k, 12, 'ws', WS_XN, S*D*2); srd(k, 16, 'ws', WS_AB, D*2*S*2)
    gemm_loop(k, 4, D*2, 12, D*2, D, 40)
    gemm_loop(k, 8, D*2, 12, D*2, D, 56)
    k('s_nop 15')
    for i in range(56, 72): k(f'v_sub_f32 v{i}, 0, v{i}')
    out_addr(k, S*4); store_tiles(k, 16, 40)
    out_addr(k, S*4, S*2); store_tiles(k, 16, 56)
    k(f'END_{name}:'); k('s_endpgm')
    return k, (name, D//32*S//32, 64, 0)

def k_g2(name, rarg, roff, oarg, ooff):
    k = Kernel(name, vgpr=80, sgpr=40)
    gemm_pro(k, name, S, D)
    srd(k, 4, 'sre', 0, S*S*2); srd(k, 8, 'sim', 0, S*S*2)
    srd(k, 12, 'ws', WS_AB, D*2*S*2); srd(k, 16, oarg, ooff, S*D*2); srd(k, 24, rarg, roff, S*D*2)
    gemm_loop(k, 4, S*2, 12, S*4, S, 40)
    gemm_loop(k, 8, S*2, 12, S*4, S, 40, boff=S*2)
    k('s_nop 15')
    out_addr(k, D*2); store_tiles(k, 16, 40, resid=24)
    k(f'END_{name}:'); k('s_endpgm')
    return k, (name, D//32*S//32, 64, 0)

def k_g3(name):
    k = Kernel(name, vgpr=80, sgpr=40)
    gemm_pro(k, name, S, F)
    srd(k, 4, 'ws', WS_XN, S*D*2); srd(k, 8, 'ws', WS_WGT, F*D*2); srd(k, 12, 'ws', WS_WUT, F*D*2)
    srd(k, 16, 'ws', WS_H, S*F*2)
    gemm_loop(k, 4, D*2, 8, D*2, D, 40)
    gemm_loop(k, 4, D*2, 12, D*2, D, 56)
    k('s_nop 15')
    for i in range(16):
        g = 40+i; u = 56+i
        k(f'v_mul_f32 v6, 0xbfb8aa3b, v{g}')
        k('v_exp_f32 v6, v6'); k('s_nop 0')
        k('v_add_f32 v6, 1.0, v6')
        k('v_rcp_f32 v6, v6'); k('s_nop 0')
        k(f'v_mul_f32 v{g}, v{g}, v6')
        k(f'v_mul_f32 v{g}, v{g}, v{u}')
    out_addr(k, F*2); store_tiles(k, 16, 40)
    k(f'END_{name}:'); k('s_endpgm')
    return k, (name, F//32*S//32, 64, 0)

def k_g4(name, rarg, roff, oarg, ooff):
    k = Kernel(name, vgpr=80, sgpr=40)
    gemm_pro(k, name, S, D)
    srd(k, 4, 'ws', WS_H, S*F*2); srd(k, 8, 'ws', WS_WDT, F*D*2)
    srd(k, 16, oarg, ooff, S*D*2); srd(k, 24, rarg, roff, S*D*2)
    gemm_loop(k, 4, F*2, 8, F*2, F, 40)
    k('s_nop 15')
    out_addr(k, D*2); store_tiles(k, 16, 40, resid=24)
    k(f'END_{name}:'); k('s_endpgm')
    return k, (name, D//32*S//32, 64, 0)

def k_empty(name):
    k = Kernel(name, vgpr=8, sgpr=16)
    k('s_endpgm')
    return k

npre = int(sys.argv[2]) if len(sys.argv) > 2 else 0
npost = int(sys.argv[3]) if len(sys.argv) > 3 else 0
ks = []; ls = []
def add(kl, again=False):
    k, l = kl
    if not again: ks.append(k)
    ls.append(l)
e = k_empty('empty_kernel'); ks.append(e)
for i in range(npre): ls.append(('empty_kernel', 256, 256, 0))
add(k_transpose('tg_kernel', 'wg', WS_WGT, D, F))
add(k_transpose('tu_kernel', 'wu', WS_WUT, D, F))
add(k_transpose('td_kernel', 'wd', WS_WDT, F, D))
add(k_ln('ln0_kernel', 'x', 0))
add(k_g1('g1_kernel'))
add(k_g2('g2a_kernel', 'x', 0, 'ws', WS_X1))
add(k_ln('ln1_kernel', 'ws', WS_X1))
add(k_g3('g3_kernel'))
add(k_g4('g4a_kernel', 'ws', WS_X1, 'ws', WS_X2))
add(k_ln('ln2_kernel', 'ws', WS_X2))
add(k_g1('g1_kernel'), again=True)
add(k_g2('g2b_kernel', 'ws', WS_X2, 'ws', WS_X3))
add(k_ln('ln3_kernel', 'ws', WS_X3))
add(k_g3('g3_kernel'), again=True)
add(k_g4('g4b_kernel', 'ws', WS_X3, 'out', 0))
for i in range(npost): ls.append(('empty_kernel', 256, 256, 0))
if npre + npost == 0: ks.remove(e)
open(sys.argv[1], 'w').write(build(ks, ls))
```

```python
import sys
from asmlib import *
S, D, F = 2048, 640, 1728
WS_WGT = 0
WS_WUT = WS_WGT + F*D*2
WS_WDT = WS_WUT + F*D*2
WS_XN  = WS_WDT + F*D*2
WS_AB  = WS_XN + S*D*2
WS_X1  = WS_AB + D*2*S*2
WS_X2  = WS_X1 + S*D*2
WS_X3  = WS_X2 + S*D*2
WS_H   = WS_X3 + S*D*2
WS_END = WS_H + S*F*2

def srd(k, d, arg, off, nbytes):
    k(f's_load_dwordx2 s[{d}:{d+1}], s[0:1], {KA[arg]}')
    k('s_waitcnt lgkmcnt(0)')
    if off:
        k(f's_add_u32 s{d}, s{d}, {off}')
        k(f's_addc_u32 s{d+1}, s{d+1}, 0')
    k(f's_mov_b32 s{d+2}, {nbytes}')
    k(f's_mov_b32 s{d+3}, 0x00020000')

def k_transpose(name, src, dstoff, R, C):
    k = Kernel(name, vgpr=16, sgpr=32)
    srd(k, 4, src, 0, R*C*2)
    srd(k, 8, 'ws', dstoff, R*C*2)
    magic = -(-(1 << 32)//R)
    k(f"""
    s_lshl_b32 s3, s2, 8
    v_add_u32 v1, s3, v0
    s_mov_b32 s12, {magic}
    v_mul_hi_u32 v2, v1, s12      ; c = idx / R
    s_mov_b32 s13, {R}
    v_mul_lo_u32 v3, v2, s13
    v_sub_u32 v3, v1, v3          ; r
    s_mov_b32 s14, {C}
    v_mul_lo_u32 v4, v3, s14
    v_add_u32 v4, v4, v2
    v_lshlrev_b32 v4, 1, v4
    v_lshlrev_b32 v5, 1, v1
    buffer_load_ushort v6, v4, s[4:7], 0 offen
    s_waitcnt vmcnt(0)
    buffer_store_short v6, v5, s[8:11], 0 offen
    s_endpgm
    """)
    return k, (name, R*C//256, 256, 0)

def k_ln(name, srcarg, srcoff):
    k = Kernel(name, vgpr=32, sgpr=32)
    k(f's_cmp_ge_u32 s2, {S}')
    k(f's_cbranch_scc1 END_{name}')
    srd(k, 4, srcarg, srcoff, S*D*2)
    srd(k, 8, 'ws', WS_XN, S*D*2)
    k(f's_mul_i32 s3, s2, {D*2}')
    k('v_lshlrev_b32 v1, 2, v0')
    k('v_add_u32 v1, s3, v1')
    for i in range(5):
        k(f'buffer_load_dword v{2+i}, v1, s[4:7], 0 offen offset:{i*256}')
    k('s_waitcnt vmcnt(0)')
    for i in range(5):
        k(f'v_lshlrev_b32 v{8+2*i}, 16, v{2+i}')
        k(f'v_and_b32 v{9+2*i}, 0xffff0000, v{2+i}')
    def wavesum(r):
        for m in [1,2,4,8,16,32]:
            k(f'v_xor_b32 v20, {m}, v0')
            k('v_lshlrev_b32 v20, 2, v20')
            k(f'ds_bpermute_b32 v21, v20, v{r}')
            k('s_waitcnt lgkmcnt(0)')
            k(f'v_add_f32 v{r}, v{r}, v21')
    k('v_mov_b32 v18, 0')
    for i in range(10): k(f'v_add_f32 v18, v18, v{8+i}')
    wavesum(18)
    k(f'v_mul_f32 v18, {1.0/D!r}, v18')
    k('v_mov_b32 v19, 0')
    for i in range(10):
        k(f'v_sub_f32 v{8+i}, v{8+i}, v18')
        k(f'v_fmac_f32 v19, v{8+i}, v{8+i}')
    wavesum(19)
    k(f'v_mul_f32 v19, {1.0/D!r}, v19')
    k('v_add_f32 v19, 0x3727c5ac, v19')
    k('v_rsq_f32 v19, v19')
    k('s_nop 1')
    for i in range(10): k(f'v_mul_f32 v{8+i}, v{8+i}, v19')
    for i in range(5):
        k(f'v_cvt_pk_bf16_f32 v{2+i}, v{8+2*i}, v{9+2*i}')
        k(f'buffer_store_dword v{2+i}, v1, s[8:11], 0 offen offset:{i*256}')
    k(f'END_{name}:')
    k('s_endpgm')
    return k, (name, S, 64, 0)

def gemm_loop(k, sA, lda, sB, ldb, K, acc, aoff=0, boff=0):
    k(f'v_mul_u32_u24 v14, {lda}, v10')
    k('v_add_u32 v14, v14, v12')
    k(f'v_add_u32 v14, {aoff}, v14')
    k(f'v_add_u32 v15, {16*lda}, v14')
    k(f'v_mul_u32_u24 v16, {ldb}, v11')
    k('v_add_u32 v16, v16, v12')
    k(f'v_add_u32 v16, {boff}, v16')
    k(f'v_add_u32 v17, {16*ldb}, v16')
    k('s_mov_b32 s30, 0')
    L = k.label()
    k(f'{L}:')
    k(f'buffer_load_dwordx4 v[20:23], v14, s[{sA}:{sA+3}], s30 offen')
    k(f'buffer_load_dwordx4 v[24:27], v15, s[{sA}:{sA+3}], s30 offen')
    k(f'buffer_load_dwordx4 v[28:31], v16, s[{sB}:{sB+3}], s30 offen')
    k(f'buffer_load_dwordx4 v[32:35], v17, s[{sB}:{sB+3}], s30 offen')
    k('s_waitcnt vmcnt(0)')
    for mi in range(2):
        for ni in range(2):
            a = acc + (mi*2+ni)*4
            k(f'v_mfma_f32_16x16x32_bf16 v[{a}:{a+3}], v[{28+4*ni}:{31+4*ni}], v[{20+4*mi}:{23+4*mi}], v[{a}:{a+3}]')
    k('s_add_u32 s30, s30, 64')
    k(f's_cmp_lt_u32 s30, {K*2}')
    k(f's_cbranch_scc1 {L}')

def gemm_pro(k, name, M, N):
    nt = N//32
    k(f's_cmp_ge_u32 s2, {M//32*nt}')
    k(f's_cbranch_scc1 END_{name}')
    magic = -(-(1 << 32)//nt)
    k(f's_mul_hi_u32 s20, s2, {magic}')
    k(f's_mul_i32 s21, s20, {nt}')
    k('s_sub_u32 s21, s2, s21')
    k('s_lshl_b32 s20, s20, 5')
    k('s_lshl_b32 s21, s21, 5')
    k('v_and_b32 v1, 15, v0')
    k('v_add_u32 v10, s20, v1')
    k('v_add_u32 v11, s21, v1')
    k('v_lshrrev_b32 v2, 4, v0')
    k('v_lshlrev_b32 v12, 4, v2')
    for i in range(40, 72): k(f'v_mov_b32 v{i}, 0')

def out_addr(k, ldc, coff=0):
    k(f'v_mul_u32_u24 v3, {ldc}, v10')
    k('v_lshlrev_b32 v4, 3, v2')
    k('v_add_u32 v3, v3, v4')
    k('s_lshl_b32 s22, s21, 1')
    k('v_add_u32 v3, s22, v3')
    k(f'v_add_u32 v3, {coff}, v3')
    k(f'v_add_u32 v5, {16*ldc}, v3')

def store_tiles(k, sC, acc, resid=None):
    for mi in range(2):
        for ni in range(2):
            a = acc + (mi*2+ni)*4
            ad = 3 if mi == 0 else 5
            if resid is not None:
                k(f'buffer_load_dwordx2 v[6:7], v{ad}, s[{resid}:{resid+3}], 0 offen offset:{ni*32}')
                k('s_waitcnt vmcnt(0)')
                k('v_lshlrev_b32 v8, 16, v6'); k(f'v_add_f32 v{a}, v{a}, v8')
                k('v_and_b32 v8, 0xffff0000, v6'); k(f'v_add_f32 v{a+1}, v{a+1}, v8')
                k('v_lshlrev_b32 v8, 16, v7'); k(f'v_add_f32 v{a+2}, v{a+2}, v8')
                k('v_and_b32 v8, 0xffff0000, v7'); k(f'v_add_f32 v{a+3}, v{a+3}, v8')
            k(f'v_cvt_pk_bf16_f32 v{a}, v{a}, v{a+1}')
            k(f'v_cvt_pk_bf16_f32 v{a+1}, v{a+2}, v{a+3}')
            k(f'buffer_store_dwordx2 v[{a}:{a+1}], v{ad}, s[{sC}:{sC+3}], 0 offen offset:{ni*32}')

def k_g1(name):
    k = Kernel(name, vgpr=80, sgpr=40)
    gemm_pro(k, name, D, S)
    srd(k, 4, 'hre', 0, D*D*2); srd(k, 8, 'him', 0, D*D*2)
    srd(k, 12, 'ws', WS_XN, S*D*2); srd(k, 16, 'ws', WS_AB, D*2*S*2)
    gemm_loop(k, 4, D*2, 12, D*2, D, 40)
    gemm_loop(k, 8, D*2, 12, D*2, D, 56)
    k('s_nop 15')
    for i in range(56, 72): k(f'v_sub_f32 v{i}, 0, v{i}')
    out_addr(k, S*4); store_tiles(k, 16, 40)
    out_addr(k, S*4, S*2); store_tiles(k, 16, 56)
    k(f'END_{name}:'); k('s_endpgm')
    return k, (name, D//32*S//32, 64, 0)

def k_g2(name, rarg, roff, oarg, ooff):
    k = Kernel(name, vgpr=80, sgpr=40)
    gemm_pro(k, name, S, D)
    srd(k, 4, 'sre', 0, S*S*2); srd(k, 8, 'sim', 0, S*S*2)
    srd(k, 12, 'ws', WS_AB, D*2*S*2); srd(k, 16, oarg, ooff, S*D*2); srd(k, 24, rarg, roff, S*D*2)
    gemm_loop(k, 4, S*2, 12, S*4, S, 40)
    gemm_loop(k, 8, S*2, 12, S*4, S, 40, boff=S*2)
    k('s_nop 15')
    out_addr(k, D*2); store_tiles(k, 16, 40, resid=24)
    k(f'END_{name}:'); k('s_endpgm')
    return k, (name, D//32*S//32, 64, 0)

def k_g3(name):
    k = Kernel(name, vgpr=80, sgpr=40)
    gemm_pro(k, name, S, F)
    srd(k, 4, 'ws', WS_XN, S*D*2); srd(k, 8, 'ws', WS_WGT, F*D*2); srd(k, 12, 'ws', WS_WUT, F*D*2)
    srd(k, 16, 'ws', WS_H, S*F*2)
    gemm_loop(k, 4, D*2, 8, D*2, D, 40)
    gemm_loop(k, 4, D*2, 12, D*2, D, 56)
    k('s_nop 15')
    for i in range(16):
        g = 40+i; u = 56+i
        k(f'v_mul_f32 v6, 0xbfb8aa3b, v{g}')
        k('v_exp_f32 v6, v6'); k('s_nop 0')
        k('v_add_f32 v6, 1.0, v6')
        k('v_rcp_f32 v6, v6'); k('s_nop 0')
        k(f'v_mul_f32 v{g}, v{g}, v6')
        k(f'v_mul_f32 v{g}, v{g}, v{u}')
    out_addr(k, F*2); store_tiles(k, 16, 40)
    k(f'END_{name}:'); k('s_endpgm')
    return k, (name, F//32*S//32, 64, 0)

def k_g4(name, rarg, roff, oarg, ooff):
    k = Kernel(name, vgpr=80, sgpr=40)
    gemm_pro(k, name, S, D)
    srd(k, 4, 'ws', WS_H, S*F*2); srd(k, 8, 'ws', WS_WDT, F*D*2)
    srd(k, 16, oarg, ooff, S*D*2); srd(k, 24, rarg, roff, S*D*2)
    gemm_loop(k, 4, F*2, 8, F*2, F, 40)
    k('s_nop 15')
    out_addr(k, D*2); store_tiles(k, 16, 40, resid=24)
    k(f'END_{name}:'); k('s_endpgm')
    return k, (name, D//32*S//32, 64, 0)

def k_empty(name):
    k = Kernel(name, vgpr=8, sgpr=16)
    k('s_endpgm')
    return k

def k_probe(name, arg, off, n, stride):
    k = Kernel(name, vgpr=8, sgpr=32)
    k('s_cmp_ge_u32 s2, 1'); k(f's_cbranch_scc1 END_{name}')
    srd(k, 4, arg, off, n*stride)
    k('v_mov_b32 v1, 0'); k('s_mov_b32 s10, 0')
    k(f'L_{name}:')
    k('buffer_load_dword v2, v1, s[4:7], s10 offen'); k('s_waitcnt vmcnt(0)')
    k(f's_add_u32 s10, s10, {stride}'); k(f's_cmp_lt_u32 s10, {n*stride}'); k(f's_cbranch_scc1 L_{name}')
    k(f'END_{name}:'); k('s_endpgm')
    return k, (name, 1, 64, 0)
npre = int(sys.argv[2]) if len(sys.argv) > 2 else 0
npost = int(sys.argv[3]) if len(sys.argv) > 3 else 0
ks = []; ls = []
def add(kl, again=False):
    k, l = kl
    if not again: ks.append(k)
    ls.append(l)
e = k_empty('empty_kernel'); ks.append(e)
for i in range(npre): ls.append(('empty_kernel', 256, 256, 0))
if len(sys.argv) > 4:
    add(k_probe('probe_kernel', sys.argv[4], int(sys.argv[5]), 400, int(sys.argv[6])))
add(k_transpose('tg_kernel', 'wg', WS_WGT, D, F))
add(k_transpose('tu_kernel', 'wu', WS_WUT, D, F))
add(k_transpose('td_kernel', 'wd', WS_WDT, F, D))
add(k_ln('ln0_kernel', 'x', 0))
add(k_g1('g1_kernel'))
add(k_g2('g2a_kernel', 'x', 0, 'ws', WS_X1))
add(k_ln('ln1_kernel', 'ws', WS_X1))
add(k_g3('g3_kernel'))
add(k_g4('g4a_kernel', 'ws', WS_X1, 'ws', WS_X2))
add(k_ln('ln2_kernel', 'ws', WS_X2))
add(k_g1('g1_kernel'), again=True)
add(k_g2('g2b_kernel', 'ws', WS_X2, 'ws', WS_X3))
add(k_ln('ln3_kernel', 'ws', WS_X3))
add(k_g3('g3_kernel'), again=True)
add(k_g4('g4b_kernel', 'ws', WS_X3, 'out', 0))
for i in range(npost): ls.append(('empty_kernel', 256, 256, 0))
if npre + npost == 0: ks.remove(e)
open(sys.argv[1], 'w').write(build(ks, ls))
```

```python
import re
from asmlib import NAME, HEADER_COMMENT, KA

REG = re.compile(r'^(-?)(abs\()?([vas])(\d+|\[(\d+):(\d+)\])\)?$')
def regs_of(tok):
    tok = tok.strip()
    if tok == 'vcc': return [('s', 'vcc_lo'), ('s', 'vcc_hi')]
    if tok in ('vcc_lo', 'vcc_hi', 'm0', 'exec_lo', 'exec_hi'): return [('s', tok)]
    if tok == 'exec': return [('s', 'exec_lo'), ('s', 'exec_hi')]
    m = REG.match(tok)
    if not m: return []
    if m.group(5) is not None: return [(m.group(3), n) for n in range(int(m.group(5)), int(m.group(6))+1)]
    return [(m.group(3), int(m.group(4)))]

TRANS = ('v_exp_f32', 'v_log_f32', 'v_rcp_f32', 'v_rsq_f32', 'v_sqrt_f32', 'v_sin_f32', 'v_cos_f32')
class I:
    __slots__ = ('text', 'op', 'kind', 'w', 'r', 'tag', 'name', 'c', 'ab', 'data', 'dpp', 'passes', 'xdl', 'need')
    def __init__(s, text, tag=None, name=None):
        s.text = text; s.tag = tag; s.name = name; s.w = []; s.r = []; s.c = []; s.ab = []; s.data = []
        s.dpp = False; s.passes = 0; s.xdl = False; s.need = None
        t = text.split(';')[0].strip()
        if t.endswith(':'): s.op = t; s.kind = 'label'; return
        if t.startswith('.'): s.op = t; s.kind = 'dir'; return
        parts = t.split(None, 1); op = s.op = parts[0]
        rest = parts[1] if len(parts) > 1 else ''
        rest2 = re.sub(r'quad_perm:\[[^\]]*\]', 'quad_perm', rest)
        toks = [x.strip() for x in rest2.split(',')] if rest2 else []
        mods = []
        if toks:
            last = toks[-1].split(); toks[-1] = last[0]; mods = last[1:]
        R = [regs_of(x) for x in toks]
        flat = lambda L: [x for l in L for x in l]
        if op.startswith('v_mfma'):
            s.kind = 'mfma'; s.w = R[0]; s.ab = R[1] + R[2]; s.c = R[3]; s.r = s.ab + s.c
            if '16x16x32_bf16' in op: s.passes, s.xdl = 4, True
            elif '32x32x16_bf16' in op: s.passes, s.xdl = 8, True
            elif '16x16x4_f32' in op: s.passes, s.xdl = 8, False
            else: raise ValueError(op)
        elif op.startswith('v_'):
            s.kind = 'valu'
            s.dpp = op.endswith('_dpp')
            if op.startswith(('v_permlane', 'v_swap')): s.w = R[0] + R[1]; s.r = list(s.w)
            elif op.startswith(('v_add_co', 'v_addc_co', 'v_sub_co')): s.w = R[0] + R[1]; s.r = flat(R[2:])
            elif op.startswith(('v_fmac', 'v_dot2c', 'v_writelane')) or s.dpp: s.w = R[0]; s.r = flat(R)
            elif op == 'v_nop': pass
            else: s.w = R[0]; s.r = flat(R[1:])
        elif op.startswith('ds_read') or op.startswith('ds_bpermute') or op.startswith('ds_swizzle'):
            s.kind = 'dsr'; s.w = R[0]; s.r = flat(R[1:])
        elif op.startswith('ds_'):
            s.kind = 'dsw'; s.r = flat(R)
        elif op.startswith(('buffer_load', 'global_load')):
            if 'lds' in mods or '_lds_' in op: s.kind = 'dma'; s.r = flat(R) + [('s', 'm0')]
            else: s.kind = 'vld'; s.w = R[0]; s.r = flat(R[1:])
        elif op.startswith('buffer_store'):
            s.kind = 'vst'; s.r = flat(R); s.data = R[0]
        elif op.startswith('global_store'):
            s.kind = 'vst'; s.r = flat(R); s.data = R[1]
        elif op.startswith('buffer_atomic'):
            s.r = flat(R)
            if 'sc0' in mods: s.kind = 'vld'; s.w = R[0]
            else: s.kind = 'vst'
        elif op.startswith(('s_load', 's_memtime', 's_memrealtime')):
            s.kind = 'smem'; s.w = R[0]; s.r = flat(R[1:])
        elif op == 's_waitcnt': s.kind = 'wait'
        elif op == 's_nop': s.kind = 'nop'
        elif op == 's_barrier': s.kind = 'barrier'
        elif op.startswith(('s_cbranch', 's_branch', 's_endpgm', 's_setpc', 's_swappc')): s.kind = 'branch'
        elif op.startswith(('s_cmp', 's_bitcmp', 's_sleep', 's_setprio')): s.kind = 'salu'; s.r = flat(R)
        elif op.startswith('s_'):
            s.kind = 'salu'; s.w = R[0]; s.r = flat(R[1:])
        else: raise ValueError('unknown op ' + text)
    def states(s):
        if s.kind in ('label', 'dir', 'need'): return 0
        if s.kind == 'nop': return int(s.text.split()[1]) + 1
        return 1

class Need(I):
    def __init__(s, regs=(), names=(), tag=None):
        s.text = ''; s.op = 'need'; s.kind = 'need'; s.tag = tag; s.name = None
        s.w = []; s.r = list(regs); s.c = []; s.ab = []; s.data = []; s.dpp = False; s.passes = 0; s.xdl = False; s.need = list(names)

def rr(spec):
    return regs_of(spec)

class K:
    def __init__(s, name, vgpr=512, sgpr=102, accum=256):
        s.name = name; s.vgpr = vgpr; s.sgpr = sgpr; s.accum = accum
        s.ins = []; s.tag = None; s._lab = 0
    def __call__(s, text, name=None):
        if isinstance(text, I):
            text.tag = s.tag; s.ins.append(text); return
        for l in text.strip('\n').split('\n'):
            l = l.strip()
            if not l or l.startswith(';'): continue
            s.ins.append(I(l, s.tag, name))
    def need(s, *specs, names=()):
        regs = [x for sp in specs for x in regs_of(sp)]
        s.ins.append(Need(regs, names, s.tag))
    def label(s, base='L'):
        s._lab += 1; return f'{base}{s._lab}'
    def begin(s, tag, branch_text):
        assert s.tag is None
        s._end = s.label('SKIP')
        s(f'{branch_text} {s._end}')
        s.ins.append(('begin', tag)); s.tag = tag
    def end(s):
        s.ins.append(('end', s.tag)); s.tag = None
        s(f'{s._end}:')
    def do_waits(s):
        out = []
        ops = {'vm': [], 'lg': []}
        done = {'vm': set(), 'lg': set()}
        pend = {}
        named = {}
        smem_out = False
        snap = None
        MAXC = {'vm': 63, 'lg': 15}
        def count_after(c, idx, cur):
            x = ops[c][idx]
            return sum(1 for y in ops[c][idx+1:] if y.tag is None or y.tag == x.tag or y.tag == cur)
        def apply_wait(c, n, cur):
            for idx in range(len(ops[c])):
                if idx not in done[c] and count_after(c, idx, cur) >= n: done[c].add(idx)
        for it in s.ins:
            if isinstance(it, tuple):
                if it[0] == 'begin': snap = {c: set(done[c]) for c in done}; snap_smem = smem_out
                else:
                    for c in done: done[c] = snap[c] | {i for i in done[c] if ops[c][i].tag == it[1]}
                    smem_out = smem_out or snap_smem
                out.append(it); continue
            if it.kind == 'wait':
                m = re.search(r'vmcnt\((\d+)\)', it.text)
                if m: apply_wait('vm', int(m.group(1)), it.tag)
                m = re.search(r'lgkmcnt\((\d+)\)', it.text)
                if m:
                    n = int(m.group(1))
                    if n == 0: smem_out = False; apply_wait('lg', 0, it.tag)
                    elif not smem_out: apply_wait('lg', n, it.tag)
                out.append(it); continue
            req = {}
            def want(c, idx):
                if idx in done[c]: return
                n = min(count_after(c, idx, it.tag), MAXC[c])
                if c == 'lg' and smem_out: n = 0
                req[c] = min(req.get(c, 99), n)
            touched = list(it.r) + list(it.w)
            for rg in touched:
                if rg in pend:
                    c, idx = pend[rg]
                    if rg not in it.r and ((c == 'vm' and it.kind == 'vld') or (c == 'lg' and it.kind == 'dsr' and ops[c][idx].kind == 'dsr' and not smem_out)): continue
                    want(c, idx)
            if it.kind == 'need':
                for nm in it.need:
                    for (c, idx) in named.get(nm, []): want(c, idx)
            if req:
                txt = 's_waitcnt ' + ' '.join(f'{"vmcnt" if c == "vm" else "lgkmcnt"}({n})' for c, n in sorted(req.items(), reverse=True))
                out.append(I(txt, it.tag))
                for c, n in req.items():
                    apply_wait(c, n, it.tag)
                    if c == 'lg' and n == 0: smem_out = False
            if it.kind == 'need': continue
            c = {'vld': 'vm', 'vst': 'vm', 'dma': 'vm', 'dsr': 'lg', 'dsw': 'lg', 'smem': 'lg'}.get(it.kind)
            if c:
                ops[c].append(it); idx = len(ops[c]) - 1
                if it.kind == 'smem': smem_out = True
                for rg in it.w: pend[rg] = (c, idx)
                if it.name: named.setdefault(it.name, []).append((c, idx))
            out.append(it)
        s.ins = out
    def do_hazards(s):
        out = []
        def need_states(p, c):
            n = 0
            pw = set(p.w)
            if p.kind == 'valu':
                vw = {x for x in pw if x[0] != 's'}; sw = {x for x in pw if x[0] == 's'}
                isdot = p.op.startswith('v_dot2')
                if vw:
                    if c.kind == 'mfma' and vw & set(c.r): n = max(n, 3 if isdot else 2)
                    if c.kind == 'valu':
                        if vw & set(c.r):
                            if c.op.startswith('v_permlane') or c.dpp: n = max(n, 2)
                            if c.op.startswith(('v_readlane', 'v_readfirstlane')): n = max(n, 1)
                            if p.op.startswith(TRANS) and not c.op.startswith(TRANS): n = max(n, 1)
                        if isdot and c.op != p.op and vw & (set(c.r) | set(c.w)): n = max(n, 3)
                    if isdot and c.kind in ('vst', 'vld', 'dsw', 'dsr', 'dma') and vw & set(c.r): n = max(n, 3)
                if sw:
                    if c.kind == 'valu' and sw & set(c.r): n = max(n, 4 if c.op.startswith(('v_readlane', 'v_writelane')) else 2)
                    if c.kind in ('vld', 'vst', 'dma') and sw & set(c.r): n = max(n, 5)
            elif p.kind == 'mfma':
                base = {4: 8, 8: 12}[p.passes] if p.xdl else {8: 10}[p.passes]
                if c.kind == 'mfma':
                    if pw & set(c.ab): n = max(n, base)
                    if pw & set(c.c):
                        if p.w == c.c and p.op == c.op: pass
                        elif p.xdl: n = max(n, base - 2)
                        elif not c.xdl: n = max(n, 8)
                    elif pw & set(c.w) and not (p.w == c.w and p.op == c.op): n = max(n, base)
                elif c.kind in ('valu', 'vld', 'vst', 'dsr', 'dsw', 'dma'):
                    if pw & (set(c.r) | set(c.w)): n = max(n, base)
                    if c.kind == 'valu' and p.xdl and set(p.c) & set(c.w): n = max(n, p.passes - 1)
            elif p.kind == 'salu':
                if ('s', 'm0') in pw and (c.kind == 'dma' or c.op.startswith('v_writelane')): n = max(n, 1)
            elif p.kind == 'vst':
                if len(p.data) >= 3 and set(p.data) & set(c.w): n = max(n, 2 if c.kind in ('valu', 'mfma') else 1)
            return n
        for it in s.ins:
            if isinstance(it, tuple): continue
            if it.kind not in ('label', 'dir', 'nop', 'wait', 'barrier', 'branch'):
                pad = 0
                dist = {}
                acc_all = 0
                k = len(out) - 1
                back = []; tot = 0
                while k >= 0 and tot < 24:
                    y = out[k]; back.append(y); k -= 1
                    if y.tag is None or y.tag == it.tag: tot += y.states()
                for pi, p in enumerate(back):
                    if p.kind in ('valu', 'mfma', 'salu', 'vst'):
                        n = need_states(p, it)
                        if n:
                            d = sum(y.states() for y in back[:pi] if y.tag is None or y.tag == p.tag or y.tag == it.tag)
                            pad = max(pad, n - d)
                if pad > 0:
                    out.append(I(f's_nop {pad-1}', it.tag))
            out.append(it)
        s.ins = out
    def finish(s):
        s.do_waits(); s.do_hazards()
        hi = {'v': -1, 'a': -1, 's': -1}
        for it in s.ins:
            for (t, n) in list(it.r) + list(it.w):
                if isinstance(n, int): hi[t] = max(hi[t], n)
        assert hi['v'] < s.accum and s.accum + hi['a'] < s.vgpr and hi['s'] < s.sgpr, hi
        s.hi = hi
    def text(s):
        n = s.name
        out = [f'.globl {n}', '.p2align 8', f'.type {n},@function', f'{n}:']
        for it in s.ins:
            out.append(it.text if it.kind == 'label' else '    ' + it.text)
        return '\n'.join(out) + '\n'
    def desc(s):
        return f""".p2align 6
.amdhsa_kernel {s.name}
  .amdhsa_next_free_vgpr {s.vgpr}
  .amdhsa_next_free_sgpr {s.sgpr}
  .amdhsa_accum_offset {s.accum}
  .amdhsa_group_segment_fixed_size 0
  .amdhsa_kernarg_size 96
  .amdhsa_user_sgpr_count 2
  .amdhsa_user_sgpr_kernarg_segment_ptr 1
  .amdhsa_system_sgpr_workgroup_id_x 1
.end_amdhsa_kernel
"""

def slots(i):
    if i.kind == 'need': return 0
    if i.kind in ('salu', 'wait', 'nop', 'barrier'): return 0.5
    if i.kind == 'valu': return 2 if i.op.startswith(TRANS) or i.op.startswith('v_permlane') else 1
    if i.kind == 'dsr': return 1
    return 2


def deps(a, b):
    aw, ar, bw, br = set(a.w), set(a.r), set(b.w), set(b.r)
    if aw & (br | bw) or ar & bw: return True
    mem = ('vld', 'vst', 'dma', 'dsr', 'dsw', 'need', 'salu', 'wait')
    return a.kind in mem and b.kind in mem

def weave(k, mf, fixed=None, stream=None, window=24, tail=True):
    mk = lambda x: x if isinstance(x, I) else I(x)
    fixed = {g: [mk(x) for x in v] for g, v in (fixed or {}).items()}
    st = [(mk(x), e) for x, e in (stream or [])]
    for g, m in enumerate(mf):
        k(mk(m))
        cap = 2; free_scalar = 1; nvec = 0
        for x in fixed.get(g, []):
            c = slots(x)
            if c == 0:
                if nvec == 0 and free_scalar: free_scalar = 0
            elif c == 0.5:
                if nvec == 0 and free_scalar: free_scalar = 0
                else: cap -= 1
            else: cap -= c; nvec += 1
            k(x)
        last = None
        while st:
            cand = []
            for idx in range(min(window, len(st))):
                x, e = st[idx]
                if e > g: continue
                if any(deps(st[p][0], x) for p in range(idx)): continue
                c = slots(x)
                if c <= 0.5:
                    if nvec == 0 and free_scalar: cand.append((-1, idx)); break
                    c = 1 if c else 0
                    if x.kind == 'need' and nvec: continue
                if x.kind == 'dsr' and nvec: continue
                if c > cap: continue
                if last is not None and (x.op.startswith('v_permlane') or x.dpp) and set(last.w) & set(x.r): continue
                cand.append((0 if (c == 2) else 1, idx))
            if not cand: break
            cand.sort()
            idx = cand[0][1]
            x, e = st.pop(idx)
            c = slots(x)
            if c <= 0.5 and nvec == 0 and free_scalar: free_scalar = 0
            elif c <= 0.5: cap -= (1 if c else 0)
            else: cap -= c; nvec += 1
            k(x); last = x
            if cap <= 0: break
    if tail:
        for x, e in st: k(x)
        return len(st)
    return st
```

```python
import sys, struct
from asmx import *
from asmlib import build
o = dict(a.split('=') for a in sys.argv[2:])
STOP = o.get('stop', '')
STAMP = int(o.get('stamp', 0))
S, D, F = 2048, 640, 1728
def fl(x): return hex(struct.unpack('<I', struct.pack('<f', x))[0])
MBSZ = 256*4*128
PH = dict(W=0, D=1, Z0=2, X10=3, H0=4, X20=5, Z1=6, X11=7, H1=8)
WS_MB = 0
WS_TS = 11*MBSZ
WS_WUF = 2 << 20
WS_WDF = WS_WUF + 32*143360
WS_Z = [WS_WDF + 8*286720 + l*3145728 for l in range(2)]
WS_X1 = [WS_Z[1] + 3145728 + l*2621440 for l in range(2)]
WS_X2 = WS_X1[1] + 2621440
WS_ST = [WS_X2 + 2621440 + l*131072 for l in range(3)]
WS_H = [WS_ST[2] + 131072 + l*7340032 for l in range(2)]
WS_END = WS_H[1] + 7340032
L_XCH = 98816
L_B = L_XCH + 12288
L_Z = 137728
L_RED = 100352
L_CSP = 143360
L_CS = 163328
LDS = 163840
sW, sXCD, sQ, sJ, sCS, sCLS, sSIG, sGAM, sCSU, sMB = range(36, 46)
sXT, sST = 64, 65
R0 = 212; WT = 232
def V(a, n=4): return f'v[{a}:{a+n-1}]'
def wdreg(n): return f'a[{4*n}:{4*n+3}]' if n < 64 else V(WT + 4*(n-64))
MF = 'v_mfma_f32_16x16x32_bf16'
k = K(NAME + '_kernel')
nstamp = [0]; stampnames = []
def stamp(name):
    if not STAMP: return
    k('s_memrealtime s[62:63]'); k('s_waitcnt lgkmcnt(0)')
    k(f'v_writelane_b32 v11, s62, {nstamp[0]}'); nstamp[0] += 1; stampnames.append(name)
def finish():
    if STAMP:
        k(f's_lshl_b32 s48, s{sMB}, 1'); k(f's_add_u32 s48, s48, {WS_TS}')
        k('v_lshlrev_b32 v12, 2, v0')
        k('buffer_store_dword v11, v12, s[4:7], s48 offen')
    k('s_endpgm')
class Stop(Exception): pass
def stop(name):
    if STOP == name:
        k('s_waitcnt vmcnt(0) lgkmcnt(0)'); raise Stop()
def setexec(n, lo=0):
    m = ((1 << n) - 1) << lo
    k(f's_mov_b32 exec_lo, {hex(m & 0xffffffff)}'); k(f's_mov_b32 exec_hi, {hex(m >> 32)}')
def allexec(): k('s_mov_b64 exec, -1')
def vcls(d, s, t):
    k(f'v_lshrrev_b32 v{d}, 1, v{s}')
    k(f'v_sub_u32 v{t}, 32, v{d}')
    k(f'v_cmp_eq_u32 vcc, 1, v{s}')
    k(f'v_cndmask_b32 v{t}, v{t}, 16, vcc')
    k(f'v_and_b32 v{t+1}, 1, v{s}')
    k(f'v_cmp_eq_u32 vcc, 1, v{t+1}')
    k(f'v_cndmask_b32 v{d}, v{d}, v{t}, vcc')
def poll(ph, n, p=12):
    L = k.label('POLL'); X = k.label('POLLX')
    k(f's_add_u32 s69, s{sMB}, {WS_MB + PH[ph]*MBSZ}')
    k('s_mov_b32 s68, 0')
    setexec(n)
    k(f'{L}:')
    k(f'v_mov_b32 v{p}, 0'); k(f'v_mov_b32 v{p+1}, 0')
    k(f'buffer_atomic_or_x2 {V(p,2)}, v5, s[4:7], s69 offen sc0 sc1')
    k('s_add_u32 s68, s68, 1')
    k('s_waitcnt vmcnt(0)')
    k(f'v_cmp_ne_u64 vcc, s[46:47], {V(p,2)}')
    k(f's_cbranch_vccz {X}')
    k('s_cmp_lt_u32 s68, 30000')
    k(f's_cbranch_scc1 {L}')
    k(f'{X}:')
    allexec()
def signal(ph, n, va):
    k(f's_mov_b32 s69, {WS_MB + PH[ph]*MBSZ}')
    setexec(n)
    k(f'buffer_atomic_swap_x2 v[6:7], v{va}, s[4:7], s69 offen sc1')
    allexec()
def u_of_cs(d, cs, t):
    k(f'v_lshrrev_b32 v{d}, 2, v{cs}')
    k(f'v_and_b32 v{t}, 3, v{cs}')
    k(f'v_lshl_add_u32 v{d}, v{t}, 6, v{d}')
    k(f'v_lshlrev_b32 v{d}, 9, v{d}')

def prologue():
    k('s_cmp_ge_u32 s2, 256'); k('s_cbranch_scc1 END')
    k('s_getpc_b64 s[48:49]')
    k('PC0:')
    for s_, a in ((4, 'ws'), (8, 'x'), (12, 'out'), (16, 'wg'), (20, 'wu'), (24, 'wd'), (32, 'dbg')):
        k(f's_load_dwordx2 s[{s_}:{s_+1}], s[0:1], {KA[a]}')
    k(f's_load_dwordx4 s[28:31], s[0:1], {KA["hre"]}')
    k('s_memrealtime s[46:47]')
    k('v_lshrrev_b32 v3, 6, v0'); k('v_and_b32 v0, 63, v0')
    k(f'v_readfirstlane_b32 s{sW}, v3')
    for s_, n in ((4, 1 << 28), (8, S*D*2), (12, S*D*2), (16, D*F*2), (20, D*F*2), (24, D*F*2), (32, 256)):
        k(f's_mov_b32 s{s_+2}, {n}'); k(f's_mov_b32 s{s_+3}, 0x00020000')
    k(f"""
    v_lshlrev_b32 v1, 4, v0
    v_and_b32 v2, 15, v0
    v_lshrrev_b32 v3, 4, v0
    v_lshlrev_b32 v5, 3, v0
    v_mov_b32 v11, 0
    v_mov_b32 v18, 0
    s_and_b32 s{sXCD}, s2, 7
    s_lshr_b32 s{sQ}, s2, 6
    s_bfe_u32 s{sJ}, s2, 0x30003
    s_lshl_b32 s{sCS}, s{sXCD}, 2
    s_add_u32 s{sCS}, s{sCS}, s{sQ}
    s_lshr_b32 s{sCLS}, s{sCS}, 1
    s_sub_u32 s50, 32, s{sCLS}
    s_cmp_eq_u32 s{sCS}, 1
    s_cselect_b32 s50, 16, s50
    s_bitcmp1_b32 s{sCS}, 0
    s_cselect_b32 s{sCLS}, s50, s{sCLS}
    s_and_b32 s{sSIG}, s{sXCD}, 3
    s_lshl_b32 s{sSIG}, s{sSIG}, 3
    s_add_u32 s{sSIG}, s{sSIG}, s{sJ}
    s_and_b32 s{sGAM}, s{sXCD}, 4
    s_add_u32 s{sGAM}, s{sGAM}, s{sQ}
    s_lshl_b32 s{sCSU}, s{sGAM}, 2
    s_add_u32 s{sCSU}, s{sCSU}, s{sW}
    s_lshl_b32 s{sMB}, s2, 2
    s_add_u32 s{sMB}, s{sMB}, s{sW}
    s_lshl_b32 s{sMB}, s{sMB}, 7
    s_lshl_b32 s50, s{sCS}, 2
    s_add_u32 s50, s50, s{sW}
    s_mul_i32 s{sXT}, s50, 20480
    s_lshl_b32 s{sST}, s50, 10
    s_mov_b32 s66, -1
    s_mov_b32 s67, 0
    """)
    k(f"""
    s_lshr_b32 s50, s2, 3
    s_lshl_b32 s50, s50, 2
    s_add_u32 s50, s50, s{sW}
    s_lshl_b32 s50, s50, 9
    v_and_b32 v12, 3, v0
    v_lshlrev_b32 v12, 7, v12
    v_add_u32 v12, s50, v12
    v_min_u32 v12, CODE_END-PC0-4, v12
    global_load_dword v13, v12, s[48:49]
    """)
    k(f"""
    s_mul_i32 s50, s{sJ}, 1280
    s_add_u32 s51, s50, 1024
    s_sub_u32 s52, {79*256}, s50
    v_mov_b32 v12, s51
    v_mov_b32 v14, s52
    v_cndmask_b32 v4, v14, v12, s[66:67]
    v_and_b32 v12, 1, v3
    v_lshl_add_u32 v4, v12, 3, v4
    v_lshl_add_u32 v4, v2, 4, v4
    """)
    k('s_waitcnt lgkmcnt(0)')
    if STAMP:
        k('v_writelane_b32 v11, s46, 0'); nstamp[0] = 1; stampnames.append('start')
    k(f's_cmp_lg_u32 s{sMB}, 0')
    k.begin('n', 's_cbranch_scc1')
    k('s_bitset1_b32 s47, 31')
    k('v_mov_b32 v6, s46'); k('v_mov_b32 v7, s47')
    setexec(1)
    k('buffer_atomic_swap_x2 v[6:7], v5, s[32:35], 0 offen sc1')
    allexec()
    k.end()

def nat_addr(a01, a23, a4, t):
    k(f"""
    s_lshr_b32 s50, s{sW}, 1
    s_lshl_b32 s50, s50, 5
    s_and_b32 s51, s{sW}, 1
    s_lshl_b32 s51, s51, 10
    s_add_u32 s50, s50, s51
    s_add_u32 s50, s50, s{sCLS}
    v_lshl_add_u32 v{t}, v2, 6, s50
    v_mul_u32_u24 v{t}, 1280, v{t}
    s_mul_i32 s50, s{sJ}, 80
    s_sub_u32 s51, 1200, s50
    v_lshl_add_u32 v{a4}, v3, 4, v{t}
    v_add_u32 v{a01}, s50, v{a4}
    v_add_u32 v{a23}, s51, v{a4}
    s_add_u32 s50, s50, 64
    s_add_u32 s51, s51, 48
    v_mov_b32 v{t+1}, s50
    v_mov_b32 v{t+2}, s51
    v_cndmask_b32 v{a4}, v{t+2}, v{t+1}, s[66:67]
    v_lshl_add_u32 v{a4}, v3, 3, v{a4}
    v_add_u32 v{a4}, v{a4}, v{t}
    """)

A0 = 132; P0 = 88; P1 = 108; P5 = 128; BR = 72; B5 = 68; M2 = 52
def d1_load_B():
    def addr(d, e, t, zero_dc=True):
        k(f'v_and_b32 v{t}, 2, v0')
        k(f'v_cmp_ne_u32 vcc, 0, v{t}')
        if zero_dc:
            k(f'v_cmp_eq_u32 s[50:51], 0, v{e}')
            k('s_or_b64 vcc, vcc, s[50:51]')
        k(f'v_mov_b32 v{d}, s28'); k(f'v_mov_b32 v{d+1}, s29')
        k(f'v_mov_b32 v{t}, s30'); k(f'v_mov_b32 v{t+1}, s31')
        k(f'v_cndmask_b32 v{d}, v{d}, v{t}, vcc'); k(f'v_cndmask_b32 v{d+1}, v{d+1}, v{t+1}, vcc')
        k(f'v_mul_u32_u24 v{t}, 1280, v{e}')
        k(f'v_lshl_add_u32 v{t}, v3, 4, v{t}')
        k(f'v_add_co_u32 v{d}, vcc, v{d}, v{t}')
        k(f'v_addc_co_u32 v{d+1}, vcc, 0, v{d+1}, vcc')
    k(f"""
    s_mul_i32 s52, s{sJ}, 40
    s_lshr_b32 s53, s{sW}, 1
    s_lshl_b32 s53, s53, 4
    s_and_b32 s54, s{sW}, 1
    s_lshl_b32 s55, s54, 1
    s_add_u32 s53, s53, s55
    s_add_u32 s53, s53, s52
    v_and_b32 v20, 1, v0
    v_and_b32 v21, 12, v0
    v_add3_u32 v22, v20, v21, s53
    """)
    addr(14, 22, 24)
    k(f's_lshl_b32 s56, s{sW}, 10'); k(f's_add_u32 s56, s56, {L_B}')
    for ks in range(10):
        k(f's_add_u32 m0, s56, {ks*5120 - ks*64}')
        k(f'global_load_lds_dwordx4 v[14:15], off offset:{ks*64}', name='B')
    k('s_add_u32 s53, s52, 32')
    k('v_lshrrev_b32 v21, 1, v21'); k('v_add3_u32 v22, v20, v21, s53')
    addr(16, 22, 24)
    k(f's_lshl_b32 s56, s{sW}, 7')
    k('v_add_co_u32 v14, vcc, s56, v16'); k('v_addc_co_u32 v15, vcc, 0, v17, vcc')
    k(f's_mul_i32 s56, s{sW}, 10240'); k(f's_add_u32 m0, s56, {L_B + 4096}')
    k('global_load_lds_dwordx4 v[14:15], off', name='B')
    k(f's_add_u32 m0, s56, {L_B + 4096 + 5120 - 64}')
    k('global_load_lds_dwordx4 v[14:15], off offset:64', name='B')
    k('s_lshl_b32 s56, s54, 6')
    k('v_add_co_u32 v14, vcc, s56, v16'); k('v_addc_co_u32 v15, vcc, 0, v17, vcc')
    k('s_mul_i32 s56, s54, 5120'); k(f's_add_u32 m0, s56, {L_B + 4096 + 8*5120 - 512}')
    k('global_load_lds_dwordx4 v[14:15], off offset:512', name='B')
    k('s_add_u32 s53, s52, 40')
    k('v_sub_u32 v22, 1, v20'); k('v_mul_u32_u24 v22, s53, v22')
    addr(16, 22, 24, zero_dc=False)
    k(f'global_load_dwordx4 {V(B5)}, v[16:17], off')

def d1_gen_M2():
    k(f's_lshl_b32 s50, s{sW}, 3')
    k('v_lshrrev_b32 v20, 1, v2'); k('v_add_u32 v20, s50, v20')
    vcls(21, 20, 22)
    k('v_and_b32 v20, 1, v0'); k('v_lshl_add_u32 v21, v20, 5, v21')
    k(f'v_lshl_add_u32 v22, v3, 8, s{sCLS}')
    k('v_mul_u32_u24 v22, v21, v22')
    k('v_cvt_f32_u32 v22, v22'); k('v_cvt_f32_u32 v21, v21')
    k(f'v_mul_f32 v22, {fl(1/2048)}, v22'); k(f'v_mul_f32 v21, {fl(1/64)}, v21')
    for kap in range(2):
        for jp in range(4):
            for h in range(2):
                jj = 2*jp + h
                mult = kap + 2*(16*(jj >> 2) + (jj & 3))
                k(f's_mov_b32 s50, {fl(float(mult))}')
                k(f'v_fma_f32 v{23+h}, v21, s50, v22')
                k(f'v_fract_f32 v{23+h}, v{23+h}')
                k(f'v_cos_f32 v{25+h}, v{23+h}'); k(f'v_sin_f32 v{27+h}, v{23+h}')
            k(f'v_cvt_pk_bf16_f32 v{M2 + 4*kap + jp}, v25, v26')
            k(f'v_cvt_pk_bf16_f32 v{M2 + 8 + 4*kap + jp}, v27, v28')

def load_stats4(d, base_const, sreg):
    k(f's_add_u32 s50, s{sreg}, {base_const}')
    k('v_lshlrev_b32 v19, 2, v0')
    for n in range(4): k(f'buffer_load_dword v{d+n}, v19, s[4:7], s50 offen offset:{256*n} sc1')

def d1_body(l):
    k(f'v_add_u32 v8, {L_B}, v1')
    k.need(names=['B']); k('s_barrier')
    stamp(f'd1b_{l}')
    S1, S2 = 40, 44
    if l == 0:
        for r in (30, 31): k(f'v_mov_b32 v{r}, 0')
        for n in range(80): k(f'v_dot2c_f32_bf16 v{30 + (n & 1)}, v{A0+n}, v{A0+n}')
        k('v_add_f32 v30, v30, v31'); k('v_mov_b32 v31, 1.0')
        k(f'v_mfma_f32_16x16x4_f32 {V(S2)}, v30, v31, 0')
    else:
        k('v_add_f32 v32, v32, v33'); k('v_add_f32 v34, v34, v35'); k('v_add_f32 v32, v32, v34')
        k('v_and_b32 v30, 1, v3'); k('v_cvt_f32_u32 v30, v30'); k('v_sub_f32 v31, 1.0, v30')
        k(f'v_mfma_f32_16x16x4_f32 {V(S1)}, v32, v31, 0')
        k(f'v_mfma_f32_16x16x4_f32 {V(S2)}, v32, v30, 0')
    rd = lambda n: f'ds_read_b128 {V(BR + 4*(n % 4))}, v8 offset:{n*1024}'
    for n in range(3): k(rd(n))
    mf = []; fixed = {}
    for ks in range(10):
        a0, a1 = V(A0 + 8*ks), V(A0 + 8*ks + 4)
        mf.append(f'{MF} {V(P5)}, {a0}, {V(B5)}, {V(P5) if ks else 0}')
        mf.append(f'{MF} {V(P5)}, {a1}, {V(B5)}, {V(P5)}')
        for T in range(5):
            n = ks*5 + T; b = V(BR + 4*(n % 4))
            fixed.setdefault(len(mf)-1, []).insert(0, Need(rr(b)))
            if n + 3 < 50: fixed.setdefault(len(mf), []).append(rd(n+3))
            mf.append(f'{MF} {V(P0+4*T)}, {a0}, {b}, {V(P0+4*T) if ks else 0}')
            mf.append(f'{MF} {V(P1+4*T)}, {a1}, {b}, {V(P1+4*T) if ks else 0}')
        if ks < 9: fixed.setdefault(len(mf)-2, []).insert(0, Need(rr(V(A0 + 8*ks + 8, 8))))
    st = []
    def stats_ops(e):
        for r in range(4):
            if l == 0: st.append((f'v_mov_b32_dpp v{S1+r}, v{P5+r} quad_perm:[1,1,1,1] row_mask:0xf bank_mask:0xf', e))
            st.append((f'v_mul_f32 v{S1+r}, {fl(1/640)}, v{S1+r}', e))
            st.append((f'v_mul_f32 v{S2+r}, {fl(1/640)}, v{S2+r}', e))
            st.append((f'v_fma_f32 v{S2+r}, -v{S1+r}, v{S1+r}, v{S2+r}', e))
            st.append((f'v_max_f32 v{S2+r}, 0, v{S2+r}', e))
            st.append((f'v_add_f32 v{S2+r}, {fl(1e-5)}, v{S2+r}', e))
            st.append((f'v_rsq_f32 v{S2+r}, v{S2+r}', e))
    st.append(('v_and_b32 v30, 1, v0', 8)); st.append(('v_cvt_f32_u32 v30, v30', 8)); st.append(('v_fma_f32 v30, v30, -2.0, 1.0', 8))
    st.append((f's_and_b32 s50, s{sW}, 1', 8)); st.append(('s_lshl_b32 s50, s50, 3', 8))
    st.append((f's_lshr_b32 s51, s{sW}, 1', 8)); st.append(('s_lshl_b32 s51, s51, 10', 8))
    st.append(('s_add_u32 s50, s50, s51', 8)); st.append((f's_add_u32 s50, s50, {L_XCH}', 8))
    st.append(('v_add_u32 v9, s50, v1', 8)); st.append((f'v_add_u32 v10, {L_XCH}, v1', 8))
    stats_ops(114 if l == 0 else 10)
    weave(k, mf, fixed, st)
    for T in (5, 0, 1, 2, 3, 4):
        p = P0 + 4*T if T < 5 else P5
        for r in range(4):
            if T < 5: k(f'v_fmac_f32 v{p+r}, v30, v{P1+4*T+r}')
        for r in range(4): k(f'v_mul_f32 v{p+r}, v{p+r}, v{S2+r}')
        k(f'v_cvt_pk_bf16_f32 v{p}, v{p}, v{p+1}'); k(f'v_cvt_pk_bf16_f32 v{p+1}, v{p+2}, v{p+3}')
        k(f'ds_write_b64 v9, {V(p,2)} offset:{T*2048}')
    k('s_waitcnt lgkmcnt(0)'); k('s_barrier')
    stamp(f'd1x_{l}')
    FR = A0; AC = 84
    for n in range(12): k(f'ds_read_b128 {V(FR+4*n)}, v10 offset:{n*1024}')
    k(f's_lshl_b32 s50, s{sCS}, 3'); k(f's_add_u32 s50, s50, s{sJ}'); k('s_mul_i32 s50, s50, 12288')
    k(f's_lshl_b32 s51, s{sW}, 10'); k('s_add_u32 s50, s50, s51'); k(f's_add_u32 s70, s50, {WS_Z[l]}')
    k('v_lshlrev_b32 v12, 6, v2'); k('v_lshl_add_u32 v12, v3, 4, v12')
    mf = []; st = []
    for T in range(6):
        t1, t2 = AC + 8*T, AC + 8*T + 4
        for kap in range(2):
            f = V(FR + 4*(2*T + kap))
            mf.append(f'{MF} {V(t1)}, {f}, {V(M2+4*kap)}, {V(t1) if kap else 0}')
            mf.append(f'{MF} {V(t2)}, {f}, {V(M2+8+4*kap)}, {V(t2) if kap else 0}')
        e = len(mf) + 3
        dst = 16 + 4*(T >> 1) + 2*(T & 1)
        for rp in range(2):
            st.append((f'v_add_f32 v{t1+rp}, v{t1+rp}, v{t2+2+rp}', e))
            st.append((f'v_sub_f32 v{t1+2+rp}, v{t1+2+rp}, v{t2+rp}', e))
        for rp in range(2): st.append((f'v_cvt_pk_bf16_f32 v{dst+rp}, v{t1+rp}, v{t1+2+rp}', e))
        if T & 1:
            st.append((f'buffer_store_dwordx4 {V(16 + 4*(T>>1))}, v12, s[4:7], s70 offen sc1', e))
            st.append(('s_add_u32 s70, s70, 4096', e))
    weave(k, mf, {}, st)
    k(f's_lshl_b32 s50, s{sW}, 3'); k('v_add_u32 v13, s50, v0')
    u_of_cs(14, 13, 15)
    k(f's_lshl_b32 s50, s{sJ}, 12'); k(f's_lshr_b32 s51, s{sCS}, 3'); k('s_lshl_b32 s51, s51, 7'); k('s_add_u32 s50, s50, s51')
    k(f's_and_b32 s51, s{sCS}, 7'); k('s_lshl_b32 s51, s51, 3'); k('s_add_u32 s50, s50, s51')
    k('v_add_u32 v14, s50, v14')
    k('s_waitcnt vmcnt(0)')
    signal(f'Z{l}', 8, 14)
    stamp(f'd1e_{l}')

def get_nonce():
    L = k.label('NON'); X = k.label('NONX')
    k('s_mov_b32 s68, 0'); k('v_mov_b32 v12, 0')
    k(f'{L}:')
    k('buffer_load_dwordx2 v[6:7], v12, s[32:35], 0 offen sc1')
    k('s_add_u32 s68, s68, 1')
    k('s_waitcnt vmcnt(0)')
    k('v_readfirstlane_b32 s46, v6'); k('v_readfirstlane_b32 s47, v7')
    k('s_cmp_lg_u32 s47, 0'); k(f's_cbranch_scc1 {X}')
    k('s_cmp_lt_u32 s68, 30000'); k(f's_cbranch_scc1 {L}')
    k(f'{X}:')

def prepass_issue():
    k('s_cmp_ge_u32 s2, 160')
    k.begin('pw', 's_cbranch_scc1')
    k(f"""
    v_mul_u32_u24 v20, 9363, v0
    v_lshrrev_b32 v20, 16, v20
    v_mul_u32_u24 v21, 7, v20
    v_sub_u32 v21, v0, v21
    v_mul_u32_u24 v20, 3456, v20
    v_lshl_add_u32 v20, v21, 4, v20
    s_lshr_b32 s72, s2, 3
    s_lshl_b32 s73, s{sXCD}, 2
    s_add_u32 s73, s73, s{sW}
    s_mul_i32 s50, s72, {32*3456}
    s_mul_i32 s51, s73, 112
    s_add_u32 s50, s50, s51
    s_mul_i32 s51, s{sW}, 7168
    """)
    setexec(56)
    for oc in range(4):
        for mat in range(2):
            k(f's_add_u32 m0, s51, {mat*3584 + oc*896}')
            k(f'buffer_load_dwordx4 v20, s[{16+4*mat}:{19+4*mat}], s50 offen lds')
        k(f's_add_u32 s50, s50, {8*3456}')
    allexec()
    k.end()
    k('s_sub_u32 s74, s2, 160'); k('s_cmp_ge_u32 s74, 56')
    k.begin('pd', 's_cbranch_scc1')
    k(f"""
    v_mul_u32_u24 v20, 3277, v0
    v_lshrrev_b32 v20, 16, v20
    v_mul_u32_u24 v21, 20, v20
    v_sub_u32 v21, v0, v21
    v_mul_u32_u24 v20, 1280, v20
    v_lshl_add_u32 v20, v21, 4, v20
    s_mul_i32 s50, s{sW}, 160
    s_sub_u32 s51, {1120-160}, s50
    v_cmp_gt_u32 vcc, 10, v21
    v_mov_b32 v22, s50
    v_mov_b32 v23, s51
    v_cndmask_b32 v22, v23, v22, vcc
    v_add_u32 v20, v20, v22
    s_mul_i32 s50, s74, {32*1280}
    s_mul_i32 s51, s{sW}, 10560
    """)
    setexec(60)
    for n in range(11):
        k(f's_add_u32 m0, s51, {n*960}')
        k('buffer_load_dwordx4 v20, s[24:27], s50 offen lds')
        k(f's_add_u32 s50, s50, {3*1280}')
    allexec()
    k.end()

def prepass_process():
    T0 = 88
    k('v_bfe_u32 v20, v0, 2, 2'); k('v_lshl_add_u32 v20, v3, 3, v20')
    k('v_and_b32 v21, 3, v0'); k('v_and_b32 v22, 1, v0'); k('v_bfe_u32 v23, v0, 1, 1')
    k('s_cmp_ge_u32 s2, 160')
    k.begin('pw', 's_cbranch_scc1')
    k(f"""
    s_mul_i32 s51, s{sW}, 7168
    v_mul_u32_u24 v24, 112, v20
    v_add_u32 v24, s51, v24
    v_lshl_add_u32 v25, v21, 4, v24
    v_lshl_add_u32 v26, v22, 4, v24
    v_lshl_add_u32 v26, v23, 3, v26
    v_mul_u32_u24 v27, 3584, v23
    v_lshl_add_u32 v27, v22, 3, v27
    v_add_u32 v27, v27, v24
    s_mul_i32 s50, s73, 143360
    s_mul_i32 s51, s72, 7168
    s_add_u32 s50, s50, s51
    s_add_u32 s50, s50, {WS_WUF}
    s_add_u32 s51, s50, 4096
    """)
    for T in range(7):
        a, off = (25, (T >> 1)*3584 + 8*(T & 1)) if T < 4 else ((26, (T-4)*3584 + 64) if T < 6 else (27, 96))
        for h in range(2): k(f'ds_read_b64_tr_b16 {V(T0+4*T+2*h, 2)}, v{a} offset:{off + h*448}')
    for T in range(7):
        k(f'buffer_store_dwordx4 {V(T0+4*T)}, v1, s[4:7], s{50 + (T >> 2)} offen offset:{(T & 3)*1024} sc1')
    k(f"""
    v_and_b32 v24, 4, v0
    v_and_b32 v25, 3, v0
    v_lshl_add_u32 v24, v25, 6, v24
    s_lshr_b32 s50, s73, 3
    s_and_b32 s51, s73, 7
    s_lshl_b32 s51, s51, 3
    s_add_u32 s50, s50, s51
    s_lshl_b32 s50, s50, 9
    s_mul_i32 s51, s72, 52429
    s_lshr_b32 s51, s51, 18
    s_mul_i32 s52, s51, 5
    s_sub_u32 s52, s72, s52
    s_lshl_b32 s51, s51, 7
    s_lshl_b32 s52, s52, 3
    s_add_u32 s50, s50, s51
    s_add_u32 s50, s50, s52
    v_lshl_add_u32 v18, v24, 9, s50
    """)
    k.end()
    k('s_cmp_ge_u32 s74, 56')
    k.begin('pd', 's_cbranch_scc1')
    k(f"""
    s_mul_i32 s51, s{sW}, 10560
    v_mul_u32_u24 v24, 320, v20
    v_add_u32 v24, s51, v24
    v_lshl_add_u32 v25, v21, 4, v24
    v_lshl_add_u32 v24, v22, 3, v24
    v_mul_u32_u24 v26, 240, v23
    v_add_u32 v26, v26, v24
    v_mul_u32_u24 v27, 80, v23
    v_add_u32 v27, v27, v24
    s_mul_i32 s50, s{sW}, {2*286720}
    s_mul_i32 s51, s74, 5120
    s_add_u32 s50, s50, s51
    s_add_u32 s50, s50, {WS_WDF}
    s_add_u32 s51, s50, 4096
    s_add_u32 s52, s50, 286720
    s_add_u32 s53, s52, 4096
    """)
    for jj in range(2):
        for T in range(5):
            if T < 2: a, off = 25, jj*80 + 8*T
            elif T < 4: a, off = 25, 160 + (1-jj)*80 + 8*(T-2)
            else: a, off = (26, 64) if jj == 0 else (27, 80 + 64)
            for h in range(2): k(f'ds_read_b64_tr_b16 {V(T0+4*(5*jj+T)+2*h, 2)}, v{a} offset:{off + h*1280}')
    for jj in range(2):
        for T in range(5):
            k(f'buffer_store_dwordx4 {V(T0+4*(5*jj+T))}, v1, s[4:7], s{50 + 2*jj + (T >> 2)} offen offset:{(T & 3)*1024} sc1')
    k('v_and_b32 v24, 31, v0')
    u_of_cs(18, 24, 25)
    k(f"""
    v_lshrrev_b32 v24, 5, v0
    v_lshl_add_u32 v18, v24, 12, v18
    s_lshl_b32 s50, s{sW}, 13
    s_mul_i32 s51, s74, 4682
    s_lshr_b32 s51, s51, 16
    s_mul_i32 s52, s51, 14
    s_sub_u32 s52, s74, s52
    s_lshl_b32 s51, s51, 7
    s_lshl_b32 s52, s52, 3
    s_add_u32 s50, s50, s51
    s_add_u32 s50, s50, s52
    v_add_u32 v18, s50, v18
    """)
    k.end()
def prepass_signal():
    k('s_cmp_ge_u32 s2, 160')
    k.begin('pw', 's_cbranch_scc1'); signal('W', 8, 18); k.end()
    k('s_cmp_ge_u32 s74, 56')
    k.begin('pd', 's_cbranch_scc1'); signal('D', 64, 18); k.end()

def publish(xbase, stbase, pk):
    for n in range(5):
        k(f'v_cvt_pk_bf16_f32 v{pk+2*n}, v{R0+4*n}, v{R0+4*n+1}'); k(f'v_cvt_pk_bf16_f32 v{pk+2*n+1}, v{R0+4*n+2}, v{R0+4*n+3}')
        if n == 0:
            k(f's_add_u32 s50, s{sXT}, {xbase}'); k(f's_mul_i32 s51, s{sJ}, 1280')
            k('s_add_u32 s52, s50, s51'); k('s_sub_u32 s53, s50, s51'); k(f's_add_u32 s53, s53, {75*256}')
        if n == 1: k(f'buffer_store_dwordx4 {V(pk)}, v1, s[4:7], s52 offen sc1')
        if n == 3: k(f'buffer_store_dwordx4 {V(pk+4)}, v1, s[4:7], s53 offen sc1')
    k(f'buffer_store_dwordx2 {V(pk+8,2)}, v4, s[4:7], s50 offen sc1')
    a = pk + 12
    k(f'v_add_f32 v{a}, v{R0}, v{R0+1}'); k(f'v_mul_f32 v{a+1}, v{R0}, v{R0}'); k(f'v_fmac_f32 v{a+1}, v{R0+1}, v{R0+1}')
    for n in range(2, 20):
        k(f'v_add_f32 v{a}, v{a}, v{R0+n}'); k(f'v_fmac_f32 v{a+1}, v{R0+n}, v{R0+n}')
    k(f's_lshl_b32 s51, s{sJ}, 7'); k(f's_add_u32 s51, s51, s{sST}'); k(f's_add_u32 s51, s51, {stbase - 64}')
    k(f'v_lshlrev_b32 v{a+2}, 2, v0')
    k(f'v_permlane32_swap_b32 v{a}, v{a+1}')
    k(f'v_add_f32 v{a}, v{a}, v{a+1}'); k(f'v_mov_b32 v{a+1}, v{a}')
    k(f'v_permlane16_swap_b32 v{a}, v{a+1}')
    k(f'v_add_f32 v{a}, v{a}, v{a+1}')
    setexec(32, 16)
    k(f'buffer_store_dword v{a}, v{a+2}, s[4:7], s51 offen sc1')
    allexec()

def d2(l):
    ML, MU, FR, AD = 40, 48, 60, 30
    k(f's_and_b32 s50, s{sW}, 1'); k('s_lshl_b32 s50, s50, 4'); k('v_add_u32 v20, s50, v2')
    k(f's_lshr_b32 s54, s{sW}, 1')
    k(f's_or_b32 s51, s54, s{sCLS}'); k('s_cmp_eq_u32 s51, 0'); k('s_cselect_b32 s51, 32, 31')
    k('v_sub_u32 v21, s51, v20')
    k('v_cvt_f32_u32 v20, v20'); k('v_cvt_f32_u32 v21, v21')
    k(f'v_mul_f32 v20, {fl(1/32)}, v20'); k(f'v_mul_f32 v21, {fl(1/32)}, v21')
    for kap in range(2):
        for jj in range(4):
            k(f'v_lshl_add_u32 v22, v3, 2, {16*kap + jj}')
            vcls(23, 22, 24)
            k('v_cvt_f32_u32 v23, v23')
            for (src, dst) in ((20, ML), (21, MU)):
                k(f'v_mul_f32 v24, v{src}, v23'); k('v_fract_f32 v24, v24')
                k('v_cos_f32 v25, v24'); k('v_sin_f32 v26, v24')
                k(f'v_cvt_pk_bf16_f32 v{dst + 4*kap + jj}, v25, v26')
    k(f"""
    s_and_b32 s50, s{sCS}, 1
    s_xor_b32 s51, s50, 1
    s_cmp_lt_u32 s{sCS}, 2
    s_cselect_b32 s51, s50, s51
    s_xor_b32 s52, s54, 1
    s_cmp_eq_u32 s{sCS}, 0
    s_cselect_b32 s52, s54, s52
    s_lshl_b32 s50, s50, 3
    s_lshl_b32 s55, s54, 2
    s_add_u32 s50, s50, s55
    s_lshl_b32 s51, s51, 3
    s_lshl_b32 s52, s52, 2
    s_add_u32 s51, s51, s52
    v_lshrrev_b32 v22, 1, v3
    v_mul_u32_u24 v22, 6144, v22
    v_and_b32 v23, 1, v3
    v_lshl_add_u32 v22, v23, 10, v22
    v_add_u32 v22, {L_Z}, v22
    v_lshlrev_b32 v23, 2, v23
    v_and_b32 v24, 3, v2
    v_lshrrev_b32 v25, 2, v2
    """)
    for T in range(5):
        if T < 2:   k(f'v_lshl_add_u32 v26, v25, 3, {4*T}'); k('v_add_u32 v26, v26, v24'); k('v_mov_b32 v27, s50')
        elif T < 4: k(f'v_lshl_add_u32 v26, v25, 3, v24'); k(f'v_sub_u32 v26, {40 - 4*(T-2)}, v26'); k('v_mov_b32 v27, s51')
        else:
            k('v_add_u32 v26, 32, v2'); k('v_sub_u32 v28, 16, v2'); k('v_cmp_gt_u32 vcc, 8, v2')
            k('v_mov_b32 v27, s50'); k('v_mov_b32 v29, s51')
            k('v_cndmask_b32 v26, v28, v26, vcc'); k('v_cndmask_b32 v27, v29, v27, vcc')
        k('v_subrev_u32 v28, 32, v26'); k('v_and_b32 v29, 6, v28'); k('v_add_u32 v29, v29, v26')
        k('v_cmp_gt_u32 vcc, 32, v26'); k('v_cndmask_b32 v29, v29, v26, vcc')
        k('v_cmp_eq_u32 vcc, 40, v26'); k('v_cndmask_b32 v29, v29, 34, vcc')
        k('v_lshrrev_b32 v26, 4, v29')
        k('v_bfe_u32 v28, v29, 2, 2'); k('v_add_u32 v28, v28, v27')
        k('v_and_b32 v27, 1, v26'); k('v_xor_b32 v28, v28, v27'); k('v_xor_b32 v28, v28, v23')
        k('v_and_b32 v29, 3, v29'); k('v_lshl_add_u32 v29, v28, 2, v29')
        k(f'v_lshl_add_u32 v{AD+T}, v26, 11, v22'); k(f'v_lshl_add_u32 v{AD+T}, v29, 2, v{AD+T}')
    k(f"""
    v_mul_u32_u24 v22, {8*12288}, v3
    s_mul_i32 s50, s{sW}, {64*12288}
    s_mul_i32 s51, s{sJ}, 12288
    s_add_u32 s50, s50, s51
    s_lshr_b32 s51, s{sCS}, 1
    s_lshl_b32 s51, s51, 8
    s_add_u32 s50, s50, s51
    s_add_u32 s70, s50, {WS_Z[l]}
    s_mul_i32 s71, s{sW}, 6144
    """)
    for n, x in enumerate((0, 4, 1, 5)):
        k(f'v_xor_b32 v23, {x}, v2'); k(f'v_lshl_add_u32 v{24+n}, v23, 4, v22')
    poll(f'Z{l}', 8)
    stamp(f'd2p_{l}')
    for p in range(3):
        for hh in range(2):
            k(f's_add_u32 m0, s71, {L_Z + p*2048 + hh*1024}')
            k(f's_add_u32 s50, s70, {p*4096 + hh*4*8*12288}')
            k(f'buffer_load_dwordx4 v{24 + 2*(p & 1) + hh}, s[4:7], s50 offen sc1 lds')
    k('s_waitcnt vmcnt(0)'); k('s_barrier')
    stamp(f'd2l_{l}')
    order = [(4, 0), (4, 1)] + [(T, kap) for T in range(4) for kap in range(2)]
    for n, (T, kap) in enumerate(order):
        for h in range(2):
            k(f'ds_read2st64_b32 {V(FR+4*n+2*h, 2)}, v{AD+T} offset0:{48*kap + 2*h} offset1:{48*kap + 2*h + 1}')
    r4 = V(R0+16)
    k(f'{MF} {V(56)}, {V(FR)}, {V(ML)}, {r4}')
    k(f'{MF} {r4}, {V(FR)}, {V(MU)}, {r4}')
    k(f'{MF} {V(56)}, {V(FR+4)}, {V(ML+4)}, {V(56)}')
    k(f'{MF} {r4}, {V(FR+4)}, {V(MU+4)}, {r4}')
    for n, (T, kap) in enumerate(order):
        if T < 4: k(f'{MF} {V(R0+4*T)}, {V(FR+4*n)}, {V((ML if T < 2 else MU) + 4*kap)}, {V(R0+4*T)}')
    for r in range(4): k(f'v_cndmask_b32 v{R0+16+r}, v{R0+16+r}, v{56+r}, s[66:67]')
    publish(WS_X1[l], WS_ST[l], 12)
    k(f"""
    v_lshrrev_b32 v30, 3, v0
    v_and_b32 v31, 7, v0
    v_lshl_add_u32 v30, v31, 3, v30
    s_and_b32 s50, s{sXCD}, 4
    s_and_b32 s51, s{sXCD}, 3
    s_lshl_b32 s51, s51, 6
    s_add_u32 s50, s50, s51
    s_lshl_b32 s50, s50, 9
    s_lshl_b32 s51, s{sQ}, 7
    s_add_u32 s50, s50, s51
    s_lshl_b32 s51, s{sJ}, 3
    s_add_u32 s50, s50, s51
    v_lshl_add_u32 v30, v30, 9, s50
    """)
    k('s_waitcnt vmcnt(0)'); k('s_barrier')
    k(f's_cmp_lg_u32 s{sW}, 0')
    k.begin('w0', 's_cbranch_scc1'); signal(f'X1{l}', 32, 30); k.end()
    stamp(f'd2e_{l}')

def load_weights(l):
    k(f's_mul_i32 s50, s{sSIG}, 143360'); k(f's_add_u32 s50, s50, {WS_WUF}')
    if l == 0:
        poll('W', 5)
        k(f's_mul_i32 s51, s{sW}, {5*7168}'); k('s_add_u32 s50, s50, s51')
        for n in range(35):
            if n % 4 == 0:
                k(f's_add_u32 m0, s51, {n*1024}'); k(f's_add_u32 s52, s50, {n*1024}')
            k(f'buffer_load_dwordx4 v1, s[4:7], s52 offen offset:{(n % 4)*1024} sc1 lds', name='WU')
        poll('D', 14)
        k(f's_mul_i32 s50, s{sJ}, 286720'); k(f's_mul_i32 s52, s{sW}, {70*1024}'); k('s_add_u32 s50, s50, s52'); k(f's_add_u32 s50, s50, {WS_WDF}')
        for n in range(70):
            k(f'buffer_load_dwordx4 {wdreg(n)}, v1, s[4:7], s50 offen offset:{(n % 4)*1024} sc1')
            if n % 4 == 3: k('s_add_u32 s50, s50, 4096')
        k('v_add_u32 v8, s51, v1')
        for r in range(4): k(f'v_mov_b32 v{20+r}, 0x3f803f80')
        for n in range(35):
            T = n % 7
            k(f'ds_read_b128 {V(60+4*n)}, v8 offset:{n*1024}')
        for n in range(35):
            T = n % 7
            k(f'{MF} {V(24+4*T)}, {V(20)}, {V(60+4*n)}, {V(24+4*T) if n >= 7 else 0}')
        k(f's_mul_i32 s50, s{sW}, 448'); k(f's_add_u32 s50, s50, {L_CSP}')
        k('v_lshl_add_u32 v12, v2, 2, s50')
        for T in range(7): k(f'ds_write_b32 v12, v{24+4*T} offset:{64*T}')
        k('s_waitcnt lgkmcnt(0)'); k('s_barrier')
        k('v_min_u32 v12, 55, v0'); k('v_lshlrev_b32 v12, 3, v12'); k(f'v_add_u32 v13, {L_CSP}, v12')
        for n in range(4): k(f'ds_read_b64 {V(14+2*n, 2)}, v13 offset:{448*n}')
        for h in range(2):
            k(f'v_add_f32 v{14+h}, v{14+h}, v{16+h}'); k(f'v_add_f32 v{18+h}, v{18+h}, v{20+h}'); k(f'v_add_f32 v{14+h}, v{14+h}, v{18+h}')
        k(f'v_add_u32 v13, {L_CS}, v12')
        k('ds_write_b64 v13, v[14:15]')
        k('s_waitcnt lgkmcnt(0)')
    else:
        k(f's_mul_i32 s51, s{sW}, {12*1024}'); k(f's_add_u32 s51, s51, {91*1024}'); k('s_add_u32 s50, s50, s51')
        for n in range(13):
            if n % 4 == 0:
                k(f's_add_u32 m0, s51, {n*1024}'); k(f's_add_u32 s52, s50, {n*1024}')
            k(f'buffer_load_dwordx4 v1, s[4:7], s52 offen offset:{(n % 4)*1024} sc1 lds', name='WU')
        k('s_waitcnt vmcnt(0)'); k('s_barrier')

ACC = [12, 68]; BRG = 124; XR = 152; XD = 5; K1 = 192; SS = 196; NM = 200; TM = 204
def acc(h, T, mi): return ACC[h] + (2*T + mi)*4
def epi_stream(h, l, e0):
    st = []
    def grp(G, U, k1, ss, dst):
        for r in range(4): st.append(f'v_mul_f32 v{U+r}, v{G+r}, v{U+r}')
        for r in range(4): st.append(f'v_mul_f32 v{G+r}, v{G+r}, v{k1}')
        for r in range(4): st.append(f'v_exp_f32 v{G+r}, v{G+r}')
        for r in range(4): st.append(f'v_fma_f32 v{G+r}, v{G+r}, v{ss}, v{ss}')
        for r in range(4): st.append(f'v_rcp_f32 v{G+r}, v{G+r}')
        for r in range(4): st.append(f'v_mul_f32 v{U+r}, v{U+r}, v{G+r}')
        st.append(f'v_cvt_pk_bf16_f32 v{dst}, v{U}, v{U+1}'); st.append(f'v_cvt_pk_bf16_f32 v{dst+1}, v{U+2}, v{U+3}')
    nm = f'H{h}'
    for mi in range(2):
        d = acc(h, 0, mi)
        grp(acc(h, 0, mi), acc(h, 2, mi), K1+2*h+mi, SS+2*h+mi, d)
        grp(acc(h, 1, mi), acc(h, 3, mi), K1+2*h+mi, SS+2*h+mi, d+2)
        st.append(I(f'buffer_store_dwordx4 {V(d)}, v1, s[4:7], s{76+2*h+mi} offen sc1', name=nm))
    d = acc(h, 4, 0)
    grp(acc(h, 4, 0), acc(h, 5, 0), K1+2*h, SS+2*h, d)
    grp(acc(h, 4, 1), acc(h, 5, 1), K1+2*h+1, SS+2*h+1, d+2)
    for r in range(4): st.append(f'v_permlane32_swap_b32 v{acc(h,6,0)+r}, v{acc(h,6,1)+r}')
    st.append(f'v_cndmask_b32 v{TM+2}, v{K1+2*h+1}, v{K1+2*h}, s[66:67]')
    st.append(f'v_cndmask_b32 v{TM+3}, v{SS+2*h+1}, v{SS+2*h}, s[66:67]')
    st.append(f'v_permlane32_swap_b32 v{d}, v{d+2}'); st.append(f'v_permlane32_swap_b32 v{d+1}, v{d+3}')
    st.append(I(f'buffer_store_dwordx4 {V(d)}, v{TM}, s[4:7], s{76+2*h} offen sc1', name=nm))
    d = acc(h, 6, 0)
    grp(d, acc(h, 6, 1), TM+2, TM+3, d)
    st.append(I(f'buffer_store_dwordx2 {V(d,2)}, v{TM+1}, s[4:7], s{76+2*h} offen sc1', name=nm))
    return [(x, e0) for x in st]

def up(l):
    k(f'v_add_u32 v9, {63*1024}, v1'); k(f'v_add_u32 v10, {126*1024}, v1')
    k(f's_mul_i32 s50, s{sCSU}, {4*20480}')
    for rt in range(4): k(f's_add_u32 s{72+rt}, s50, {WS_X1[l] + rt*20480}')
    k(f's_mul_i32 s50, s{sCSU}, {4*57344}'); k(f's_mul_i32 s51, s{sSIG}, {7*256}'); k('s_add_u32 s50, s50, s51')
    for rt in range(4): k(f's_add_u32 s{76+rt}, s50, {WS_H[l] + rt*57344}')
    k(f's_lshl_b32 s80, s{sCSU}, 12'); k(f's_add_u32 s80, s80, {WS_ST[l]}')
    k(f"""
    s_lshr_b32 s50, s{sCSU}, 2
    s_and_b32 s51, s{sCSU}, 3
    s_lshl_b32 s51, s51, 6
    s_add_u32 s50, s50, s51
    s_lshl_b32 s50, s50, 9
    s_lshr_b32 s51, s{sSIG}, 3
    s_lshl_b32 s51, s51, 7
    s_add_u32 s50, s50, s51
    s_lshl_b32 s51, s{sJ}, 3
    s_add_u32 s50, s50, s51
    v_lshl_add_u32 v8, v0, 12, s50
    v_lshlrev_b32 v{TM+7}, 2, v0
    """)
    def brd(n):
        f = n % 140
        a, off = (1, f) if f < 63 else ((9, f-63) if f < 126 else (10, f-126))
        return f'ds_read_b128 {V(BRG + 4*(n % 7))}, v{a} offset:{off*1024}'
    def xld(n, mi):
        h, ks = divmod(n, 20)
        return f'buffer_load_dwordx4 {V(XR + 8*(n % XD) + 4*mi)}, v1, s[4:7], s{72+2*h+mi} offen offset:{(ks % 4)*1024} sc1'
    def xadv(n):
        h, ks = divmod(n, 20)
        return [f's_add_u32 s{72+2*h+mi}, s{72+2*h+mi}, 4096' for mi in range(2)] if ks % 4 == 3 else []
    for n in range(6): k(brd(n))
    poll(f'X1{l}', 8)
    stamp(f'upp_{l}')
    SL = ACC[1]
    for n in range(XD-1):
        for mi in range(2): k(xld(n, mi))
        for x in xadv(n): k(x)
    for rt in range(4):
        for n in range(4): k(f'buffer_load_dword v{SL+4*rt+n}, v{TM+7}, s[4:7], s80 offen offset:{1024*rt + 256*n} sc1')
    for h in range(2):
        mf = []; fixed = {}
        def fx(g, x, first=False):
            L = fixed.setdefault(g, [])
            L.insert(0, x) if first else L.append(x)
        for ks in range(20):
            n = 20*h + ks
            for T in range(7):
                g = len(mf); f = 7*n + T
                for mi in range(2):
                    a = V(acc(h, T, mi))
                    mf.append(f'{MF} {a}, {V(BRG+4*T)}, {V(XR + 8*(n % XD) + 4*mi)}, {a if (ks or h) else 0}')
                if f + 6 < 280: fx(g, brd(f+6))
                if T % 2 == 0 and f + 1 < 280:
                    nxt = [BRG + 4*((f+1) % 7)] + ([BRG + 4*((f+2) % 7)] if T < 6 else [])
                    fx(g+1, Need([x for b in nxt for x in rr(V(b))]), True)
            g0 = 14*ks
            if n + XD - 1 < 40:
                fx(g0+3, xld(n+XD-1, 0)); fx(g0+7, xld(n+XD-1, 1))
                for q_, x in enumerate(xadv(n+XD-1)): fx(g0+8+2*q_, x, True)
            if n + 1 < 40: fx(g0+12, Need(rr(V(XR + 8*((n+1) % XD), 8))), True)
        st = []
        if h == 0:
            e = 14*3
            for rt in range(4):
                b = SL + 4*rt
                st += [f'v_add_f32 v{b}, v{b}, v{b+1}', f'v_add_f32 v{b+2}, v{b+2}, v{b+3}', f'v_add_f32 v{b}, v{b}, v{b+2}',
                       f'v_mov_b32 v{b+1}, v{b}', f'v_permlane32_swap_b32 v{b}, v{b+1}', f'v_add_f32 v{b}, v{b}, v{b+1}',
                       f'v_mov_b32 v{b+1}, v{b}', f'v_permlane16_swap_b32 v{b}, v{b+1}',
                       f'v_mul_f32 v{NM+rt}, {fl(-1/640)}, v{b}', f'v_mul_f32 v{b+1}, {fl(1/640)}, v{b+1}',
                       f'v_fma_f32 v{b+1}, -v{NM+rt}, v{NM+rt}, v{b+1}', f'v_max_f32 v{b+1}, 0, v{b+1}',
                       f'v_add_f32 v{SS+rt}, {fl(1e-5)}, v{b+1}', f'v_rsq_f32 v{K1+rt}, v{SS+rt}',
                       f'v_mul_f32 v{K1+rt}, {fl(-1.4426950408889634)}, v{K1+rt}']
            st.append(f'v_lshlrev_b32 v{TM+7}, 4, v3'); st.append(f'v_add_u32 v{TM+7}, {L_CS}, v{TM+7}')
            st = [(x, e) for x in st]
            for T in range(7):
                g0 = 14*(9 + T) + 2*T
                c = acc(1, T, 1)
                gr = g0 - 3
                while gr % 14 in (3, 7): gr -= 2
                fx(gr, f'ds_read_b128 {V(c)}, v{TM+7} offset:{64*T}')
                ops = [f'v_fmac_f32 v{acc(0,T,mi)+r}, v{NM+mi}, v{c+r}' for mi in range(2) for r in range(4)]
                g = g0 + 4
                while ops:
                    cap = 2 - sum(slots(x if isinstance(x, I) else I(x)) for x in fixed.get(g, []) if slots(x if isinstance(x, I) else I(x)) >= 1)
                    while cap >= 1 and ops: fx(g, ops.pop(0)); cap -= 1
                    g += 1
                assert g <= g0 + 13, (T, g, g0)
                st += [(f'v_mul_f32 v{acc(1,T,mi)+r}, v{NM+2+mi}, v{c+r}', g) for mi in range(2) for r in range(4)]
            g = 14*18
            for x in [f'v_lshrrev_b32 v{TM+2}, 5, v0', f'v_mul_u32_u24 v{TM+2}, 57344, v{TM+2}', f'v_lshl_add_u32 v{TM+2}, v2, 4, v{TM+2}',
                      f'v_and_b32 v{TM+3}, 1, v3', f'v_lshl_add_u32 v{TM}, v{TM+3}, 8, v{TM+2}', f'v_add_u32 v{TM}, 1024, v{TM}',
                      f'v_lshl_add_u32 v{TM+1}, v{TM+3}, 3, v{TM+2}', f'v_add_u32 v{TM+1}, 1536, v{TM+1}']:
                st.append((x, g))
        else:
            st = epi_stream(0, l, 4)
        left = weave(k, mf, fixed, st)
        print('up half', h, 'leftover', left)
        stamp(f'up{h}_{l}')
    k.need(names=['H0'])
    signal(f'H{l}', 8, 8)
    k('v_add_u32 v8, 64, v8')
    for x, e in epi_stream(1, l, 0): k(x)
    k('s_waitcnt vmcnt(0)')
    signal(f'H{l}', 8, 8)
    stamp(f'upe_{l}')

def down(l):
    HR = 124; DA = 12; PR = 72
    k(f's_mul_i32 s50, s{sCS}, {4*57344}'); k(f's_mul_i32 s51, s{sW}, {14*1024}'); k('s_add_u32 s50, s50, s51'); k(f's_add_u32 s50, s50, {WS_H[l]}')
    for p in range(4):
        k(f's_add_u32 s51, s{sW}, {p+1}'); k('s_and_b32 s51, s51, 3')
        k('s_mul_i32 s52, s51, 57344'); k(f's_add_u32 s{72+p}, s50, s52')
        if p < 3:
            k('s_mul_i32 s52, s51, 15360'); k(f's_add_u32 s52, s52, {L_RED + p*5120}'); k(f'v_add_u32 v{8+p}, s52, v1')
    k(f's_mul_i32 s52, s{sW}, 15360'); k(f's_add_u32 s52, s52, {L_RED}'); k('v_add_u32 v200, s52, v1')
    def hld(n):
        p, ks = divmod(n, 14)
        return f'buffer_load_dwordx4 {V(HR + 4*ks)}, v1, s[4:7], s{72+p} offen offset:{(ks % 4)*1024} sc1'
    def hadv(n):
        p, ks = divmod(n, 14)
        return [f's_add_u32 s{72+p}, s{72+p}, 4096'] if ks % 4 == 3 else []
    poll(f'H{l}', 16)
    k('s_barrier')
    stamp(f'dnp_{l}')
    HD = 13
    for n in range(HD):
        k(hld(n))
        for x in hadv(n): k(x)
    mf = []; fixed = {}
    def fx(g, x, first=False):
        L = fixed.setdefault(g, [])
        L.insert(0, x) if first else L.append(x)
    for p in range(4):
        for ks in range(14):
            n = 14*p + ks; g = len(mf)
            for T in range(5):
                a = V(DA + 20*p + 4*T) if p < 3 else V(R0 + 4*T)
                mf.append(f'{MF} {a}, {wdreg(5*ks+T)}, {V(HR+4*ks)}, {a if (ks or p == 3) else 0}')
            if n + HD < 56:
                fx(g, hld(n+HD))
                for x in hadv(n+HD): fx(g+1, x, True)
            if n + 1 < 56: fx(g+3, Need(rr(V(HR + 4*((ks+1) % 14)))), True)
        if p > 0:
            for T in range(5): fx(70*p + 7 + 5*T, f'ds_write_b128 v{8+p-1}, {V(DA + 20*(p-1) + 4*T)} offset:{T*1024}')
    g = 210 + 33
    fx(g, 's_waitcnt lgkmcnt(0)', True); fx(g, 's_barrier')
    st = []
    for n in range(15): fx(g + 1 + n, f'ds_read_b128 {V(DA+4*n)}, v200 offset:{n*1024}')
    for n in range(20):
        st.append((f'v_add_f32 v{DA+n}, v{DA+n}, v{DA+20+n}', g + 20))
    for n in range(20):
        st.append((f'v_add_f32 v{DA+n}, v{DA+n}, v{DA+40+n}', g + 22))
    weave(k, mf, fixed, st)
    for n in range(20): k(f'v_add_f32 v{R0+n}, v{R0+n}, v{DA+n}')
    stamp(f'dnm_{l}')
    if l == 0:
        k('s_barrier')
        publish(WS_X2, WS_ST[2], 12)
        k(f"""
        s_lshl_b32 s50, s{sQ}, 6
        s_add_u32 s50, s50, s{sXCD}
        s_lshl_b32 s50, s50, 9
        s_lshl_b32 s51, s{sW}, 7
        s_add_u32 s50, s50, s51
        s_lshl_b32 s51, s{sJ}, 3
        s_add_u32 s50, s50, s51
        v_lshl_add_u32 v30, v0, 12, s50
        s_waitcnt vmcnt(0)
        """)
        signal('X20', 8, 30)
    else:
        nat_addr(40, 41, 42, 43)
        pk = 12
        for n in range(5):
            k(f'v_cvt_pk_bf16_f32 v{pk+2*n}, v{R0+4*n}, v{R0+4*n+1}'); k(f'v_cvt_pk_bf16_f32 v{pk+2*n+1}, v{R0+4*n+2}, v{R0+4*n+3}')
        k(f'buffer_store_dwordx4 {V(pk)}, v40, s[12:15], 0 offen')
        k(f'buffer_store_dwordx4 {V(pk+4)}, v41, s[12:15], 0 offen')
        k(f'buffer_store_dwordx2 {V(pk+8,2)}, v42, s[12:15], 0 offen')
    stamp(f'dne_{l}')

def main():
    prologue()
    d1_load_B()
    nat_addr(32, 33, 34, 35)
    k('v_lshl_add_u32 v35, v3, 4, v35')
    for ks in range(10):
        for h in range(2): k(f'buffer_load_dwordx4 {V(A0 + 8*ks + 4*h)}, v35, s[8:11], 0 offen offset:{ks*64 + h*640}')
    k(f'buffer_load_dwordx4 {V(36)}, v32, s[8:11], 0 offen')
    k(f'buffer_load_dwordx4 {V(40)}, v33, s[8:11], 0 offen')
    k(f'buffer_load_dwordx2 {V(44,2)}, v34, s[8:11], 0 offen')
    k(f'v_mul_u32_u24 v12, {MBSZ}, v0'); k('v_mov_b32 v13, 0')
    setexec(len(PH)); k(f'buffer_atomic_or v13, v12, s[4:7], s{sMB} offen sc1'); allexec()
    prepass_issue()
    d1_gen_M2()
    for n in range(10):
        k(f'v_lshlrev_b32 v{R0+2*n}, 16, v{36+n}'); k(f'v_and_b32 v{R0+2*n+1}, 0xffff0000, v{36+n}')
    k('s_waitcnt vmcnt(0)')
    stamp('ld0')
    prepass_process()
    get_nonce()
    prepass_signal()
    stamp('pre')
    stop('pre')
    for l in range(2):
        if l == 1:
            d1_load_B()
            d1_gen_M2()
            poll('X20', 8)
            stamp('d1p_1')
            load_stats4(32, WS_ST[2], sST)
            k(f's_add_u32 s50, s{sXT}, {WS_X2}'); k('s_add_u32 s51, s50, 10240')
            for ks in range(10):
                for h in range(2): k(f'buffer_load_dwordx4 {V(A0 + 8*ks + 4*h)}, v1, s[4:7], s{50+h} offen offset:{(ks % 4)*1024} sc1')
                if ks % 4 == 3: k('s_add_u32 s50, s50, 4096'); k('s_add_u32 s51, s51, 4096')
        d1_body(l); stop(f'd1_{l}')
        d2(l); stop(f'd2_{l}')
        load_weights(l); stamp(f'lw_{l}')
        up(l); stop(f'up_{l}')
        down(l); stop(f'dn_{l}')
try: main()
except Stop: pass
finish()
k('END:'); k('s_endpgm'); k('CODE_END:')
k.finish()
open(sys.argv[1], 'w').write(build([k], [(k.name, 256, 256, LDS)], single=True))
import json
json.dump(dict(stamps=stampnames, WS_TS=WS_TS, WS_WUF=WS_WUF, WS_WDF=WS_WDF, WS_Z=WS_Z, WS_X1=WS_X1, WS_X2=WS_X2, WS_ST=WS_ST, WS_H=WS_H), open(sys.argv[1] + '.json', 'w'))
print('insts', len(k.ins), 'hi', k.hi, 'nops', sum(1 for i in k.ins if i.kind == 'nop'))
```

```python
import re
from asmlib import NAME, HEADER_COMMENT, KA

REG = re.compile(r'^(-?)(abs\()?([vas])(\d+|\[(\d+):(\d+)\])\)?$')
def regs_of(tok):
    tok = tok.strip()
    if tok == 'vcc': return [('s', 'vcc_lo'), ('s', 'vcc_hi')]
    if tok in ('vcc_lo', 'vcc_hi', 'm0', 'exec_lo', 'exec_hi'): return [('s', tok)]
    if tok == 'exec': return [('s', 'exec_lo'), ('s', 'exec_hi')]
    m = REG.match(tok)
    if not m: return []
    if m.group(5) is not None: return [(m.group(3), n) for n in range(int(m.group(5)), int(m.group(6))+1)]
    return [(m.group(3), int(m.group(4)))]

TRANS = ('v_exp_f32', 'v_log_f32', 'v_rcp_f32', 'v_rsq_f32', 'v_sqrt_f32', 'v_sin_f32', 'v_cos_f32')
class I:
    __slots__ = ('text', 'op', 'kind', 'w', 'r', 'tag', 'name', 'c', 'ab', 'data', 'dpp', 'passes', 'xdl', 'need')
    def __init__(s, text, tag=None, name=None):
        s.text = text; s.tag = tag; s.name = name; s.w = []; s.r = []; s.c = []; s.ab = []; s.data = []
        s.dpp = False; s.passes = 0; s.xdl = False; s.need = None
        t = text.split(';')[0].strip()
        if t.endswith(':'): s.op = t; s.kind = 'label'; return
        if t.startswith('.'): s.op = t; s.kind = 'dir'; return
        parts = t.split(None, 1); op = s.op = parts[0]
        rest = parts[1] if len(parts) > 1 else ''
        rest2 = re.sub(r'quad_perm:\[[^\]]*\]', 'quad_perm', rest)
        toks = [x.strip() for x in rest2.split(',')] if rest2 else []
        mods = []
        if toks:
            last = toks[-1].split(); toks[-1] = last[0]; mods = last[1:]
        R = [regs_of(x) for x in toks]
        flat = lambda L: [x for l in L for x in l]
        if op.startswith('v_mfma'):
            s.kind = 'mfma'; s.w = R[0]; s.ab = R[1] + R[2]; s.c = R[3]; s.r = s.ab + s.c
            if '16x16x32_bf16' in op: s.passes, s.xdl = 4, True
            elif '32x32x16_bf16' in op: s.passes, s.xdl = 8, True
            elif '16x16x4_f32' in op: s.passes, s.xdl = 8, False
            else: raise ValueError(op)
        elif op.startswith('v_'):
            s.kind = 'valu'
            s.dpp = op.endswith('_dpp')
            if op.startswith(('v_permlane', 'v_swap')): s.w = R[0] + R[1]; s.r = list(s.w)
            elif op.startswith(('v_add_co', 'v_addc_co', 'v_sub_co')): s.w = R[0] + R[1]; s.r = flat(R[2:])
            elif op.startswith(('v_fmac', 'v_dot2c', 'v_writelane')) or s.dpp: s.w = R[0]; s.r = flat(R)
            elif op == 'v_nop': pass
            else: s.w = R[0]; s.r = flat(R[1:])
        elif op.startswith('ds_read') or op.startswith('ds_bpermute') or op.startswith('ds_swizzle'):
            s.kind = 'dsr'; s.w = R[0]; s.r = flat(R[1:])
        elif op.startswith('ds_'):
            s.kind = 'dsw'; s.r = flat(R)
        elif op.startswith(('buffer_load', 'global_load')):
            if 'lds' in mods or '_lds_' in op: s.kind = 'dma'; s.r = flat(R) + [('s', 'm0')]
            else: s.kind = 'vld'; s.w = R[0]; s.r = flat(R[1:])
        elif op.startswith('buffer_store'):
            s.kind = 'vst'; s.r = flat(R); s.data = R[0]
        elif op.startswith('global_store'):
            s.kind = 'vst'; s.r = flat(R); s.data = R[1]
        elif op.startswith('buffer_atomic'):
            s.r = flat(R)
            if 'sc0' in mods: s.kind = 'vld'; s.w = R[0]
            else: s.kind = 'vst'
        elif op.startswith('s_atomic'):
            s.kind = 'smem'; s.r = flat(R)
            if 'glc' in mods: s.w = R[0]
        elif op == 'phantom_vm': s.kind = 'vst'
        elif op.startswith(('s_load', 's_memtime', 's_memrealtime')):
            s.kind = 'smem'; s.w = R[0]; s.r = flat(R[1:])
        elif op == 's_waitcnt': s.kind = 'wait'
        elif op == 's_nop': s.kind = 'nop'
        elif op == 's_barrier': s.kind = 'barrier'
        elif op.startswith(('s_cbranch', 's_branch', 's_endpgm', 's_setpc', 's_swappc')): s.kind = 'branch'
        elif op.startswith(('s_cmp', 's_bitcmp', 's_sleep', 's_setprio')): s.kind = 'salu'; s.r = flat(R)
        elif op.startswith('s_'):
            s.kind = 'salu'; s.w = R[0]; s.r = flat(R[1:])
        else: raise ValueError('unknown op ' + text)
    def states(s):
        if s.kind in ('label', 'dir', 'need') or s.op == 'phantom_vm': return 0
        if s.kind == 'nop': return int(s.text.split()[1]) + 1
        return 1

class Need(I):
    def __init__(s, regs=(), names=(), tag=None):
        s.text = ''; s.op = 'need'; s.kind = 'need'; s.tag = tag; s.name = None
        s.w = []; s.r = list(regs); s.c = []; s.ab = []; s.data = []; s.dpp = False; s.passes = 0; s.xdl = False; s.need = list(names)

def rr(spec):
    return regs_of(spec)

class K:
    def __init__(s, name, vgpr=512, sgpr=102, accum=256):
        s.name = name; s.vgpr = vgpr; s.sgpr = sgpr; s.accum = accum
        s.ins = []; s.tag = None; s._lab = 0
    def __call__(s, text, name=None):
        if isinstance(text, I):
            text.tag = s.tag; s.ins.append(text); return
        for l in text.strip('\n').split('\n'):
            l = l.strip()
            if not l or l.startswith(';'): continue
            s.ins.append(I(l, s.tag, name))
    def need(s, *specs, names=()):
        regs = [x for sp in specs for x in regs_of(sp)]
        s.ins.append(Need(regs, names, s.tag))
    def label(s, base='L'):
        s._lab += 1; return f'{base}{s._lab}'
    def begin(s, tag, branch_text):
        assert s.tag is None
        s._end = s.label('SKIP')
        s(f'{branch_text} {s._end}')
        s.ins.append(('begin', tag)); s.tag = tag
    def end(s):
        s.ins.append(('end', s.tag)); s.tag = None
        s(f'{s._end}:')
    def do_waits(s):
        out = []
        ops = {'vm': [], 'lg': []}
        done = {'vm': set(), 'lg': set()}
        pend = {}
        named = {}
        smem_out = False
        snap = None
        MAXC = {'vm': 63, 'lg': 15}
        def count_after(c, idx, cur):
            x = ops[c][idx]
            return sum(1 for y in ops[c][idx+1:] if y.tag is None or y.tag == x.tag or y.tag == cur)
        def apply_wait(c, n, cur):
            for idx in range(len(ops[c])):
                if idx not in done[c] and count_after(c, idx, cur) >= n: done[c].add(idx)
        for it in s.ins:
            if isinstance(it, tuple):
                if it[0] == 'begin': snap = {c: set(done[c]) for c in done}; snap_smem = smem_out
                else:
                    for c in done: done[c] = snap[c] | {i for i in done[c] if ops[c][i].tag == it[1]}
                    smem_out = smem_out or snap_smem
                out.append(it); continue
            if it.kind == 'wait':
                m = re.search(r'vmcnt\((\d+)\)', it.text)
                if m: apply_wait('vm', int(m.group(1)), it.tag)
                m = re.search(r'lgkmcnt\((\d+)\)', it.text)
                if m:
                    n = int(m.group(1))
                    if n == 0: smem_out = False; apply_wait('lg', 0, it.tag)
                    elif not smem_out: apply_wait('lg', n, it.tag)
                out.append(it); continue
            req = {}
            def want(c, idx):
                if idx in done[c]: return
                n = min(count_after(c, idx, it.tag), MAXC[c])
                if c == 'lg' and smem_out: n = 0
                req[c] = min(req.get(c, 99), n)
            touched = list(it.r) + list(it.w)
            for rg in touched:
                if rg in pend:
                    c, idx = pend[rg]
                    if rg not in it.r and ((c == 'vm' and it.kind == 'vld') or (c == 'lg' and it.kind == 'dsr' and ops[c][idx].kind == 'dsr' and not smem_out)): continue
                    want(c, idx)
            if it.kind == 'need':
                for nm in it.need:
                    for (c, idx) in named.get(nm, []): want(c, idx)
            if req:
                txt = 's_waitcnt ' + ' '.join(f'{"vmcnt" if c == "vm" else "lgkmcnt"}({n})' for c, n in sorted(req.items(), reverse=True))
                out.append(I(txt, it.tag))
                for c, n in req.items():
                    apply_wait(c, n, it.tag)
                    if c == 'lg' and n == 0: smem_out = False
            if it.kind == 'need': continue
            c = {'vld': 'vm', 'vst': 'vm', 'dma': 'vm', 'dsr': 'lg', 'dsw': 'lg', 'smem': 'lg'}.get(it.kind)
            if c:
                ops[c].append(it); idx = len(ops[c]) - 1
                if it.kind == 'smem': smem_out = True
                for rg in it.w: pend[rg] = (c, idx)
                if it.name: named.setdefault(it.name, []).append((c, idx))
            out.append(it)
        s.ins = out
    def do_hazards(s):
        out = []
        def need_states(p, c):
            n = 0
            pw = set(p.w)
            if p.kind == 'valu':
                vw = {x for x in pw if x[0] != 's'}; sw = {x for x in pw if x[0] == 's'}
                isdot = p.op.startswith('v_dot2')
                if vw:
                    if c.kind == 'mfma' and vw & set(c.r): n = max(n, 3 if isdot else 2)
                    if c.kind == 'valu':
                        if vw & set(c.r):
                            if c.op.startswith('v_permlane') or c.dpp: n = max(n, 2)
                            if c.op.startswith(('v_readlane', 'v_readfirstlane')): n = max(n, 1)
                            if p.op.startswith(TRANS) and not c.op.startswith(TRANS): n = max(n, 1)
                        if isdot and c.op != p.op and vw & (set(c.r) | set(c.w)): n = max(n, 3)
                    if isdot and c.kind in ('vst', 'vld', 'dsw', 'dsr', 'dma') and vw & set(c.r): n = max(n, 3)
                if sw:
                    if c.kind == 'valu' and sw & set(c.r): n = max(n, 4 if c.op.startswith(('v_readlane', 'v_writelane')) else 2)
                    if c.kind in ('vld', 'vst', 'dma') and sw & set(c.r): n = max(n, 5)
            elif p.kind == 'mfma':
                base = {4: 8, 8: 12}[p.passes] if p.xdl else {8: 10}[p.passes]
                if c.kind == 'mfma':
                    if pw & set(c.ab): n = max(n, base)
                    if pw & set(c.c):
                        if p.w == c.c and p.op == c.op: pass
                        elif p.xdl: n = max(n, base - 2)
                        elif not c.xdl: n = max(n, 8)
                    elif pw & set(c.w) and not (p.w == c.w and p.op == c.op): n = max(n, base)
                elif c.kind in ('valu', 'vld', 'vst', 'dsr', 'dsw', 'dma'):
                    if pw & (set(c.r) | set(c.w)): n = max(n, base)
                    if c.kind == 'valu' and p.xdl and set(p.c) & set(c.w): n = max(n, p.passes - 1)
            elif p.kind == 'salu':
                if ('s', 'm0') in pw and (c.kind == 'dma' or c.op.startswith('v_writelane')): n = max(n, 1)
            elif p.kind == 'vst':
                if len(p.data) >= 3 and set(p.data) & set(c.w): n = max(n, 2 if c.kind in ('valu', 'mfma') else 1)
            return n
        for it in s.ins:
            if isinstance(it, tuple): continue
            if it.kind not in ('label', 'dir', 'nop', 'wait', 'barrier', 'branch'):
                pad = 0
                dist = {}
                acc_all = 0
                k = len(out) - 1
                back = []; tot = 0
                while k >= 0 and tot < 24:
                    y = out[k]; back.append(y); k -= 1
                    if y.tag is None or y.tag == it.tag: tot += y.states()
                for pi, p in enumerate(back):
                    if p.kind in ('valu', 'mfma', 'salu', 'vst'):
                        n = need_states(p, it)
                        if n:
                            d = sum(y.states() for y in back[:pi] if y.tag is None or y.tag == p.tag or y.tag == it.tag)
                            pad = max(pad, n - d)
                if pad > 0:
                    out.append(I(f's_nop {pad-1}', it.tag))
            out.append(it)
        s.ins = out
    def finish(s):
        s.do_waits(); s.do_hazards()
        hi = {'v': -1, 'a': -1, 's': -1}
        for it in s.ins:
            for (t, n) in list(it.r) + list(it.w):
                if isinstance(n, int): hi[t] = max(hi[t], n)
        assert hi['v'] < s.accum and s.accum + hi['a'] < s.vgpr and hi['s'] < s.sgpr, hi
        s.hi = hi
    def text(s):
        n = s.name
        out = [f'.globl {n}', '.p2align 8', f'.type {n},@function', f'{n}:']
        for it in s.ins:
            if it.op == 'phantom_vm': continue
            out.append(it.text if it.kind == 'label' else '    ' + it.text)
        return '\n'.join(out) + '\n'
    def desc(s):
        return f""".p2align 6
.amdhsa_kernel {s.name}
  .amdhsa_next_free_vgpr {s.vgpr}
  .amdhsa_next_free_sgpr {s.sgpr}
  .amdhsa_accum_offset {s.accum}
  .amdhsa_group_segment_fixed_size 0
  .amdhsa_kernarg_size 96
  .amdhsa_user_sgpr_count 2
  .amdhsa_user_sgpr_kernarg_segment_ptr 1
  .amdhsa_system_sgpr_workgroup_id_x 1
.end_amdhsa_kernel
"""

def slots(i):
    if i.kind == 'need': return 0
    if i.kind in ('salu', 'wait', 'nop', 'barrier', 'smem', 'branch', 'label'): return 0.5
    if i.kind == 'valu': return 2 if i.op.startswith(TRANS) or i.op.startswith('v_permlane') else 1
    if i.kind == 'dsr': return 1
    return 2


def deps(a, b):
    aw, ar, bw, br = set(a.w), set(a.r), set(b.w), set(b.r)
    if aw & (br | bw) or ar & bw: return True
    mem = ('vld', 'vst', 'dma', 'dsr', 'dsw', 'need', 'salu', 'wait', 'smem', 'barrier', 'branch', 'label')
    return a.kind in mem and b.kind in mem

def weave(k, mf, fixed=None, stream=None, window=24, tail=True):
    mk = lambda x: x if isinstance(x, I) else I(x)
    fixed = {g: [mk(x) for x in v] for g, v in (fixed or {}).items()}
    st = [(mk(x), e) for x, e in (stream or [])]
    for g, m in enumerate(mf):
        k(mk(m))
        cap = 2; free_scalar = 1; nvec = 0
        for x in fixed.get(g, []):
            c = slots(x)
            if c == 0:
                if nvec == 0 and free_scalar: free_scalar = 0
            elif c == 0.5:
                if nvec == 0 and free_scalar: free_scalar = 0
                else: cap -= 1
            else: cap -= c; nvec += 1
            k(x)
        last = None
        while st:
            cand = []
            for idx in range(min(window, len(st))):
                x, e = st[idx]
                if e > g: continue
                if any(deps(st[p][0], x) for p in range(idx)): continue
                c = slots(x)
                if c <= 0.5:
                    if nvec == 0 and free_scalar: cand.append((-1, idx)); break
                    c = 1 if c else 0
                    if x.kind == 'need' and nvec: continue
                if x.kind == 'dsr' and nvec: continue
                if c > cap: continue
                if last is not None and (x.op.startswith('v_permlane') or x.dpp) and set(last.w) & set(x.r): continue
                cand.append((0 if (c == 2) else 1, idx))
            if not cand: break
            cand.sort()
            idx = cand[0][1]
            x, e = st.pop(idx)
            c = slots(x)
            if c <= 0.5 and nvec == 0 and free_scalar: free_scalar = 0
            elif c <= 0.5: cap -= (1 if c else 0)
            else: cap -= c; nvec += 1
            k(x); last = x
            if cap <= 0: break
    if tail:
        for x, e in st: k(x)
        return len(st)
    return st
```

```python
import sys, struct
from asmx import *
from asmlib import build
o = dict(a.split('=') for a in sys.argv[2:])
STOP = o.get('stop', '')
STAMP = int(o.get('stamp', 0))
def opt(n, d): return int(o.get(n, d))
S, D, F = 2048, 640, 1728
def fl(x): return hex(struct.unpack('<I', struct.pack('<f', x))[0])
MBSZ = 256*4*128
PH = dict(W=0, Z0=1, X10=2, HA0=3, HB0=4, X20=5, Z1=6, X11=7, HA1=8, HB1=9)
WS_TS = 11*MBSZ
WS_WUF = 2 << 20
WS_WDF = WS_WUF + 32*143360
WS_Z = [WS_WDF + 8*286720 + l*3145728 for l in range(2)]
WS_X1 = [WS_Z[1] + 3145728 + l*2621440 for l in range(2)]
WS_X2 = WS_X1[1] + 2621440
WS_ST = [WS_X2 + 2621440 + l*131072 for l in range(3)]
WS_H = [WS_ST[2] + 131072 + l*7340032 for l in range(2)]
WS_BF = WS_H[1] + 7340032
WS_END = WS_BF + 8*51200
L_XCH = 93184
L_B = L_XCH + 12288
L_Z = 132096
L_RED = 93184
L_CSP = 156672
L_CS = 163328
LDS = 163840
sW, sXCD, sQ, sJ, sCS, sCLS, sSIG, sGAM, sCSU, sMB = range(36, 46)
sXT, sST = 64, 65
sgZ, sgX1, sgH, sgX2 = 84, 85, 86, 87
R0 = 212; WT = 232
def V(a, n=4): return f'v[{a}:{a+n-1}]'
def wdreg(n): return f'a[{4*n}:{4*n+3}]' if n < 64 else V(WT + 4*(n-64))
MF = 'v_mfma_f32_16x16x32_bf16'
k = K(NAME + '_kernel')
nstamp = [0]; stampnames = []
def stamp(name):
    if not STAMP: return
    if name in stampnames: n = stampnames.index(name)
    else: n = len(stampnames); stampnames.append(name)
    k('s_memrealtime s[62:63]' if STAMP == 1 else 's_memtime s[62:63]'); k('s_waitcnt lgkmcnt(0)')
    k(f'v_writelane_b32 v11, s62, {n}')
def finish():
    if STAMP:
        k(f's_lshl_b32 s48, s{sMB}, 1'); k(f's_add_u32 s48, s48, {WS_TS}')
        k('v_lshlrev_b32 v12, 2, v0')
        k('buffer_store_dword v11, v12, s[4:7], s48 offen')
    k('s_endpgm')
class Stop(Exception): pass
def stop(name):
    if STOP == name:
        k('s_waitcnt vmcnt(0) lgkmcnt(0)'); raise Stop()
def setexec(n, lo=0):
    m = ((1 << n) - 1) << lo
    k(f's_mov_b32 exec_lo, {hex(m & 0xffffffff)}'); k(f's_mov_b32 exec_hi, {hex(m >> 32)}')
def allexec(): k('s_mov_b64 exec, -1')
def lines(s): return [l.strip() for l in s.strip().split('\n') if l.strip()]
def emit(L):
    for x in L: k(x)
MAXPOLL = 40000
def poll_issue(ph):
    return [f's_add_u32 s82, s92, {PH[ph]*MBSZ}', 's_addc_u32 s83, s93, 0', 's_load_dword s91, s[82:83], 0 glc']
def poll_wait():
    L = k.label('POLL'); X = k.label('POLLX')
    return ['s_waitcnt lgkmcnt(0)', 's_cmp_ge_u32 s91, 8', f's_cbranch_scc1 {X}', 's_mov_b32 s68, 0', f'{L}:',
            's_load_dword s91, s[82:83], 0 glc', 's_add_u32 s68, s68, 1', 's_waitcnt lgkmcnt(0)',
            's_cmp_ge_u32 s91, 8', f's_cbranch_scc1 {X}', f's_cmp_lt_u32 s68, {MAXPOLL}', f's_cbranch_scc1 {L}', f'{X}:']
SIGOFF = {sgZ: lambda l: (l >> 2)*512 + (l & 3)*32768, sgX1: lambda l: (l & 3)*512 + (l >> 2)*4096, sgH: lambda l: l*4096, sgX2: lambda l: l*4096}
def sig_prep(ph, sg): return [f's_add_u32 s89, s{sg}, {PH[ph]*MBSZ}', 's_add_u32 s88, s4, s89', 's_addc_u32 s89, s5, 0']
def sig_go(sg): return [f's_atomic_add s90, s[88:89], {SIGOFF[sg](l)}' for l in range(8)]

def prologue():
    k('s_cmp_ge_u32 s2, 256'); k('s_cbranch_scc1 END')
    k('s_getpc_b64 s[48:49]')
    k('PC0:')
    for s_, a in ((4, 'ws'), (16, 'wg'), (20, 'wu'), (24, 'wd'), (8, 'x'), (12, 'out'), (32, 'dbg')):
        k(f's_load_dwordx2 s[{s_}:{s_+1}], s[0:1], {KA[a]}')
    if STAMP: k('s_memrealtime s[62:63]' if STAMP == 1 else 's_memtime s[62:63]')
    k(f"""
    s_lshr_b32 s50, s2, 3
    s_lshl_b32 s50, s50, 11
    v_lshrrev_b32 v12, 4, v0
    v_lshl_add_u32 v12, v12, 7, s50
    v_min_u32 v12, CODE_END-PC0-4, v12
    global_load_dword v13, v12, s[48:49]
    v_lshrrev_b32 v3, 6, v0
    v_and_b32 v0, 63, v0
    v_readfirstlane_b32 s{sW}, v3
    """)
    for s_, n in ((4, 1 << 28), (16, D*F*2), (20, D*F*2), (24, D*F*2), (8, S*D*2), (12, S*D*2), (32, 256)):
        k(f's_mov_b32 s{s_+2}, {n}'); k(f's_mov_b32 s{s_+3}, 0x00020000')
    k(f"""
    v_lshlrev_b32 v1, 4, v0
    v_and_b32 v2, 15, v0
    v_lshrrev_b32 v3, 4, v0
    s_and_b32 s{sXCD}, s2, 7
    s_lshr_b32 s{sQ}, s2, 6
    s_bfe_u32 s{sJ}, s2, 0x30003
    s_lshl_b32 s{sCS}, s{sXCD}, 2
    s_add_u32 s{sCS}, s{sCS}, s{sQ}
    s_lshr_b32 s{sCLS}, s{sCS}, 1
    s_sub_u32 s50, 32, s{sCLS}
    s_cmp_eq_u32 s{sCS}, 1
    s_cselect_b32 s50, 16, s50
    s_bitcmp1_b32 s{sCS}, 0
    s_cselect_b32 s{sCLS}, s50, s{sCLS}
    """)
    k(f"""
    s_and_b32 s50, s{sCS}, 7
    s_lshl_b32 s51, s{sW}, 3
    s_add_u32 s50, s50, s51
    s_lshr_b32 s72, s{sCS}, 3
    s_mul_i32 s72, s72, 20
    s_add_u32 s72, s72, s50
    s_cmp_lt_u32 s2, 224
    s_cselect_b32 s75, 1, 2
    s_cmp_eq_u32 s{sW}, 3
    s_cselect_b32 s75, s75, 2
    s_cmp_lt_u32 s50, 20
    s_cselect_b32 s75, 0, s75
    s_mul_i32 s73, s{sW}, 7168
    """)
    if STAMP: k('v_mov_b32 v11, 0')
    k('s_waitcnt lgkmcnt(0)')
    if STAMP:
        k('v_writelane_b32 v11, s62, 0'); stampnames.append('start')

def ids2():
    return lines(f"""
    s_and_b32 s{sSIG}, s{sXCD}, 3
    s_lshl_b32 s50, s{sJ}, 2
    s_add_u32 s{sSIG}, s{sSIG}, s50
    s_and_b32 s{sGAM}, s{sXCD}, 4
    s_add_u32 s{sGAM}, s{sGAM}, s{sQ}
    s_lshl_b32 s{sCSU}, s{sGAM}, 2
    s_add_u32 s{sCSU}, s{sCSU}, s{sW}
    s_lshl_b32 s{sMB}, s2, 2
    s_add_u32 s{sMB}, s{sMB}, s{sW}
    s_lshl_b32 s{sMB}, s{sMB}, 7
    s_add_u32 s92, s4, s{sMB}
    s_addc_u32 s93, s5, 0
    s_lshl_b32 s50, s{sCS}, 2
    s_add_u32 s50, s50, s{sW}
    s_mul_i32 s{sXT}, s50, 20480
    s_lshl_b32 s{sST}, s50, 10
    s_mov_b32 s66, -1
    s_mov_b32 s67, 0
    s_mov_b32 s90, 1
    s_lshl_b32 s50, s{sW}, 10
    s_lshl_b32 s51, s{sJ}, 12
    s_add_u32 s50, s50, s51
    s_lshr_b32 s51, s{sCS}, 3
    s_lshl_b32 s51, s51, 7
    s_add_u32 s{sgZ}, s50, s51
    s_and_b32 s50, s{sXCD}, 4
    s_and_b32 s51, s{sXCD}, 3
    s_lshl_b32 s51, s51, 6
    s_add_u32 s50, s50, s51
    s_lshl_b32 s51, s{sW}, 4
    s_add_u32 s50, s50, s51
    s_lshl_b32 s50, s50, 2
    s_add_u32 s50, s50, s{sQ}
    s_lshl_b32 s{sgX1}, s50, 7
    s_lshl_b32 s50, s{sW}, 6
    s_add_u32 s50, s50, s{sGAM}
    s_lshl_b32 s50, s50, 2
    s_lshr_b32 s51, s{sJ}, 1
    s_add_u32 s50, s50, s51
    s_lshl_b32 s{sgH}, s50, 7
    s_lshl_b32 s50, s{sQ}, 6
    s_add_u32 s50, s50, s{sXCD}
    s_lshl_b32 s50, s50, 2
    s_add_u32 s50, s50, s{sW}
    s_lshl_b32 s{sgX2}, s50, 7
    s_mul_i32 s50, s{sJ}, 1280
    s_add_u32 s51, s50, 1024
    s_sub_u32 s52, {79*256}, s50
    v_mov_b32 v12, s51
    v_mov_b32 v14, s52
    v_cndmask_b32 v4, v14, v12, s[66:67]
    v_and_b32 v12, 1, v3
    v_lshl_add_u32 v4, v12, 3, v4
    v_lshl_add_u32 v4, v2, 4, v4
    v_lshlrev_b32 v5, 2, v0
    s_sub_u32 s94, s{sJ}, 5
    s_cmp_lt_u32 s{sJ}, 5
    s_cselect_b32 s94, s{sJ}, s94
    s_mul_i32 s94, s94, {opt('rot', 1)}
    """) + [x for n in range(1, 5) for x in (f's_add_u32 s{94+n}, s{93+n}, 1', f's_cmp_eq_u32 s{94+n}, 5', f's_cselect_b32 s{94+n}, 0, s{94+n}')]

def nat_addr(a01, a23, a4, t):
    return lines(f"""
    s_lshr_b32 s50, s{sW}, 1
    s_lshl_b32 s50, s50, 5
    s_and_b32 s51, s{sW}, 1
    s_lshl_b32 s51, s51, 10
    s_add_u32 s50, s50, s51
    s_add_u32 s50, s50, s{sCLS}
    v_lshl_add_u32 v{t}, v2, 6, s50
    v_mul_u32_u24 v{t}, 1280, v{t}
    s_mul_i32 s50, s{sJ}, 80
    s_sub_u32 s51, 1200, s50
    v_lshl_add_u32 v{a4}, v3, 4, v{t}
    v_add_u32 v{a01}, s50, v{a4}
    v_add_u32 v{a23}, s51, v{a4}
    s_add_u32 s50, s50, 64
    s_add_u32 s51, s51, 48
    v_mov_b32 v{t+1}, s50
    v_mov_b32 v{t+2}, s51
    v_cndmask_b32 v{a4}, v{t+2}, v{t+1}, s[66:67]
    v_lshl_add_u32 v{a4}, v3, 3, v{a4}
    v_add_u32 v{a4}, v{a4}, v{t}
    """)

A0 = 132; P0 = 88; P1 = 108; P5 = 128; BR = 72; B5 = 68; M2 = 52
def gen_frag(dst, ef, base, t):
    L = []
    for jj in range(8):
        L.append(f'v_fmamk_f32 v{t+jj}, v{ef}, {fl(float(jj))}, v{base}' if jj else f'v_cos_f32 v{t}, v{base}')
    for jj in range(1, 8): L.append(f'v_cos_f32 v{t+jj}, v{t+jj}')
    for p in range(4): L.append(f'v_cvt_pk_bf16_f32 v{dst+p}, v{t+2*p}, v{t+2*p+1}')
    return L
def gen_setup(e, ef, base, t, zero_dc):
    L = [f'v_and_b32 v{t}, 2, v0', f'v_cvt_f32_u32 v{ef}, v{e}', f'v_cvt_f32_u32 v{t}, v{t}', f'v_mul_f32 v{t}, 0x3e000000, v{t}']
    if zero_dc: L += [f'v_cmp_eq_u32 vcc, 0, v{e}', f'v_mov_b32 v{t+1}, 0x3e800000', f'v_cndmask_b32 v{t}, v{t}, v{t+1}, vcc']
    L += [f'v_mul_f32 v{ef}, {fl(1/640)}, v{ef}', f'v_lshlrev_b32 v{t+1}, 3, v3', f'v_cvt_f32_u32 v{t+1}, v{t+1}', f'v_fma_f32 v{base}, v{ef}, v{t+1}, v{t}']
    return L
def gen_T5():
    return [f's_mul_i32 s53, s{sJ}, 40', 's_add_u32 s53, s53, 40', 'v_and_b32 v20, 1, v0', 'v_sub_u32 v22, 1, v20', 'v_mul_u32_u24 v22, s53, v22'] \
        + gen_setup(22, 23, 24, 26, False) + gen_frag(B5, 23, 24, 26)
def gen_B(mid):
    k(f"""
    s_mul_i32 s52, s{sJ}, 40
    s_lshr_b32 s53, s{sW}, 1
    s_lshl_b32 s53, s53, 4
    s_and_b32 s54, s{sW}, 1
    s_lshl_b32 s55, s54, 1
    s_add_u32 s53, s53, s55
    s_add_u32 s53, s53, s52
    v_and_b32 v20, 1, v0
    v_and_b32 v21, 12, v0
    v_add3_u32 v22, v20, v21, s53
    s_lshl_b32 s56, s{sW}, 10
    s_add_u32 s56, s56, {L_B}
    v_add_u32 v25, s56, v1
    s_mov_b32 s57, 0
    """)
    emit(gen_setup(22, 23, 34, 26, True))
    k('s_lshl_b32 s58, s94, 6')
    k('GENB:')
    k('v_cvt_f32_u32 v24, s58'); k('s_add_u32 s58, s58, 32'); k('v_fma_f32 v24, v24, v23, v34')
    k('s_cmp_eq_u32 s58, 320'); k('s_cselect_b32 s58, 0, s58')
    k('v_fract_f32 v24, v24')
    emit(gen_frag(36, 23, 24, 26))
    k('ds_write_b128 v25, v[36:39]')
    k('v_add_u32 v25, 5120, v25')
    k('s_add_u32 s57, s57, 1'); k('s_cmp_lt_u32 s57, 10'); k('s_cbranch_scc1 GENB')
    mid()
    k('s_add_u32 s53, s52, 32'); k('v_lshrrev_b32 v21, 1, v21'); k('v_add3_u32 v22, v20, v21, s53')
    emit(gen_setup(22, 23, 34, 26, False))
    for n in range(3):
        if n == 0: k(f's_lshl_b32 s57, s{sW}, 1')
        elif n == 1: k('s_add_u32 s57, s57, 1')
        else: k('s_add_u32 s57, s54, 8')
        k('s_lshl_b32 s58, s94, 1'); k('s_add_u32 s58, s58, s57'); k('s_sub_u32 s59, s58, 10'); k('s_cmp_lt_u32 s58, 10'); k('s_cselect_b32 s58, s58, s59')
        k('s_lshl_b32 s58, s58, 5'); k('v_cvt_f32_u32 v24, s58'); k('v_fma_f32 v24, v24, v23, v34'); k('v_fract_f32 v24, v24')
        k('s_mul_i32 s58, s57, 5120'); k(f's_add_u32 s58, s58, {L_B + 4096}'); k('v_add_u32 v25, s58, v1')
        emit(gen_frag(36 + 4*n, 23, 24, 26))
        k(f'ds_write_b128 v25, {V(36+4*n)}')
    emit(gen_T5())

def gen_M2():
    L = lines(f"""
    s_lshl_b32 s50, s{sW}, 3
    v_lshrrev_b32 v20, 1, v2
    v_add_u32 v20, s50, v20
    v_lshrrev_b32 v21, 1, v20
    v_cmp_eq_u32 vcc, 1, v20
    v_sub_u32 v22, 32, v21
    v_and_b32 v23, 2, v0
    v_cndmask_b32 v22, v22, 16, vcc
    v_cmp_ne_u32 vcc, 0, v23
    v_and_b32 v20, 1, v0
    v_lshl_add_u32 v23, v3, 8, s{sCLS}
    v_cndmask_b32 v21, v21, v22, vcc
    v_lshl_add_u32 v21, v20, 5, v21
    v_mul_u32_u24 v22, v21, v23
    v_and_b32 v22, 2047, v22
    v_cvt_f32_u32 v21, v21
    v_cvt_f32_u32 v22, v22
    v_mul_f32 v21, {fl(1/64)}, v21
    v_mul_f32 v22, {fl(1/2048)}, v22
    """)
    for kap in range(2):
        for jp in range(4):
            for h in range(2):
                jj = 2*jp + h
                mult = kap + 2*(16*(jj >> 2) + (jj & 3))
                L.append(f'v_fmamk_f32 v{23+h}, v21, {fl(float(mult))}, v22')
            L += ['v_cos_f32 v25, v23', 'v_cos_f32 v26, v24', 'v_sin_f32 v27, v23', 'v_sin_f32 v28, v24']
            L.append(f'v_cvt_pk_bf16_f32 v{M2 + 4*kap + jp}, v25, v26')
            L.append(f'v_cvt_pk_bf16_f32 v{M2 + 8 + 4*kap + jp}, v27, v28')
    return L

def init_issue():
    k('v_and_b32 v14, 3, v0'); k('v_lshlrev_b32 v14, 6, v14')
    k('buffer_load_dword v15, v14, s[32:35], 0 offen sc1')
def init_check():
    L = k.label('INI'); X = k.label('INIX')
    k('s_mov_b32 s68, 0')
    k(f'{L}:')
    k('s_waitcnt vmcnt(0)')
    k('v_cmp_gt_u32 vcc, 64, v15')
    k(f's_cbranch_vccz {X}')
    k('s_sleep 10')
    k('buffer_load_dword v15, v14, s[32:35], 0 offen sc1')
    k('s_add_u32 s68, s68, 1')
    k(f's_cmp_lt_u32 s68, {MAXPOLL}'); k(f's_cbranch_scc1 {L}')
    k('s_waitcnt vmcnt(0)')
    k(f'{X}:')

def d1_body(l, aload):
    S1, S2 = 40, 44
    rd = lambda n: f'ds_read_b128 {V(BR + 4*(n % 4))}, v8 offset:{n*1024}'
    for n in range(3): k(rd(n))
    mf = []; fixed = {}
    def fx(g, x, first=False):
        L = fixed.setdefault(g, [])
        L.insert(0, x) if first else L.append(x)
    pre = []
    if l == 0:
        pre = ['v_mov_b32 v30, 0', 'v_mov_b32 v31, 0']
    for ks in range(10):
        a0, a1 = V(A0 + 8*ks), V(A0 + 8*ks + 4)
        g0 = len(mf)
        if l == 0 and ks % 2 == 0:
            burst = [f'v_dot2c_f32_bf16 v{30 + (n & 1)}, v{A0+8*ks+n}, v{A0+8*ks+n}' for n in range(16)]
            if ks == 8: burst += ['v_add_f32 v30, v30, v31', 'v_mov_b32 v31, 1.0', f'v_mfma_f32_16x16x4_f32 {V(S2)}, v30, v31, 0']
            if ks == 0: pre += burst
            else:
                for x in burst: fx(g0-1, x)
        mf.append(f'{MF} {V(P5)}, {a0}, {V(B5)}, {V(P5) if ks else 0}')
        mf.append(f'{MF} {V(P5)}, {a1}, {V(B5)}, {V(P5)}')
        for T in range(5):
            n = ks*5 + T; b = V(BR + 4*(n % 4))
            fx(len(mf)-1, Need(rr(b)), True)
            if n + 3 < 50: fx(len(mf), rd(n+3))
            mf.append(f'{MF} {V(P0+4*T)}, {a0}, {b}, {V(P0+4*T) if ks else 0}')
            mf.append(f'{MF} {V(P1+4*T)}, {a1}, {b}, {V(P1+4*T) if ks else 0}')
        if ks < 9: fx(len(mf)-2, Need(rr(V(A0 + 8*ks + 8, 8))), True)
        if aload:
            for c in range(3):
                n = aload[0] + 3*ks + c
                if n < 20:
                    for x in aload[1](n): fx(g0 + (0, 3, 7)[c], x)
    st = []
    if l == 1:
        for x in ['v_add_f32 v32, v32, v33', 'v_add_f32 v34, v34, v35', 'v_add_f32 v32, v32, v34',
                  'v_and_b32 v33, 1, v3', 'v_cvt_f32_u32 v33, v33', 'v_sub_f32 v34, 1.0, v33']: st.append((x, 40))
        fx(59, f'v_mfma_f32_16x16x4_f32 {V(S1)}, v32, v34, 0'); fx(59, f'v_mfma_f32_16x16x4_f32 {V(S2)}, v32, v33, 0')
    for x in ['v_and_b32 v29, 1, v0', 'v_cvt_f32_u32 v29, v29', 'v_fma_f32 v29, v29, -2.0, 1.0',
              f's_and_b32 s50, s{sW}, 1', 's_lshl_b32 s50, s50, 3', f's_lshr_b32 s51, s{sW}, 1', 's_lshl_b32 s51, s51, 10',
              's_add_u32 s50, s50, s51', f's_add_u32 s50, s50, {L_XCH}', 'v_add_u32 v9, s50, v1', f'v_add_u32 v10, {L_XCH}, v1',
              f's_lshl_b32 s50, s{sCS}, 3', f's_add_u32 s50, s50, s{sJ}', 's_mul_i32 s50, s50, 12288',
              f's_lshl_b32 s51, s{sW}, 10', 's_add_u32 s50, s50, s51', f's_add_u32 s70, s50, {WS_Z[l]}',
              'v_lshlrev_b32 v12, 6, v2', 'v_lshl_add_u32 v12, v3, 4, v12']: st.append((x, 62))
    e = 113 if l == 0 else 70
    for r in range(4):
        if l == 0: st.append((f'v_mov_b32_dpp v{S1+r}, v{P5+r} quad_perm:[1,1,1,1] row_mask:0xf bank_mask:0xf', e))
        st.append((f'v_mul_f32 v{S2+r}, {fl(1/640)}, v{S2+r}', e if l else 104))
    for r in range(4): st.append((f'v_mul_f32 v{S1+r}, {fl(1/640)}, v{S1+r}', e))
    for r in range(4): st.append((f'v_fma_f32 v{S2+r}, -v{S1+r}, v{S1+r}, v{S2+r}', e))
    for r in range(4): st.append((f'v_max_f32 v{S2+r}, 0, v{S2+r}', e))
    for r in range(4): st.append((f'v_add_f32 v{S2+r}, {fl(1e-5)}, v{S2+r}', e))
    for r in range(4): st.append((f'v_rsq_f32 v{S2+r}, v{S2+r}', e))
    for T in (5, 0, 1, 2, 3, 4):
        p = P0 + 4*T if T < 5 else P5
        e = 113 if T == 5 else 115 + 2*T
        if T < 5:
            for r in range(4): st.append((f'v_fmac_f32 v{p+r}, v29, v{P1+4*T+r}', e))
        for r in range(4): st.append((f'v_mul_f32 v{p+r}, v{p+r}, v{S2+r}', e))
        st.append((f'v_cvt_pk_bf16_f32 v{p}, v{p}, v{p+1}', e)); st.append((f'v_cvt_pk_bf16_f32 v{p+1}, v{p+2}, v{p+3}', e))
        st.append((f'ds_write_b64 v9, {V(p,2)} offset:{T*2048}', e))
    emit(pre)
    rest = weave(k, mf, fixed, st, tail=False)
    if l == 0:
        k(f's_cmp_lg_u32 s{sW}, 0'); k.begin('w0', 's_cbranch_scc1'); init_issue(); k.end()
    for x, e in rest: k(x)
    if l == 0:
        stamp('g1')
        k(f's_cmp_lg_u32 s{sW}, 0'); k.begin('w0', 's_cbranch_scc1'); init_check(); k.end()
        stamp('inic')
        k('s_waitcnt vmcnt(0)')
    k('s_waitcnt lgkmcnt(0)'); k('s_barrier')
    stamp(f'd1x_{l}')
    FR = A0; AC = 84
    for n in range(12): k(f'ds_read_b128 {V(FR+4*n)}, v10 offset:{n*1024}')
    mf = []; st = []; fixed = {}
    for T in range(6):
        t1, t2 = AC + 8*T, AC + 8*T + 4
        for kap in range(2):
            f = V(FR + 4*(2*T + kap))
            mf.append(f'{MF} {V(t1)}, {f}, {V(M2+4*kap)}, {V(t1) if kap else 0}')
            mf.append(f'{MF} {V(t2)}, {f}, {V(M2+8+4*kap)}, {V(t2) if kap else 0}')
        e = len(mf) + 2
        dst = 16 + 4*(T >> 1) + 2*(T & 1)
        for rp in range(2):
            st.append((f'v_add_f32 v{t1+rp}, v{t1+rp}, v{t2+2+rp}', e))
            st.append((f'v_sub_f32 v{t1+2+rp}, v{t1+2+rp}, v{t2+rp}', e))
        for rp in range(2): st.append((f'v_cvt_pk_bf16_f32 v{dst+rp}, v{t1+rp}, v{t1+2+rp}', e))
        if T & 1:
            st.append((I(f'buffer_store_dwordx4 {V(16 + 4*(T>>1))}, v12, s[4:7], s70 offen sc1', name='ZS'), e))
            st.append(('s_add_u32 s70, s70, 4096', e))
    if l == 0:
        fixed[5] = [Need(rr(V(FR, 48)))]
        for n, x in enumerate(sig_prep('W', sgZ)): fixed[n] = [x]
        for n, x in enumerate(sig_go(sgZ)): fixed[6+n] = [x]
    weave(k, mf, fixed, st)

def prepass_issue():
    k('s_cmp_lg_u32 s75, 0')
    k.begin('pw', 's_cbranch_scc1')
    k(f"""
    v_cmp_lt_u32 vcc, 27, v0
    s_mul_i32 s50, s72, {8*3456}
    s_mul_i32 s51, s{sJ}, 448
    s_add_u32 s50, s50, s51
    v_mov_b32 v21, {3456 - 448}
    v_cndmask_b32 v20, 0, v21, vcc
    v_add_u32 v20, v20, v1
    """)
    setexec(56)
    for rp in range(4):
        for mat in range(2):
            k(f's_add_u32 m0, s73, {mat*3584 + rp*896}')
            k(f'buffer_load_dwordx4 v20, s[{16+4*mat}:{19+4*mat}], s50 offen lds', name='RAW')
        k(f's_add_u32 s50, s50, {2*3456}')
    allexec()
    k.end()
    k('s_cmp_lg_u32 s75, 1')
    k.begin('pd', 's_cbranch_scc1')
    k('s_mul_i32 s50, s2, 10240')
    for n in range(10):
        if n % 4 == 0:
            k(f's_mov_b32 m0, {3*7168 + n*1024}')
            if n: k('s_add_u32 s50, s50, 4096')
        k(f'buffer_load_dwordx4 v1, s[24:27], s50 offen offset:{(n % 4)*1024} lds', name='RAW')
    k.end()

def prepass_process():
    T0 = 88
    dummy = 'buffer_load_dword v13, off, s[32:35], 0 offset:1024'
    k('v_bfe_u32 v20, v0, 2, 2'); k('v_and_b32 v21, 3, v0'); k('v_and_b32 v22, 1, v0'); k('v_bfe_u32 v23, v0, 1, 1')
    k('s_cmp_lg_u32 s75, 0')
    k.begin('pw', 's_cbranch_scc1')
    k(f"""
    v_mul_u32_u24 v24, 448, v20
    v_mul_u32_u24 v25, 112, v3
    v_add3_u32 v24, v24, v25, s73
    v_lshl_add_u32 v25, v21, 4, v24
    v_lshl_add_u32 v26, v22, 4, v24
    v_lshl_add_u32 v26, v23, 3, v26
    v_mul_u32_u24 v27, 3584, v23
    v_lshl_add_u32 v27, v22, 3, v27
    v_add_u32 v27, v27, v24
    v_mul_u32_u24 v28, 143360, v3
    v_lshl_add_u32 v28, v2, 4, v28
    s_mul_i32 s50, s{sJ}, {4*143360}
    s_lshr_b32 s51, s72, 2
    s_mul_i32 s51, s51, 7168
    s_add_u32 s50, s50, s51
    s_and_b32 s51, s72, 3
    s_lshl_b32 s51, s51, 8
    s_add_u32 s50, s50, s51
    s_add_u32 s50, s50, {WS_WUF}
    s_add_u32 s51, s50, 4096
    """)
    k.need(names=['RAW'])
    for T in range(7):
        a, off = (25, (T >> 1)*3584 + 8*(T & 1)) if T < 4 else ((26, (T-4)*3584 + 64) if T < 6 else (27, 96))
        for h in range(2): k(f'ds_read_b64_tr_b16 {V(T0+4*T+2*h, 2)}, v{a} offset:{off + h*1792}')
    for T in range(7):
        k(f'buffer_store_dwordx4 {V(T0+4*T)}, v28, s[4:7], s{50 + (T >> 2)} offen offset:{(T & 3)*1024} sc1')
    for n in range(3): k(dummy)
    k.end()
    k('s_cmp_lg_u32 s75, 1')
    k.begin('pd', 's_cbranch_scc1')
    k(f"""
    v_mul_u32_u24 v24, 1280, v20
    v_add_u32 v24, {3*7168}, v24
    v_mul_u32_u24 v28, 80, v3
    v_lshl_add_u32 v26, v21, 4, v24
    v_add_u32 v25, v26, v28
    v_sub_u32 v26, v26, v28
    v_lshl_add_u32 v24, v22, 3, v24
    v_cmp_ne_u32 vcc, 0, v23
    v_sub_u32 v27, 1200, v28
    v_sub_u32 v29, 880, v28
    v_add_u32 v30, 320, v28
    v_cndmask_b32 v27, v28, v27, vcc
    v_cndmask_b32 v29, v30, v29, vcc
    v_add_u32 v27, v27, v24
    v_add_u32 v29, v29, v24
    v_mul_u32_u24 v28, 286720, v3
    v_lshl_add_u32 v28, v2, 4, v28
    s_lshr_b32 s50, s2, 2
    s_mul_i32 s50, s50, 5120
    s_and_b32 s51, s2, 3
    s_lshl_b32 s51, s51, 8
    s_add_u32 s50, s50, s51
    s_add_u32 s50, s50, {WS_WDF}
    s_add_u32 s51, s50, 4096
    s_add_u32 s52, s50, {4*286720}
    s_add_u32 s53, s52, 4096
    """)
    k.need(names=['RAW'])
    for jh in range(2):
        for T in range(5):
            if T < 2: a, off = 25, 320*jh + 8*T
            elif T < 4: a, off = 26, 1200 - 320*jh + 8*(T-2)
            else: a, off = (27 if jh == 0 else 29), 64
            for h in range(2): k(f'ds_read_b64_tr_b16 {V(T0+4*(5*jh+T)+2*h, 2)}, v{a} offset:{off + h*5120}')
    for jh in range(2):
        for T in range(5):
            k(f'buffer_store_dwordx4 {V(T0+4*(5*jh+T))}, v28, s[4:7], s{50 + 2*jh + (T >> 2)} offen offset:{(T & 3)*1024} sc1')
    k.end()
    k('s_cmp_lg_u32 s75, 2')
    k.begin('pi', 's_cbranch_scc1')
    for n in range(10): k(dummy)
    k.end()
    for n in range(10): k('phantom_vm')

def publish(xbase, stbase, pk, nm):
    a = pk + 12
    for n in range(5):
        k(f'v_cvt_pk_bf16_f32 v{pk+2*n}, v{R0+4*n}, v{R0+4*n+1}'); k(f'v_cvt_pk_bf16_f32 v{pk+2*n+1}, v{R0+4*n+2}, v{R0+4*n+3}')
        if n == 1: k(f'buffer_store_dwordx4 {V(pk)}, v1, s[4:7], s57 offen sc1', name=nm)
        if n == 3: k(f'buffer_store_dwordx4 {V(pk+4)}, v1, s[4:7], s58 offen sc1', name=nm)
    k(f'buffer_store_dwordx2 {V(pk+8,2)}, v4, s[4:7], s56 offen sc1', name=nm)
    k(f'v_mov_b32 v{a}, 0'); k(f'v_mov_b32 v{a+1}, 0')
    for n in range(10):
        k(f'v_dot2c_f32_bf16 v{a}, s60, v{pk+n}'); k(f'v_dot2c_f32_bf16 v{a+1}, v{pk+n}, v{pk+n}')
    k(f'v_permlane32_swap_b32 v{a}, v{a+1}')
    k(f'v_add_f32 v{a}, v{a}, v{a+1}'); k(f'v_mov_b32 v{a+1}, v{a}')
    k(f'v_permlane16_swap_b32 v{a}, v{a+1}')
    k(f'v_add_f32 v{a}, v{a}, v{a+1}')
    setexec(32, 16)
    k(f'buffer_store_dword v{a}, v5, s[4:7], s59 offen sc1', name=nm)
    allexec()
def pub_prep(xbase, stbase):
    return [f's_add_u32 s56, s{sXT}, {xbase}', f's_mul_i32 s59, s{sJ}, 1280', 's_add_u32 s57, s56, s59', 's_sub_u32 s58, s56, s59',
            f's_add_u32 s58, s58, {75*256}', f's_lshl_b32 s59, s{sJ}, 7', f's_add_u32 s59, s59, s{sST}', f's_add_u32 s59, s59, {stbase - 64}',
            's_mov_b32 s60, 0x3f803f80']

ML, MU, ZF, AD, ZA = 40, 48, 60, 30, 100
def d2_prep(l):
    L = lines(f"""
    s_and_b32 s50, s{sW}, 1
    s_lshl_b32 s50, s50, 4
    v_add_u32 v104, s50, v2
    s_lshr_b32 s54, s{sW}, 1
    s_or_b32 s51, s54, s{sCLS}
    s_cmp_eq_u32 s51, 0
    s_cselect_b32 s51, 32, 31
    v_sub_u32 v105, s51, v104
    v_cvt_f32_u32 v104, v104
    v_cvt_f32_u32 v105, v105
    v_cvt_f32_u32 v106, v3
    v_mul_f32 v104, {fl(1/32)}, v104
    v_mul_f32 v105, {fl(1/32)}, v105
    v_add_f32 v106, v106, v106
    v_cmp_eq_u32 vcc, 0, v3
    v_mul_f32 v107, v104, v106
    v_mul_f32 v108, v105, v106
    """)
    for (t, b, dst) in ((104, 107, ML), (105, 108, MU)):
        for q_ in range(4):
            kap, jh = q_ >> 1, q_ & 1
            L.append(f'v_fmamk_f32 v{109+q_}, v{t}, {fl(float(8*kap + jh))}, v{b}')
        L.append(f'v_mul_f32 v121, 0x41800000, v{t}')
        for q_ in range(4): L += [f'v_cos_f32 v{113+q_}, v{109+q_}', f'v_sin_f32 v{117+q_}, v{109+q_}']
        L.append('v_cos_f32 v121, v121')
        for q_ in range(4): L.append(f'v_cvt_pk_bf16_f32 v{dst+2*q_}, v{113+q_}, v{117+q_}')
        L.append('v_cndmask_b32 v113, v113, v121, vcc')
        for q_ in range(4): L.append(f'v_cvt_pk_bf16_f32 v{dst+2*q_+1}, v{113+q_}, -v{117+q_}')
    L += lines(f"""
    v_mul_u32_u24 v104, {8*12288}, v3
    s_mul_i32 s50, s{sW}, {64*12288}
    s_mul_i32 s51, s{sJ}, 12288
    s_add_u32 s50, s50, s51
    s_lshr_b32 s51, s{sCS}, 1
    s_lshl_b32 s51, s51, 8
    s_add_u32 s50, s50, s51
    s_add_u32 s70, s50, {WS_Z[l]}
    s_mul_i32 s71, s{sW}, 6144
    """)
    for n, x in enumerate((0, 4, 1, 5)):
        L += [f'v_xor_b32 v105, {x}, v2', f'v_lshl_add_u32 v{ZA+n}, v105, 4, v104']
    n1 = len(L)
    L += lines(f"""
    s_and_b32 s50, s{sCS}, 1
    s_xor_b32 s51, s50, 1
    s_cmp_lt_u32 s{sCS}, 2
    s_cselect_b32 s51, s50, s51
    s_xor_b32 s52, s54, 1
    s_cmp_eq_u32 s{sCS}, 0
    s_cselect_b32 s52, s54, s52
    s_lshl_b32 s50, s50, 7
    s_lshl_b32 s55, s54, 6
    s_add_u32 s50, s50, s55
    s_lshl_b32 s51, s51, 7
    s_lshl_b32 s52, s52, 6
    s_add_u32 s51, s51, s52
    v_lshrrev_b32 v104, 1, v3
    v_mul_u32_u24 v104, 6144, v104
    v_and_b32 v105, 1, v3
    v_lshl_add_u32 v104, v105, 10, v104
    v_add_u32 v104, {L_Z}, v104
    v_lshlrev_b32 v105, 6, v105
    v_xor_b32 v106, s50, v105
    v_xor_b32 v107, s51, v105
    v_add_u32 v106, v106, v104
    v_add_u32 v107, v107, v104
    v_and_b32 v108, 12, v2
    v_add_u32 v108, v108, v2
    """)
    def fin(T, base):
        return ['v_lshrrev_b32 v110, 4, v109', 'v_and_b32 v111, 15, v109', f'v_lshl_add_u32 v{AD+T}, v110, 11, v{base}',
                'v_and_b32 v110, 1, v110', 'v_lshlrev_b32 v110, 2, v110', 'v_xor_b32 v111, v111, v110', f'v_lshl_add_u32 v{AD+T}, v111, 2, v{AD+T}']
    L += ['v_mov_b32 v109, v108'] + fin(0, 106) + [f'v_xor_b32 v{AD+1}, 16, v{AD}']
    for T in (2, 3):
        L += [f'v_sub_u32 v109, {40 - 4*(T-2)}, v108', 'v_cmp_lt_u32 vcc, 31, v109', 'v_and_b32 v110, 6, v109', 'v_add_u32 v110, v110, v109',
              'v_cndmask_b32 v109, v109, v110, vcc']
        if T == 2: L += ['v_cmp_eq_u32 vcc, 0, v2', 'v_nop', 'v_nop', 'v_cndmask_b32 v109, v109, 34, vcc']
        L += fin(T, 107)
    L += ['v_cmp_gt_u32 vcc, 8, v2', 'v_and_b32 v110, 6, v2', 'v_add3_u32 v110, v110, v2, 32', 'v_sub_u32 v109, 16, v2',
          'v_cndmask_b32 v109, v109, v110, vcc', 'v_cndmask_b32 v112, v107, v106, vcc'] + fin(4, 112)
    return L, n1

def wu_dma(f0, f1, sreg_lds, sreg_src):
    L = []
    for c, n in enumerate(range(f0, f1)):
        if c % 4 == 0: L += [f's_add_u32 m0, s{sreg_lds}, {n*1024}', f's_add_u32 s61, s{sreg_src}, {n*1024}']
        L.append(I(f'buffer_load_dwordx4 v1, s[4:7], s61 offen offset:{(c % 4)*1024} sc1 lds', name='WU'))
    return L
CSA = 128
def cs_part(f0, f1):
    for c0 in range(f0, f1, 14):
        c1 = min(f1, c0 + 14)
        for n in range(c0, c1): k(f'ds_read_b128 {V(156+4*(n-c0))}, v8 offset:{n*1024}')
        for n in range(c0, c1):
            T = n % 7
            k(f'{MF} {V(CSA+4*T)}, {V(124)}, {V(156+4*(n-c0))}, {V(CSA+4*T) if n >= 7 else 0}')

def d2(l):
    N1 = opt('n1', 14)
    prep, n1 = d2_prep(l)
    emit(sig_prep(f'Z{l}', sgZ))
    if l == 0: emit(poll_issue('W'))
    k(f's_mul_i32 s76, s{sSIG}, 143360'); k(f's_add_u32 s76, s76, {WS_WUF}')
    if l == 0: k(f's_mul_i32 s77, s{sW}, {5*7168}')
    else: k(f's_mul_i32 s77, s{sW}, {12*1024}'); k(f's_add_u32 s77, s77, {91*1024}')
    k('s_add_u32 s76, s76, s77')
    cut = opt('cut', 150)
    emit(prep[:cut])
    k.need(names=['ZS'])
    emit(sig_go(sgZ))
    stamp(f'd1e_{l}')
    if l == 0:
        emit(poll_wait())
        stamp('wp')
        emit(wu_dma(0, N1, 77, 76))
    emit(prep[cut:])
    emit(pub_prep(WS_X1[l], WS_ST[l]))
    emit(sig_prep(f'X1{l}', sgX1))
    emit(poll_issue(f'Z{l}'))
    emit(poll_wait())
    stamp(f'd2p_{l}')
    for p in range(3):
        for hh in range(2):
            k(f's_add_u32 m0, s71, {L_Z + p*2048 + hh*1024}')
            k(f's_add_u32 s50, s70, {p*4096 + hh*4*8*12288}')
            k(f'buffer_load_dwordx4 v{ZA + 2*(p & 1) + hh}, s[4:7], s50 offen sc1 lds')
    if l == 0:
        k('v_add_u32 v8, s77, v1')
        for r in range(4): k(f'v_mov_b32 v{124+r}, 0x3f803f80')
        k.need(names=['WU'])
        cs_part(0, N1)
    k('s_waitcnt vmcnt(0)'); k('s_barrier')
    stamp(f'd2l_{l}')
    order = [(4, 0), (4, 1)] + [(T, kap) for T in range(4) for kap in range(2)]
    for n, (T, kap) in enumerate(order):
        for h in range(2):
            k(f'ds_read2st64_b32 {V(ZF+4*n+2*h, 2)}, v{AD+T} offset0:{48*kap + 2*h} offset1:{48*kap + 2*h + 1}')
    r4 = V(R0+16)
    k(f'{MF} {V(56)}, {V(ZF)}, {V(ML)}, {r4}')
    k(f'{MF} {r4}, {V(ZF)}, {V(MU)}, {r4}')
    k(f'{MF} {V(56)}, {V(ZF+4)}, {V(ML+4)}, {V(56)}')
    k(f'{MF} {r4}, {V(ZF+4)}, {V(MU+4)}, {r4}')
    for n, (T, kap) in enumerate(order):
        if T < 4: k(f'{MF} {V(R0+4*T)}, {V(ZF+4*n)}, {V((ML if T < 2 else MU) + 4*kap)}, {V(R0+4*T)}')
    k('s_barrier')
    for r in range(4): k(f'v_cndmask_b32 v{R0+16+r}, v{R0+16+r}, v{56+r}, s[66:67]')
    publish(WS_X1[l], WS_ST[l], 12, 'XS')
    N2 = opt('n2', 6)
    f0, f1 = (N1, 35) if l == 0 else (0, 13)
    emit(wu_dma(f0, f0+N2, 77, 76))
    up_prep(l)
    k.need(names=['XS']); k('s_barrier')
    emit(sig_go(sgX1))
    stamp(f'd2e_{l}')
    emit(wu_dma(f0+N2, f1, 77, 76))

ACC = [12, 68]; BRG = 124; XR = 152; XD = 5; K1 = 192; SS = 196; NM = 200; TM = 204
def acc(h, T, mi): return ACC[h] + (2*T + mi)*4
def epi_stream(h, l, e0):
    st = []
    def grp(G, U, k1, ss, dst):
        for r in range(4): st.append(f'v_mul_f32 v{U+r}, v{G+r}, v{U+r}')
        for r in range(4): st.append(f'v_mul_f32 v{G+r}, v{G+r}, v{k1}')
        for r in range(4): st.append(f'v_exp_f32 v{G+r}, v{G+r}')
        for r in range(4): st.append(f'v_fma_f32 v{G+r}, v{G+r}, v{ss}, v{ss}')
        for r in range(4): st.append(f'v_rcp_f32 v{G+r}, v{G+r}')
        for r in range(4): st.append(f'v_mul_f32 v{U+r}, v{U+r}, v{G+r}')
        st.append(f'v_cvt_pk_bf16_f32 v{dst}, v{U}, v{U+1}'); st.append(f'v_cvt_pk_bf16_f32 v{dst+1}, v{U+2}, v{U+3}')
    nm = f'H{h}'
    for mi in range(2):
        d = acc(h, 0, mi)
        grp(acc(h, 0, mi), acc(h, 2, mi), K1+2*h+mi, SS+2*h+mi, d)
        grp(acc(h, 1, mi), acc(h, 3, mi), K1+2*h+mi, SS+2*h+mi, d+2)
        st.append(I(f'buffer_store_dwordx4 {V(d)}, v1, s[4:7], s{76+2*h+mi} offen sc1', name=nm))
    d = acc(h, 4, 0)
    grp(acc(h, 4, 0), acc(h, 5, 0), K1+2*h, SS+2*h, d)
    grp(acc(h, 4, 1), acc(h, 5, 1), K1+2*h+1, SS+2*h+1, d+2)
    for r in range(4): st.append(f'v_permlane32_swap_b32 v{acc(h,6,0)+r}, v{acc(h,6,1)+r}')
    st.append(f'v_cndmask_b32 v{TM+2}, v{K1+2*h+1}, v{K1+2*h}, s[66:67]')
    st.append(f'v_cndmask_b32 v{TM+3}, v{SS+2*h+1}, v{SS+2*h}, s[66:67]')
    st.append(f'v_permlane32_swap_b32 v{d}, v{d+2}'); st.append(f'v_permlane32_swap_b32 v{d+1}, v{d+3}')
    st.append(I(f'buffer_store_dwordx4 {V(d)}, v6, s[4:7], s{76+2*h} offen sc1', name=nm))
    d = acc(h, 6, 0)
    grp(d, acc(h, 6, 1), TM+2, TM+3, d)
    st.append(I(f'buffer_store_dwordx2 {V(d,2)}, v7, s[4:7], s{76+2*h} offen sc1', name=nm))
    return [(x, e0) for x in st]

def up_prep(l):
    k(f'v_add_u32 v9, {63*1024}, v1'); k(f'v_add_u32 v10, {126*1024}, v1')
    k(f's_mul_i32 s50, s{sCSU}, {4*20480}')
    for rt in range(4): k(f's_add_u32 s{72+rt}, s50, {WS_X1[l] + rt*20480}')
    k(f's_lshl_b32 s80, s{sCSU}, 12'); k(f's_add_u32 s80, s80, {WS_ST[l]}')
    if l == 0:
        k(f"""
        v_lshrrev_b32 v30, 5, v0
        v_mul_u32_u24 v30, 57344, v30
        v_lshl_add_u32 v30, v2, 4, v30
        v_and_b32 v31, 1, v3
        v_lshl_add_u32 v6, v31, 8, v30
        v_add_u32 v6, 1024, v6
        v_lshl_add_u32 v7, v31, 3, v30
        v_add_u32 v7, 1536, v7
        s_mul_i32 s81, s{sJ}, 286720
        s_mul_i32 s50, s{sW}, {70*1024}
        s_add_u32 s81, s81, s50
        s_add_u32 s81, s81, {WS_WDF}
        """)
def wdld(n): return [f'buffer_load_dwordx4 {wdreg(n)}, v1, s[4:7], s81 offen offset:{(n % 4)*1024} sc1'] + (['s_add_u32 s81, s81, 4096'] if n % 4 == 3 else [])

def up(l):
    def brd(n):
        f = n % 140
        a, off = (1, f) if f < 63 else ((9, f-63) if f < 126 else (10, f-126))
        return f'ds_read_b128 {V(BRG + 4*(n % 7))}, v{a} offset:{off*1024}'
    def xld(n, mi):
        h, ks = divmod(n, 20)
        return f'buffer_load_dwordx4 {V(XR + 8*(n % XD) + 4*mi)}, v1, s[4:7], s{72+2*h+mi} offen offset:{(ks % 4)*1024} sc1'
    def xadv(n):
        h, ks = divmod(n, 20)
        return [f's_add_u32 s{72+2*h+mi}, s{72+2*h+mi}, 4096' for mi in range(2)] if ks % 4 == 3 else []
    SL = ACC[1]
    def first_loads():
        emit(poll_issue(f'X1{l}')); emit(poll_wait())
        stamp(f'upp_{l}')
        for n in range(XD-1):
            for mi in range(2): k(xld(n, mi))
            emit(xadv(n))
    k(f's_mul_i32 s50, s{sCSU}, {4*57344}'); k(f's_mul_i32 s51, s{sSIG}, {7*256}'); k('s_add_u32 s50, s50, s51')
    for rt in range(4): k(f's_add_u32 s{76+rt}, s50, {WS_H[l] + rt*57344}')
    if l == 0:
        k.need(names=['WU'])
        stamp('wu')
        cs_part(opt('n1', 14), 35)
        k(f's_mul_i32 s50, s{sW}, 448'); k(f's_add_u32 s50, s50, {L_CSP}')
        k('v_lshl_add_u32 v12, v2, 2, s50')
        for T in range(7): k(f'ds_write_b32 v12, v{CSA+4*T} offset:{64*T}')
        first_loads()
        k('s_barrier')
        k('v_min_u32 v12, 55, v0'); k('v_lshlrev_b32 v12, 3, v12'); k(f'v_add_u32 v13, {L_CSP}, v12')
        for n in range(4): k(f'ds_read_b64 {V(14+2*n, 2)}, v13 offset:{448*n}')
        for n in range(6): k(brd(n))
        for h in range(2):
            k(f'v_add_f32 v{14+h}, v{14+h}, v{16+h}'); k(f'v_add_f32 v{18+h}, v{18+h}, v{20+h}'); k(f'v_add_f32 v{14+h}, v{14+h}, v{18+h}')
        k(f'v_add_u32 v13, {L_CS}, v12')
        k('ds_write_b64 v13, v[14:15]')
        k('s_waitcnt lgkmcnt(0)')
    else:
        first_loads()
        for n in range(6): k(brd(n))
        k.need(names=['WU']); k('s_barrier')
    wdn = [0]
    NWD = [opt('wa', 32), opt('wb', 22)] if l == 0 else [0, 0]
    for h in range(2):
        mf = []; fixed = {}
        def fx(g, x, first=False):
            L = fixed.setdefault(g, [])
            L.insert(0, x) if first else L.append(x)
        for ks in range(20):
            n = 20*h + ks
            for T in range(7):
                g = len(mf); f = 7*n + T
                for mi in range(2):
                    a = V(acc(h, T, mi))
                    mf.append(f'{MF} {a}, {V(BRG+4*T)}, {V(XR + 8*(n % XD) + 4*mi)}, {a if (ks or h) else 0}')
                if f + 6 < 280: fx(g, brd(f+6))
                if T % 2 == 0 and f + 1 < 280:
                    nxt = [BRG + 4*((f+1) % 7)] + ([BRG + 4*((f+2) % 7)] if T < 6 else [])
                    fx(g+1, Need([x for b in nxt for x in rr(V(b))]), True)
            g0 = 14*ks
            if n + XD - 1 < 40:
                fx(g0+3, xld(n+XD-1, 0)); fx(g0+7, xld(n+XD-1, 1))
                for q_, x in enumerate(xadv(n+XD-1)): fx(g0+8+2*q_, x, True)
            if n + 1 < 40: fx(g0+12, Need(rr(V(XR + 8*((n+1) % XD), 8))), True)
            if h == 0 and ks < 4:
                for c in range(4): fx(g0 + (1, 5, 9, 13)[c], f'buffer_load_dword v{SL+4*ks+c}, v5, s[4:7], s80 offen offset:{1024*ks + 256*c} sc1')
            k0 = 4 if h == 0 else 0
            if ks >= k0:
                cnt = NWD[h]*(ks-k0+1)//(20-k0) - NWD[h]*(ks-k0)//(20-k0)
                free = [11, 5, 1] + ([3, 7] if n + XD - 1 >= 40 else [])
                for c in range(cnt):
                    w_ = wdld(wdn[0]); wdn[0] += 1
                    fx(g0 + sorted(free[:cnt])[c], w_[0])
                    if len(w_) > 1: fx(g0 + sorted(free[:cnt])[c] + 1, w_[1], True)
        st = []
        if h == 0:
            for rt in range(4):
                b = SL + 4*rt
                st += [(x, 14*(rt+3)) for x in [f'v_add_f32 v{b}, v{b}, v{b+1}', f'v_add_f32 v{b+2}, v{b+2}, v{b+3}', f'v_add_f32 v{b}, v{b}, v{b+2}',
                       f'v_mov_b32 v{b+1}, v{b}', f'v_permlane32_swap_b32 v{b}, v{b+1}', f'v_add_f32 v{b}, v{b}, v{b+1}',
                       f'v_mov_b32 v{b+1}, v{b}', f'v_permlane16_swap_b32 v{b}, v{b+1}',
                       f'v_mul_f32 v{NM+rt}, {fl(-1/640)}, v{b}', f'v_mul_f32 v{b+1}, {fl(1/640)}, v{b+1}',
                       f'v_fma_f32 v{b+1}, -v{NM+rt}, v{NM+rt}, v{b+1}', f'v_max_f32 v{b+1}, 0, v{b+1}',
                       f'v_add_f32 v{SS+rt}, {fl(1e-5)}, v{b+1}', f'v_rsq_f32 v{K1+rt}, v{SS+rt}',
                       f'v_mul_f32 v{K1+rt}, {fl(-1.4426950408889634)}, v{K1+rt}']]
            st = [(f'v_lshlrev_b32 v{TM+7}, 4, v3', 2), (f'v_add_u32 v{TM+7}, {L_CS}, v{TM+7}', 2)] + st
            KS0 = 11
            def capg(g): return 2 - sum(slots(x if isinstance(x, I) else I(x)) for x in fixed.get(g, []) if slots(x if isinstance(x, I) else I(x)) >= 1)
            firstcs = None
            for T in range(7):
                g0 = 14*(KS0 + T) + 2*T
                c = acc(1, T, 1)
                gr = g0 - 3
                while capg(gr) < 2: gr -= 1
                x = I(f'ds_read_b128 {V(c)}, v{TM+7} offset:{64*T}')
                if T == 0: firstcs = x
                fx(gr, x)
                ops = [f'v_fmac_f32 v{acc(0,T,mi)+r}, v{NM+mi}, v{c+r}' for mi in range(2) for r in range(4)]
                g = g0 + 4
                while ops:
                    cap = capg(g)
                    while cap >= 1 and ops: fx(g, ops.pop(0)); cap -= 1
                    g += 1
                if g > g0 + 14: print('warn fmac window', T, g - g0)
                st += [(f'v_mul_f32 v{acc(1,T,mi)+r}, v{NM+2+mi}, v{c+r}', g) for mi in range(2) for r in range(4)]
        else:
            st = epi_stream(0, l, 4) + [(x, 200) for x in sig_prep(f'HA{l}', sgH)]
        n0 = len(k.ins)
        left = weave(k, mf, fixed, st)
        if h == 0:
            pos = k.ins.index(firstcs)
            assert all(not (x.text.startswith(f'v_mul_f32 v{K1+rt},')) for x in k.ins[pos:] for rt in range(4)), 'stats not done before cs'
        print('up half', h, 'leftover', left)
        stamp(f'up{h}_{l}')
    k.need(names=['H0'])
    emit(sig_go(sgH))
    if l == 0:
        while wdn[0] < 70: emit(wdld(wdn[0])); wdn[0] += 1
    ep = [x for x, e in epi_stream(1, l, 0)]
    cut = opt('pa', 110)
    emit(ep[:cut]); emit(poll_issue(f'HA{l}')); emit(ep[cut:])
    stamp(f'upe_{l}')

def down_variant(l, own_is_A):
    HR = 124; DA = 12
    SP = opt('sp', 7)
    if own_is_A:
        seq = [(0, ks) for ks in range(14)] + [(3, ks) for ks in range(SP)] + [(1, ks) for ks in range(14)] + [(2, ks) for ks in range(14)] + [(3, ks) for ks in range(SP, 14)]
        firstB, pB = 14 + SP, opt('pba', 13)
    else:
        seq = [(p, ks) for p in range(4) for ks in range(14)]
        firstB, pB = 28, opt('pbb', 16)
    def hld(n):
        p, ks = seq[n]
        return [f'buffer_load_dwordx4 {V(HR + 4*(n % 14))}, v1, s[4:7], s{72+p} offen offset:{(ks % 4)*1024} sc1'] + \
               ([f's_add_u32 s{72+p}, s{72+p}, 4096'] if ks % 4 == 3 else [])
    HD = 13
    emit(poll_wait())
    stamp(f'dnp_{l}')
    for n in range(HD): emit(hld(n))
    mf = []; fixed = {}
    def fx(g, x, first=False):
        L = fixed.setdefault(g, [])
        L.insert(0, x) if first else L.append(x)
    nxt = HD; ends = {}
    for n, (p, ks) in enumerate(seq):
        g = len(mf)
        for T in range(5):
            a = V(DA + 20*p + 4*T) if p < 3 else V(R0 + 4*T)
            mf.append(f'{MF} {a}, {wdreg(5*ks+T)}, {V(HR+4*(n % 14))}, {a if (ks or p == 3) else 0}')
        if n == pB - 4:
            for c, x in enumerate(poll_issue(f'HB{l}')): fx(g + (0, 2, 4)[c], x, True)
        if n == pB - 1:
            for x in poll_wait(): fx(g + 4, x)
        for c in range(2):
            if nxt < 56 and nxt <= n + HD and (nxt < firstB or n >= pB):
                h_ = hld(nxt); nxt += 1
                fx(g + 2*c, h_[0])
                if len(h_) > 1: fx(g + 2*c + 1, h_[1], True)
        if n + 1 < 56: fx(g+3, Need(rr(V(HR + 4*((n+1) % 14)))), True)
        if ks == 13: ends[p] = n
    for c, x in enumerate(sig_go(sgH)): fx((0, 1, 2, 4, 5, 6, 7, 9)[c], x, True)
    fx(5*14 + 4, 's_barrier', True)
    LASTW = 56 - (14 - SP)
    for p in range(3):
        late = (ends[p] + 1 == LASTW)
        for T in range(5):
            g = 5*(ends[p]+1) + (1 + T if late else 9 + 5*T)
            fx(g, f'ds_write_b128 v{8+p}, {V(DA + 20*p + 4*T)} offset:{T*1024}')
    g = 5*LASTW + 8
    fx(g, 's_waitcnt lgkmcnt(0)', True); fx(g, 's_barrier')
    st = []
    rdorder = [5*s_ + T for T in range(5) for s_ in range(3)]
    for c, n in enumerate(rdorder): fx(g + 1 + c, f'ds_read_b128 {V(DA+4*n)}, v200 offset:{n*1024}')
    for T in range(5):
        for r in range(4): st.append((f'v_add_f32 v{DA+4*T+r}, v{DA+4*T+r}, v{DA+20+4*T+r}', g + 9 + 3*T))
        for r in range(4): st.append((f'v_add_f32 v{DA+4*T+r}, v{DA+4*T+r}, v{DA+40+4*T+r}', g + 9 + 3*T))
    pre = pub_prep(WS_X2, WS_ST[2]) + sig_prep('X20', sgX2) if l == 0 else nat_addr(72, 73, 74, 75)
    st = [(x, 150) for x in pre] + st
    k.need(names=['H1'])
    left = weave(k, mf, fixed, st)
    print('down leftover', left)
    for n in range(20): k(f'v_add_f32 v{R0+n}, v{R0+n}, v{DA+n}')

def down(l):
    k(f"""
    s_mul_i32 s50, s{sCS}, {4*57344}
    s_mul_i32 s51, s{sW}, {14*1024}
    s_add_u32 s50, s50, s51
    s_add_u32 s50, s50, {WS_H[l]}
    s_xor_b32 s54, s{sW}, 1
    s_cmp_lt_u32 s{sW}, 2
    s_cselect_b32 s55, s54, 0
    s_cselect_b32 s56, 2, 1
    s_cselect_b32 s57, 3, s54
    s_mul_i32 s52, s{sW}, 57344
    s_add_u32 s75, s50, s52
    """)
    for p in range(3):
        k(f's_mul_i32 s52, s{55+p}, 57344'); k(f's_add_u32 s{72+p}, s50, s52')
        k(f's_sub_u32 s52, s{sW}, s{55+p}'); k('s_sub_u32 s52, s52, 1'); k('s_and_b32 s52, s52, 3')
        k(f's_mul_i32 s53, s{55+p}, 3'); k('s_add_u32 s52, s52, s53'); k('s_mul_i32 s52, s52, 5120')
        k(f's_add_u32 s52, s52, {L_RED}'); k(f'v_add_u32 v{8+p}, s52, v1')
    k(f's_mul_i32 s52, s{sW}, 15360'); k(f's_add_u32 s52, s52, {L_RED}'); k('v_add_u32 v200, s52, v1')
    emit(sig_prep(f'HB{l}', sgH))
    k(f's_cmp_ge_u32 s{sW}, 2')
    k.begin('dA', 's_cbranch_scc1'); down_variant(l, True); k.end()
    k(f's_cmp_lt_u32 s{sW}, 2')
    k.begin('dB', 's_cbranch_scc1'); down_variant(l, False); k.end()
    k('s_waitcnt vmcnt(0) lgkmcnt(0)')
    stamp(f'dnm_{l}')
    if l == 0:
        publish(WS_X2, WS_ST[2], 32, 'X2S')
        k('s_barrier')
        k(f's_mul_i32 s51, s{sW}, 37'); k('s_mul_i32 s51, s51, 21846'); k('s_lshr_b32 s51, s51, 16'); k('s_lshl_b32 s51, s51, 10')
        k(f's_mul_i32 s50, s{sJ}, 51200'); k('s_add_u32 s50, s50, s51'); k(f's_add_u32 s50, s50, {WS_BF}'); k(f's_add_u32 s51, s51, {L_B}')
        NB = opt('nb', 6)
        k('s_mov_b32 s76, s50'); k('s_mov_b32 s77, s51')
        emit(wu_dma(0, NB, 77, 76))
        emit(gen_M2())
        k.need(names=['X2S'])
        emit(sig_go(sgX2))
        stamp(f'dne_{l}')
        emit(wu_dma(NB, 13, 77, 76))
    else:
        pk = 32
        for n in range(5):
            k(f'v_cvt_pk_bf16_f32 v{pk+2*n}, v{R0+4*n}, v{R0+4*n+1}'); k(f'v_cvt_pk_bf16_f32 v{pk+2*n+1}, v{R0+4*n+2}, v{R0+4*n+3}')
            if n == 1: k(f'buffer_store_dwordx4 {V(pk)}, v72, s[12:15], 0 offen')
            if n == 3: k(f'buffer_store_dwordx4 {V(pk+4)}, v73, s[12:15], 0 offen')
        k(f'buffer_store_dwordx2 {V(pk+8,2)}, v74, s[12:15], 0 offen')
        stamp(f'dne_{l}')

def main():
    prologue()
    k(f's_cmp_lg_u32 s{sW}, 0')
    k.begin('w0', 's_cbranch_scc1')
    k(f'v_lshrrev_b32 v12, 5, v0'); k(f'v_mul_u32_u24 v12, {MBSZ - 512}, v12'); k('v_add_u32 v12, v12, v1')
    for r in range(4): k(f'v_mov_b32 v{16+r}, 0')
    k('s_lshl_b32 s50, s2, 9')
    for n in range(5):
        k('buffer_store_dwordx4 v[16:19], v12, s[4:7], s50 offen sc1')
        k(f's_add_u32 s50, s50, {2*MBSZ}')
    k.end()
    prepass_issue()
    k(f"""
    s_lshl_b32 s50, s{sJ}, 3
    s_lshl_b32 s51, s{sW}, 1
    s_add_u32 s50, s50, s51
    s_lshr_b32 s51, s50, 5
    s_lshl_b32 s51, s51, 5
    s_and_b32 s50, s50, 31
    s_lshl_b32 s50, s50, 6
    s_add_u32 s50, s50, s51
    s_add_u32 s50, s50, s{sCLS}
    s_mul_i32 s50, s50, 1280
    v_cmp_lt_u32 vcc, 9, v0
    v_mov_b32 v21, {64*1280 - 1280}
    v_cndmask_b32 v20, 0, v21, vcc
    v_lshl_add_u32 v20, v0, 7, v20
    """)
    setexec(20); k('buffer_load_dword v15, v20, s[8:11], s50 offen'); allexec()
    stamp('iss0')
    emit(ids2())
    def arrive():
        k(f's_cmp_lg_u32 s{sW}, 0')
        k.begin('w0', 's_cbranch_scc1')
        k('s_and_b32 s50, s2, 3'); k('s_lshl_b32 s50, s50, 6'); k('s_add_u32 s88, s32, s50'); k('s_addc_u32 s89, s33, 0')
        k(I('s_nop 0')); k.ins[-1].text = 's_waitcnt vmcnt(9)'; k.ins[-1].kind = 'salu'
        k('s_atomic_add s90, s[88:89], 0')
        k.end()
    gen_B(arrive)
    emit(gen_M2())
    stamp('gen')
    emit(nat_addr(32, 33, 34, 35))
    k('v_lshl_add_u32 v35, v3, 4, v35')
    if o.get('fine'): k('s_waitcnt vmcnt(0)'); stamp('rawland')
    for ks in range(10):
        if ks % 2 == 0: k(f's_lshl_b32 s50, s{94 + ks//2}, 7')
        for h in range(2): k(f'buffer_load_dwordx4 {V(A0 + 8*ks + 4*h)}, v35, s[8:11], s50 offen offset:{(ks & 1)*64 + h*640}')
    k(f'buffer_load_dwordx4 {V(R0+8)}, v32, s[8:11], 0 offen')
    k(f'buffer_load_dwordx4 {V(R0+12)}, v33, s[8:11], 0 offen')
    k(f'buffer_load_dwordx2 {V(R0+18,2)}, v34, s[8:11], 0 offen')
    stamp('issA')
    if o.get('fine'): k('s_waitcnt vmcnt(0)'); stamp('Aland')
    prepass_process()
    stamp('pre')
    k(f'v_add_u32 v8, {L_B}, v1')
    k('s_waitcnt lgkmcnt(0)'); k('s_barrier')
    k(f"""
    s_lshl_b32 s50, s{sCS}, 2
    s_add_u32 s50, s50, s{sW}
    s_min_u32 s50, s50, 99
    s_lshl_b32 s50, s50, 9
    v_add_u32 v12, s50, v8
    ds_read_b128 v[16:19], v12
    s_mul_i32 s51, s{sJ}, 51200
    s_add_u32 s50, s50, s51
    s_add_u32 s50, s50, {WS_BF}
    """)
    setexec(32); k('buffer_store_dwordx4 v[16:19], v1, s[4:7], s50 offen sc1'); allexec()
    stamp('ini')
    stop('pre')
    for l in range(2):
        if l == 0:
            d1_body(0, None)
            for n in range(10):
                src = R0 + 8 + n if n < 8 else R0 + 10 + n
                if n in (7, 9):
                    k(f'v_lshlrev_b32 v{R0+2*n}, 16, v{src}'); k(f'v_and_b32 v{R0+2*n+1}, 0xffff0000, v{src}')
                else:
                    k(f'v_and_b32 v{R0+2*n+1}, 0xffff0000, v{src}'); k(f'v_lshlrev_b32 v{R0+2*n}, 16, v{src}')
        else:
            emit(gen_T5())
            k(f'v_add_u32 v8, {L_B}, v1')
            k(f's_add_u32 s72, s{sXT}, {WS_X2}'); k(f's_add_u32 s74, s{sST}, {WS_ST[2]}')
            for n in range(5): k(f's_lshl_b32 s{94+n}, s{94+n}, 11'); k(f's_add_u32 s{94+n}, s{94+n}, s72')
            k('v_add_u32 v36, 10240, v1')
            def ald(n):
                ks, h = n >> 1, n & 1
                return [f'buffer_load_dwordx4 {V(A0 + 4*n)}, v{36 if h else 1}, s[4:7], s{94 + ks//2} offen offset:{(ks & 1)*1024} sc1']
            emit(poll_issue('X20')); emit(poll_wait())
            stamp('d1p_1')
            NUP = opt('nup', 8)
            for n in range(NUP): emit(ald(n))
            for n in range(4): k(f'buffer_load_dword v{32+n}, v5, s[4:7], s74 offen offset:{256*n} sc1')
            k.need(names=['WU']); k('s_barrier')
            stamp('d1b_1')
            d1_body(1, (NUP, ald))
        stop(f'd1_{l}')
        d2(l); stop(f'd2_{l}')
        up(l); stop(f'up_{l}')
        down(l); stop(f'dn_{l}')
try: main()
except Stop: pass
finish()
k('END:'); k('s_endpgm'); k('CODE_END:')
k.finish()
open(sys.argv[1], 'w').write(build([k], [(k.name, 256, 256, LDS)], single=True))
import json
json.dump(dict(stamps=stampnames, WS_TS=WS_TS, WS_WUF=WS_WUF, WS_WDF=WS_WDF, WS_Z=WS_Z, WS_X1=WS_X1, WS_X2=WS_X2, WS_ST=WS_ST, WS_H=WS_H), open(sys.argv[1] + '.json', 'w'))
print('insts', len(k.ins), 'hi', k.hi, 'nops', sum(1 for i in k.ins if i.kind == 'nop'))
```

```python
import re
from asmlib import NAME, HEADER_COMMENT, KA

REG = re.compile(r'^(-?)(abs\()?([vas])(\d+|\[(\d+):(\d+)\])\)?$')
def regs_of(tok):
    tok = tok.strip()
    if tok == 'vcc': return [('s', 'vcc_lo'), ('s', 'vcc_hi')]
    if tok in ('vcc_lo', 'vcc_hi', 'm0', 'exec_lo', 'exec_hi'): return [('s', tok)]
    if tok == 'exec': return [('s', 'exec_lo'), ('s', 'exec_hi')]
    m = REG.match(tok)
    if not m: return []
    if m.group(5) is not None: return [(m.group(3), n) for n in range(int(m.group(5)), int(m.group(6))+1)]
    return [(m.group(3), int(m.group(4)))]

TRANS = ('v_exp_f32', 'v_log_f32', 'v_rcp_f32', 'v_rsq_f32', 'v_sqrt_f32', 'v_sin_f32', 'v_cos_f32')
class I:
    __slots__ = ('text', 'op', 'kind', 'w', 'r', 'tag', 'name', 'c', 'ab', 'data', 'dpp', 'passes', 'xdl', 'need')
    def __init__(s, text, tag=None, name=None):
        s.text = text; s.tag = tag; s.name = name; s.w = []; s.r = []; s.c = []; s.ab = []; s.data = []
        s.dpp = False; s.passes = 0; s.xdl = False; s.need = None
        t = text.split(';')[0].strip()
        if t.endswith(':'): s.op = t; s.kind = 'label'; return
        if t.startswith('.'): s.op = t; s.kind = 'dir'; return
        parts = t.split(None, 1); op = s.op = parts[0]
        rest = parts[1] if len(parts) > 1 else ''
        rest2 = re.sub(r'(quad_perm|op_sel|op_sel_hi|neg_lo|neg_hi):\[[^\]]*\]', 'mod', rest)
        toks = [x.strip() for x in rest2.split(',')] if rest2 else []
        mods = []
        if toks:
            last = toks[-1].split(); toks[-1] = last[0]; mods = last[1:]
        R = [regs_of(x) for x in toks]
        flat = lambda L: [x for l in L for x in l]
        if op.startswith('v_mfma'):
            s.kind = 'mfma'; s.w = R[0]; s.ab = R[1] + R[2]; s.c = R[3]; s.r = s.ab + s.c
            if '16x16x32_bf16' in op: s.passes, s.xdl = 4, True
            elif '32x32x16_bf16' in op: s.passes, s.xdl = 8, True
            elif '16x16x4_f32' in op: s.passes, s.xdl = 8, False
            else: raise ValueError(op)
        elif op.startswith('v_'):
            s.kind = 'valu'
            s.dpp = op.endswith('_dpp')
            if op.startswith(('v_permlane', 'v_swap')): s.w = R[0] + R[1]; s.r = list(s.w)
            elif op.startswith(('v_add_co', 'v_addc_co', 'v_sub_co')): s.w = R[0] + R[1]; s.r = flat(R[2:])
            elif op.startswith(('v_fmac', 'v_dot2c', 'v_writelane')) or s.dpp: s.w = R[0]; s.r = flat(R)
            elif op == 'v_nop': pass
            else: s.w = R[0]; s.r = flat(R[1:])
        elif op.startswith('ds_read') or op.startswith('ds_bpermute') or op.startswith('ds_swizzle'):
            s.kind = 'dsr'; s.w = R[0]; s.r = flat(R[1:])
        elif op.startswith('ds_'):
            s.kind = 'dsw'; s.r = flat(R)
        elif op.startswith(('buffer_load', 'global_load')):
            if 'lds' in mods or '_lds_' in op: s.kind = 'dma'; s.r = flat(R) + [('s', 'm0')]
            else: s.kind = 'vld'; s.w = R[0]; s.r = flat(R[1:])
        elif op.startswith('buffer_store'):
            s.kind = 'vst'; s.r = flat(R); s.data = R[0]
        elif op.startswith('global_store'):
            s.kind = 'vst'; s.r = flat(R); s.data = R[1]
        elif op.startswith('buffer_atomic'):
            s.r = flat(R)
            if 'sc0' in mods: s.kind = 'vld'; s.w = R[0]
            else: s.kind = 'vst'
        elif op.startswith('s_atomic'):
            s.kind = 'smem'; s.r = flat(R)
            if 'glc' in mods: s.w = R[0]
        elif op == 'phantom_vm': s.kind = 'vst'
        elif op.startswith(('s_load', 's_memtime', 's_memrealtime')):
            s.kind = 'smem'; s.w = R[0]; s.r = flat(R[1:])
        elif op == 's_waitcnt': s.kind = 'wait'
        elif op == 's_nop': s.kind = 'nop'
        elif op == 's_barrier': s.kind = 'barrier'
        elif op.startswith(('s_cbranch', 's_branch', 's_endpgm', 's_setpc', 's_swappc')): s.kind = 'branch'
        elif op.startswith(('s_cmp', 's_bitcmp', 's_sleep', 's_setprio')): s.kind = 'salu'; s.r = flat(R)
        elif op.startswith('s_'):
            s.kind = 'salu'; s.w = R[0]; s.r = flat(R[1:])
        else: raise ValueError('unknown op ' + text)
    def states(s):
        if s.kind in ('label', 'dir', 'need') or s.op == 'phantom_vm': return 0
        if s.kind == 'nop': return int(s.text.split()[1]) + 1
        return 1

class Need(I):
    def __init__(s, regs=(), names=(), tag=None):
        s.text = ''; s.op = 'need'; s.kind = 'need'; s.tag = tag; s.name = None
        s.w = []; s.r = list(regs); s.c = []; s.ab = []; s.data = []; s.dpp = False; s.passes = 0; s.xdl = False; s.need = list(names)

def rr(spec):
    return regs_of(spec)

class K:
    def __init__(s, name, vgpr=512, sgpr=102, accum=256):
        s.name = name; s.vgpr = vgpr; s.sgpr = sgpr; s.accum = accum
        s.ins = []; s.tag = None; s._lab = 0
    def __call__(s, text, name=None):
        if isinstance(text, I):
            text.tag = s.tag; s.ins.append(text); return
        for l in text.strip('\n').split('\n'):
            l = l.strip()
            if not l or l.startswith(';'): continue
            s.ins.append(I(l, s.tag, name))
    def need(s, *specs, names=()):
        regs = [x for sp in specs for x in regs_of(sp)]
        s.ins.append(Need(regs, names, s.tag))
    def label(s, base='L'):
        s._lab += 1; return f'{base}{s._lab}'
    def begin(s, tag, branch_text):
        assert s.tag is None
        s._end = s.label('SKIP')
        s(f'{branch_text} {s._end}')
        s.ins.append(('begin', tag)); s.tag = tag
    def end(s):
        s.ins.append(('end', s.tag)); s.tag = None
        s(f'{s._end}:')
    def do_waits(s):
        out = []
        ops = {'vm': [], 'lg': []}
        done = {'vm': set(), 'lg': set()}
        pend = {}
        named = {}
        smem_out = False
        snap = None
        MAXC = {'vm': 63, 'lg': 15}
        def count_after(c, idx, cur):
            x = ops[c][idx]
            return sum(1 for y in ops[c][idx+1:] if y.tag is None or y.tag == x.tag or y.tag == cur)
        def apply_wait(c, n, cur):
            for idx in range(len(ops[c])):
                if idx not in done[c] and count_after(c, idx, cur) >= n: done[c].add(idx)
        for it in s.ins:
            if isinstance(it, tuple):
                if it[0] == 'begin': snap = {c: set(done[c]) for c in done}; snap_smem = smem_out; snap_pend = {r_: list(v_) for r_, v_ in pend.items()}
                else:
                    for c in done: done[c] = snap[c] | {i for i in done[c] if ops[c][i].tag == it[1]}
                    smem_out = smem_out or snap_smem
                    for r_, v_ in snap_pend.items():
                        for e_ in v_:
                            if e_ not in pend[r_]: pend[r_].append(e_)
                out.append(it); continue
            if it.kind == 'wait':
                m = re.search(r'vmcnt\((\d+)\)', it.text)
                if m: apply_wait('vm', int(m.group(1)), it.tag)
                m = re.search(r'lgkmcnt\((\d+)\)', it.text)
                if m:
                    n = int(m.group(1))
                    if n == 0: smem_out = False; apply_wait('lg', 0, it.tag)
                    elif not smem_out: apply_wait('lg', n, it.tag)
                out.append(it); continue
            req = {}
            def want(c, idx):
                if idx in done[c]: return
                n = min(count_after(c, idx, it.tag), MAXC[c])
                if c == 'lg' and smem_out: n = 0
                req[c] = min(req.get(c, 99), n)
            touched = list(it.r) + list(it.w)
            for rg in touched:
                for (c, idx) in pend.get(rg, []):
                    if rg not in it.r and ((c == 'vm' and it.kind == 'vld') or (c == 'lg' and it.kind == 'dsr' and ops[c][idx].kind == 'dsr' and not smem_out)): continue
                    want(c, idx)
            if it.kind == 'need':
                for nm in it.need:
                    for (c, idx) in named.get(nm, []): want(c, idx)
            if req:
                txt = 's_waitcnt ' + ' '.join(f'{"vmcnt" if c == "vm" else "lgkmcnt"}({n})' for c, n in sorted(req.items(), reverse=True))
                out.append(I(txt, it.tag))
                for c, n in req.items():
                    apply_wait(c, n, it.tag)
                    if c == 'lg' and n == 0: smem_out = False
            if it.kind == 'need': continue
            c = {'vld': 'vm', 'vst': 'vm', 'dma': 'vm', 'dsr': 'lg', 'dsw': 'lg', 'smem': 'lg'}.get(it.kind)
            if c:
                ops[c].append(it); idx = len(ops[c]) - 1
                if it.kind == 'smem': smem_out = True
                for rg in it.w: pend[rg] = [(c, idx)]
                if it.name: named.setdefault(it.name, []).append((c, idx))
            out.append(it)
        s.ins = out
    def do_hazards(s):
        out = []
        def need_states(p, c):
            n = 0
            pw = set(p.w)
            if p.kind == 'valu':
                vw = {x for x in pw if x[0] != 's'}; sw = {x for x in pw if x[0] == 's'}
                isdot = p.op.startswith('v_dot2')
                if vw:
                    if c.kind == 'mfma' and vw & set(c.r): n = max(n, 3 if isdot else 2)
                    if c.kind == 'valu':
                        if vw & set(c.r):
                            if c.op.startswith('v_permlane') or c.dpp: n = max(n, 2)
                            if c.op.startswith(('v_readlane', 'v_readfirstlane')): n = max(n, 1)
                            if p.op.startswith(TRANS) and not c.op.startswith(TRANS): n = max(n, 1)
                        if isdot and c.op != p.op and vw & (set(c.r) | set(c.w)): n = max(n, 3)
                    if isdot and c.kind in ('vst', 'vld', 'dsw', 'dsr', 'dma') and vw & set(c.r): n = max(n, 3)
                if sw:
                    if c.kind == 'valu' and sw & set(c.r): n = max(n, 4 if c.op.startswith(('v_readlane', 'v_writelane')) else 2)
                    if c.kind in ('vld', 'vst', 'dma') and sw & set(c.r): n = max(n, 5)
            elif p.kind == 'mfma':
                base = {4: 8, 8: 12}[p.passes] if p.xdl else {8: 10}[p.passes]
                if c.kind == 'mfma':
                    if pw & set(c.ab): n = max(n, base)
                    if pw & set(c.c):
                        if p.w == c.c and p.op == c.op: pass
                        elif p.xdl: n = max(n, base - 2)
                        elif not c.xdl: n = max(n, 8)
                    elif pw & set(c.w) and not (p.w == c.w and p.op == c.op): n = max(n, base)
                elif c.kind in ('valu', 'vld', 'vst', 'dsr', 'dsw', 'dma'):
                    if pw & (set(c.r) | set(c.w)): n = max(n, base)
                    if c.kind == 'valu' and p.xdl and set(p.c) & set(c.w): n = max(n, p.passes - 1)
            elif p.kind == 'salu':
                if ('s', 'm0') in pw and (c.kind == 'dma' or c.op.startswith('v_writelane')): n = max(n, 1)
            elif p.kind == 'vst':
                if len(p.data) >= 3 and set(p.data) & set(c.w): n = max(n, 2 if c.kind in ('valu', 'mfma') else 1)
            return n
        for it in s.ins:
            if isinstance(it, tuple): continue
            if it.kind not in ('label', 'dir', 'nop', 'wait', 'barrier', 'branch'):
                while True:
                    pad = 0; ppos = None
                    k = len(out) - 1
                    back = []; tot = 0
                    while k >= 0 and tot < 24:
                        y = out[k]; back.append(y); k -= 1
                        if y.tag is None or y.tag == it.tag: tot += y.states()
                    for pi, p in enumerate(back):
                        if p.kind in ('valu', 'mfma', 'salu', 'vst'):
                            n = need_states(p, it)
                            if n:
                                d = sum(y.states() for y in back[:pi] if y.tag is None or y.tag == p.tag or y.tag == it.tag)
                                if n - d > pad: pad = n - d; ppos = len(out) - 1 - pi
                    if pad <= 0: break
                    spot = None
                    for q in range(len(out) - 2, ppos - 1, -1):
                        if out[q].kind == 'mfma' and out[q+1].kind == 'mfma' and out[q].tag == it.tag and out[q+1].tag == it.tag:
                            spot = q; break
                    if spot is None:
                        out.append(I(f's_nop {pad-1}', it.tag)); break
                    out.insert(spot + 1, I(f's_nop {min(pad, 2)-1}', it.tag))
            out.append(it)
        s.ins = out
    def finish(s):
        s.do_waits(); s.do_hazards()
        hi = {'v': -1, 'a': -1, 's': -1}
        for it in s.ins:
            for (t, n) in list(it.r) + list(it.w):
                if isinstance(n, int): hi[t] = max(hi[t], n)
        assert hi['v'] < s.accum and s.accum + hi['a'] < s.vgpr and hi['s'] < s.sgpr, hi
        s.hi = hi
    def text(s):
        n = s.name
        out = [f'.globl {n}', '.p2align 8', f'.type {n},@function', f'{n}:']
        for it in s.ins:
            if it.op == 'phantom_vm': continue
            out.append(it.text if it.kind == 'label' else '    ' + it.text)
        return '\n'.join(out) + '\n'
    def desc(s):
        return f""".p2align 6
.amdhsa_kernel {s.name}
  .amdhsa_next_free_vgpr {s.vgpr}
  .amdhsa_next_free_sgpr {s.sgpr}
  .amdhsa_accum_offset {s.accum}
  .amdhsa_group_segment_fixed_size 0
  .amdhsa_kernarg_size 96
  .amdhsa_user_sgpr_count 2
  .amdhsa_user_sgpr_kernarg_segment_ptr 1
  .amdhsa_system_sgpr_workgroup_id_x 1
.end_amdhsa_kernel
"""

def slots(i):
    if i.kind == 'need': return 0
    if i.kind in ('salu', 'wait', 'nop', 'barrier', 'smem', 'branch', 'label'): return 0.5
    if i.kind == 'valu': return 2 if i.op.startswith(TRANS) or i.op.startswith('v_permlane') else 1
    if i.kind == 'dsr': return 1
    return 2


def deps(a, b):
    aw, ar, bw, br = set(a.w), set(a.r), set(b.w), set(b.r)
    if aw & (br | bw) or ar & bw: return True
    mem = ('vld', 'vst', 'dma', 'dsr', 'dsw', 'need', 'salu', 'wait', 'smem', 'barrier', 'branch', 'label')
    return a.kind in mem and b.kind in mem

def weave(k, mf, fixed=None, stream=None, window=24, tail=True):
    mk = lambda x: x if isinstance(x, I) else I(x)
    fixed = {g: [mk(x) for x in v] for g, v in (fixed or {}).items()}
    st = [(mk(x), e) for x, e in (stream or [])]
    for g, m in enumerate(mf):
        k(mk(m))
        cap = 2; free_scalar = 1; nvec = 0
        for x in fixed.get(g, []):
            c = slots(x)
            if c == 0:
                if nvec == 0 and free_scalar: free_scalar = 0
            elif c == 0.5:
                if nvec == 0 and free_scalar: free_scalar = 0
                else: cap -= 1
            else: cap -= c; nvec += 1
            k(x)
        last = None
        while st:
            cand = []
            for idx in range(min(window, len(st))):
                x, e = st[idx]
                if e > g: continue
                if any(deps(st[p][0], x) for p in range(idx)): continue
                c = slots(x)
                if c <= 0.5:
                    if nvec == 0 and free_scalar: cand.append((-1, idx)); break
                    c = 1 if c else 0
                    if x.kind == 'need' and nvec: continue
                if x.kind == 'dsr' and nvec: continue
                if c > cap: continue
                if last is not None and (x.op.startswith('v_permlane') or x.dpp) and set(last.w) & set(x.r): continue
                cand.append((0 if (c == 2) else 1, idx))
            if not cand: break
            cand.sort()
            idx = cand[0][1]
            x, e = st.pop(idx)
            c = slots(x)
            if c <= 0.5 and nvec == 0 and free_scalar: free_scalar = 0
            elif c <= 0.5: cap -= (1 if c else 0)
            else: cap -= c; nvec += 1
            k(x); last = x
            if cap <= 0: break
    if tail:
        for x, e in st: k(x)
        return len(st)
    return st
```

```python
import sys, struct
from asmx import *
from asmlib import build
o = dict(a.split('=') for a in sys.argv[2:])
STOP = o.get('stop', '')
STAMP = int(o.get('stamp', 0))
def opt(n, d): return int(o.get(n, d))
S, D, F = 2048, 640, 1728
def fl(x): return hex(struct.unpack('<I', struct.pack('<f', x))[0])
MBSZ = 256*4*128
PH = dict(W=0, Z0=1, X10=2, HA0=3, HB0=4, X20=5, Z1=6, X11=7, HA1=8, HB1=9)
WS_TS = 11*MBSZ
WS_WUF = 2 << 20
WS_WDF = WS_WUF + 32*143360
WS_Z = [WS_WDF + 8*286720 + l*3145728 for l in range(2)]
WS_X1 = [WS_Z[1] + 3145728 + l*2621440 for l in range(2)]
WS_X2 = WS_X1[1] + 2621440
WS_ST = [WS_X2 + 2621440 + l*131072 for l in range(3)]
WS_H = [WS_ST[2] + 131072 + l*7340032 for l in range(2)]
WS_BF = WS_H[1] + 7340032
WS_END = WS_BF + 8*51200
L_XCH = 93184
L_B = L_XCH + 12288
L_Z = 132096
L_RED = 93184
L_RAW = 73728
L_CSP = 156672
L_CS = 163328
LDS = 163840
sW, sXCD, sQ, sJ, sCS, sCLS, sSIG, sGAM, sCSU, sMB = range(36, 46)
sXT, sST = 64, 65
sgZ, sgX1, sgH, sgX2 = 84, 85, 86, 87
R0 = 212; WT = 232
def V(a, n=4): return f'v[{a}:{a+n-1}]'
def wdreg(n): return f'a[{4*n}:{4*n+3}]' if n < 64 else V(WT + 4*(n-64))
MF = 'v_mfma_f32_16x16x32_bf16'
k = K(NAME + '_kernel')
nstamp = [0]; stampnames = []
def stamp(name):
    if not STAMP: return
    if name in stampnames: n = stampnames.index(name)
    else: n = len(stampnames); stampnames.append(name)
    k('s_memrealtime s[62:63]' if STAMP == 1 else 's_memtime s[62:63]'); k('s_waitcnt lgkmcnt(0)')
    k(f'v_writelane_b32 v11, s62, {n}')
def stampL(name):
    if not STAMP or not o.get('fine'): return []
    if name in stampnames: n = stampnames.index(name)
    else: n = len(stampnames); stampnames.append(name)
    return ['s_memrealtime s[62:63]' if STAMP == 1 else 's_memtime s[62:63]', 's_waitcnt lgkmcnt(0)', f'v_writelane_b32 v11, s62, {n}']
def finish():
    if STAMP:
        k(f's_lshl_b32 s48, s{sMB}, 1'); k(f's_add_u32 s48, s48, {WS_TS}')
        k('v_lshlrev_b32 v12, 2, v0')
        k('buffer_store_dword v11, v12, s[4:7], s48 offen')
    k('s_endpgm')
class Stop(Exception): pass
def stop(name):
    if STOP == name:
        k('s_waitcnt vmcnt(0) lgkmcnt(0)'); raise Stop()
def setexec(n, lo=0):
    m = ((1 << n) - 1) << lo
    k(f's_mov_b32 exec_lo, {hex(m & 0xffffffff)}'); k(f's_mov_b32 exec_hi, {hex(m >> 32)}')
def allexec(): k('s_mov_b64 exec, -1')
def lines(s): return [l.strip() for l in s.strip().split('\n') if l.strip()]
def emit(L):
    for x in L: k(x)
MAXPOLL = 40000
def poll_issue(ph):
    return [f's_add_u32 s82, s92, {PH[ph]*MBSZ}', 's_addc_u32 s83, s93, 0', 's_load_dword s91, s[82:83], 0 glc']
def poll_wait():
    L = k.label('POLL'); X = k.label('POLLX')
    return ['s_waitcnt lgkmcnt(0)', 's_cmp_ge_u32 s91, 8', f's_cbranch_scc1 {X}', 's_mov_b32 s68, 0', f'{L}:',
            's_load_dword s91, s[82:83], 0 glc', 's_add_u32 s68, s68, 1', 's_waitcnt lgkmcnt(0)',
            's_cmp_ge_u32 s91, 8', f's_cbranch_scc1 {X}', f's_cmp_lt_u32 s68, {MAXPOLL}', f's_cbranch_scc1 {L}', f'{X}:']
SIGOFF = {sgZ: lambda l: (l >> 2)*512 + (l & 3)*32768, sgX1: lambda l: (l & 3)*512 + (l >> 2)*4096, sgH: lambda l: l*4096, sgX2: lambda l: l*4096}
def sig_prep(ph, sg): return [f's_add_u32 s89, s{sg}, {PH[ph]*MBSZ}', 's_add_u32 s88, s4, s89', 's_addc_u32 s89, s5, 0']
def sig_go(sg): return [f's_atomic_add s90, s[88:89], {SIGOFF[sg](l)}' for l in range(8)]

def prologue():
    k('s_cmp_ge_u32 s2, 256'); k('s_cbranch_scc1 END')
    k('s_getpc_b64 s[48:49]')
    k('PC0:')
    for s_, a in ((4, 'ws'), (16, 'wg'), (20, 'wu'), (24, 'wd'), (8, 'x'), (12, 'out'), (32, 'dbg')):
        k(f's_load_dwordx2 s[{s_}:{s_+1}], s[0:1], {KA[a]}')
    if STAMP: k('s_memrealtime s[62:63]' if STAMP == 1 else 's_memtime s[62:63]')
    k(f"""
    s_lshr_b32 s50, s2, 3
    s_lshl_b32 s50, s50, 11
    v_lshrrev_b32 v12, 4, v0
    v_lshl_add_u32 v12, v12, 7, s50
    v_min_u32 v12, CODE_END-PC0-4, v12
    global_load_dword v13, v12, s[48:49]
    v_lshrrev_b32 v3, 6, v0
    v_and_b32 v0, 63, v0
    v_readfirstlane_b32 s{sW}, v3
    """)
    for s_, n in ((4, 1 << 28), (16, D*F*2), (20, D*F*2), (24, D*F*2), (8, S*D*2), (12, S*D*2), (32, 256)):
        k(f's_mov_b32 s{s_+2}, {n}'); k(f's_mov_b32 s{s_+3}, 0x00020000')
    k(f"""
    v_lshlrev_b32 v1, 4, v0
    v_and_b32 v2, 15, v0
    v_lshrrev_b32 v3, 4, v0
    s_and_b32 s{sXCD}, s2, 7
    s_lshr_b32 s{sQ}, s2, 6
    s_bfe_u32 s{sJ}, s2, 0x30003
    s_lshl_b32 s{sCS}, s{sXCD}, 2
    s_add_u32 s{sCS}, s{sCS}, s{sQ}
    s_lshr_b32 s{sCLS}, s{sCS}, 1
    s_sub_u32 s50, 32, s{sCLS}
    s_cmp_eq_u32 s{sCS}, 1
    s_cselect_b32 s50, 16, s50
    s_bitcmp1_b32 s{sCS}, 0
    s_cselect_b32 s{sCLS}, s50, s{sCLS}
    """)
    k(f"""
    s_and_b32 s50, s{sCS}, 7
    s_lshl_b32 s51, s{sW}, 3
    s_add_u32 s50, s50, s51
    s_lshr_b32 s72, s{sCS}, 3
    s_mul_i32 s72, s72, 20
    s_add_u32 s72, s72, s50
    s_cmp_lt_u32 s2, 224
    s_cselect_b32 s75, 1, 2
    s_cmp_eq_u32 s{sW}, 3
    s_cselect_b32 s75, s75, 2
    s_cmp_lt_u32 s50, 20
    s_cselect_b32 s75, 0, s75
    s_mul_i32 s73, s{sW}, 7168
    s_add_u32 s73, s73, {L_RAW}
    """)
    if STAMP: k('v_mov_b32 v11, 0')
    k('s_waitcnt lgkmcnt(0)')
    if STAMP:
        k('v_writelane_b32 v11, s62, 0'); stampnames.append('start')

def ids2():
    return lines(f"""
    s_and_b32 s{sSIG}, s{sXCD}, 3
    s_lshl_b32 s50, s{sJ}, 2
    s_add_u32 s{sSIG}, s{sSIG}, s50
    s_and_b32 s{sGAM}, s{sXCD}, 4
    s_add_u32 s{sGAM}, s{sGAM}, s{sQ}
    s_lshl_b32 s{sCSU}, s{sGAM}, 2
    s_add_u32 s{sCSU}, s{sCSU}, s{sW}
    s_lshl_b32 s{sMB}, s2, 2
    s_add_u32 s{sMB}, s{sMB}, s{sW}
    s_lshl_b32 s{sMB}, s{sMB}, 7
    s_add_u32 s92, s4, s{sMB}
    s_addc_u32 s93, s5, 0
    s_lshl_b32 s50, s{sCS}, 2
    s_add_u32 s50, s50, s{sW}
    s_mul_i32 s{sXT}, s50, 20480
    s_lshl_b32 s{sST}, s50, 10
    s_mov_b32 s66, -1
    s_mov_b32 s67, 0
    s_lshl_b32 s50, s{sW}, 10
    s_lshl_b32 s51, s{sJ}, 12
    s_add_u32 s50, s50, s51
    s_lshr_b32 s51, s{sCS}, 3
    s_lshl_b32 s51, s51, 7
    s_add_u32 s{sgZ}, s50, s51
    s_and_b32 s50, s{sXCD}, 4
    s_and_b32 s51, s{sXCD}, 3
    s_lshl_b32 s51, s51, 6
    s_add_u32 s50, s50, s51
    s_lshl_b32 s51, s{sW}, 4
    s_add_u32 s50, s50, s51
    s_lshl_b32 s50, s50, 2
    s_add_u32 s50, s50, s{sQ}
    s_lshl_b32 s{sgX1}, s50, 7
    s_lshl_b32 s50, s{sW}, 6
    s_add_u32 s50, s50, s{sGAM}
    s_lshl_b32 s50, s50, 2
    s_lshr_b32 s51, s{sJ}, 1
    s_add_u32 s50, s50, s51
    s_lshl_b32 s{sgH}, s50, 7
    s_lshl_b32 s50, s{sQ}, 6
    s_add_u32 s50, s50, s{sXCD}
    s_lshl_b32 s50, s50, 2
    s_add_u32 s50, s50, s{sW}
    s_lshl_b32 s{sgX2}, s50, 7
    s_mul_i32 s50, s{sJ}, 1280
    s_add_u32 s51, s50, 1024
    s_sub_u32 s52, {79*256}, s50
    v_mov_b32 v12, s51
    v_mov_b32 v14, s52
    v_cndmask_b32 v4, v14, v12, s[66:67]
    v_and_b32 v12, 1, v3
    v_lshl_add_u32 v4, v12, 3, v4
    v_lshl_add_u32 v4, v2, 4, v4
    v_lshlrev_b32 v5, 2, v0
    """)
def ids1():
    return lines(f"""
    s_mov_b32 s90, 1
    s_sub_u32 s94, s{sJ}, 5
    s_cmp_lt_u32 s{sJ}, 5
    s_cselect_b32 s94, s{sJ}, s94
    s_mul_i32 s94, s94, {opt('rot', 1)}
    """) + [x for n in range(1, 5) for x in (f's_add_u32 s{94+n}, s{93+n}, 1', f's_cmp_eq_u32 s{94+n}, 5', f's_cselect_b32 s{94+n}, 0, s{94+n}')]

def nat_addr(a01, a23, a4, t):
    return lines(f"""
    s_lshr_b32 s50, s{sW}, 1
    s_lshl_b32 s50, s50, 5
    s_and_b32 s51, s{sW}, 1
    s_lshl_b32 s51, s51, 10
    s_add_u32 s50, s50, s51
    s_add_u32 s50, s50, s{sCLS}
    v_lshl_add_u32 v{t}, v2, 6, s50
    v_mul_u32_u24 v{t}, 1280, v{t}
    s_mul_i32 s50, s{sJ}, 80
    s_sub_u32 s51, 1200, s50
    v_lshl_add_u32 v{a4}, v3, 4, v{t}
    v_add_u32 v{a01}, s50, v{a4}
    v_add_u32 v{a23}, s51, v{a4}
    s_add_u32 s50, s50, 64
    s_add_u32 s51, s51, 48
    v_mov_b32 v{t+1}, s50
    v_mov_b32 v{t+2}, s51
    v_cndmask_b32 v{a4}, v{t+2}, v{t+1}, s[66:67]
    v_lshl_add_u32 v{a4}, v3, 3, v{a4}
    v_add_u32 v{a4}, v{a4}, v{t}
    """)

A0 = 132; P0 = 88; P1 = 108; P5 = 128; BR = 72; B5 = 68; M2 = 52
def gen_vals(t, ef, base):
    L = []
    for jj in range(1, 8): L.append(f'v_fmamk_f32 v{t+jj}, v{ef}, {fl(float(jj))}, v{base}')
    L.append(f'v_cos_f32 v{t}, v{base}')
    for jj in range(1, 8): L.append(f'v_cos_f32 v{t+jj}, v{t+jj}')
    return L
def pack8(dst, t): return [f'v_cvt_pk_bf16_f32 v{dst+p}, v{t+2*p}, v{t+2*p+1}' for p in range(4)]
def gen_setup(e, ef, base, t, zero_dc):
    L = [f'v_and_b32 v{t}, 2, v0', f'v_cvt_f32_u32 v{ef}, v{e}', f'v_cvt_f32_u32 v{t}, v{t}', f'v_mul_f32 v{t}, 0x3e000000, v{t}']
    if zero_dc: L += [f'v_cmp_eq_u32 vcc, 0, v{e}', f'v_mov_b32 v{t+1}, 0x3e800000', f'v_mul_f32 v{ef}, {fl(1/640)}, v{ef}', f'v_cndmask_b32 v{t}, v{t}, v{t+1}, vcc']
    else: L += [f'v_mul_f32 v{ef}, {fl(1/640)}, v{ef}']
    L += [f'v_lshlrev_b32 v{t+1}, 3, v3', f'v_cvt_f32_u32 v{t+1}, v{t+1}', f'v_fma_f32 v{base}, v{ef}, v{t+1}, v{t}']
    return L
def gen_T5():
    return [f's_mul_i32 s53, s{sJ}, 40', 's_add_u32 s53, s53, 40', 'v_and_b32 v20, 1, v0', 'v_sub_u32 v22, 1, v20', 'v_mul_u32_u24 v22, s53, v22'] \
        + gen_setup(22, 23, 24, 26, False) + gen_vals(26, 23, 24) + pack8(B5, 26)
def gen_run(nfr, C0, C1, PK):
    L = gen_vals(C0, 23, 24) + [f'v_fmamk_f32 v24, v23, {fl(32.0)}, v24', f'v_mul_f32 v34, {fl(32.0)}, v23'] + gen_vals(C1, 23, 24) + ['v_cos_f32 v34, v34']
    for n in range(nfr):
        c, o_ = (C0, C1) if n % 2 == 0 else (C1, C0)
        if n == 2: L.append('v_add_f32 v34, v34, v34')
        if n >= 2:
            for p in range(4): L.append(f'v_pk_fma_f32 {V(c+2*p,2)}, {V(o_+2*p,2)}, v[34:35], {V(c+2*p,2)} op_sel_hi:[1,0,1] neg_lo:[0,0,1] neg_hi:[0,0,1]')
        pk = PK + 4*(n % 2)
        L += ['v_add_u32 v35, s57, v25', 's_add_u32 s57, s57, 5120', 's_cmp_eq_u32 s57, 51200', 's_cselect_b32 s57, 0, s57']
        L += pack8(pk, c) + [f'ds_write_b128 v35, {V(pk)}']
    return L
def gen_B1():
    return lines(f"""
    s_mul_i32 s52, s{sJ}, 40
    s_lshr_b32 s53, s{sW}, 1
    s_lshl_b32 s53, s53, 4
    s_and_b32 s54, s{sW}, 1
    s_lshl_b32 s55, s54, 1
    s_add_u32 s53, s53, s55
    s_add_u32 s53, s53, s52
    v_and_b32 v20, 1, v0
    v_and_b32 v21, 12, v0
    v_add3_u32 v22, v20, v21, s53
    s_lshl_b32 s56, s{sW}, 10
    s_add_u32 s56, s56, {L_B}
    v_add_u32 v25, s56, v1
    s_mul_i32 s58, s94, 10240
    s_sub_u32 s57, 51200, s58
    s_cmp_eq_u32 s94, 0
    s_cselect_b32 s57, 0, s57
    """) + gen_setup(22, 23, 24, 26, True) + gen_run(10, 88, 96, 104)
def gen_B2():
    return lines(f"""
    s_add_u32 s53, s52, 32
    v_lshrrev_b32 v21, 1, v21
    v_add3_u32 v22, v20, v21, s53
    s_lshl_b32 s55, s{sW}, 1
    s_min_u32 s56, s{sW}, 1
    s_add_u32 s55, s55, s56
    s_mul_i32 s56, s55, 5120
    s_add_u32 s57, s57, s56
    s_sub_u32 s56, s57, 51200
    s_cmp_ge_u32 s57, 51200
    s_cselect_b32 s57, s56, s57
    s_lshl_b32 s55, s55, 5
    v_add_u32 v25, {L_B + 4096}, v1
    """) + gen_setup(22, 23, 24, 26, False) + ['v_cvt_f32_u32 v26, s55', 'v_fma_f32 v24, v26, v23, v24', 'v_fract_f32 v24, v24'] + gen_run(3, 88, 96, 104)

def gen_M2():
    L = lines(f"""
    s_lshl_b32 s50, s{sW}, 3
    v_lshrrev_b32 v20, 1, v2
    v_add_u32 v20, s50, v20
    v_lshrrev_b32 v21, 1, v20
    v_cmp_eq_u32 vcc, 1, v20
    v_sub_u32 v22, 32, v21
    v_and_b32 v23, 2, v0
    v_cndmask_b32 v22, v22, 16, vcc
    v_cmp_ne_u32 vcc, 0, v23
    v_and_b32 v20, 1, v0
    v_lshl_add_u32 v23, v3, 8, s{sCLS}
    v_cndmask_b32 v21, v21, v22, vcc
    v_lshl_add_u32 v21, v20, 5, v21
    v_mul_u32_u24 v22, v21, v23
    v_and_b32 v22, 2047, v22
    v_bfe_i32 v20, v21, 0, 1
    v_and_b32 v20, 0x80008000, v20
    v_cvt_f32_u32 v21, v21
    v_cvt_f32_u32 v22, v22
    v_mul_f32 v21, {fl(1/64)}, v21
    v_mul_f32 v22, {fl(1/2048)}, v22
    """)
    for kap in range(2):
        for jp in range(2):
            for h in range(2): L.append(f'v_fmamk_f32 v{23+h}, v21, {fl(float(kap + 2*(2*jp + h)))}, v22')
            L += ['v_cos_f32 v25, v23', 'v_cos_f32 v26, v24', 'v_sin_f32 v27, v23', 'v_sin_f32 v28, v24']
            L.append(f'v_cvt_pk_bf16_f32 v{M2 + 4*kap + jp}, v25, v26')
            L.append(f'v_cvt_pk_bf16_f32 v{M2 + 8 + 4*kap + jp}, v27, v28')
            L.append(f'v_xor_b32 v{M2 + 4*kap + jp + 2}, v20, v{M2 + 4*kap + jp}')
            L.append(f'v_xor_b32 v{M2 + 8 + 4*kap + jp + 2}, v20, v{M2 + 8 + 4*kap + jp}')
    return L

def a_lds(m):
    return [f'ds_read_b128 {V(A0 + 8*(2*(m >> 1) + od) + 4*(m & 1))}, v{50+od} offset:{(m % 9)*2048}' for od in range(2)]
def init_issue():
    k('v_and_b32 v14, 3, v0'); k('v_lshlrev_b32 v14, 6, v14')
    k('buffer_load_dword v15, v14, s[32:35], 0 offen sc1')
def init_check():
    L = k.label('INI'); X = k.label('INIX')
    k('s_mov_b32 s68, 0')
    k(f'{L}:')
    k('s_waitcnt vmcnt(0)')
    k('v_cmp_gt_u32 vcc, 64, v15')
    k(f's_cbranch_vccz {X}')
    k('s_sleep 10')
    k('buffer_load_dword v15, v14, s[32:35], 0 offen sc1')
    k('s_add_u32 s68, s68, 1')
    k(f's_cmp_lt_u32 s68, {MAXPOLL}'); k(f's_cbranch_scc1 {L}')
    k('s_waitcnt vmcnt(0)')
    k(f'{X}:')

def d1_body(l, aload):
    S1, S2 = 40, 44
    BRL = [72, 76, 80, 84, 16, 20, 24][:opt('br', 7)]; NB = len(BRL)
    mf = []; fixed = {}
    def fx(g, x, first=False):
        L = fixed.setdefault(g, [])
        L.insert(0, x) if first else L.append(x)
    pre = []
    if l == 0:
        pre = ['v_mov_b32 v30, 0', 'v_mov_b32 v31, 0']
    TK = opt('tk', 2)
    border = [(ks, T) for ks in range(10 - TK) for T in range(5)] + [(ks, T) for T in range(5) for ks in range(10 - TK, 10)]
    rd = lambda n: f'ds_read_b128 {V(BRL[n % NB])}, v8 offset:{(border[n][0]*5 + border[n][1])*1024}'
    for n in range(NB-1): k(rd(n))
    tdone = {}
    def head(ks):
        a0, a1 = V(A0 + 8*ks), V(A0 + 8*ks + 4)
        g0 = len(mf)
        if l == 0 and ks % 2 == 0:
            burst = [f'v_dot2c_f32_bf16 v{30 + (n & 1)}, v{A0+8*ks+n}, v{A0+8*ks+n}' for n in range(16)]
            if ks == 8: burst += ['v_add_f32 v30, v30, v31', 'v_mov_b32 v31, 1.0', f'v_mfma_f32_16x16x4_f32 {V(S2)}, v30, v31, 0']
            if ks == 0: pre.extend(burst)
            else:
                for x in burst: fx(g0-1, x)
        if ks and l == 1: fx(g0-2, Need(rr(V(A0 + 8*ks, 8))), True)
        mf.append(f'{MF} {V(P5)}, {a0}, {V(B5)}, {V(P5) if ks else 0}')
        mf.append(f'{MF} {V(P5)}, {a1}, {V(B5)}, {V(P5)}')
        if l == 0 and ks % 2 == 1 and ks < 9:
            fx(g0, Need([], [f'AD{ks+1}', f'AD{ks+2}']), True)
            for c, x in enumerate(a_lds(ks+1) + a_lds(ks+2)): fx(g0 + (0, 1, 3, 5)[c], x)
        if aload:
            for c in range(3):
                n = aload[0] + 3*ks + c
                if n < 20:
                    for x in aload[1](n): fx(g0 + (0, 3, 7)[c], x)
    for n, (ks, T) in enumerate(border):
        if n < 5*(10-TK):
            if T == 0: head(ks)
        elif n == 5*(10-TK):
            for k2 in range(10-TK, 10): head(k2)
            tdone[5] = len(mf)
        b = V(BRL[n % NB])
        fx(len(mf)-1, Need(rr(b)), True)
        if n + NB - 1 < 50: fx(len(mf), rd(n+NB-1))
        mf.append(f'{MF} {V(P0+4*T)}, {V(A0 + 8*ks)}, {b}, {V(P0+4*T) if ks else 0}')
        mf.append(f'{MF} {V(P1+4*T)}, {V(A0 + 8*ks + 4)}, {b}, {V(P1+4*T) if ks else 0}')
        if ks == 9: tdone[T] = len(mf)
    st = []
    if l == 1:
        for x in ['v_add_f32 v32, v32, v33', 'v_add_f32 v34, v34, v35', 'v_add_f32 v32, v32, v34',
                  'v_and_b32 v33, 1, v3', 'v_cvt_f32_u32 v33, v33', 'v_sub_f32 v34, 1.0, v33']: st.append((x, 40))
        fx(59, f'v_mfma_f32_16x16x4_f32 {V(S1)}, v32, v34, 0'); fx(59, f'v_mfma_f32_16x16x4_f32 {V(S2)}, v32, v33, 0')
    for x in ['v_and_b32 v29, 1, v0', 'v_cvt_f32_u32 v29, v29', 'v_fma_f32 v29, v29, -2.0, 1.0',
              f's_and_b32 s50, s{sW}, 1', 's_lshl_b32 s50, s50, 3', f's_lshr_b32 s51, s{sW}, 1', 's_lshl_b32 s51, s51, 10',
              's_add_u32 s50, s50, s51', f's_add_u32 s50, s50, {L_XCH}', 'v_add_u32 v9, s50, v1', f'v_add_u32 v10, {L_XCH}, v1',
              f's_lshl_b32 s50, s{sCS}, 3', f's_add_u32 s50, s50, s{sJ}', 's_mul_i32 s50, s50, 12288',
              f's_lshl_b32 s51, s{sW}, 10', 's_add_u32 s50, s50, s51', f's_add_u32 s70, s50, {WS_Z[l]}',
              'v_lshlrev_b32 v12, 6, v2', 'v_lshl_add_u32 v12, v3, 4, v12']: st.append((x, 62))
    e = tdone[5] + 2 if l == 0 else 70
    for r in range(4):
        if l == 0: st.append((f'v_mov_b32_dpp v{S1+r}, v{P5+r} quad_perm:[1,1,1,1] row_mask:0xf bank_mask:0xf', e))
        st.append((f'v_mul_f32 v{S2+r}, {fl(1/640)}, v{S2+r}', e))
    for r in range(4): st.append((f'v_mul_f32 v{S1+r}, {fl(1/640)}, v{S1+r}', e))
    for r in range(4): st.append((f'v_fma_f32 v{S2+r}, -v{S1+r}, v{S1+r}, v{S2+r}', e))
    for r in range(4): st.append((f'v_max_f32 v{S2+r}, 0, v{S2+r}', e))
    for r in range(4): st.append((f'v_add_f32 v{S2+r}, {fl(1e-5)}, v{S2+r}', e))
    for r in range(4): st.append((f'v_rsq_f32 v{S2+r}, v{S2+r}', e))
    for T in (5, 0, 1, 2, 3, 4):
        p = P0 + 4*T if T < 5 else P5
        e = tdone[T] + 2
        if T < 5:
            for r in range(4): st.append((f'v_fmac_f32 v{p+r}, v29, v{P1+4*T+r}', e))
        for r in range(4): st.append((f'v_mul_f32 v{p+r}, v{p+r}, v{S2+r}', e))
        st.append((f'v_cvt_pk_bf16_f32 v{p}, v{p}, v{p+1}', e)); st.append((f'v_cvt_pk_bf16_f32 v{p+1}, v{p+2}, v{p+3}', e))
        st.append((f'ds_write_b64 v9, {V(p,2)} offset:{T*2048}', e))
    emit(pre)
    if l == 1: k.need(V(A0, 8)); emit(stampL('g1a_1'))
    rest = weave(k, mf, fixed, st, tail=False)
    emit(stampL(f'g1m_{l}'))
    if l == 0:
        k(f's_cmp_lg_u32 s{sW}, 0'); k.begin('w0', 's_cbranch_scc1'); init_issue(); k.end()
    for x, e in rest: k(x)
    if l == 0:
        stamp('g1')
        k(f's_cmp_lg_u32 s{sW}, 0'); k.begin('w0', 's_cbranch_scc1'); init_check(); k.end()
        stamp('inic')
        k('s_waitcnt vmcnt(0)')
    k('s_waitcnt lgkmcnt(0)'); k('s_barrier')
    stamp(f'd1x_{l}')
    FR = A0; AC = 84
    for n in range(12): k(f'ds_read_b128 {V(FR+4*n)}, v10 offset:{n*1024}')
    mf = []; st = []; fixed = {}
    for T in range(6):
        t1, t2 = AC + 8*T, AC + 8*T + 4
        for kap in range(2):
            f = V(FR + 4*(2*T + kap))
            mf.append(f'{MF} {V(t1)}, {f}, {V(M2+4*kap)}, {V(t1) if kap else 0}')
            mf.append(f'{MF} {V(t2)}, {f}, {V(M2+8+4*kap)}, {V(t2) if kap else 0}')
        e = len(mf) + 2
        dst = 16 + 4*(T >> 1) + 2*(T & 1)
        for rp in range(2):
            st.append((f'v_add_f32 v{t1+rp}, v{t1+rp}, v{t2+2+rp}', e))
            st.append((f'v_sub_f32 v{t1+2+rp}, v{t1+2+rp}, v{t2+rp}', e))
        for rp in range(2): st.append((f'v_cvt_pk_bf16_f32 v{dst+rp}, v{t1+rp}, v{t1+2+rp}', e))
        if T & 1:
            st.append((I(f'buffer_store_dwordx4 {V(16 + 4*(T>>1))}, v12, s[4:7], s70 offen sc1', name='ZS'), e))
            st.append(('s_add_u32 s70, s70, 4096', e))
    if l == 0:
        fixed[5] = [Need(rr(V(FR, 48)))]
        for n, x in enumerate(sig_prep('W', sgZ)): fixed[n] = [x]
        for n, x in enumerate(sig_go(sgZ)): fixed[6+n] = [x]
    weave(k, mf, fixed, st)

def prepass_issue():
    k('s_cmp_lg_u32 s75, 0')
    k.begin('pw', 's_cbranch_scc1')
    k(f"""
    v_cmp_lt_u32 vcc, 27, v0
    s_mul_i32 s50, s72, {8*3456}
    s_mul_i32 s51, s{sJ}, 448
    s_add_u32 s50, s50, s51
    v_mov_b32 v21, {3456 - 448}
    v_cndmask_b32 v20, 0, v21, vcc
    v_add_u32 v20, v20, v1
    """)
    setexec(56)
    for rp in range(4):
        for mat in range(2):
            k(f's_add_u32 m0, s73, {mat*3584 + rp*896}')
            k(f'buffer_load_dwordx4 v20, s[{16+4*mat}:{19+4*mat}], s50 offen lds', name='RAW')
        k(f's_add_u32 s50, s50, {2*3456}')
    allexec()
    k.end()
    k('s_cmp_lg_u32 s75, 1')
    k.begin('pd', 's_cbranch_scc1')
    k('s_mul_i32 s50, s2, 10240')
    for n in range(10):
        if n % 4 == 0:
            k(f's_mov_b32 m0, {L_RAW + 3*7168 + n*1024}')
            if n: k('s_add_u32 s50, s50, 4096')
        k(f'buffer_load_dwordx4 v1, s[24:27], s50 offen offset:{(n % 4)*1024} lds', name='RAW')
    k.end()

def prepass_process():
    T0 = 88
    dummy = 'buffer_load_dword v13, off, s[32:35], 0 offset:1024'
    k('v_bfe_u32 v20, v0, 2, 2'); k('v_and_b32 v21, 3, v0'); k('v_and_b32 v22, 1, v0'); k('v_bfe_u32 v23, v0, 1, 1')
    k('s_cmp_lg_u32 s75, 0')
    k.begin('pw', 's_cbranch_scc1')
    k(f"""
    v_mul_u32_u24 v24, 448, v20
    v_mul_u32_u24 v25, 112, v3
    v_add3_u32 v24, v24, v25, s73
    v_lshl_add_u32 v25, v21, 4, v24
    v_lshl_add_u32 v26, v22, 4, v24
    v_lshl_add_u32 v26, v23, 3, v26
    v_mul_u32_u24 v27, 3584, v23
    v_lshl_add_u32 v27, v22, 3, v27
    v_add_u32 v27, v27, v24
    v_mul_u32_u24 v28, 143360, v3
    v_lshl_add_u32 v28, v2, 4, v28
    s_mul_i32 s50, s{sJ}, {4*143360}
    s_lshr_b32 s51, s72, 2
    s_mul_i32 s51, s51, 7168
    s_add_u32 s50, s50, s51
    s_and_b32 s51, s72, 3
    s_lshl_b32 s51, s51, 8
    s_add_u32 s50, s50, s51
    s_add_u32 s50, s50, {WS_WUF}
    s_add_u32 s51, s50, 4096
    """)
    k.need(names=['RAW'])
    for T in range(7):
        a, off = (25, (T >> 1)*3584 + 8*(T & 1)) if T < 4 else ((26, (T-4)*3584 + 64) if T < 6 else (27, 96))
        for h in range(2): k(f'ds_read_b64_tr_b16 {V(T0+4*T+2*h, 2)}, v{a} offset:{off + h*1792}')
    for T in range(7):
        k(f'buffer_store_dwordx4 {V(T0+4*T)}, v28, s[4:7], s{50 + (T >> 2)} offen offset:{(T & 3)*1024} sc1')
    for n in range(3): k(dummy)
    k.end()
    k('s_cmp_lg_u32 s75, 1')
    k.begin('pd', 's_cbranch_scc1')
    k(f"""
    v_mul_u32_u24 v24, 1280, v20
    v_add_u32 v24, {L_RAW + 3*7168}, v24
    v_mul_u32_u24 v28, 80, v3
    v_lshl_add_u32 v26, v21, 4, v24
    v_add_u32 v25, v26, v28
    v_sub_u32 v26, v26, v28
    v_lshl_add_u32 v24, v22, 3, v24
    v_cmp_ne_u32 vcc, 0, v23
    v_sub_u32 v27, 1200, v28
    v_sub_u32 v29, 880, v28
    v_add_u32 v30, 320, v28
    v_cndmask_b32 v27, v28, v27, vcc
    v_cndmask_b32 v29, v30, v29, vcc
    v_add_u32 v27, v27, v24
    v_add_u32 v29, v29, v24
    v_mul_u32_u24 v28, 286720, v3
    v_lshl_add_u32 v28, v2, 4, v28
    s_lshr_b32 s50, s2, 2
    s_mul_i32 s50, s50, 5120
    s_and_b32 s51, s2, 3
    s_lshl_b32 s51, s51, 8
    s_add_u32 s50, s50, s51
    s_add_u32 s50, s50, {WS_WDF}
    s_add_u32 s51, s50, 4096
    s_add_u32 s52, s50, {4*286720}
    s_add_u32 s53, s52, 4096
    """)
    k.need(names=['RAW'])
    for jh in range(2):
        for T in range(5):
            if T < 2: a, off = 25, 320*jh + 8*T
            elif T < 4: a, off = 26, 1200 - 320*jh + 8*(T-2)
            else: a, off = (27 if jh == 0 else 29), 64
            for h in range(2): k(f'ds_read_b64_tr_b16 {V(T0+4*(5*jh+T)+2*h, 2)}, v{a} offset:{off + h*5120}')
    for jh in range(2):
        for T in range(5):
            k(f'buffer_store_dwordx4 {V(T0+4*(5*jh+T))}, v28, s[4:7], s{50 + 2*jh + (T >> 2)} offen offset:{(T & 3)*1024} sc1')
    k.end()
    k('s_cmp_lg_u32 s75, 2')
    k.begin('pi', 's_cbranch_scc1')
    for n in range(10): k(dummy)
    k.end()
    for n in range(10): k('phantom_vm')

def publish(xbase, stbase, pk, nm):
    a = pk + 12
    for n in range(5):
        k(f'v_cvt_pk_bf16_f32 v{pk+2*n}, v{R0+4*n}, v{R0+4*n+1}'); k(f'v_cvt_pk_bf16_f32 v{pk+2*n+1}, v{R0+4*n+2}, v{R0+4*n+3}')
        if n == 1: k(f'buffer_store_dwordx4 {V(pk)}, v1, s[4:7], s57 offen sc1', name=nm)
        if n == 3: k(f'buffer_store_dwordx4 {V(pk+4)}, v1, s[4:7], s58 offen sc1', name=nm)
    k(f'buffer_store_dwordx2 {V(pk+8,2)}, v4, s[4:7], s56 offen sc1', name=nm)
    k(f'v_mov_b32 v{a}, 0'); k(f'v_mov_b32 v{a+1}, 0')
    for n in range(10):
        k(f'v_dot2c_f32_bf16 v{a}, s60, v{pk+n}'); k(f'v_dot2c_f32_bf16 v{a+1}, v{pk+n}, v{pk+n}')
    k(f'v_permlane32_swap_b32 v{a}, v{a+1}')
    k(f'v_add_f32 v{a}, v{a}, v{a+1}'); k(f'v_mov_b32 v{a+1}, v{a}')
    k(f'v_permlane16_swap_b32 v{a}, v{a+1}')
    k(f'v_add_f32 v{a}, v{a}, v{a+1}')
    setexec(32, 16)
    k(f'buffer_store_dword v{a}, v5, s[4:7], s59 offen sc1', name=nm)
    allexec()
def pub_prep(xbase, stbase):
    return [f's_add_u32 s56, s{sXT}, {xbase}', f's_mul_i32 s59, s{sJ}, 1280', 's_add_u32 s57, s56, s59', 's_sub_u32 s58, s56, s59',
            f's_add_u32 s58, s58, {75*256}', f's_lshl_b32 s59, s{sJ}, 7', f's_add_u32 s59, s59, s{sST}', f's_add_u32 s59, s59, {stbase - 64}',
            's_mov_b32 s60, 0x3f803f80']

ML, MU, ZF, AD, ZA = 40, 48, 60, 30, 100
def d2_prep(l):
    L = lines(f"""
    s_and_b32 s50, s{sW}, 1
    s_lshl_b32 s50, s50, 4
    v_add_u32 v104, s50, v2
    s_lshr_b32 s54, s{sW}, 1
    s_or_b32 s51, s54, s{sCLS}
    s_cmp_eq_u32 s51, 0
    s_cselect_b32 s51, 32, 31
    v_sub_u32 v105, s51, v104
    v_cvt_f32_u32 v104, v104
    v_cvt_f32_u32 v105, v105
    v_cvt_f32_u32 v106, v3
    v_mul_f32 v104, {fl(1/32)}, v104
    v_mul_f32 v105, {fl(1/32)}, v105
    v_add_f32 v106, v106, v106
    v_cmp_eq_u32 vcc, 0, v3
    v_mul_f32 v107, v104, v106
    v_mul_f32 v108, v105, v106
    """)
    for (t, b, dst) in ((104, 107, ML), (105, 108, MU)):
        for q_ in range(4):
            kap, jh = q_ >> 1, q_ & 1
            L.append(f'v_fmamk_f32 v{109+q_}, v{t}, {fl(float(8*kap + jh))}, v{b}')
        L.append(f'v_mul_f32 v121, 0x41800000, v{t}')
        for q_ in range(4): L += [f'v_cos_f32 v{113+q_}, v{109+q_}', f'v_sin_f32 v{117+q_}, v{109+q_}']
        L.append('v_cos_f32 v121, v121')
        for q_ in range(4): L.append(f'v_cvt_pk_bf16_f32 v{dst+2*q_}, v{113+q_}, v{117+q_}')
        L.append('v_cndmask_b32 v113, v113, v121, vcc')
        for q_ in range(4): L.append(f'v_cvt_pk_bf16_f32 v{dst+2*q_+1}, v{113+q_}, -v{117+q_}')
    L += lines(f"""
    v_mul_u32_u24 v104, {8*12288}, v3
    s_mul_i32 s50, s{sW}, {64*12288}
    s_mul_i32 s51, s{sJ}, 12288
    s_add_u32 s50, s50, s51
    s_lshr_b32 s51, s{sCS}, 1
    s_lshl_b32 s51, s51, 8
    s_add_u32 s50, s50, s51
    s_add_u32 s70, s50, {WS_Z[l]}
    s_mul_i32 s71, s{sW}, 6144
    """)
    for n, x in enumerate((0, 4, 1, 5)):
        L += [f'v_xor_b32 v105, {x}, v2', f'v_lshl_add_u32 v{ZA+n}, v105, 4, v104']
    n1 = len(L)
    L += lines(f"""
    s_and_b32 s50, s{sCS}, 1
    s_xor_b32 s51, s50, 1
    s_cmp_lt_u32 s{sCS}, 2
    s_cselect_b32 s51, s50, s51
    s_xor_b32 s52, s54, 1
    s_cmp_eq_u32 s{sCS}, 0
    s_cselect_b32 s52, s54, s52
    s_lshl_b32 s50, s50, 7
    s_lshl_b32 s55, s54, 6
    s_add_u32 s50, s50, s55
    s_lshl_b32 s51, s51, 7
    s_lshl_b32 s52, s52, 6
    s_add_u32 s51, s51, s52
    v_lshrrev_b32 v104, 1, v3
    v_mul_u32_u24 v104, 6144, v104
    v_and_b32 v105, 1, v3
    v_lshl_add_u32 v104, v105, 10, v104
    v_add_u32 v104, {L_Z}, v104
    v_lshlrev_b32 v105, 6, v105
    v_xor_b32 v106, s50, v105
    v_xor_b32 v107, s51, v105
    v_add_u32 v106, v106, v104
    v_add_u32 v107, v107, v104
    v_and_b32 v108, 12, v2
    v_add_u32 v108, v108, v2
    """)
    def fin(T, base):
        return ['v_lshrrev_b32 v110, 4, v109', 'v_and_b32 v111, 15, v109', f'v_lshl_add_u32 v{AD+T}, v110, 11, v{base}',
                'v_and_b32 v110, 1, v110', 'v_lshlrev_b32 v110, 2, v110', 'v_xor_b32 v111, v111, v110', f'v_lshl_add_u32 v{AD+T}, v111, 2, v{AD+T}']
    L += ['v_mov_b32 v109, v108'] + fin(0, 106) + [f'v_xor_b32 v{AD+1}, 16, v{AD}']
    for T in (2, 3):
        L += [f'v_sub_u32 v109, {40 - 4*(T-2)}, v108', 'v_cmp_lt_u32 vcc, 31, v109', 'v_and_b32 v110, 6, v109', 'v_add_u32 v110, v110, v109',
              'v_cndmask_b32 v109, v109, v110, vcc']
        if T == 2: L += ['v_cmp_eq_u32 vcc, 0, v2', 'v_nop', 'v_nop', 'v_cndmask_b32 v109, v109, 34, vcc']
        L += fin(T, 107)
    L += ['v_cmp_gt_u32 vcc, 8, v2', 'v_and_b32 v110, 6, v2', 'v_add3_u32 v110, v110, v2, 32', 'v_sub_u32 v109, 16, v2',
          'v_cndmask_b32 v109, v109, v110, vcc', 'v_cndmask_b32 v112, v107, v106, vcc'] + fin(4, 112)
    return L, n1

def wu_dma(f0, f1, sreg_lds, sreg_src):
    L = []
    for c, n in enumerate(range(f0, f1)):
        if c % 4 == 0: L += [f's_add_u32 m0, s{sreg_lds}, {n*1024}', f's_add_u32 s61, s{sreg_src}, {n*1024}']
        L.append(I(f'buffer_load_dwordx4 v1, s[4:7], s61 offen offset:{(c % 4)*1024} sc1 lds', name='WU'))
    return L
CSA = 128
def cs_part(f0, f1):
    for c0 in range(f0, f1, 14):
        c1 = min(f1, c0 + 14)
        for n in range(c0, c1): k(f'ds_read_b128 {V(156+4*(n-c0))}, v8 offset:{n*1024}')
        for n in range(c0, c1):
            T = n % 7
            k(f'{MF} {V(CSA+4*T)}, {V(124)}, {V(156+4*(n-c0))}, {V(CSA+4*T) if n >= 7 else 0}')

def d2(l):
    N1 = opt('n1', 14)
    prep, n1 = d2_prep(l)
    emit(sig_prep(f'Z{l}', sgZ))
    if l == 0: emit(poll_issue('W'))
    k(f's_mul_i32 s76, s{sSIG}, 143360'); k(f's_add_u32 s76, s76, {WS_WUF}')
    if l == 0: k(f's_mul_i32 s77, s{sW}, {5*7168}')
    else: k(f's_mul_i32 s77, s{sW}, {12*1024}'); k(f's_add_u32 s77, s77, {91*1024}')
    k('s_add_u32 s76, s76, s77')
    cut = opt('cut', 150)
    emit(prep[:cut])
    k.need(names=['ZS'])
    stamp(f'd1e_{l}')
    emit(sig_go(sgZ))
    if l == 0:
        emit(poll_wait())
        stamp('wp')
        emit(wu_dma(0, N1, 77, 76))
    emit(prep[cut:])
    emit(pub_prep(WS_X1[l], WS_ST[l]))
    emit(sig_prep(f'X1{l}', sgX1))
    emit(poll_issue(f'Z{l}'))
    emit(poll_wait())
    stamp(f'd2p_{l}')
    for p in range(3):
        for hh in range(2):
            k(f's_add_u32 m0, s71, {L_Z + p*2048 + hh*1024}')
            k(f's_add_u32 s50, s70, {p*4096 + hh*4*8*12288}')
            k(f'buffer_load_dwordx4 v{ZA + 2*(p & 1) + hh}, s[4:7], s50 offen sc1 lds')
    if l == 0:
        k('v_add_u32 v8, s77, v1')
        for r in range(4): k(f'v_mov_b32 v{124+r}, 0x3f803f80')
        k.need(names=['WU'])
        cs_part(0, N1)
    k('s_waitcnt vmcnt(0)'); k('s_barrier')
    stamp(f'd2l_{l}')
    order = [(4, 0), (4, 1)] + [(T, kap) for T in range(4) for kap in range(2)]
    for n, (T, kap) in enumerate(order):
        for h in range(2):
            k(f'ds_read2st64_b32 {V(ZF+4*n+2*h, 2)}, v{AD+T} offset0:{48*kap + 2*h} offset1:{48*kap + 2*h + 1}')
    r4 = V(R0+16)
    k(f'{MF} {V(56)}, {V(ZF)}, {V(ML)}, {r4}')
    k(f'{MF} {r4}, {V(ZF)}, {V(MU)}, {r4}')
    k(f'{MF} {V(56)}, {V(ZF+4)}, {V(ML+4)}, {V(56)}')
    k(f'{MF} {r4}, {V(ZF+4)}, {V(MU+4)}, {r4}')
    for n, (T, kap) in enumerate(order):
        if T < 4: k(f'{MF} {V(R0+4*T)}, {V(ZF+4*n)}, {V((ML if T < 2 else MU) + 4*kap)}, {V(R0+4*T)}')
    k('s_barrier')
    for r in range(4): k(f'v_cndmask_b32 v{R0+16+r}, v{R0+16+r}, v{56+r}, s[66:67]')
    publish(WS_X1[l], WS_ST[l], 12, 'XS')
    N2 = opt('n2', 6)
    f0, f1 = (N1, 35) if l == 0 else (0, 13)
    emit(wu_dma(f0, f0+N2, 77, 76))
    up_prep(l)
    k.need(names=['XS']); k('s_barrier')
    stamp(f'd2e_{l}')
    emit(sig_go(sgX1))
    emit(wu_dma(f0+N2, f1, 77, 76))

ACC = [12, 68]; BRG = 124; XR = 152; XD = 5; K1 = 192; SS = 196; NM = 200; TM = 204
def acc(h, T, mi): return ACC[h] + (2*T + mi)*4
def epi_stream(h, l, e0):
    st = []
    def grp(G, U, k1, ss, dst):
        if h == 1 and opt('pk', 1):
            b1, b2 = k1 & 1, ss & 1
            for r in (0, 2): st.append(f'v_pk_mul_f32 {V(U+r,2)}, {V(G+r,2)}, {V(U+r,2)}')
            for r in (0, 2): st.append(f'v_pk_mul_f32 {V(G+r,2)}, {V(G+r,2)}, {V(k1-b1,2)} op_sel:[0,{b1}] op_sel_hi:[1,{b1}]')
            for r in range(4): st.append(f'v_exp_f32 v{G+r}, v{G+r}')
            for r in (0, 2): st.append(f'v_pk_fma_f32 {V(G+r,2)}, {V(G+r,2)}, {V(ss-b2,2)}, {V(ss-b2,2)} op_sel:[0,{b2},{b2}] op_sel_hi:[1,{b2},{b2}]')
            for r in range(4): st.append(f'v_rcp_f32 v{G+r}, v{G+r}')
            for r in (0, 2): st.append(f'v_pk_mul_f32 {V(U+r,2)}, {V(U+r,2)}, {V(G+r,2)}')
            st.append(f'v_cvt_pk_bf16_f32 v{dst}, v{U}, v{U+1}'); st.append(f'v_cvt_pk_bf16_f32 v{dst+1}, v{U+2}, v{U+3}')
            return
        for r in range(4): st.append(f'v_mul_f32 v{U+r}, v{G+r}, v{U+r}')
        for r in range(4): st.append(f'v_mul_f32 v{G+r}, v{G+r}, v{k1}')
        for r in range(4): st.append(f'v_exp_f32 v{G+r}, v{G+r}')
        for r in range(4): st.append(f'v_fma_f32 v{G+r}, v{G+r}, v{ss}, v{ss}')
        for r in range(4): st.append(f'v_rcp_f32 v{G+r}, v{G+r}')
        for r in range(4): st.append(f'v_mul_f32 v{U+r}, v{U+r}, v{G+r}')
        st.append(f'v_cvt_pk_bf16_f32 v{dst}, v{U}, v{U+1}'); st.append(f'v_cvt_pk_bf16_f32 v{dst+1}, v{U+2}, v{U+3}')
    nm = f'H{h}'
    for mi in range(2):
        d = acc(h, 0, mi)
        grp(acc(h, 0, mi), acc(h, 2, mi), K1+2*h+mi, SS+2*h+mi, d)
        grp(acc(h, 1, mi), acc(h, 3, mi), K1+2*h+mi, SS+2*h+mi, d+2)
        st.append(I(f'buffer_store_dwordx4 {V(d)}, v1, s[4:7], s{76+2*h+mi} offen sc1', name=nm))
    d = acc(h, 4, 0)
    grp(acc(h, 4, 0), acc(h, 5, 0), K1+2*h, SS+2*h, d)
    grp(acc(h, 4, 1), acc(h, 5, 1), K1+2*h+1, SS+2*h+1, d+2)
    for r in range(4): st.append(f'v_permlane32_swap_b32 v{acc(h,6,0)+r}, v{acc(h,6,1)+r}')
    st.append(f'v_cndmask_b32 v{TM+2}, v{K1+2*h+1}, v{K1+2*h}, s[66:67]')
    st.append(f'v_cndmask_b32 v{TM+3}, v{SS+2*h+1}, v{SS+2*h}, s[66:67]')
    st.append(f'v_permlane32_swap_b32 v{d}, v{d+2}'); st.append(f'v_permlane32_swap_b32 v{d+1}, v{d+3}')
    st.append(I(f'buffer_store_dwordx4 {V(d)}, v6, s[4:7], s{76+2*h} offen sc1', name=nm))
    d = acc(h, 6, 0)
    grp(d, acc(h, 6, 1), TM+2, TM+3, d)
    st.append(I(f'buffer_store_dwordx2 {V(d,2)}, v7, s[4:7], s{76+2*h} offen sc1', name=nm))
    return [(x, e0) for x in st]

def up_prep(l):
    k(f'v_add_u32 v9, {63*1024}, v1'); k(f'v_add_u32 v10, {126*1024}, v1')
    k(f's_mul_i32 s50, s{sCSU}, {4*20480}')
    for rt in range(4): k(f's_add_u32 s{72+rt}, s50, {WS_X1[l] + rt*20480}')
    k(f's_lshl_b32 s80, s{sCSU}, 12'); k(f's_add_u32 s80, s80, {WS_ST[l]}')
    if l == 0:
        k(f"""
        v_lshrrev_b32 v30, 5, v0
        v_mul_u32_u24 v30, 57344, v30
        v_lshl_add_u32 v30, v2, 4, v30
        v_and_b32 v31, 1, v3
        v_lshl_add_u32 v6, v31, 8, v30
        v_add_u32 v6, 1024, v6
        v_lshl_add_u32 v7, v31, 3, v30
        v_add_u32 v7, 1536, v7
        s_mul_i32 s81, s{sJ}, 286720
        s_mul_i32 s50, s{sW}, {70*1024}
        s_add_u32 s81, s81, s50
        s_add_u32 s81, s81, {WS_WDF}
        s_mul_i32 s16, s{sJ}, {7*opt('rotd', 1)}
        s_lshr_b32 s16, s16, 2
        s_lshl_b32 s16, s16, 10
        """)
        for n in range(1, 14):
            k(f's_add_u32 s{16+n}, s{15+n}, 1024'); k(f's_cmp_eq_u32 s{16+n}, {14*1024}'); k(f's_cselect_b32 s{16+n}, 0, s{16+n}')
        k('s_mul_i32 s30, s16, 5'); k('s_add_u32 s30, s30, s81')
def wdld(n):
    sl, T = divmod(n, 5)
    L = [f'buffer_load_dwordx4 {wdreg(n)}, v{1 if T < 4 else TM+4}, s[4:7], s30 offen offset:{(T % 4)*1024} sc1']
    if T == 3 and sl < 13: L.append(f's_mul_i32 s31, s{17+sl}, 5')
    if T == 4 and sl < 13: L.append('s_add_u32 s30, s31, s81')
    return L

def up(l):
    def brd(n):
        f = n % 140
        a, off = (1, f) if f < 63 else ((9, f-63) if f < 126 else (10, f-126))
        return f'ds_read_b128 {V(BRG + 4*(n % 7))}, v{a} offset:{off*1024}'
    def xld(n, mi):
        h, ks = divmod(n, 20)
        return f'buffer_load_dwordx4 {V(XR + 8*(n % XD) + 4*mi)}, v1, s[4:7], s{72+2*h+mi} offen offset:{(ks % 4)*1024} sc1'
    def xadv(n):
        h, ks = divmod(n, 20)
        return [f's_add_u32 s{72+2*h+mi}, s{72+2*h+mi}, 4096' for mi in range(2)] if ks % 4 == 3 else []
    SL = ACC[1]
    def first_loads():
        emit(poll_issue(f'X1{l}')); emit(poll_wait())
        stamp(f'upp_{l}')
        for n in range(XD-1):
            for mi in range(2): k(xld(n, mi))
            emit(xadv(n))
    k(f's_mul_i32 s50, s{sCSU}, {4*57344}'); k(f's_mul_i32 s51, s{sSIG}, {7*256}'); k('s_add_u32 s50, s50, s51')
    for rt in range(4): k(f's_add_u32 s{76+rt}, s50, {WS_H[l] + rt*57344}')
    if l == 0:
        k.need(names=['WU'])
        stamp('wu')
        cs_part(opt('n1', 14), 35)
        k(f's_mul_i32 s50, s{sW}, 448'); k(f's_add_u32 s50, s50, {L_CSP}')
        k('v_lshl_add_u32 v12, v2, 2, s50')
        for T in range(7): k(f'ds_write_b32 v12, v{CSA+4*T} offset:{64*T}')
        first_loads()
        k('s_barrier')
        k('v_min_u32 v12, 55, v0'); k('v_lshlrev_b32 v12, 3, v12'); k(f'v_add_u32 v13, {L_CSP}, v12')
        for n in range(4): k(f'ds_read_b64 {V(14+2*n, 2)}, v13 offset:{448*n}')
        for n in range(6): k(brd(n))
        for h in range(2):
            k(f'v_add_f32 v{14+h}, v{14+h}, v{16+h}'); k(f'v_add_f32 v{18+h}, v{18+h}, v{20+h}'); k(f'v_add_f32 v{14+h}, v{14+h}, v{18+h}')
        k(f'v_add_u32 v13, {L_CS}, v12')
        k('ds_write_b64 v13, v[14:15]')
        k('s_waitcnt lgkmcnt(0)')
    else:
        first_loads()
        for n in range(6): k(brd(n))
        k.need(names=['WU']); k('s_barrier')
    wdn = [0]
    if l == 0: k(f'v_add_u32 v{TM+4}, 4096, v1')
    NWD = [opt('wa', 32), opt('wb', 22)] if l == 0 else [0, 0]
    for h in range(2):
        mf = []; fixed = {}
        def fx(g, x, first=False):
            L = fixed.setdefault(g, [])
            L.insert(0, x) if first else L.append(x)
        for ks in range(20):
            n = 20*h + ks
            for T in range(7):
                g = len(mf); f = 7*n + T
                for mi in range(2):
                    a = V(acc(h, T, mi))
                    mf.append(f'{MF} {a}, {V(BRG+4*T)}, {V(XR + 8*(n % XD) + 4*mi)}, {a if (ks or h) else 0}')
                if f + 6 < 280: fx(g, brd(f+6))
                if T % 2 == 0 and f + 1 < 280:
                    nxt = [BRG + 4*((f+1) % 7)] + ([BRG + 4*((f+2) % 7)] if T < 6 else [])
                    fx(g+1, Need([x for b in nxt for x in rr(V(b))]), True)
            g0 = 14*ks
            if n + XD - 1 < 40:
                fx(g0+3, xld(n+XD-1, 0)); fx(g0+7, xld(n+XD-1, 1))
                for q_, x in enumerate(xadv(n+XD-1)): fx(g0+8+2*q_, x, True)
            if n + 1 < 40: fx(g0+12, Need(rr(V(XR + 8*((n+1) % XD), 8))), True)
            if h == 0 and ks < 4:
                for c in range(4): fx(g0 + (1, 5, 9, 13)[c], f'buffer_load_dword v{SL+4*ks+c}, v5, s[4:7], s80 offen offset:{1024*ks + 256*c} sc1')
            k0 = 4 if h == 0 else 0
            if ks >= k0:
                cnt = NWD[h]*(ks-k0+1)//(20-k0) - NWD[h]*(ks-k0)//(20-k0)
                free = [11, 5, 1] + ([3, 7] if n + XD - 1 >= 40 else [])
                for c in range(cnt):
                    w_ = wdld(wdn[0]); wdn[0] += 1
                    fx(g0 + sorted(free[:cnt])[c], w_[0])
                    if len(w_) > 1: fx(g0 + sorted(free[:cnt])[c] + 1, w_[1], True)
        st = []
        if h == 0:
            for rt in range(4):
                b = SL + 4*rt
                st += [(x, 14*(rt+3)) for x in [f'v_add_f32 v{b}, v{b}, v{b+1}', f'v_add_f32 v{b+2}, v{b+2}, v{b+3}', f'v_add_f32 v{b}, v{b}, v{b+2}',
                       f'v_mov_b32 v{b+1}, v{b}', f'v_permlane32_swap_b32 v{b}, v{b+1}', f'v_add_f32 v{b}, v{b}, v{b+1}',
                       f'v_mov_b32 v{b+1}, v{b}', f'v_permlane16_swap_b32 v{b}, v{b+1}',
                       f'v_mul_f32 v{NM+rt}, {fl(-1/640)}, v{b}', f'v_mul_f32 v{b+1}, {fl(1/640)}, v{b+1}',
                       f'v_fma_f32 v{b+1}, -v{NM+rt}, v{NM+rt}, v{b+1}', f'v_max_f32 v{b+1}, 0, v{b+1}',
                       f'v_add_f32 v{SS+rt}, {fl(1e-5)}, v{b+1}', f'v_rsq_f32 v{K1+rt}, v{SS+rt}',
                       f'v_mul_f32 v{K1+rt}, {fl(-1.4426950408889634)}, v{K1+rt}']]
            st = [(f'v_lshlrev_b32 v{TM+7}, 4, v3', 2), (f'v_add_u32 v{TM+7}, {L_CS}, v{TM+7}', 2)] + st
            KS0 = 11
            def capg(g): return 2 - sum(slots(x if isinstance(x, I) else I(x)) for x in fixed.get(g, []) if slots(x if isinstance(x, I) else I(x)) >= 1)
            firstcs = None
            for T in range(7):
                g0 = 14*(KS0 + T) + 2*T
                c = acc(1, T, 1)
                gr = g0 - 3
                while capg(gr) < 2: gr -= 1
                x = I(f'ds_read_b128 {V(c)}, v{TM+7} offset:{64*T}')
                if T == 0: firstcs = x
                fx(gr, x)
                ops = [f'v_fmac_f32 v{acc(0,T,mi)+r}, v{NM+mi}, v{c+r}' for mi in range(2) for r in range(4)]
                g = g0 + 4
                while ops:
                    cap = capg(g)
                    while cap >= 1 and ops: fx(g, ops.pop(0)); cap -= 1
                    g += 1
                if g > g0 + 14: print('warn fmac window', T, g - g0)
                st += [(f'v_mul_f32 v{acc(1,T,mi)+r}, v{NM+2+mi}, v{c+r}', g) for mi in range(2) for r in range(4)]
        else:
            st = epi_stream(0, l, 4) + [(x, 200) for x in sig_prep(f'HA{l}', sgH)]
        n0 = len(k.ins)
        left = weave(k, mf, fixed, st)
        if h == 0:
            pos = k.ins.index(firstcs)
            assert all(not (x.text.startswith(f'v_mul_f32 v{K1+rt},')) for x in k.ins[pos:] for rt in range(4)), 'stats not done before cs'
        print('up half', h, 'leftover', left)
        stamp(f'up{h}_{l}')
    k.need(names=['H0'])
    emit(sig_go(sgH))
    k('s_barrier')
    if l == 0:
        while wdn[0] < 70: emit(wdld(wdn[0])); wdn[0] += 1
    ep = [x for x, e in epi_stream(1, l, 0)]
    cut = opt('pa', 100)
    emit(down_prep(l))
    emit(ep[:cut]); emit(poll_issue(f'HA{l}')); emit(ep[cut:])
    stamp(f'upe_{l}')

HR = 124; DA = 12; HV = 180
def hld(ps, ks): return f'buffer_load_dwordx4 {V(HR + 4*ks)}, v{HV+ps}, s[4:7], s{16+ks} offen sc1'
def down_prep(l):
    L = lines(f"""
    s_mul_i32 s50, s{sCS}, {4*57344}
    s_mul_i32 s51, s{sW}, {14*1024}
    s_add_u32 s50, s50, s51
    s_add_u32 s50, s50, {WS_H[l]}
    s_lshr_b32 s54, s{sW}, 1
    s_xor_b32 s54, s54, s{sW}
    s_and_b32 s54, s54, 1
    """)
    for p in range(4):
        L += [f's_xor_b32 s55, s54, {(1, 0, 2, 3)[p]}', 's_mul_i32 s52, s55, 57344', 's_add_u32 s52, s50, s52', f'v_add_u32 v{TMPV[p]}, s52, v1']
    return L
def down_prep2():
    L = []
    for p in range(4):
        L += [f's_xor_b32 s55, s54, {(1, 0, 2, 3)[p]}', 's_mul_i32 s53, s55, 15360',
              f's_sub_u32 s52, s{sW}, s55', 's_sub_u32 s52, s52, 1', 's_and_b32 s52, s52, 3', 's_mul_i32 s52, s52, 5120',
              's_add_u32 s52, s52, s53', f's_add_u32 s52, s52, {L_RED}', f'v_add_u32 v{184+p}, s52, v1']
    L += [f's_mul_i32 s52, s{sW}, 15360', f's_add_u32 s52, s52, {L_RED}', 'v_add_u32 v188, s52, v1',
          f's_cmp_eq_u32 s{sW}, 3', 's_cselect_b32 s53, 5120, 0', 's_cselect_b32 s55, 0, 10240',
          'v_add_u32 v189, s53, v188', 'v_add_u32 v190, s55, v188']
    return L
TMPV = [HV, HV+1, HV+2, HV+3]
def down_variant(l, isA):
    own = 1 if isA else 3
    aset = {0: DA, 1: DA+20, 2: DA+40} if not isA else {0: DA, 2: DA+20, 3: DA+40}
    aset[own] = R0
    pB = opt('pb', 19); pI = opt('pi', 8); TMJ = opt('tmj', 7)
    HD = 13
    mf = []; fixed = {}
    def fx(g, x, first=False):
        L = fixed.setdefault(g, [])
        L.insert(0, x) if first else L.append(x)
    def mm(p, ks, T):
        a = V(aset[p] + 4*T)
        mf.append(f'{MF} {a}, {wdreg(5*ks+T)}, {V(HR+4*ks)}, {a if (ks or p == own) else 0}')
    nxt = opt('hu', 7)
    for n in range(56 - TMJ):
        p, ks = divmod(n, 14)
        g = len(mf)
        for T in range(5): mm(p, ks, T)
        if n == pB - pI:
            for c, x in enumerate(poll_issue(f'HB{l}')): fx(g + (1, 2, 4)[c], x, True)
        if n == pB - 1:
            for x in stampL(f'dnb4_{l}') + poll_wait() + stampL(f'dnB_{l}'): fx(g + 4, x)
        if n in (27, 41):
            for x in stampL(f'dn{n}_{l}'): fx(g + 4, x)
        for c in range(2):
            if nxt < 56 and nxt <= n + HD and (nxt < 28 or n >= pB):
                fx(g + 2*c, hld(*divmod(nxt, 14))); nxt += 1
        fx(g+3, Need(rr(V(HR + 4*((n+1) % 14)))), True)
    assert nxt == 56
    tdone = {}
    for T in range(5):
        for ks in range(14 - TMJ, 14): mm(3, ks, T)
        tdone[T] = len(mf)
    for c, x in enumerate(sig_go(sgH)): fx((0, 1, 2, 4, 5, 6, 7, 9)[c], x, True)
    wr = lambda p, T: f'ds_write_b128 v{184+p}, {V(aset[p] + 4*T)} offset:{T*1024}'
    for p in range(3):
        if p == own: continue
        for T in range(5):
            g = 70*(p+1) + (4 + 2*T if p == 2 else 9 + 5*T)
            fx(g, wr(p, T))
    ga = 210 + 16
    fx(ga, 's_waitcnt lgkmcnt(0)', True); fx(ga, 's_barrier')
    st = [(x, 12) for x in down_prep2()]
    pre = pub_prep(WS_X2, WS_ST[2]) + sig_prep('X20', sgX2) if l == 0 else nat_addr(92, 93, 94, 95)
    st += [(x, 150) for x in pre]
    tail = []
    if isA:
        dst = [DA, DA+20, 72]
        for T in range(5):
            for s_ in range(3):
                fx(ga + 1 + 3*T + s_, f'ds_read_b128 {V(dst[s_]+4*T)}, v188 offset:{s_*5120 + T*1024}')
            for s_ in range(3):
                for r in range(4): st.append((f'v_add_f32 v{R0+4*T+r}, v{R0+4*T+r}, v{dst[s_]+4*T+r}', ga + 10 + 3*T))
        for T in range(4): fx(tdone[T] + 3, wr(3, T))
        tail = [wr(3, 4), 's_waitcnt lgkmcnt(0)', 's_barrier']
    else:
        for T in range(5):
            for s_ in range(2):
                fx(ga + 1 + 2*T + s_, f'ds_read_b128 {V(DA+20*s_+4*T)}, v189 offset:{s_*5120 + T*1024}')
            for r in range(4): st.append((f'v_add_f32 v{DA+4*T+r}, v{DA+4*T+r}, v{DA+20+4*T+r}', ga + 9 + 2*T))
        for T in range(5):
            for r in range(4): st.append((f'v_add_f32 v{R0+4*T+r}, v{R0+4*T+r}, v{DA+4*T+r}', tdone[T] + 3))
        tail = ['s_barrier'] + [f'ds_read_b128 {V(DA+40+4*T)}, v190 offset:{T*1024}' for T in range(5)]
        tail += [f'v_pk_add_f32 {V(R0+n,2)}, {V(R0+n,2)}, {V(DA+40+n,2)}' for n in range(0, 20, 2)]
    left = weave(k, mf, fixed, st, tail=False)
    print('down leftover', len(left))
    emit(stampL(f'dn55_{l}'))
    if isA: emit(tail); emit([x for x, e in left])
    else: emit([x for x, e in left]); emit(tail)

def down(l):
    emit(poll_wait())
    stamp(f'dnp_{l}')
    for n in range(opt('hu', 7)): k(hld(0, n))
    emit(sig_prep(f'HB{l}', sgH))
    k.need(names=['H1'])
    k.need(V(HR)); emit(stampL(f'dn0_{l}'))
    k(f's_cmp_ge_u32 s{sW}, 2')
    k.begin('dA', 's_cbranch_scc1'); down_variant(l, True); k.end()
    k(f's_cmp_lt_u32 s{sW}, 2')
    k.begin('dB', 's_cbranch_scc1'); down_variant(l, False); k.end()
    k('s_waitcnt vmcnt(0) lgkmcnt(0)')
    stamp(f'dnm_{l}')
    if l == 0:
        publish(WS_X2, WS_ST[2], 32, 'X2S')
        k('s_barrier')
        k(f's_mul_i32 s51, s{sW}, 37'); k('s_mul_i32 s51, s51, 21846'); k('s_lshr_b32 s51, s51, 16'); k('s_lshl_b32 s51, s51, 10')
        k(f's_mul_i32 s50, s{sJ}, 51200'); k('s_add_u32 s50, s50, s51'); k(f's_add_u32 s50, s50, {WS_BF}'); k(f's_add_u32 s51, s51, {L_B}')
        NB = opt('nb', 6)
        k('s_mov_b32 s76, s50'); k('s_mov_b32 s77, s51')
        emit(wu_dma(0, NB, 77, 76))
        emit(gen_M2())
        k.need(names=['X2S'])
        stamp(f'dne_{l}')
        emit(sig_go(sgX2))
        emit(wu_dma(NB, 13, 77, 76))
    else:
        pk = 32
        for n in range(5):
            k(f'v_cvt_pk_bf16_f32 v{pk+2*n}, v{R0+4*n}, v{R0+4*n+1}'); k(f'v_cvt_pk_bf16_f32 v{pk+2*n+1}, v{R0+4*n+2}, v{R0+4*n+3}')
            if n == 1: k(f'buffer_store_dwordx4 {V(pk)}, v92, s[12:15], 0 offen')
            if n == 3: k(f'buffer_store_dwordx4 {V(pk+4)}, v93, s[12:15], 0 offen')
        k(f'buffer_store_dwordx2 {V(pk+8,2)}, v94, s[12:15], 0 offen')
        stamp(f'dne_{l}')

def main():
    prologue()
    k(f's_cmp_lg_u32 s{sW}, 0')
    k.begin('w0', 's_cbranch_scc1')
    k(f'v_lshrrev_b32 v12, 5, v0'); k(f'v_mul_u32_u24 v12, {MBSZ - 512}, v12'); k('v_add_u32 v12, v12, v1')
    for r in range(4): k(f'v_mov_b32 v{16+r}, 0')
    k('s_lshl_b32 s50, s2, 9')
    for n in range(5):
        k('buffer_store_dwordx4 v[16:19], v12, s[4:7], s50 offen sc1')
        k(f's_add_u32 s50, s50, {2*MBSZ}')
    k.end()
    prepass_issue()
    k(f"""
    s_lshl_b32 s50, s{sJ}, 3
    s_lshl_b32 s51, s{sW}, 1
    s_add_u32 s50, s50, s51
    s_lshr_b32 s51, s50, 5
    s_lshl_b32 s51, s51, 5
    s_and_b32 s50, s50, 31
    s_lshl_b32 s50, s50, 6
    s_add_u32 s50, s50, s51
    s_add_u32 s50, s50, s{sCLS}
    s_mul_i32 s50, s50, 1280
    v_cmp_lt_u32 vcc, 9, v0
    v_mov_b32 v21, {64*1280 - 1280}
    v_cndmask_b32 v20, 0, v21, vcc
    v_lshl_add_u32 v20, v0, 7, v20
    """)
    setexec(20); k('buffer_load_dword v15, v20, s[8:11], s50 offen'); allexec()
    stamp('iss0')
    emit(ids1())
    def arrive():
        k(f's_cmp_lg_u32 s{sW}, 0')
        k.begin('w0', 's_cbranch_scc1')
        k('s_and_b32 s50, s2, 3'); k('s_lshl_b32 s50, s50, 6'); k('s_add_u32 s88, s32, s50'); k('s_addc_u32 s89, s33, 0')
        k(I('s_nop 0')); k.ins[-1].text = 's_waitcnt vmcnt(9)'; k.ins[-1].kind = 'salu'
        k('s_atomic_add s90, s[88:89], 0')
        k.end()
    def adma(m):
        L = [f's_lshl_b32 s50, s{94 + (m >> 1)}, 7'] if (m & 1) == 0 or m == 9 else []
        off = (m & 1)*640
        if m == 9: L.append('s_add_u32 s50, s50, 640'); off = 0
        for hf in range(2):
            L.append(f's_add_u32 m0, s74, {(m % 9)*2048 + hf*1024 - off}')
            L.append(I(f'buffer_load_dwordx4 v{48+hf}, s[8:11], s50 offen offset:{off} lds', name=f'AD{m}'))
        return L
    def mid():
        arrive()
        k(f"""
        s_lshr_b32 s50, s{sW}, 1
        s_lshl_b32 s50, s50, 5
        s_and_b32 s51, s{sW}, 1
        s_lshl_b32 s51, s51, 10
        s_add_u32 s50, s50, s51
        s_add_u32 s50, s50, s{sCLS}
        s_mul_i32 s50, s50, 1280
        v_lshrrev_b32 v50, 3, v0
        v_and_b32 v51, 7, v0
        v_xor_b32 v51, v51, v50
        v_mul_u32_u24 v48, 81920, v50
        v_lshl_add_u32 v48, v51, 4, v48
        v_add_u32 v48, s50, v48
        v_add_u32 v49, {8*81920}, v48
        s_mul_i32 s74, s{sW}, 18432
        v_and_b32 v51, 7, v2
        v_xor_b32 v51, v51, v3
        v_lshlrev_b32 v51, 4, v51
        v_lshl_add_u32 v50, v2, 7, v51
        v_add_u32 v50, s74, v50
        v_xor_b32 v51, 64, v50
        """)
        stamp('gen1')
        for m in range(9): emit(adma(m))
        stamp('issA')
    emit(gen_B1()); emit(gen_B2()); emit(gen_T5())
    mid()
    emit(ids2())
    emit(gen_M2())
    emit(nat_addr(32, 33, 34, 35))
    stamp('gen')
    k.need(names=['AD0', 'AD1'])
    stamp('A0land')
    for m in range(2): emit(a_lds(m))
    k('s_waitcnt lgkmcnt(0)')
    emit(adma(9))
    prepass_process()
    stamp('pre')
    k(f'v_add_u32 v8, {L_B}, v1')
    k('s_waitcnt lgkmcnt(0)'); k('s_barrier')
    k(f"""
    s_lshl_b32 s50, s{sCS}, 2
    s_add_u32 s50, s50, s{sW}
    s_min_u32 s50, s50, 99
    s_lshl_b32 s50, s50, 9
    v_add_u32 v12, s50, v8
    ds_read_b128 v[16:19], v12
    s_mul_i32 s51, s{sJ}, 51200
    s_add_u32 s50, s50, s51
    s_add_u32 s50, s50, {WS_BF}
    """)
    setexec(32); k('buffer_store_dwordx4 v[16:19], v1, s[4:7], s50 offen sc1'); allexec()
    k(f'buffer_load_dwordx4 {V(R0+8)}, v32, s[8:11], 0 offen')
    k(f'buffer_load_dwordx4 {V(R0+12)}, v33, s[8:11], 0 offen')
    k(f'buffer_load_dwordx2 {V(R0+18,2)}, v34, s[8:11], 0 offen')
    stamp('ini')
    stop('pre')
    for l in range(2):
        if l == 0:
            d1_body(0, None)
            for n in range(10):
                src = R0 + 8 + n if n < 8 else R0 + 10 + n
                if n in (7, 9):
                    k(f'v_lshlrev_b32 v{R0+2*n}, 16, v{src}'); k(f'v_and_b32 v{R0+2*n+1}, 0xffff0000, v{src}')
                else:
                    k(f'v_and_b32 v{R0+2*n+1}, 0xffff0000, v{src}'); k(f'v_lshlrev_b32 v{R0+2*n}, 16, v{src}')
        else:
            emit(gen_T5())
            k(f'v_add_u32 v8, {L_B}, v1')
            k(f's_add_u32 s72, s{sXT}, {WS_X2}'); k(f's_add_u32 s74, s{sST}, {WS_ST[2]}')
            for n in range(5): k(f's_lshl_b32 s{94+n}, s{94+n}, 11'); k(f's_add_u32 s{94+n}, s{94+n}, s72')
            k('v_add_u32 v36, 10240, v1')
            def ald(n):
                ks, h = n >> 1, n & 1
                return [f'buffer_load_dwordx4 {V(A0 + 4*n)}, v{36 if h else 1}, s[4:7], s{94 + ks//2} offen offset:{(ks & 1)*1024} sc1']
            emit(poll_issue('X20')); emit(poll_wait())
            stamp('d1p_1')
            NUP = opt('nup', 8)
            for n in range(NUP): emit(ald(n))
            for n in range(4): k(f'buffer_load_dword v{32+n}, v5, s[4:7], s74 offen offset:{256*n} sc1')
            k.need(names=['WU']); k('s_barrier')
            stamp('d1b_1')
            d1_body(1, (NUP, ald))
        stop(f'd1_{l}')
        d2(l); stop(f'd2_{l}')
        up(l); stop(f'up_{l}')
        down(l); stop(f'dn_{l}')
try: main()
except Stop: pass
finish()
k('END:'); k('s_endpgm'); k('CODE_END:')
k.finish()
open(sys.argv[1], 'w').write(build([k], [(k.name, 256, 256, LDS)], single=True))
import json
json.dump(dict(stamps=stampnames, WS_TS=WS_TS, WS_WUF=WS_WUF, WS_WDF=WS_WDF, WS_Z=WS_Z, WS_X1=WS_X1, WS_X2=WS_X2, WS_ST=WS_ST, WS_H=WS_H), open(sys.argv[1] + '.json', 'w'))
print('insts', len(k.ins), 'hi', k.hi, 'nops', sum(1 for i in k.ins if i.kind == 'nop'))
```

```python
import sys, struct
from asmx import *
from asmlib import build
o = dict(a.split('=') for a in sys.argv[2:])
STOP = o.get('stop', '')
STAMP = int(o.get('stamp', 0))
def opt(n, d): return int(o.get(n, d))
S, D, F = 2048, 640, 1728
def fl(x): return hex(struct.unpack('<I', struct.pack('<f', x))[0])
MBSZ = 256*4*128
PH = dict(W=0, Z0=1, X10=2, HA0=3, HB0=4, X20=5, Z1=6, X11=7, HA1=8, HB1=9)
WS_TS = 11*MBSZ
WS_WUF = 2 << 20
WS_WDF = WS_WUF + 32*143360
WS_Z = [WS_WDF + 8*286720 + l*3145728 for l in range(2)]
WS_X1 = [WS_Z[1] + 3145728 + l*2621440 for l in range(2)]
WS_X2 = WS_X1[1] + 2621440
WS_ST = [WS_X2 + 2621440 + l*131072 for l in range(3)]
WS_H = [WS_ST[2] + 131072 + l*7340032 for l in range(2)]
WS_BF = WS_H[1] + 7340032
WS_END = WS_BF + 8*51200
L_XCH = 93184
L_B = L_XCH + 12288
L_Z = 132096
L_RED = 93184
L_RAW = 73728
L_CSP = 156672
L_CS = 163328
LDS = 163840
sW, sXCD, sQ, sJ, sCS, sCLS, sSIG, sGAM, sCSU, sMB = range(36, 46)
sXT, sST = 64, 65
sgZ, sgX1, sgH, sgX2 = 84, 85, 86, 87
R0 = 212; WT = 232
def V(a, n=4): return f'v[{a}:{a+n-1}]'
def wdreg(n): return f'a[{4*n}:{4*n+3}]' if n < 64 else V(WT + 4*(n-64))
MF = 'v_mfma_f32_16x16x32_bf16'
k = K(NAME + '_kernel')
nstamp = [0]; stampnames = []
DIAG = o.get('diag')
def stamp(name):
    if DIAG == name:
        k('s_memrealtime s[100:101]'); k('s_waitcnt lgkmcnt(0)')
    if not STAMP: return
    if name in stampnames: n = stampnames.index(name)
    else: n = len(stampnames); stampnames.append(name)
    k('s_memrealtime s[62:63]' if STAMP == 1 else 's_memtime s[62:63]'); k('s_waitcnt lgkmcnt(0)')
    k(f'v_writelane_b32 v11, s62, {n}')
def stampL(name):
    if not STAMP or not o.get('fine'): return []
    if name in stampnames: n = stampnames.index(name)
    else: n = len(stampnames); stampnames.append(name)
    return ['s_memrealtime s[62:63]' if STAMP == 1 else 's_memtime s[62:63]', 's_waitcnt lgkmcnt(0)', f'v_writelane_b32 v11, s62, {n}']
def finish():
    if DIAG:
        op = o.get('red', 'max')
        k(f's_cmp_lg_u32 s{sW}, 0'); k('s_cbranch_scc1 END')
        k('v_mov_b32 v12, s100'); k('s_lshl_b32 s48, s2, 2'); k(f's_add_u32 s48, s48, {WS_TS}')
        setexec(1); k('buffer_store_dword v12, off, s[4:7], s48 sc1'); allexec()
        k('s_cmp_lg_u32 s2, 0'); k('s_cbranch_scc1 END')
        k('PADL:'); k('s_memrealtime s[62:63]'); k('s_waitcnt lgkmcnt(0)')
        k('s_sub_u32 s62, s62, s99'); k('s_cmp_lt_u32 s62, 8000'); k('s_cbranch_scc1 PADL')
        k(f's_mov_b32 s48, {WS_TS}')
        k('buffer_load_dwordx4 v[12:15], v1, s[4:7], s48 offen sc1')
        for r in range(4): k(f'v_subrev_u32 v{12+r}, s99, v{12+r}')
        k(f'v_{op}_i32 v12, v12, v13'); k(f'v_{op}_i32 v14, v14, v15'); k(f'v_{op}_i32 v12, v12, v14')
        k('v_readlane_b32 s50, v12, 0')
        for n in range(1, 64):
            k(f'v_readlane_b32 s51, v12, {n}'); k(f's_{op}_i32 s50, s50, s51')
        k('s_mul_i32 s50, s50, 10'); k('s_add_u32 s50, s50, 20000'); k('s_min_u32 s50, s50, 100000')
        k('PADM:'); k('s_memrealtime s[62:63]'); k('s_waitcnt lgkmcnt(0)')
        k('s_sub_u32 s62, s62, s99'); k('s_cmp_lt_u32 s62, s50'); k('s_cbranch_scc1 PADM')
    if STAMP:
        k(f's_lshl_b32 s48, s{sMB}, 1'); k(f's_add_u32 s48, s48, {WS_TS}')
        k('v_lshlrev_b32 v12, 2, v0')
        k('buffer_store_dword v11, v12, s[4:7], s48 offen')
    k('s_endpgm')
class Stop(Exception): pass
def stop(name):
    if STOP == name:
        k('s_waitcnt vmcnt(0) lgkmcnt(0)'); raise Stop()
def setexec(n, lo=0):
    m = ((1 << n) - 1) << lo
    k(f's_mov_b32 exec_lo, {hex(m & 0xffffffff)}'); k(f's_mov_b32 exec_hi, {hex(m >> 32)}')
def allexec(): k('s_mov_b64 exec, -1')
def lines(s): return [l.strip() for l in s.strip().split('\n') if l.strip()]
def emit(L):
    for x in L: k(x)
MAXPOLL = 40000
def poll_issue(ph):
    return [f's_add_u32 s82, s92, {PH[ph]*MBSZ}', 's_addc_u32 s83, s93, 0', 's_load_dword s91, s[82:83], 0 glc']
def poll_wait():
    L = k.label('POLL'); X = k.label('POLLX')
    return ['s_waitcnt lgkmcnt(0)', 's_cmp_ge_u32 s91, 8', f's_cbranch_scc1 {X}', 's_mov_b32 s68, 0', f'{L}:',
            's_load_dword s91, s[82:83], 0 glc', 's_add_u32 s68, s68, 1', 's_waitcnt lgkmcnt(0)',
            's_cmp_ge_u32 s91, 8', f's_cbranch_scc1 {X}', f's_cmp_lt_u32 s68, {MAXPOLL}', f's_cbranch_scc1 {L}', f'{X}:']
SIGOFF = {sgZ: lambda l: (l >> 2)*512 + (l & 3)*32768, sgX1: lambda l: (l & 3)*512 + (l >> 2)*4096, sgH: lambda l: l*4096, sgX2: lambda l: l*4096}
def sig_prep(ph, sg): return [f's_add_u32 s89, s{sg}, {PH[ph]*MBSZ}', 's_add_u32 s88, s4, s89', 's_addc_u32 s89, s5, 0']
def sig_go(sg): return [f's_atomic_add s90, s[88:89], {SIGOFF[sg](l)}' for l in range(8)]

def prologue():
    k('s_cmp_ge_u32 s2, 256'); k('s_cbranch_scc1 END')
    k('s_getpc_b64 s[48:49]')
    k('PC0:')
    for s_, a in ((4, 'ws'), (16, 'wg'), (20, 'wu'), (24, 'wd'), (8, 'x'), (12, 'out'), (32, 'dbg')):
        k(f's_load_dwordx2 s[{s_}:{s_+1}], s[0:1], {KA[a]}')
    if STAMP: k('s_memrealtime s[62:63]' if STAMP == 1 else 's_memtime s[62:63]')
    if DIAG: k('s_memrealtime s[100:101]')
    k(f"""
    s_lshr_b32 s50, s2, 3
    s_lshl_b32 s50, s50, 11
    v_lshrrev_b32 v12, 4, v0
    v_lshl_add_u32 v12, v12, 7, s50
    v_min_u32 v12, CODE_END-PC0-4, v12
    global_load_dword v13, v12, s[48:49]
    v_lshrrev_b32 v3, 6, v0
    v_and_b32 v0, 63, v0
    v_readfirstlane_b32 s{sW}, v3
    """)
    for s_, n in ((4, 1 << 28), (16, D*F*2), (20, D*F*2), (24, D*F*2), (8, S*D*2), (12, S*D*2), (32, 256)):
        k(f's_mov_b32 s{s_+2}, {n}'); k(f's_mov_b32 s{s_+3}, 0x00020000')
    k(f"""
    v_lshlrev_b32 v1, 4, v0
    v_and_b32 v2, 15, v0
    v_lshrrev_b32 v3, 4, v0
    s_and_b32 s{sXCD}, s2, 7
    s_lshr_b32 s{sQ}, s2, 6
    s_bfe_u32 s{sJ}, s2, 0x30003
    s_lshl_b32 s{sCS}, s{sXCD}, 2
    s_add_u32 s{sCS}, s{sCS}, s{sQ}
    s_lshr_b32 s{sCLS}, s{sCS}, 1
    s_sub_u32 s50, 32, s{sCLS}
    s_cmp_eq_u32 s{sCS}, 1
    s_cselect_b32 s50, 16, s50
    s_bitcmp1_b32 s{sCS}, 0
    s_cselect_b32 s{sCLS}, s50, s{sCLS}
    """)
    k(f"""
    s_and_b32 s50, s{sCS}, 7
    s_lshl_b32 s51, s{sW}, 3
    s_add_u32 s50, s50, s51
    s_lshr_b32 s72, s{sCS}, 3
    s_mul_i32 s72, s72, 20
    s_add_u32 s72, s72, s50
    s_cmp_lt_u32 s2, 224
    s_cselect_b32 s75, 1, 2
    s_cmp_eq_u32 s{sW}, 3
    s_cselect_b32 s75, s75, 2
    s_cmp_lt_u32 s50, 20
    s_cselect_b32 s75, 0, s75
    s_mul_i32 s73, s{sW}, 7168
    s_add_u32 s73, s73, {L_RAW}
    """)
    if STAMP: k('v_mov_b32 v11, 0')
    k('s_waitcnt lgkmcnt(0)')
    if DIAG: k('s_mov_b32 s99, s100')
    if STAMP:
        k('v_writelane_b32 v11, s62, 0'); stampnames.append('start')

def ids2():
    return lines(f"""
    s_and_b32 s{sSIG}, s{sXCD}, 3
    s_lshl_b32 s50, s{sJ}, 2
    s_add_u32 s{sSIG}, s{sSIG}, s50
    s_and_b32 s{sGAM}, s{sXCD}, 4
    s_add_u32 s{sGAM}, s{sGAM}, s{sQ}
    s_lshl_b32 s{sCSU}, s{sGAM}, 2
    s_add_u32 s{sCSU}, s{sCSU}, s{sW}
    s_lshl_b32 s{sMB}, s2, 2
    s_add_u32 s{sMB}, s{sMB}, s{sW}
    s_lshl_b32 s{sMB}, s{sMB}, 7
    s_add_u32 s92, s4, s{sMB}
    s_addc_u32 s93, s5, 0
    s_lshl_b32 s50, s{sCS}, 2
    s_add_u32 s50, s50, s{sW}
    s_mul_i32 s{sXT}, s50, 20480
    s_lshl_b32 s{sST}, s50, 10
    s_mov_b32 s66, -1
    s_mov_b32 s67, 0
    s_lshl_b32 s50, s{sW}, 10
    s_lshl_b32 s51, s{sJ}, 12
    s_add_u32 s50, s50, s51
    s_lshr_b32 s51, s{sCS}, 3
    s_lshl_b32 s51, s51, 7
    s_add_u32 s{sgZ}, s50, s51
    s_and_b32 s50, s{sXCD}, 4
    s_and_b32 s51, s{sXCD}, 3
    s_lshl_b32 s51, s51, 6
    s_add_u32 s50, s50, s51
    s_lshl_b32 s51, s{sW}, 4
    s_add_u32 s50, s50, s51
    s_lshl_b32 s50, s50, 2
    s_add_u32 s50, s50, s{sQ}
    s_lshl_b32 s{sgX1}, s50, 7
    s_lshl_b32 s50, s{sW}, 6
    s_add_u32 s50, s50, s{sGAM}
    s_lshl_b32 s50, s50, 2
    s_lshr_b32 s51, s{sJ}, 1
    s_add_u32 s50, s50, s51
    s_lshl_b32 s{sgH}, s50, 7
    s_lshl_b32 s50, s{sQ}, 6
    s_add_u32 s50, s50, s{sXCD}
    s_lshl_b32 s50, s50, 2
    s_add_u32 s50, s50, s{sW}
    s_lshl_b32 s{sgX2}, s50, 7
    s_mul_i32 s50, s{sJ}, 1280
    s_add_u32 s51, s50, 1024
    s_sub_u32 s52, {79*256}, s50
    v_mov_b32 v12, s51
    v_mov_b32 v14, s52
    v_cndmask_b32 v4, v14, v12, s[66:67]
    v_and_b32 v12, 1, v3
    v_lshl_add_u32 v4, v12, 3, v4
    v_lshl_add_u32 v4, v2, 4, v4
    v_lshlrev_b32 v5, 2, v0
    """)
def ids1():
    return lines(f"""
    s_mov_b32 s90, 1
    s_sub_u32 s94, s{sJ}, 5
    s_cmp_lt_u32 s{sJ}, 5
    s_cselect_b32 s94, s{sJ}, s94
    s_mul_i32 s94, s94, {opt('rot', 1)}
    """) + [x for n in range(1, 5) for x in (f's_add_u32 s{94+n}, s{93+n}, 1', f's_cmp_eq_u32 s{94+n}, 5', f's_cselect_b32 s{94+n}, 0, s{94+n}')]

def nat_addr(a01, a23, a4, t):
    return lines(f"""
    s_lshr_b32 s50, s{sW}, 1
    s_lshl_b32 s50, s50, 5
    s_and_b32 s51, s{sW}, 1
    s_lshl_b32 s51, s51, 10
    s_add_u32 s50, s50, s51
    s_add_u32 s50, s50, s{sCLS}
    v_lshl_add_u32 v{t}, v2, 6, s50
    v_mul_u32_u24 v{t}, 1280, v{t}
    s_mul_i32 s50, s{sJ}, 80
    s_sub_u32 s51, 1200, s50
    v_lshl_add_u32 v{a4}, v3, 4, v{t}
    v_add_u32 v{a01}, s50, v{a4}
    v_add_u32 v{a23}, s51, v{a4}
    s_add_u32 s50, s50, 64
    s_add_u32 s51, s51, 48
    v_mov_b32 v{t+1}, s50
    v_mov_b32 v{t+2}, s51
    v_cndmask_b32 v{a4}, v{t+2}, v{t+1}, s[66:67]
    v_lshl_add_u32 v{a4}, v3, 3, v{a4}
    v_add_u32 v{a4}, v{a4}, v{t}
    """)

A0 = 132; P0 = 88; P1 = 108; P5 = 128; BR = 72; B5 = 68; M2 = 52
def gen_vals(t, ef, base):
    L = []
    for jj in range(1, 8): L.append(f'v_fmamk_f32 v{t+jj}, v{ef}, {fl(float(jj))}, v{base}')
    L.append(f'v_cos_f32 v{t}, v{base}')
    for jj in range(1, 8): L.append(f'v_cos_f32 v{t+jj}, v{t+jj}')
    return L
def pack8(dst, t): return [f'v_cvt_pk_bf16_f32 v{dst+p}, v{t+2*p}, v{t+2*p+1}' for p in range(4)]
def gen_setup(e, ef, base, t, zero_dc):
    L = [f'v_and_b32 v{t}, 2, v0', f'v_cvt_f32_u32 v{ef}, v{e}', f'v_cvt_f32_u32 v{t}, v{t}', f'v_mul_f32 v{t}, 0x3e000000, v{t}']
    if zero_dc: L += [f'v_cmp_eq_u32 vcc, 0, v{e}', f'v_mov_b32 v{t+1}, 0x3e800000', f'v_mul_f32 v{ef}, {fl(1/640)}, v{ef}', f'v_cndmask_b32 v{t}, v{t}, v{t+1}, vcc']
    else: L += [f'v_mul_f32 v{ef}, {fl(1/640)}, v{ef}']
    L += [f'v_lshlrev_b32 v{t+1}, 3, v3', f'v_cvt_f32_u32 v{t+1}, v{t+1}', f'v_fma_f32 v{base}, v{ef}, v{t+1}, v{t}']
    return L
def gen_T5():
    return [f's_mul_i32 s53, s{sJ}, 40', 's_add_u32 s53, s53, 40', 'v_and_b32 v20, 1, v0', 'v_sub_u32 v22, 1, v20', 'v_mul_u32_u24 v22, s53, v22'] \
        + gen_setup(22, 23, 24, 26, False) + gen_vals(26, 23, 24) + pack8(B5, 26)
def gen_run(nfr, C0, C1, PK):
    L = gen_vals(C0, 23, 24) + [f'v_fmamk_f32 v24, v23, {fl(32.0)}, v24', f'v_mul_f32 v34, {fl(32.0)}, v23'] + gen_vals(C1, 23, 24) + ['v_cos_f32 v34, v34']
    for n in range(nfr):
        c, o_ = (C0, C1) if n % 2 == 0 else (C1, C0)
        if n == 2: L.append('v_add_f32 v34, v34, v34')
        if n >= 2:
            for p in range(4): L.append(f'v_pk_fma_f32 {V(c+2*p,2)}, {V(o_+2*p,2)}, v[34:35], {V(c+2*p,2)} op_sel_hi:[1,0,1] neg_lo:[0,0,1] neg_hi:[0,0,1]')
        pk = PK + 4*(n % 2)
        if nfr == 3 and n == 2: L += [f's_cmp_lt_u32 s{sW}, 2', f's_cselect_b32 s57, s57, {L_CSP - L_B - 4096}']
        L += ['v_add_u32 v35, s57, v25', 's_add_u32 s57, s57, 5120', 's_cmp_eq_u32 s57, 51200', 's_cselect_b32 s57, 0, s57']
        L += pack8(pk, c) + [f'ds_write_b128 v35, {V(pk)}']
    return L
def gen_B1():
    return lines(f"""
    s_mul_i32 s52, s{sJ}, 40
    s_lshr_b32 s53, s{sW}, 1
    s_lshl_b32 s53, s53, 4
    s_and_b32 s54, s{sW}, 1
    s_lshl_b32 s55, s54, 1
    s_add_u32 s53, s53, s55
    s_add_u32 s53, s53, s52
    v_and_b32 v20, 1, v0
    v_and_b32 v21, 12, v0
    v_add3_u32 v22, v20, v21, s53
    s_lshl_b32 s56, s{sW}, 10
    s_add_u32 s56, s56, {L_B}
    v_add_u32 v25, s56, v1
    s_mul_i32 s58, s94, 10240
    s_sub_u32 s57, 51200, s58
    s_cmp_eq_u32 s94, 0
    s_cselect_b32 s57, 0, s57
    """) + gen_setup(22, 23, 24, 26, True) + gen_run(10, 88, 96, 104)
def gen_B2():
    return lines(f"""
    s_add_u32 s53, s52, 32
    v_lshrrev_b32 v21, 1, v21
    v_add3_u32 v22, v20, v21, s53
    s_mul_i32 s55, s{sW}, 3
    s_min_u32 s55, s55, 8
    s_mul_i32 s56, s55, 5120
    s_add_u32 s57, s57, s56
    s_sub_u32 s56, s57, 51200
    s_cmp_ge_u32 s57, 51200
    s_cselect_b32 s57, s56, s57
    s_lshl_b32 s55, s55, 5
    v_add_u32 v25, {L_B + 4096}, v1
    """) + gen_setup(22, 23, 24, 26, False) + ['v_cvt_f32_u32 v26, s55', 'v_fma_f32 v24, v26, v23, v24', 'v_fract_f32 v24, v24'] + gen_run(3, 88, 96, 104)

def gen_M2():
    L = lines(f"""
    s_lshl_b32 s50, s{sW}, 3
    v_lshrrev_b32 v20, 1, v2
    v_add_u32 v20, s50, v20
    v_lshrrev_b32 v21, 1, v20
    v_cmp_eq_u32 vcc, 1, v20
    v_sub_u32 v22, 32, v21
    v_and_b32 v23, 2, v0
    v_cndmask_b32 v22, v22, 16, vcc
    v_cmp_ne_u32 vcc, 0, v23
    v_and_b32 v20, 1, v0
    v_lshl_add_u32 v23, v3, 8, s{sCLS}
    v_cndmask_b32 v21, v21, v22, vcc
    v_lshl_add_u32 v21, v20, 5, v21
    v_mul_u32_u24 v22, v21, v23
    v_and_b32 v22, 2047, v22
    v_bfe_i32 v20, v21, 0, 1
    v_and_b32 v20, 0x80008000, v20
    v_cvt_f32_u32 v21, v21
    v_cvt_f32_u32 v22, v22
    v_mul_f32 v21, {fl(1/64)}, v21
    v_mul_f32 v22, {fl(1/2048)}, v22
    """)
    for kap in range(2):
        for jp in range(2):
            for h in range(2): L.append(f'v_fmamk_f32 v{23+h}, v21, {fl(float(kap + 2*(2*jp + h)))}, v22')
            L += ['v_cos_f32 v25, v23', 'v_cos_f32 v26, v24', 'v_sin_f32 v27, v23', 'v_sin_f32 v28, v24']
            L.append(f'v_cvt_pk_bf16_f32 v{M2 + 4*kap + jp}, v25, v26')
            L.append(f'v_cvt_pk_bf16_f32 v{M2 + 8 + 4*kap + jp}, v27, v28')
            L.append(f'v_xor_b32 v{M2 + 4*kap + jp + 2}, v20, v{M2 + 4*kap + jp}')
            L.append(f'v_xor_b32 v{M2 + 8 + 4*kap + jp + 2}, v20, v{M2 + 8 + 4*kap + jp}')
    return L

def a_lds(m):
    return [f'ds_read_b128 {V(A0 + 8*(2*(m >> 1) + od) + 4*(m & 1))}, v{50+od} offset:{(m % 9)*2048}' for od in range(2)]
def init_issue():
    k('v_and_b32 v14, 3, v0'); k('v_lshlrev_b32 v14, 6, v14')
    k('buffer_load_dword v15, v14, s[32:35], 0 offen sc1')
def init_check():
    L = k.label('INI'); X = k.label('INIX')
    k('s_mov_b32 s68, 0')
    k(f'{L}:')
    k('s_waitcnt vmcnt(0)')
    k('v_cmp_gt_u32 vcc, 64, v15')
    k(f's_cbranch_vccz {X}')
    k('s_sleep 10')
    k('buffer_load_dword v15, v14, s[32:35], 0 offen sc1')
    k('s_add_u32 s68, s68, 1')
    k(f's_cmp_lt_u32 s68, {MAXPOLL}'); k(f's_cbranch_scc1 {L}')
    k('s_waitcnt vmcnt(0)')
    k(f'{X}:')

def d1_body(l, aload):
    S1, S2 = 40, 44
    BRL = [72, 76, 80, 84, 16, 20, 24][:opt('br', 7)]; NB = len(BRL)
    mf = []; fixed = {}
    def fx(g, x, first=False):
        L = fixed.setdefault(g, [])
        L.insert(0, x) if first else L.append(x)
    pre = []
    if l == 0:
        pre = ['v_mov_b32 v30, 0', 'v_mov_b32 v31, 0']
    TK = opt('tk', 2)
    border = [(ks, T) for ks in range(10 - TK) for T in range(5)] + [(ks, T) for T in range(5) for ks in range(10 - TK, 10)]
    rd = lambda n: f'ds_read_b128 {V(BRL[n % NB])}, v8 offset:{(border[n][0]*5 + border[n][1])*1024}'
    for n in range(NB-1): k(rd(n))
    tdone = {}
    def head(ks):
        a0, a1 = V(A0 + 8*ks), V(A0 + 8*ks + 4)
        g0 = len(mf)
        if l == 0 and ks % 2 == 0:
            burst = [f'v_dot2c_f32_bf16 v{30 + (n & 1)}, v{A0+8*ks+n}, v{A0+8*ks+n}' for n in range(16)]
            if ks == 8: burst += ['v_add_f32 v30, v30, v31', 'v_mov_b32 v31, 1.0', f'v_mfma_f32_16x16x4_f32 {V(S2)}, v30, v31, 0']
            if ks == 0: pre.extend(burst)
            else:
                for x in burst: fx(g0-1, x)
        if ks and l == 1: fx(g0-2, Need(rr(V(A0 + 8*ks, 8))), True)
        mf.append(f'{MF} {V(P5)}, {a0}, {V(B5)}, {V(P5) if ks else 0}')
        mf.append(f'{MF} {V(P5)}, {a1}, {V(B5)}, {V(P5)}')
        if l == 0 and ks % 2 == 1 and ks < 9:
            fx(g0, Need([], [f'AD{ks+1}', f'AD{ks+2}']), True)
            for c, x in enumerate(a_lds(ks+1) + a_lds(ks+2)): fx(g0 + (0, 1, 3, 5)[c], x)
        if aload:
            for c in range(3):
                n = aload[0] + 3*ks + c
                if n < 20:
                    for x in aload[1](n): fx(g0 + (0, 3, 7)[c], x)
    for n, (ks, T) in enumerate(border):
        if n < 5*(10-TK):
            if T == 0: head(ks)
        elif n == 5*(10-TK):
            for k2 in range(10-TK, 10): head(k2)
            tdone[5] = len(mf)
        b = V(BRL[n % NB])
        fx(len(mf)-1, Need(rr(b)), True)
        if n + NB - 1 < 50: fx(len(mf), rd(n+NB-1))
        mf.append(f'{MF} {V(P0+4*T)}, {V(A0 + 8*ks)}, {b}, {V(P0+4*T) if ks else 0}')
        mf.append(f'{MF} {V(P1+4*T)}, {V(A0 + 8*ks + 4)}, {b}, {V(P1+4*T) if ks else 0}')
        if ks == 9: tdone[T] = len(mf)
    st = []
    if l == 1:
        for x in ['v_add_f32 v32, v32, v33', 'v_add_f32 v34, v34, v35', 'v_add_f32 v32, v32, v34',
                  'v_and_b32 v33, 1, v3', 'v_cvt_f32_u32 v33, v33', 'v_sub_f32 v34, 1.0, v33']: st.append((x, 40))
        fx(59, f'v_mfma_f32_16x16x4_f32 {V(S1)}, v32, v34, 0'); fx(59, f'v_mfma_f32_16x16x4_f32 {V(S2)}, v32, v33, 0')
    for x in ['v_and_b32 v29, 1, v0', 'v_cvt_f32_u32 v29, v29', 'v_fma_f32 v29, v29, -2.0, 1.0',
              f's_and_b32 s50, s{sW}, 1', 's_lshl_b32 s50, s50, 3', f's_lshr_b32 s51, s{sW}, 1', 's_lshl_b32 s51, s51, 10',
              's_add_u32 s50, s50, s51', f's_add_u32 s50, s50, {L_XCH}', 'v_add_u32 v9, s50, v1', f'v_add_u32 v10, {L_XCH}, v1',
              f's_lshl_b32 s50, s{sCS}, 3', f's_add_u32 s50, s50, s{sJ}', 's_mul_i32 s50, s50, 12288',
              f's_lshl_b32 s51, s{sW}, 10', 's_add_u32 s50, s50, s51', f's_add_u32 s70, s50, {WS_Z[l]}',
              'v_lshlrev_b32 v12, 6, v2', 'v_lshl_add_u32 v12, v3, 4, v12']: st.append((x, 62))
    e = tdone[5] + 2 if l == 0 else 70
    for r in range(4):
        if l == 0: st.append((f'v_mov_b32_dpp v{S1+r}, v{P5+r} quad_perm:[1,1,1,1] row_mask:0xf bank_mask:0xf', e))
        st.append((f'v_mul_f32 v{S2+r}, {fl(1/640)}, v{S2+r}', e))
    for r in range(4): st.append((f'v_mul_f32 v{S1+r}, {fl(1/640)}, v{S1+r}', e))
    for r in range(4): st.append((f'v_fma_f32 v{S2+r}, -v{S1+r}, v{S1+r}, v{S2+r}', e))
    for r in range(4): st.append((f'v_max_f32 v{S2+r}, 0, v{S2+r}', e))
    for r in range(4): st.append((f'v_add_f32 v{S2+r}, {fl(1e-5)}, v{S2+r}', e))
    for r in range(4): st.append((f'v_rsq_f32 v{S2+r}, v{S2+r}', e))
    for T in (5, 0, 1, 2, 3, 4):
        p = P0 + 4*T if T < 5 else P5
        e = tdone[T] + 2
        if T < 5:
            for r in range(4): st.append((f'v_fmac_f32 v{p+r}, v29, v{P1+4*T+r}', e))
        for r in range(4): st.append((f'v_mul_f32 v{p+r}, v{p+r}, v{S2+r}', e))
        st.append((f'v_cvt_pk_bf16_f32 v{p}, v{p}, v{p+1}', e)); st.append((f'v_cvt_pk_bf16_f32 v{p+1}, v{p+2}, v{p+3}', e))
        st.append((f'ds_write_b64 v9, {V(p,2)} offset:{T*2048}', e))
    emit(pre)
    if l == 1: k.need(V(A0, 8)); emit(stampL('g1a_1'))
    rest = weave(k, mf, fixed, st, tail=False)
    emit(stampL(f'g1m_{l}'))
    if l == 0:
        k(f's_cmp_lg_u32 s{sW}, 0'); k.begin('w0', 's_cbranch_scc1'); init_issue(); k.end()
    for x, e in rest: k(x)
    if l == 0:
        stamp('g1')
        k(f's_cmp_lg_u32 s{sW}, 0'); k.begin('w0', 's_cbranch_scc1'); init_check(); k.end()
        stamp('inic')
        k('s_waitcnt vmcnt(0)')
    k('s_waitcnt lgkmcnt(0)'); k('s_barrier')
    stamp(f'd1x_{l}')
    FR = A0; AC = 84
    for n in range(12): k(f'ds_read_b128 {V(FR+4*n)}, v10 offset:{n*1024}')
    mf = []; st = []; fixed = {}
    for T in range(6):
        t1, t2 = AC + 8*T, AC + 8*T + 4
        for kap in range(2):
            f = V(FR + 4*(2*T + kap))
            mf.append(f'{MF} {V(t1)}, {f}, {V(M2+4*kap)}, {V(t1) if kap else 0}')
            mf.append(f'{MF} {V(t2)}, {f}, {V(M2+8+4*kap)}, {V(t2) if kap else 0}')
        e = len(mf) + 2
        dst = 16 + 4*(T >> 1) + 2*(T & 1)
        for rp in range(2):
            st.append((f'v_add_f32 v{t1+rp}, v{t1+rp}, v{t2+2+rp}', e))
            st.append((f'v_sub_f32 v{t1+2+rp}, v{t1+2+rp}, v{t2+rp}', e))
        for rp in range(2): st.append((f'v_cvt_pk_bf16_f32 v{dst+rp}, v{t1+rp}, v{t1+2+rp}', e))
        if T & 1:
            st.append((I(f'buffer_store_dwordx4 {V(16 + 4*(T>>1))}, v12, s[4:7], s70 offen sc1', name='ZS'), e))
            st.append(('s_add_u32 s70, s70, 4096', e))
    if l == 0:
        fixed[5] = [Need(rr(V(FR, 48)))]
        for n, x in enumerate(sig_prep('W', sgZ)): fixed[n] = [x]
        for n, x in enumerate(sig_go(sgZ)): fixed[6+n] = [x]
    weave(k, mf, fixed, st)

def prepass_issue():
    k('s_cmp_lg_u32 s75, 0')
    k.begin('pw', 's_cbranch_scc1')
    k(f"""
    v_cmp_lt_u32 vcc, 27, v0
    s_mul_i32 s50, s72, {8*3456}
    s_mul_i32 s51, s{sJ}, 448
    s_add_u32 s50, s50, s51
    v_mov_b32 v21, {3456 - 448}
    v_cndmask_b32 v20, 0, v21, vcc
    v_add_u32 v20, v20, v1
    """)
    setexec(56)
    for rp in range(4):
        for mat in range(2):
            k(f's_add_u32 m0, s73, {mat*3584 + rp*896}')
            k(f'buffer_load_dwordx4 v20, s[{16+4*mat}:{19+4*mat}], s50 offen lds', name='RAW')
        k(f's_add_u32 s50, s50, {2*3456}')
    allexec()
    k.end()
    k('s_cmp_lg_u32 s75, 1')
    k.begin('pd', 's_cbranch_scc1')
    k('s_mul_i32 s50, s2, 10240')
    for n in range(10):
        if n % 4 == 0:
            k(f's_mov_b32 m0, {L_RAW + 3*7168 + n*1024}')
            if n: k('s_add_u32 s50, s50, 4096')
        k(f'buffer_load_dwordx4 v1, s[24:27], s50 offen offset:{(n % 4)*1024} lds', name='RAW')
    k.end()

def prepass_process():
    T0 = 88
    dummy = 'buffer_load_dword v13, off, s[32:35], 0 offset:1024'
    k('v_bfe_u32 v20, v0, 2, 2'); k('v_and_b32 v21, 3, v0'); k('v_and_b32 v22, 1, v0'); k('v_bfe_u32 v23, v0, 1, 1')
    k('s_cmp_lg_u32 s75, 0')
    k.begin('pw', 's_cbranch_scc1')
    k(f"""
    v_mul_u32_u24 v24, 448, v20
    v_mul_u32_u24 v25, 112, v3
    v_add3_u32 v24, v24, v25, s73
    v_lshl_add_u32 v25, v21, 4, v24
    v_lshl_add_u32 v26, v22, 4, v24
    v_lshl_add_u32 v26, v23, 3, v26
    v_mul_u32_u24 v27, 3584, v23
    v_lshl_add_u32 v27, v22, 3, v27
    v_add_u32 v27, v27, v24
    v_mul_u32_u24 v28, 143360, v3
    v_lshl_add_u32 v28, v2, 4, v28
    s_mul_i32 s50, s{sJ}, {4*143360}
    s_lshr_b32 s51, s72, 2
    s_mul_i32 s51, s51, 7168
    s_add_u32 s50, s50, s51
    s_and_b32 s51, s72, 3
    s_lshl_b32 s51, s51, 8
    s_add_u32 s50, s50, s51
    s_add_u32 s50, s50, {WS_WUF}
    s_add_u32 s51, s50, 4096
    """)
    k.need(names=['RAW'])
    for T in range(7):
        a, off = (25, (T >> 1)*3584 + 8*(T & 1)) if T < 4 else ((26, (T-4)*3584 + 64) if T < 6 else (27, 96))
        for h in range(2): k(f'ds_read_b64_tr_b16 {V(T0+4*T+2*h, 2)}, v{a} offset:{off + h*1792}')
    for T in range(7):
        k(f'buffer_store_dwordx4 {V(T0+4*T)}, v28, s[4:7], s{50 + (T >> 2)} offen offset:{(T & 3)*1024} sc1')
    for n in range(3): k(dummy)
    k.end()
    k('s_cmp_lg_u32 s75, 1')
    k.begin('pd', 's_cbranch_scc1')
    k(f"""
    v_mul_u32_u24 v24, 1280, v20
    v_add_u32 v24, {L_RAW + 3*7168}, v24
    v_mul_u32_u24 v28, 80, v3
    v_lshl_add_u32 v26, v21, 4, v24
    v_add_u32 v25, v26, v28
    v_sub_u32 v26, v26, v28
    v_lshl_add_u32 v24, v22, 3, v24
    v_cmp_ne_u32 vcc, 0, v23
    v_sub_u32 v27, 1200, v28
    v_sub_u32 v29, 880, v28
    v_add_u32 v30, 320, v28
    v_cndmask_b32 v27, v28, v27, vcc
    v_cndmask_b32 v29, v30, v29, vcc
    v_add_u32 v27, v27, v24
    v_add_u32 v29, v29, v24
    v_mul_u32_u24 v28, 286720, v3
    v_lshl_add_u32 v28, v2, 4, v28
    s_lshr_b32 s50, s2, 2
    s_mul_i32 s50, s50, 5120
    s_and_b32 s51, s2, 3
    s_lshl_b32 s51, s51, 8
    s_add_u32 s50, s50, s51
    s_add_u32 s50, s50, {WS_WDF}
    s_add_u32 s51, s50, 4096
    s_add_u32 s52, s50, {4*286720}
    s_add_u32 s53, s52, 4096
    """)
    k.need(names=['RAW'])
    for jh in range(2):
        for T in range(5):
            if T < 2: a, off = 25, 320*jh + 8*T
            elif T < 4: a, off = 26, 1200 - 320*jh + 8*(T-2)
            else: a, off = (27 if jh == 0 else 29), 64
            for h in range(2): k(f'ds_read_b64_tr_b16 {V(T0+4*(5*jh+T)+2*h, 2)}, v{a} offset:{off + h*5120}')
    for jh in range(2):
        for T in range(5):
            k(f'buffer_store_dwordx4 {V(T0+4*(5*jh+T))}, v28, s[4:7], s{50 + 2*jh + (T >> 2)} offen offset:{(T & 3)*1024} sc1')
    k.end()
    k('s_cmp_lg_u32 s75, 2')
    k.begin('pi', 's_cbranch_scc1')
    for n in range(10): k(dummy)
    k.end()
    for n in range(10): k('phantom_vm')

def publish(xbase, stbase, pk, nm):
    a = pk + 12
    for n in range(5):
        k(f'v_cvt_pk_bf16_f32 v{pk+2*n}, v{R0+4*n}, v{R0+4*n+1}'); k(f'v_cvt_pk_bf16_f32 v{pk+2*n+1}, v{R0+4*n+2}, v{R0+4*n+3}')
        if n == 1: k(f'buffer_store_dwordx4 {V(pk)}, v1, s[4:7], s57 offen sc1', name=nm)
        if n == 3: k(f'buffer_store_dwordx4 {V(pk+4)}, v1, s[4:7], s58 offen sc1', name=nm)
    k(f'buffer_store_dwordx2 {V(pk+8,2)}, v4, s[4:7], s56 offen sc1', name=nm)
    k(f'v_mov_b32 v{a}, 0'); k(f'v_mov_b32 v{a+1}, 0')
    for n in range(10):
        k(f'v_dot2c_f32_bf16 v{a}, s60, v{pk+n}'); k(f'v_dot2c_f32_bf16 v{a+1}, v{pk+n}, v{pk+n}')
    k(f'v_permlane32_swap_b32 v{a}, v{a+1}')
    k(f'v_add_f32 v{a}, v{a}, v{a+1}'); k(f'v_mov_b32 v{a+1}, v{a}')
    k(f'v_permlane16_swap_b32 v{a}, v{a+1}')
    k(f'v_add_f32 v{a}, v{a}, v{a+1}')
    setexec(32, 16)
    k(f'buffer_store_dword v{a}, v5, s[4:7], s59 offen sc1', name=nm)
    allexec()
def pub_prep(xbase, stbase):
    return [f's_add_u32 s56, s{sXT}, {xbase}', f's_mul_i32 s59, s{sJ}, 1280', 's_add_u32 s57, s56, s59', 's_sub_u32 s58, s56, s59',
            f's_add_u32 s58, s58, {75*256}', f's_lshl_b32 s59, s{sJ}, 7', f's_add_u32 s59, s59, s{sST}', f's_add_u32 s59, s59, {stbase - 64}',
            's_mov_b32 s60, 0x3f803f80']

ML, MU, ZF, AD, ZA = 40, 48, 60, 30, 100
def d2_prep(l):
    L = lines(f"""
    s_and_b32 s50, s{sW}, 1
    s_lshl_b32 s50, s50, 4
    v_add_u32 v104, s50, v2
    s_lshr_b32 s54, s{sW}, 1
    s_or_b32 s51, s54, s{sCLS}
    s_cmp_eq_u32 s51, 0
    s_cselect_b32 s51, 32, 31
    v_sub_u32 v105, s51, v104
    v_cvt_f32_u32 v104, v104
    v_cvt_f32_u32 v105, v105
    v_cvt_f32_u32 v106, v3
    v_mul_f32 v104, {fl(1/32)}, v104
    v_mul_f32 v105, {fl(1/32)}, v105
    v_add_f32 v106, v106, v106
    v_cmp_eq_u32 vcc, 0, v3
    v_mul_f32 v107, v104, v106
    v_mul_f32 v108, v105, v106
    """)
    for (t, b, dst) in ((104, 107, ML), (105, 108, MU)):
        for q_ in range(4):
            kap, jh = q_ >> 1, q_ & 1
            L.append(f'v_fmamk_f32 v{109+q_}, v{t}, {fl(float(8*kap + jh))}, v{b}')
        L.append(f'v_mul_f32 v121, 0x41800000, v{t}')
        for q_ in range(4): L += [f'v_cos_f32 v{113+q_}, v{109+q_}', f'v_sin_f32 v{117+q_}, v{109+q_}']
        L.append('v_cos_f32 v121, v121')
        for q_ in range(4): L.append(f'v_cvt_pk_bf16_f32 v{dst+2*q_}, v{113+q_}, v{117+q_}')
        L.append('v_cndmask_b32 v113, v113, v121, vcc')
        for q_ in range(4): L.append(f'v_cvt_pk_bf16_f32 v{dst+2*q_+1}, v{113+q_}, -v{117+q_}')
    L += lines(f"""
    v_mul_u32_u24 v104, {8*12288}, v3
    s_mul_i32 s50, s{sW}, {64*12288}
    s_mul_i32 s51, s{sJ}, 12288
    s_add_u32 s50, s50, s51
    s_lshr_b32 s51, s{sCS}, 1
    s_lshl_b32 s51, s51, 8
    s_add_u32 s50, s50, s51
    s_add_u32 s70, s50, {WS_Z[l]}
    s_mul_i32 s71, s{sW}, 6144
    """)
    for n, x in enumerate((0, 4, 1, 5)):
        L += [f'v_xor_b32 v105, {x}, v2', f'v_lshl_add_u32 v{ZA+n}, v105, 4, v104']
    n1 = len(L)
    L += lines(f"""
    s_and_b32 s50, s{sCS}, 1
    s_xor_b32 s51, s50, 1
    s_cmp_lt_u32 s{sCS}, 2
    s_cselect_b32 s51, s50, s51
    s_xor_b32 s52, s54, 1
    s_cmp_eq_u32 s{sCS}, 0
    s_cselect_b32 s52, s54, s52
    s_lshl_b32 s50, s50, 7
    s_lshl_b32 s55, s54, 6
    s_add_u32 s50, s50, s55
    s_lshl_b32 s51, s51, 7
    s_lshl_b32 s52, s52, 6
    s_add_u32 s51, s51, s52
    v_lshrrev_b32 v104, 1, v3
    v_mul_u32_u24 v104, 6144, v104
    v_and_b32 v105, 1, v3
    v_lshl_add_u32 v104, v105, 10, v104
    v_add_u32 v104, {L_Z}, v104
    v_lshlrev_b32 v105, 6, v105
    v_xor_b32 v106, s50, v105
    v_xor_b32 v107, s51, v105
    v_add_u32 v106, v106, v104
    v_add_u32 v107, v107, v104
    v_and_b32 v108, 12, v2
    v_add_u32 v108, v108, v2
    """)
    def fin(T, base):
        return ['v_lshrrev_b32 v110, 4, v109', 'v_and_b32 v111, 15, v109', f'v_lshl_add_u32 v{AD+T}, v110, 11, v{base}',
                'v_and_b32 v110, 1, v110', 'v_lshlrev_b32 v110, 2, v110', 'v_xor_b32 v111, v111, v110', f'v_lshl_add_u32 v{AD+T}, v111, 2, v{AD+T}']
    L += ['v_mov_b32 v109, v108'] + fin(0, 106) + [f'v_xor_b32 v{AD+1}, 16, v{AD}']
    for T in (2, 3):
        L += [f'v_sub_u32 v109, {40 - 4*(T-2)}, v108', 'v_cmp_lt_u32 vcc, 31, v109', 'v_and_b32 v110, 6, v109', 'v_add_u32 v110, v110, v109',
              'v_cndmask_b32 v109, v109, v110, vcc']
        if T == 2: L += ['v_cmp_eq_u32 vcc, 0, v2', 'v_nop', 'v_nop', 'v_cndmask_b32 v109, v109, 34, vcc']
        L += fin(T, 107)
    L += ['v_cmp_gt_u32 vcc, 8, v2', 'v_and_b32 v110, 6, v2', 'v_add3_u32 v110, v110, v2, 32', 'v_sub_u32 v109, 16, v2',
          'v_cndmask_b32 v109, v109, v110, vcc', 'v_cndmask_b32 v112, v107, v106, vcc'] + fin(4, 112)
    return L, n1

def wu_dma(f0, f1, sreg_lds, sreg_src):
    L = []
    for c, n in enumerate(range(f0, f1)):
        if c % 4 == 0: L += [f's_add_u32 m0, s{sreg_lds}, {n*1024}', f's_add_u32 s61, s{sreg_src}, {n*1024}']
        L.append(I(f'buffer_load_dwordx4 v1, s[4:7], s61 offen offset:{(c % 4)*1024} sc1 lds', name='WU'))
    return L
CSA = 128
def cs_part(f0, f1):
    for c0 in range(f0, f1, 14):
        c1 = min(f1, c0 + 14)
        for n in range(c0, c1): k(f'ds_read_b128 {V(156+4*(n-c0))}, v8 offset:{n*1024}')
        for n in range(c0, c1):
            T = n % 7
            k(f'{MF} {V(CSA+4*T)}, {V(124)}, {V(156+4*(n-c0))}, {V(CSA+4*T) if n >= 7 else 0}')

def d2(l):
    N1 = opt('n1', 14)
    prep, n1 = d2_prep(l)
    emit(sig_prep(f'Z{l}', sgZ))
    if l == 0: emit(poll_issue('W'))
    k(f's_mul_i32 s76, s{sSIG}, 143360'); k(f's_add_u32 s76, s76, {WS_WUF}')
    if l == 0: k(f's_mul_i32 s77, s{sW}, {5*7168}')
    else: k(f's_mul_i32 s77, s{sW}, {12*1024}'); k(f's_add_u32 s77, s77, {91*1024}')
    k('s_add_u32 s76, s76, s77')
    cut = opt('cut', 150)
    emit(prep[:cut])
    k.need(names=['ZS'])
    stamp(f'd1e_{l}')
    emit(sig_go(sgZ))
    if l == 0:
        emit(poll_wait())
        stamp('wp')
        emit(wu_dma(0, N1, 77, 76))
    emit(prep[cut:])
    emit(pub_prep(WS_X1[l], WS_ST[l]))
    emit(sig_prep(f'X1{l}', sgX1))
    emit(poll_issue(f'Z{l}'))
    emit(poll_wait())
    stamp(f'd2p_{l}')
    for p in range(3):
        for hh in range(2):
            k(f's_add_u32 m0, s71, {L_Z + p*2048 + hh*1024}')
            k(f's_add_u32 s50, s70, {p*4096 + hh*4*8*12288}')
            k(f'buffer_load_dwordx4 v{ZA + 2*(p & 1) + hh}, s[4:7], s50 offen sc1 lds')
    if l == 0:
        k('v_add_u32 v8, s77, v1')
        for r in range(4): k(f'v_mov_b32 v{124+r}, 0x3f803f80')
        k.need(names=['WU'])
        cs_part(0, N1)
    k('s_waitcnt vmcnt(0)'); k('s_barrier')
    stamp(f'd2l_{l}')
    order = [(4, 0), (4, 1)] + [(T, kap) for T in range(4) for kap in range(2)]
    for n, (T, kap) in enumerate(order):
        for h in range(2):
            k(f'ds_read2st64_b32 {V(ZF+4*n+2*h, 2)}, v{AD+T} offset0:{48*kap + 2*h} offset1:{48*kap + 2*h + 1}')
    r4 = V(R0+16)
    k(f'{MF} {V(56)}, {V(ZF)}, {V(ML)}, {r4}')
    k(f'{MF} {r4}, {V(ZF)}, {V(MU)}, {r4}')
    k(f'{MF} {V(56)}, {V(ZF+4)}, {V(ML+4)}, {V(56)}')
    k(f'{MF} {r4}, {V(ZF+4)}, {V(MU+4)}, {r4}')
    for n, (T, kap) in enumerate(order):
        if T < 4: k(f'{MF} {V(R0+4*T)}, {V(ZF+4*n)}, {V((ML if T < 2 else MU) + 4*kap)}, {V(R0+4*T)}')
    k('s_barrier')
    for r in range(4): k(f'v_cndmask_b32 v{R0+16+r}, v{R0+16+r}, v{56+r}, s[66:67]')
    publish(WS_X1[l], WS_ST[l], 12, 'XS')
    N2 = opt('n2', 6)
    f0, f1 = (N1, 35) if l == 0 else (0, 13)
    emit(wu_dma(f0, f0+N2, 77, 76))
    up_prep(l)
    k.need(names=['XS']); k('s_barrier')
    stamp(f'd2e_{l}')
    emit(sig_go(sgX1))
    emit(wu_dma(f0+N2, f1, 77, 76))

ACC = [12, 68]; BRG = 124; XR = 152; XD = 5; K1 = 192; SS = 196; NM = 200; TM = 204
def acc(h, T, mi): return ACC[h] + (2*T + mi)*4
def epi_stream(h, l, e0):
    st = []
    def grp(G, U, k1, ss, dst):
        if h == 1 and opt('pk', 1):
            b1, b2 = k1 & 1, ss & 1
            for r in (0, 2): st.append(f'v_pk_mul_f32 {V(U+r,2)}, {V(G+r,2)}, {V(U+r,2)}')
            for r in (0, 2): st.append(f'v_pk_mul_f32 {V(G+r,2)}, {V(G+r,2)}, {V(k1-b1,2)} op_sel:[0,{b1}] op_sel_hi:[1,{b1}]')
            for r in range(4): st.append(f'v_exp_f32 v{G+r}, v{G+r}')
            for r in (0, 2): st.append(f'v_pk_fma_f32 {V(G+r,2)}, {V(G+r,2)}, {V(ss-b2,2)}, {V(ss-b2,2)} op_sel:[0,{b2},{b2}] op_sel_hi:[1,{b2},{b2}]')
            for r in range(4): st.append(f'v_rcp_f32 v{G+r}, v{G+r}')
            for r in (0, 2): st.append(f'v_pk_mul_f32 {V(U+r,2)}, {V(U+r,2)}, {V(G+r,2)}')
            st.append(f'v_cvt_pk_bf16_f32 v{dst}, v{U}, v{U+1}'); st.append(f'v_cvt_pk_bf16_f32 v{dst+1}, v{U+2}, v{U+3}')
            return
        for r in range(4): st.append(f'v_mul_f32 v{U+r}, v{G+r}, v{U+r}')
        for r in range(4): st.append(f'v_mul_f32 v{G+r}, v{G+r}, v{k1}')
        for r in range(4): st.append(f'v_exp_f32 v{G+r}, v{G+r}')
        for r in range(4): st.append(f'v_fma_f32 v{G+r}, v{G+r}, v{ss}, v{ss}')
        for r in range(4): st.append(f'v_rcp_f32 v{G+r}, v{G+r}')
        for r in range(4): st.append(f'v_mul_f32 v{U+r}, v{U+r}, v{G+r}')
        st.append(f'v_cvt_pk_bf16_f32 v{dst}, v{U}, v{U+1}'); st.append(f'v_cvt_pk_bf16_f32 v{dst+1}, v{U+2}, v{U+3}')
    nm = f'H{h}'
    for mi in range(2):
        d = acc(h, 0, mi)
        grp(acc(h, 0, mi), acc(h, 2, mi), K1+2*h+mi, SS+2*h+mi, d)
        grp(acc(h, 1, mi), acc(h, 3, mi), K1+2*h+mi, SS+2*h+mi, d+2)
        st.append(I(f'buffer_store_dwordx4 {V(d)}, v1, s[4:7], s{76+2*h+mi} offen sc1', name=nm))
    d = acc(h, 4, 0)
    grp(acc(h, 4, 0), acc(h, 5, 0), K1+2*h, SS+2*h, d)
    grp(acc(h, 4, 1), acc(h, 5, 1), K1+2*h+1, SS+2*h+1, d+2)
    for r in range(4): st.append(f'v_permlane32_swap_b32 v{acc(h,6,0)+r}, v{acc(h,6,1)+r}')
    st.append(f'v_cndmask_b32 v{TM+2}, v{K1+2*h+1}, v{K1+2*h}, s[66:67]')
    st.append(f'v_cndmask_b32 v{TM+3}, v{SS+2*h+1}, v{SS+2*h}, s[66:67]')
    st.append(f'v_permlane32_swap_b32 v{d}, v{d+2}'); st.append(f'v_permlane32_swap_b32 v{d+1}, v{d+3}')
    st.append(I(f'buffer_store_dwordx4 {V(d)}, v6, s[4:7], s{76+2*h} offen sc1', name=nm))
    d = acc(h, 6, 0)
    grp(d, acc(h, 6, 1), TM+2, TM+3, d)
    st.append(I(f'buffer_store_dwordx2 {V(d,2)}, v7, s[4:7], s{76+2*h} offen sc1', name=nm))
    return [(x, e0) for x in st]

def up_prep(l):
    k(f'v_add_u32 v9, {63*1024}, v1'); k(f'v_add_u32 v10, {126*1024}, v1')
    k(f's_mul_i32 s50, s{sCSU}, {4*20480}')
    for rt in range(4): k(f's_add_u32 s{72+rt}, s50, {WS_X1[l] + rt*20480}')
    k(f's_lshl_b32 s80, s{sCSU}, 12'); k(f's_add_u32 s80, s80, {WS_ST[l]}')
    if l == 0:
        k(f"""
        v_lshrrev_b32 v30, 5, v0
        v_mul_u32_u24 v30, 57344, v30
        v_lshl_add_u32 v30, v2, 4, v30
        v_and_b32 v31, 1, v3
        v_lshl_add_u32 v6, v31, 8, v30
        v_add_u32 v6, 1024, v6
        v_lshl_add_u32 v7, v31, 3, v30
        v_add_u32 v7, 1536, v7
        s_mul_i32 s81, s{sJ}, 286720
        s_mul_i32 s50, s{sW}, {70*1024}
        s_add_u32 s81, s81, s50
        s_add_u32 s81, s81, {WS_WDF}
        s_mul_i32 s16, s{sJ}, {7*opt('rotd', 1)}
        s_lshr_b32 s16, s16, 2
        s_lshl_b32 s16, s16, 10
        """)
        for n in range(1, 14):
            k(f's_add_u32 s{16+n}, s{15+n}, 1024'); k(f's_cmp_eq_u32 s{16+n}, {14*1024}'); k(f's_cselect_b32 s{16+n}, 0, s{16+n}')
        k('s_mul_i32 s30, s16, 5'); k('s_add_u32 s30, s30, s81')
def wdld(n):
    sl, T = divmod(n, 5)
    L = [f'buffer_load_dwordx4 {wdreg(n)}, v{1 if T < 4 else TM+4}, s[4:7], s30 offen offset:{(T % 4)*1024} sc1']
    if T == 3 and sl < 13: L.append(f's_mul_i32 s31, s{17+sl}, 5')
    if T == 4 and sl < 13: L.append('s_add_u32 s30, s31, s81')
    return L

def up(l):
    def brd(n):
        f = n % 140
        a, off = (1, f) if f < 63 else ((9, f-63) if f < 126 else (10, f-126))
        return f'ds_read_b128 {V(BRG + 4*(n % 7))}, v{a} offset:{off*1024}'
    def xld(n, mi):
        h, ks = divmod(n, 20)
        return f'buffer_load_dwordx4 {V(XR + 8*(n % XD) + 4*mi)}, v1, s[4:7], s{72+2*h+mi} offen offset:{(ks % 4)*1024} sc1'
    def xadv(n):
        h, ks = divmod(n, 20)
        return [f's_add_u32 s{72+2*h+mi}, s{72+2*h+mi}, 4096' for mi in range(2)] if ks % 4 == 3 else []
    SL = ACC[1]
    def first_loads():
        emit(poll_issue(f'X1{l}')); emit(poll_wait())
        stamp(f'upp_{l}')
        for n in range(XD-1):
            for mi in range(2): k(xld(n, mi))
            emit(xadv(n))
    k(f's_mul_i32 s50, s{sCSU}, {4*57344}'); k(f's_mul_i32 s51, s{sSIG}, {7*256}'); k('s_add_u32 s50, s50, s51')
    for rt in range(4): k(f's_add_u32 s{76+rt}, s50, {WS_H[l] + rt*57344}')
    if l == 0:
        k.need(names=['WU'])
        stamp('wu')
        cs_part(opt('n1', 14), 35)
        k(f's_mul_i32 s50, s{sW}, 448'); k(f's_add_u32 s50, s50, {L_CSP}')
        k('v_lshl_add_u32 v12, v2, 2, s50')
        for T in range(7): k(f'ds_write_b32 v12, v{CSA+4*T} offset:{64*T}')
        first_loads()
        k('s_barrier')
        k('v_min_u32 v12, 55, v0'); k('v_lshlrev_b32 v12, 3, v12'); k(f'v_add_u32 v13, {L_CSP}, v12')
        for n in range(4): k(f'ds_read_b64 {V(14+2*n, 2)}, v13 offset:{448*n}')
        for n in range(6): k(brd(n))
        for h in range(2):
            k(f'v_add_f32 v{14+h}, v{14+h}, v{16+h}'); k(f'v_add_f32 v{18+h}, v{18+h}, v{20+h}'); k(f'v_add_f32 v{14+h}, v{14+h}, v{18+h}')
        k(f'v_add_u32 v13, {L_CS}, v12')
        k('ds_write_b64 v13, v[14:15]')
        k('s_waitcnt lgkmcnt(0)')
    else:
        first_loads()
        for n in range(6): k(brd(n))
        k.need(names=['WU']); k('s_barrier')
    wdn = [0]
    if l == 0: k(f'v_add_u32 v{TM+4}, 4096, v1')
    NWD = [opt('wa', 32), opt('wb', 22)] if l == 0 else [0, 0]
    for h in range(2):
        mf = []; fixed = {}
        def fx(g, x, first=False):
            L = fixed.setdefault(g, [])
            L.insert(0, x) if first else L.append(x)
        for ks in range(20):
            n = 20*h + ks
            for T in range(7):
                g = len(mf); f = 7*n + T
                for mi in range(2):
                    a = V(acc(h, T, mi))
                    mf.append(f'{MF} {a}, {V(BRG+4*T)}, {V(XR + 8*(n % XD) + 4*mi)}, {a if (ks or h) else 0}')
                if f + 6 < 280: fx(g, brd(f+6))
                if T % 2 == 0 and f + 1 < 280:
                    nxt = [BRG + 4*((f+1) % 7)] + ([BRG + 4*((f+2) % 7)] if T < 6 else [])
                    fx(g+1, Need([x for b in nxt for x in rr(V(b))]), True)
            g0 = 14*ks
            if n + XD - 1 < 40:
                fx(g0+3, xld(n+XD-1, 0)); fx(g0+7, xld(n+XD-1, 1))
                for q_, x in enumerate(xadv(n+XD-1)): fx(g0+8+2*q_, x, True)
            if n + 1 < 40: fx(g0+12, Need(rr(V(XR + 8*((n+1) % XD), 8))), True)
            if h == 0 and ks < 4:
                for c in range(4): fx(g0 + (1, 5, 9, 13)[c], f'buffer_load_dword v{SL+4*ks+c}, v5, s[4:7], s80 offen offset:{1024*ks + 256*c} sc1')
            k0 = 4 if h == 0 else 0
            if ks >= k0:
                cnt = NWD[h]*(ks-k0+1)//(20-k0) - NWD[h]*(ks-k0)//(20-k0)
                free = [11, 5, 1] + ([3, 7] if n + XD - 1 >= 40 else [])
                for c in range(cnt):
                    w_ = wdld(wdn[0]); wdn[0] += 1
                    fx(g0 + sorted(free[:cnt])[c], w_[0])
                    if len(w_) > 1: fx(g0 + sorted(free[:cnt])[c] + 1, w_[1], True)
        st = []
        if h == 0:
            for rt in range(4):
                b = SL + 4*rt
                st += [(x, 14*(rt+3)) for x in [f'v_add_f32 v{b}, v{b}, v{b+1}', f'v_add_f32 v{b+2}, v{b+2}, v{b+3}', f'v_add_f32 v{b}, v{b}, v{b+2}',
                       f'v_mov_b32 v{b+1}, v{b}', f'v_permlane32_swap_b32 v{b}, v{b+1}', f'v_add_f32 v{b}, v{b}, v{b+1}',
                       f'v_mov_b32 v{b+1}, v{b}', f'v_permlane16_swap_b32 v{b}, v{b+1}',
                       f'v_mul_f32 v{NM+rt}, {fl(-1/640)}, v{b}', f'v_mul_f32 v{b+1}, {fl(1/640)}, v{b+1}',
                       f'v_fma_f32 v{b+1}, -v{NM+rt}, v{NM+rt}, v{b+1}', f'v_max_f32 v{b+1}, 0, v{b+1}',
                       f'v_add_f32 v{SS+rt}, {fl(1e-5)}, v{b+1}', f'v_rsq_f32 v{K1+rt}, v{SS+rt}',
                       f'v_mul_f32 v{K1+rt}, {fl(-1.4426950408889634)}, v{K1+rt}']]
            st = [(f'v_lshlrev_b32 v{TM+7}, 4, v3', 2), (f'v_add_u32 v{TM+7}, {L_CS}, v{TM+7}', 2)] + st
            KS0 = 11
            def capg(g): return 2 - sum(slots(x if isinstance(x, I) else I(x)) for x in fixed.get(g, []) if slots(x if isinstance(x, I) else I(x)) >= 1)
            firstcs = None
            for T in range(7):
                g0 = 14*(KS0 + T) + 2*T
                c = acc(1, T, 1)
                gr = g0 - 3
                while capg(gr) < 2: gr -= 1
                x = I(f'ds_read_b128 {V(c)}, v{TM+7} offset:{64*T}')
                if T == 0: firstcs = x
                fx(gr, x)
                ops = [f'v_fmac_f32 v{acc(0,T,mi)+r}, v{NM+mi}, v{c+r}' for mi in range(2) for r in range(4)]
                g = g0 + 4
                while ops:
                    cap = capg(g)
                    while cap >= 1 and ops: fx(g, ops.pop(0)); cap -= 1
                    g += 1
                if g > g0 + 14: print('warn fmac window', T, g - g0)
                st += [(f'v_mul_f32 v{acc(1,T,mi)+r}, v{NM+2+mi}, v{c+r}', g) for mi in range(2) for r in range(4)]
        else:
            st = epi_stream(0, l, 4) + [(x, 200) for x in sig_prep(f'HA{l}', sgH)]
        n0 = len(k.ins)
        left = weave(k, mf, fixed, st)
        if h == 0:
            pos = k.ins.index(firstcs)
            assert all(not (x.text.startswith(f'v_mul_f32 v{K1+rt},')) for x in k.ins[pos:] for rt in range(4)), 'stats not done before cs'
        print('up half', h, 'leftover', left)
        stamp(f'up{h}_{l}')
    k.need(names=['H0'])
    emit(sig_go(sgH))
    k('s_barrier')
    if l == 0:
        while wdn[0] < 70: emit(wdld(wdn[0])); wdn[0] += 1
    ep = [x for x, e in epi_stream(1, l, 0)]
    cut = opt('pa', 100)
    emit(down_prep(l))
    emit(ep[:cut]); emit(poll_issue(f'HA{l}')); emit(ep[cut:])
    stamp(f'upe_{l}')

HR = 124; DA = 12; HV = 180
def hld(ps, ks): return f'buffer_load_dwordx4 {V(HR + 4*ks)}, v{HV+ps}, s[4:7], s{16+ks} offen sc1'
def down_prep(l):
    L = lines(f"""
    s_mul_i32 s50, s{sCS}, {4*57344}
    s_mul_i32 s51, s{sW}, {14*1024}
    s_add_u32 s50, s50, s51
    s_add_u32 s50, s50, {WS_H[l]}
    s_lshr_b32 s54, s{sW}, 1
    s_xor_b32 s54, s54, s{sW}
    s_and_b32 s54, s54, 1
    """)
    for p in range(4):
        L += [f's_xor_b32 s55, s54, {(1, 0, 2, 3)[p]}', 's_mul_i32 s52, s55, 57344', 's_add_u32 s52, s50, s52', f'v_add_u32 v{TMPV[p]}, s52, v1']
    return L
def down_prep2():
    L = []
    for p in range(4):
        L += [f's_xor_b32 s55, s54, {(1, 0, 2, 3)[p]}', 's_mul_i32 s53, s55, 15360',
              f's_sub_u32 s52, s{sW}, s55', 's_sub_u32 s52, s52, 1', 's_and_b32 s52, s52, 3', 's_mul_i32 s52, s52, 5120',
              's_add_u32 s52, s52, s53', f's_add_u32 s52, s52, {L_RED}', f'v_add_u32 v{184+p}, s52, v1']
    L += [f's_mul_i32 s52, s{sW}, 15360', f's_add_u32 s52, s52, {L_RED}', 'v_add_u32 v188, s52, v1',
          f's_cmp_eq_u32 s{sW}, 3', 's_cselect_b32 s53, 5120, 0', 's_cselect_b32 s55, 0, 10240',
          'v_add_u32 v189, s53, v188', 'v_add_u32 v190, s55, v188']
    return L
TMPV = [HV, HV+1, HV+2, HV+3]
def down_variant(l, isA):
    own = 1 if isA else 3
    aset = {0: DA, 1: DA+20, 2: DA+40} if not isA else {0: DA, 2: DA+20, 3: DA+40}
    aset[own] = R0
    pB = opt('pb', 19); pI = opt('pi', 8); TMJ = opt('tmj', 7)
    HD = 13
    mf = []; fixed = {}
    def fx(g, x, first=False):
        L = fixed.setdefault(g, [])
        L.insert(0, x) if first else L.append(x)
    def mm(p, ks, T):
        a = V(aset[p] + 4*T)
        mf.append(f'{MF} {a}, {wdreg(5*ks+T)}, {V(HR+4*ks)}, {a if (ks or p == own) else 0}')
    nxt = opt('hu', 7)
    for n in range(56 - TMJ):
        p, ks = divmod(n, 14)
        g = len(mf)
        for T in range(5): mm(p, ks, T)
        if n == pB - pI:
            for c, x in enumerate(poll_issue(f'HB{l}')): fx(g + (1, 2, 4)[c], x, True)
        if n == pB - 1:
            for x in stampL(f'dnb4_{l}') + poll_wait() + stampL(f'dnB_{l}'): fx(g + 4, x)
        if n in (27, 41):
            for x in stampL(f'dn{n}_{l}'): fx(g + 4, x)
        for c in range(2):
            if nxt < 56 and nxt <= n + HD and (nxt < 28 or n >= pB):
                fx(g + 2*c, hld(*divmod(nxt, 14))); nxt += 1
        fx(g+3, Need(rr(V(HR + 4*((n+1) % 14)))), True)
    assert nxt == 56
    tdone = {}
    for T in range(5):
        for ks in range(14 - TMJ, 14): mm(3, ks, T)
        tdone[T] = len(mf)
    for c, x in enumerate(sig_go(sgH)): fx((0, 1, 2, 4, 5, 6, 7, 9)[c], x, True)
    wr = lambda p, T: f'ds_write_b128 v{184+p}, {V(aset[p] + 4*T)} offset:{T*1024}'
    for p in range(3):
        if p == own: continue
        for T in range(5):
            g = 70*(p+1) + (4 + 2*T if p == 2 else 9 + 5*T)
            fx(g, wr(p, T))
    ga = 210 + 16
    fx(ga, 's_waitcnt lgkmcnt(0)', True); fx(ga, 's_barrier')
    st = [(x, 12) for x in down_prep2()]
    pre = pub_prep(WS_X2, WS_ST[2]) + sig_prep('X20', sgX2) if l == 0 else nat_addr(92, 93, 94, 95)
    st += [(x, 150) for x in pre]
    tail = []
    if isA:
        dst = [DA, DA+20, 72]
        for T in range(5):
            for s_ in range(3):
                fx(ga + 1 + 3*T + s_, f'ds_read_b128 {V(dst[s_]+4*T)}, v188 offset:{s_*5120 + T*1024}')
            for s_ in range(3):
                for r in range(4): st.append((f'v_add_f32 v{R0+4*T+r}, v{R0+4*T+r}, v{dst[s_]+4*T+r}', ga + 10 + 3*T))
        for T in range(4): fx(tdone[T] + 3, wr(3, T))
        tail = [wr(3, 4), 's_waitcnt lgkmcnt(0)', 's_barrier']
    else:
        for T in range(5):
            for s_ in range(2):
                fx(ga + 1 + 2*T + s_, f'ds_read_b128 {V(DA+20*s_+4*T)}, v189 offset:{s_*5120 + T*1024}')
            for r in range(4): st.append((f'v_add_f32 v{DA+4*T+r}, v{DA+4*T+r}, v{DA+20+4*T+r}', ga + 9 + 2*T))
        for T in range(5):
            for r in range(4): st.append((f'v_add_f32 v{R0+4*T+r}, v{R0+4*T+r}, v{DA+4*T+r}', tdone[T] + 3))
        tail = ['s_barrier'] + [f'ds_read_b128 {V(DA+40+4*T)}, v190 offset:{T*1024}' for T in range(5)]
        tail += [f'v_pk_add_f32 {V(R0+n,2)}, {V(R0+n,2)}, {V(DA+40+n,2)}' for n in range(0, 20, 2)]
    left = weave(k, mf, fixed, st, tail=False)
    print('down leftover', len(left))
    emit(stampL(f'dn55_{l}'))
    if isA: emit(tail); emit([x for x, e in left])
    else: emit([x for x, e in left]); emit(tail)

def down(l):
    emit(poll_wait())
    stamp(f'dnp_{l}')
    for n in range(opt('hu', 7)): k(hld(0, n))
    emit(sig_prep(f'HB{l}', sgH))
    k.need(names=['H1'])
    k.need(V(HR)); emit(stampL(f'dn0_{l}'))
    k(f's_cmp_ge_u32 s{sW}, 2')
    k.begin('dA', 's_cbranch_scc1'); down_variant(l, True); k.end()
    k(f's_cmp_lt_u32 s{sW}, 2')
    k.begin('dB', 's_cbranch_scc1'); down_variant(l, False); k.end()
    k('s_waitcnt vmcnt(0) lgkmcnt(0)')
    stamp(f'dnm_{l}')
    if l == 0:
        publish(WS_X2, WS_ST[2], 32, 'X2S')
        k('s_barrier')
        k(f's_mul_i32 s51, s{sW}, 37'); k('s_mul_i32 s51, s51, 21846'); k('s_lshr_b32 s51, s51, 16'); k('s_lshl_b32 s51, s51, 10')
        k(f's_mul_i32 s50, s{sJ}, 51200'); k('s_add_u32 s50, s50, s51'); k(f's_add_u32 s50, s50, {WS_BF}'); k(f's_add_u32 s51, s51, {L_B}')
        NB = opt('nb', 6)
        k('s_mov_b32 s76, s50'); k('s_mov_b32 s77, s51')
        emit(wu_dma(0, NB, 77, 76))
        emit(gen_M2())
        k.need(names=['X2S'])
        stamp(f'dne_{l}')
        emit(sig_go(sgX2))
        emit(wu_dma(NB, 13, 77, 76))
    else:
        pk = 32
        for n in range(5):
            k(f'v_cvt_pk_bf16_f32 v{pk+2*n}, v{R0+4*n}, v{R0+4*n+1}'); k(f'v_cvt_pk_bf16_f32 v{pk+2*n+1}, v{R0+4*n+2}, v{R0+4*n+3}')
            if n == 1: k(f'buffer_store_dwordx4 {V(pk)}, v92, s[12:15], 0 offen')
            if n == 3: k(f'buffer_store_dwordx4 {V(pk+4)}, v93, s[12:15], 0 offen')
        k(f'buffer_store_dwordx2 {V(pk+8,2)}, v94, s[12:15], 0 offen')
        stamp(f'dne_{l}')

def main():
    prologue()
    k(f's_cmp_lg_u32 s{sW}, 0')
    k.begin('w0', 's_cbranch_scc1')
    k(f'v_lshrrev_b32 v12, 5, v0'); k(f'v_mul_u32_u24 v12, {MBSZ - 512}, v12'); k('v_add_u32 v12, v12, v1')
    for r in range(4): k(f'v_mov_b32 v{16+r}, 0')
    k('s_lshl_b32 s50, s2, 9')
    for n in range(5):
        k('buffer_store_dwordx4 v[16:19], v12, s[4:7], s50 offen sc1')
        k(f's_add_u32 s50, s50, {2*MBSZ}')
    k.end()
    prepass_issue()
    k(f"""
    s_lshl_b32 s50, s{sJ}, 3
    s_lshl_b32 s51, s{sW}, 1
    s_add_u32 s50, s50, s51
    s_lshr_b32 s51, s50, 5
    s_lshl_b32 s51, s51, 5
    s_and_b32 s50, s50, 31
    s_lshl_b32 s50, s50, 6
    s_add_u32 s50, s50, s51
    s_add_u32 s50, s50, s{sCLS}
    s_mul_i32 s50, s50, 1280
    v_cmp_lt_u32 vcc, 9, v0
    v_mov_b32 v21, {64*1280 - 1280}
    v_cndmask_b32 v20, 0, v21, vcc
    v_lshl_add_u32 v20, v0, 7, v20
    """)
    setexec(20); k('buffer_load_dword v15, v20, s[8:11], s50 offen'); allexec()
    stamp('iss0')
    emit(ids1())
    def arrive():
        k(f's_cmp_lg_u32 s{sW}, 0')
        k.begin('w0', 's_cbranch_scc1')
        k('s_and_b32 s50, s2, 3'); k('s_lshl_b32 s50, s50, 6'); k('s_add_u32 s88, s32, s50'); k('s_addc_u32 s89, s33, 0')
        k(I('s_nop 0')); k.ins[-1].text = 's_waitcnt vmcnt(9)'; k.ins[-1].kind = 'salu'
        k('s_atomic_add s90, s[88:89], 0')
        k.end()
    def adma(m):
        L = [f's_lshl_b32 s50, s{94 + (m >> 1)}, 7'] if (m & 1) == 0 or m == 9 else []
        off = (m & 1)*640
        if m == 9: L.append('s_add_u32 s50, s50, 640'); off = 0
        for hf in range(2):
            L.append(f's_add_u32 m0, s74, {(m % 9)*2048 + hf*1024 - off}')
            L.append(I(f'buffer_load_dwordx4 v{48+hf}, s[8:11], s50 offen offset:{off} lds', name=f'AD{m}'))
        return L
    def mid():
        arrive()
        k(f"""
        s_lshr_b32 s50, s{sW}, 1
        s_lshl_b32 s50, s50, 5
        s_and_b32 s51, s{sW}, 1
        s_lshl_b32 s51, s51, 10
        s_add_u32 s50, s50, s51
        s_add_u32 s50, s50, s{sCLS}
        s_mul_i32 s50, s50, 1280
        v_lshrrev_b32 v50, 3, v0
        v_and_b32 v51, 7, v0
        v_xor_b32 v51, v51, v50
        v_mul_u32_u24 v48, 81920, v50
        v_lshl_add_u32 v48, v51, 4, v48
        v_add_u32 v48, s50, v48
        v_add_u32 v49, {8*81920}, v48
        s_mul_i32 s74, s{sW}, 18432
        v_and_b32 v51, 7, v2
        v_xor_b32 v51, v51, v3
        v_lshlrev_b32 v51, 4, v51
        v_lshl_add_u32 v50, v2, 7, v51
        v_add_u32 v50, s74, v50
        v_xor_b32 v51, 64, v50
        """)
        stamp('gen1')
        for m in range(9): emit(adma(m))
        stamp('issA')
    emit(gen_B1()); emit(gen_B2()); emit(gen_T5())
    mid()
    emit(ids2())
    emit(gen_M2())
    emit(nat_addr(32, 33, 34, 35))
    stamp('gen')
    k.need(names=['AD0', 'AD1'])
    stamp('A0land')
    for m in range(2): emit(a_lds(m))
    k('s_waitcnt lgkmcnt(0)')
    emit(adma(9))
    prepass_process()
    stamp('pre')
    k(f'v_add_u32 v8, {L_B}, v1')
    k('s_waitcnt lgkmcnt(0)'); k('s_barrier')
    k(f"""
    s_lshl_b32 s50, s{sCS}, 2
    s_add_u32 s50, s50, s{sW}
    s_min_u32 s50, s50, 99
    s_lshl_b32 s50, s50, 9
    v_add_u32 v12, s50, v8
    ds_read_b128 v[16:19], v12
    s_mul_i32 s51, s{sJ}, 51200
    s_add_u32 s50, s50, s51
    s_add_u32 s50, s50, {WS_BF}
    """)
    setexec(32); k('buffer_store_dwordx4 v[16:19], v1, s[4:7], s50 offen sc1'); allexec()
    k(f'buffer_load_dwordx4 {V(R0+8)}, v32, s[8:11], 0 offen')
    k(f'buffer_load_dwordx4 {V(R0+12)}, v33, s[8:11], 0 offen')
    k(f'buffer_load_dwordx2 {V(R0+18,2)}, v34, s[8:11], 0 offen')
    stamp('ini')
    stop('pre')
    for l in range(2):
        if l == 0:
            d1_body(0, None)
            for n in range(10):
                src = R0 + 8 + n if n < 8 else R0 + 10 + n
                if n in (7, 9):
                    k(f'v_lshlrev_b32 v{R0+2*n}, 16, v{src}'); k(f'v_and_b32 v{R0+2*n+1}, 0xffff0000, v{src}')
                else:
                    k(f'v_and_b32 v{R0+2*n+1}, 0xffff0000, v{src}'); k(f'v_lshlrev_b32 v{R0+2*n}, 16, v{src}')
        else:
            emit(gen_T5())
            k(f'v_add_u32 v8, {L_B}, v1')
            k(f's_add_u32 s72, s{sXT}, {WS_X2}'); k(f's_add_u32 s74, s{sST}, {WS_ST[2]}')
            for n in range(5): k(f's_lshl_b32 s{94+n}, s{94+n}, 11'); k(f's_add_u32 s{94+n}, s{94+n}, s72')
            k('v_add_u32 v36, 10240, v1')
            def ald(n):
                ks, h = n >> 1, n & 1
                return [f'buffer_load_dwordx4 {V(A0 + 4*n)}, v{36 if h else 1}, s[4:7], s{94 + ks//2} offen offset:{(ks & 1)*1024} sc1']
            emit(poll_issue('X20')); emit(poll_wait())
            stamp('d1p_1')
            NUP = opt('nup', 8)
            for n in range(NUP): emit(ald(n))
            for n in range(4): k(f'buffer_load_dword v{32+n}, v5, s[4:7], s74 offen offset:{256*n} sc1')
            k.need(names=['WU']); k('s_barrier')
            stamp('d1b_1')
            d1_body(1, (NUP, ald))
        stop(f'd1_{l}')
        d2(l); stop(f'd2_{l}')
        up(l); stop(f'up_{l}')
        down(l); stop(f'dn_{l}')
try: main()
except Stop: pass
finish()
k('END:'); k('s_endpgm'); k('CODE_END:')
k.finish()
open(sys.argv[1], 'w').write(build([k], [(k.name, 256, 256, LDS)], single=True))
import json
json.dump(dict(WS_BF=WS_BF, stamps=stampnames, WS_TS=WS_TS, WS_WUF=WS_WUF, WS_WDF=WS_WDF, WS_Z=WS_Z, WS_X1=WS_X1, WS_X2=WS_X2, WS_ST=WS_ST, WS_H=WS_H), open(sys.argv[1] + '.json', 'w'))
print('insts', len(k.ins), 'hi', k.hi, 'nops', sum(1 for i in k.ins if i.kind == 'nop'))
```

```python
import sys, struct
from asmx import *
from asmlib import build
o = dict(a.split('=') for a in sys.argv[2:])
STOP = o.get('stop', '')
STAMP = int(o.get('stamp', 0))
def opt(n, d): return int(o.get(n, d))
S, D, F = 2048, 640, 1728
def fl(x): return hex(struct.unpack('<I', struct.pack('<f', x))[0])
MBSZ = 256*4*128
PH = dict(W=0, Z0=1, X10=2, HA0=3, HB0=4, X20=5, Z1=6, X11=7, HA1=8, HB1=9)
WS_TS = 11*MBSZ
WS_WUF = 2 << 20
WS_WDF = WS_WUF + 32*143360
WS_Z = [WS_WDF + 8*286720 + l*3145728 for l in range(2)]
WS_X1 = [WS_Z[1] + 3145728 + l*2621440 for l in range(2)]
WS_X2 = WS_X1[1] + 2621440
WS_ST = [WS_X2 + 2621440 + l*131072 for l in range(3)]
WS_H = [WS_ST[2] + 131072 + l*7340032 for l in range(2)]
WS_BF = WS_H[1] + 7340032
WS_END = WS_BF + 8*51200
L_XCH = 93184
L_B = L_XCH + 12288
L_Z = 132096
L_RED = 93184
L_RAW = 73728
L_CSP = 156672
L_CS = 163328
LDS = 163840
sW, sXCD, sQ, sJ, sCS, sCLS, sSIG, sGAM, sCSU, sMB = range(36, 46)
sXT, sST = 64, 65
sgZ, sgX1, sgH, sgX2 = 84, 85, 86, 87
R0 = 212; WT = 232
def V(a, n=4): return f'v[{a}:{a+n-1}]'
def wdreg(n): return f'a[{4*n}:{4*n+3}]' if n < 64 else V(WT + 4*(n-64))
MF = 'v_mfma_f32_16x16x32_bf16'
k = K(NAME + '_kernel')
nstamp = [0]; stampnames = []
DIAG = o.get('diag')
def stamp(name):
    if DIAG == name:
        k('s_memrealtime s[100:101]'); k('s_waitcnt lgkmcnt(0)')
    if not STAMP: return
    if o.get('only') and name not in o['only'].split(':'): return
    if name in stampnames: n = stampnames.index(name)
    else: n = len(stampnames); stampnames.append(name)
    k('s_memrealtime s[62:63]' if STAMP == 1 else 's_memtime s[62:63]'); k('s_waitcnt lgkmcnt(0)')
    k(f'v_writelane_b32 v11, s62, {n}')
def stampL(name):
    if DIAG == name: return ['s_memrealtime s[100:101]', 's_waitcnt lgkmcnt(0)']
    if not STAMP or not (o.get('fine') or name in o.get('only', '').split(':')): return []
    if name in stampnames: n = stampnames.index(name)
    else: n = len(stampnames); stampnames.append(name)
    return ['s_memrealtime s[62:63]' if STAMP == 1 else 's_memtime s[62:63]', 's_waitcnt lgkmcnt(0)', f'v_writelane_b32 v11, s62, {n}']
def finish():
    if DIAG:
        op = o.get('red', 'max')
        k(f's_cmp_lg_u32 s{sW}, 0'); k('s_cbranch_scc1 END')
        k('v_mov_b32 v12, s100'); k('s_lshl_b32 s48, s2, 2'); k(f's_add_u32 s48, s48, {WS_TS}')
        setexec(1); k('buffer_store_dword v12, off, s[4:7], s48 sc1'); allexec()
        k('s_cmp_lg_u32 s2, 0'); k('s_cbranch_scc1 END')
        k('PADL:'); k('s_memrealtime s[62:63]'); k('s_waitcnt lgkmcnt(0)')
        k('s_sub_u32 s62, s62, s99'); k('s_cmp_lt_u32 s62, 8000'); k('s_cbranch_scc1 PADL')
        k(f's_mov_b32 s48, {WS_TS}')
        k('buffer_load_dwordx4 v[12:15], v1, s[4:7], s48 offen sc1')
        for r in range(4): k(f'v_subrev_u32 v{12+r}, s99, v{12+r}')
        k(f'v_{op}_i32 v12, v12, v13'); k(f'v_{op}_i32 v14, v14, v15'); k(f'v_{op}_i32 v12, v12, v14')
        k('v_readlane_b32 s50, v12, 0')
        for n in range(1, 64):
            k(f'v_readlane_b32 s51, v12, {n}'); k(f's_{op}_i32 s50, s50, s51')
        k('s_mul_i32 s50, s50, 10'); k('s_add_u32 s50, s50, 20000'); k('s_min_u32 s50, s50, 100000')
        k('PADM:'); k('s_memrealtime s[62:63]'); k('s_waitcnt lgkmcnt(0)')
        k('s_sub_u32 s62, s62, s99'); k('s_cmp_lt_u32 s62, s50'); k('s_cbranch_scc1 PADM')
    if STAMP:
        k(f's_lshl_b32 s48, s{sMB}, 1'); k(f's_add_u32 s48, s48, {WS_TS}')
        k('v_lshlrev_b32 v12, 2, v0')
        k('buffer_store_dword v11, v12, s[4:7], s48 offen')
    k('s_endpgm')
class Stop(Exception): pass
def stop(name):
    if STOP == name:
        k('s_waitcnt vmcnt(0) lgkmcnt(0)'); raise Stop()
def setexec(n, lo=0):
    m = ((1 << n) - 1) << lo
    k(f's_mov_b32 exec_lo, {hex(m & 0xffffffff)}'); k(f's_mov_b32 exec_hi, {hex(m >> 32)}')
def allexec(): k('s_mov_b64 exec, -1')
def lines(s): return [l.strip() for l in s.strip().split('\n') if l.strip()]
def emit(L):
    for x in L: k(x)
MAXPOLL = 40000
def poll_issue(ph):
    return [f's_add_u32 s82, s92, {PH[ph]*MBSZ}', 's_addc_u32 s83, s93, 0', 's_load_dword s91, s[82:83], 0 glc']
def poll_wait():
    L = k.label('POLL'); X = k.label('POLLX')
    return ['s_waitcnt lgkmcnt(0)', 's_cmp_ge_u32 s91, 8', f's_cbranch_scc1 {X}', 's_mov_b32 s68, 0', f'{L}:',
            *([f's_sleep {opt("psl", 0)}'] if opt('psl', 0) else []),
            's_load_dword s91, s[82:83], 0 glc', 's_add_u32 s68, s68, 1', 's_waitcnt lgkmcnt(0)',
            's_cmp_ge_u32 s91, 8', f's_cbranch_scc1 {X}', f's_cmp_lt_u32 s68, {MAXPOLL}', f's_cbranch_scc1 {L}', f'{X}:']
SIGOFF = {sgZ: lambda l: (l >> 2)*512 + (l & 3)*32768, sgX1: lambda l: (l & 3)*512 + (l >> 2)*4096, sgH: lambda l: l*4096, sgX2: lambda l: l*4096}
def sig_prep(ph, sg): return [f's_add_u32 s89, s{sg}, {PH[ph]*MBSZ}', 's_add_u32 s88, s4, s89', 's_addc_u32 s89, s5, 0']
def sig_go(sg): return [f's_atomic_add s90, s[88:89], {SIGOFF[sg](l)}' for l in range(8)]

def prologue():
    k('s_cmp_ge_u32 s2, 256'); k('s_cbranch_scc1 END')
    k('s_getpc_b64 s[48:49]')
    k('PC0:')
    for s_, a in ((4, 'ws'), (16, 'wg'), (20, 'wu'), (24, 'wd'), (8, 'x'), (12, 'out'), (32, 'dbg')):
        k(f's_load_dwordx2 s[{s_}:{s_+1}], s[0:1], {KA[a]}')
    if STAMP: k('s_memrealtime s[62:63]' if STAMP == 1 else 's_memtime s[62:63]')
    if DIAG: k('s_memrealtime s[100:101]')
    k(f"""
    s_lshr_b32 s50, s2, 3
    s_lshl_b32 s50, s50, 11
    v_lshrrev_b32 v12, 4, v0
    v_lshl_add_u32 v12, v12, 7, s50
    v_min_u32 v12, CODE_END-PC0-4, v12
    global_load_dword v13, v12, s[48:49]
    v_lshrrev_b32 v3, 6, v0
    v_and_b32 v0, 63, v0
    v_readfirstlane_b32 s{sW}, v3
    """)
    for s_, n in ((4, 1 << 28), (16, D*F*2), (20, D*F*2), (24, D*F*2), (8, S*D*2), (12, S*D*2), (32, 256)):
        k(f's_mov_b32 s{s_+2}, {n}'); k(f's_mov_b32 s{s_+3}, 0x00020000')
    k(f"""
    v_lshlrev_b32 v1, 4, v0
    v_and_b32 v2, 15, v0
    v_lshrrev_b32 v3, 4, v0
    s_and_b32 s{sXCD}, s2, 7
    s_lshr_b32 s{sQ}, s2, 6
    s_bfe_u32 s{sJ}, s2, 0x30003
    s_lshl_b32 s{sCS}, s{sXCD}, 2
    s_add_u32 s{sCS}, s{sCS}, s{sQ}
    s_lshr_b32 s{sCLS}, s{sCS}, 1
    s_sub_u32 s50, 32, s{sCLS}
    s_cmp_eq_u32 s{sCS}, 1
    s_cselect_b32 s50, 16, s50
    s_bitcmp1_b32 s{sCS}, 0
    s_cselect_b32 s{sCLS}, s50, s{sCLS}
    """)
    k(f"""
    s_and_b32 s50, s{sCS}, 7
    s_lshl_b32 s51, s{sW}, 3
    s_add_u32 s50, s50, s51
    s_lshr_b32 s72, s{sCS}, 3
    s_mul_i32 s72, s72, 20
    s_add_u32 s72, s72, s50
    s_cmp_lt_u32 s2, 224
    s_cselect_b32 s75, 1, 2
    s_cmp_eq_u32 s{sW}, 3
    s_cselect_b32 s75, s75, 2
    s_cmp_lt_u32 s50, 20
    s_cselect_b32 s75, 0, s75
    s_mul_i32 s73, s{sW}, 7168
    s_add_u32 s73, s73, {L_RAW}
    """)
    if STAMP: k('v_mov_b32 v11, 0')
    k('s_waitcnt lgkmcnt(0)')
    if DIAG: k('s_mov_b32 s99, s100')
    if STAMP:
        k('v_writelane_b32 v11, s62, 0'); stampnames.append('start')

def ids2():
    return lines(f"""
    s_and_b32 s{sSIG}, s{sXCD}, 3
    s_lshl_b32 s50, s{sJ}, 2
    s_add_u32 s{sSIG}, s{sSIG}, s50
    s_and_b32 s{sGAM}, s{sXCD}, 4
    s_add_u32 s{sGAM}, s{sGAM}, s{sQ}
    s_lshl_b32 s{sCSU}, s{sGAM}, 2
    s_add_u32 s{sCSU}, s{sCSU}, s{sW}
    s_lshl_b32 s{sMB}, s2, 2
    s_add_u32 s{sMB}, s{sMB}, s{sW}
    s_lshl_b32 s{sMB}, s{sMB}, 7
    s_add_u32 s92, s4, s{sMB}
    s_addc_u32 s93, s5, 0
    s_lshl_b32 s50, s{sCS}, 2
    s_add_u32 s50, s50, s{sW}
    s_mul_i32 s{sXT}, s50, 20480
    s_lshl_b32 s{sST}, s50, 10
    s_mov_b32 s66, -1
    s_mov_b32 s67, 0
    s_lshl_b32 s50, s{sW}, 10
    s_lshl_b32 s51, s{sJ}, 12
    s_add_u32 s50, s50, s51
    s_lshr_b32 s51, s{sCS}, 3
    s_lshl_b32 s51, s51, 7
    s_add_u32 s{sgZ}, s50, s51
    s_and_b32 s50, s{sXCD}, 4
    s_and_b32 s51, s{sXCD}, 3
    s_lshl_b32 s51, s51, 6
    s_add_u32 s50, s50, s51
    s_lshl_b32 s51, s{sW}, 4
    s_add_u32 s50, s50, s51
    s_lshl_b32 s50, s50, 2
    s_add_u32 s50, s50, s{sQ}
    s_lshl_b32 s{sgX1}, s50, 7
    s_lshl_b32 s50, s{sW}, 6
    s_add_u32 s50, s50, s{sGAM}
    s_lshl_b32 s50, s50, 2
    s_lshr_b32 s51, s{sJ}, 1
    s_add_u32 s50, s50, s51
    s_lshl_b32 s{sgH}, s50, 7
    s_lshl_b32 s50, s{sQ}, 6
    s_add_u32 s50, s50, s{sXCD}
    s_lshl_b32 s50, s50, 2
    s_add_u32 s50, s50, s{sW}
    s_lshl_b32 s{sgX2}, s50, 7
    s_mul_i32 s50, s{sJ}, 1280
    s_add_u32 s51, s50, 1024
    s_sub_u32 s52, {79*256}, s50
    v_mov_b32 v12, s51
    v_mov_b32 v14, s52
    v_cndmask_b32 v4, v14, v12, s[66:67]
    v_and_b32 v12, 1, v3
    v_lshl_add_u32 v4, v12, 3, v4
    v_lshl_add_u32 v4, v2, 4, v4
    v_lshlrev_b32 v5, 2, v0
    """)
def ids1():
    return lines(f"""
    s_mov_b32 s90, 1
    s_sub_u32 s94, s{sJ}, 5
    s_cmp_lt_u32 s{sJ}, 5
    s_cselect_b32 s94, s{sJ}, s94
    s_mul_i32 s94, s94, {opt('rot', 1)}
    """) + [x for n in range(1, 5) for x in (f's_add_u32 s{94+n}, s{93+n}, 1', f's_cmp_eq_u32 s{94+n}, 5', f's_cselect_b32 s{94+n}, 0, s{94+n}')]

def nat_addr(a01, a23, a4, t):
    return lines(f"""
    s_lshr_b32 s50, s{sW}, 1
    s_lshl_b32 s50, s50, 5
    s_and_b32 s51, s{sW}, 1
    s_lshl_b32 s51, s51, 10
    s_add_u32 s50, s50, s51
    s_add_u32 s50, s50, s{sCLS}
    v_lshl_add_u32 v{t}, v2, 6, s50
    v_mul_u32_u24 v{t}, 1280, v{t}
    s_mul_i32 s50, s{sJ}, 80
    s_sub_u32 s51, 1200, s50
    v_lshl_add_u32 v{a4}, v3, 4, v{t}
    v_add_u32 v{a01}, s50, v{a4}
    v_add_u32 v{a23}, s51, v{a4}
    s_add_u32 s50, s50, 64
    s_add_u32 s51, s51, 48
    v_mov_b32 v{t+1}, s50
    v_mov_b32 v{t+2}, s51
    v_cndmask_b32 v{a4}, v{t+2}, v{t+1}, s[66:67]
    v_lshl_add_u32 v{a4}, v3, 3, v{a4}
    v_add_u32 v{a4}, v{a4}, v{t}
    """)

A0 = 132; P0 = 88; P1 = 108; P5 = 128; BR = 72; B5 = 68; M2 = 52
def gen_vals(t, ef, base):
    L = []
    for jj in range(1, 8): L.append(f'v_fmamk_f32 v{t+jj}, v{ef}, {fl(float(jj))}, v{base}')
    L.append(f'v_cos_f32 v{t}, v{base}')
    for jj in range(1, 8): L.append(f'v_cos_f32 v{t+jj}, v{t+jj}')
    return L
def pack8(dst, t): return [f'v_cvt_pk_bf16_f32 v{dst+p}, v{t+2*p}, v{t+2*p+1}' for p in range(4)]
def gen_setup(e, ef, base, t, zero_dc):
    L = [f'v_and_b32 v{t}, 2, v0', f'v_cvt_f32_u32 v{ef}, v{e}', f'v_cvt_f32_u32 v{t}, v{t}', f'v_mul_f32 v{t}, 0x3e000000, v{t}']
    if zero_dc: L += [f'v_cmp_eq_u32 vcc, 0, v{e}', f'v_mov_b32 v{t+1}, 0x3e800000', f'v_mul_f32 v{ef}, {fl(1/640)}, v{ef}', f'v_cndmask_b32 v{t}, v{t}, v{t+1}, vcc']
    else: L += [f'v_mul_f32 v{ef}, {fl(1/640)}, v{ef}']
    L += [f'v_lshlrev_b32 v{t+1}, 3, v3', f'v_cvt_f32_u32 v{t+1}, v{t+1}', f'v_fma_f32 v{base}, v{ef}, v{t+1}, v{t}']
    return L
def gen_T5():
    return [f's_mul_i32 s53, s{sJ}, 40', 's_add_u32 s53, s53, 40', 'v_and_b32 v20, 1, v0', 'v_sub_u32 v22, 1, v20', 'v_mul_u32_u24 v22, s53, v22'] \
        + gen_setup(22, 23, 24, 26, False) + gen_vals(26, 23, 24) + pack8(B5, 26)
def gen_run(nfr, C0, C1, PK):
    L = gen_vals(C0, 23, 24) + [f'v_fmamk_f32 v24, v23, {fl(32.0)}, v24', f'v_mul_f32 v34, {fl(32.0)}, v23'] + gen_vals(C1, 23, 24) + ['v_cos_f32 v34, v34']
    for n in range(nfr):
        c, o_ = (C0, C1) if n % 2 == 0 else (C1, C0)
        if n == 2: L.append('v_add_f32 v34, v34, v34')
        if n >= 2:
            for p in range(4): L.append(f'v_pk_fma_f32 {V(c+2*p,2)}, {V(o_+2*p,2)}, v[34:35], {V(c+2*p,2)} op_sel_hi:[1,0,1] neg_lo:[0,0,1] neg_hi:[0,0,1]')
        pk = PK + 4*(n % 2)
        if nfr == 3 and n == 2: L += [f's_cmp_lt_u32 s{sW}, 2', f's_cselect_b32 s57, s57, {L_CSP - L_B - 4096}']
        L += ['v_add_u32 v35, s57, v25', 's_add_u32 s57, s57, 5120', 's_cmp_eq_u32 s57, 51200', 's_cselect_b32 s57, 0, s57']
        L += pack8(pk, c) + [f'ds_write_b128 v35, {V(pk)}']
    return L
def gen_B1():
    return lines(f"""
    s_mul_i32 s52, s{sJ}, 40
    s_lshr_b32 s53, s{sW}, 1
    s_lshl_b32 s53, s53, 4
    s_and_b32 s54, s{sW}, 1
    s_lshl_b32 s55, s54, 1
    s_add_u32 s53, s53, s55
    s_add_u32 s53, s53, s52
    v_and_b32 v20, 1, v0
    v_and_b32 v21, 12, v0
    v_add3_u32 v22, v20, v21, s53
    s_lshl_b32 s56, s{sW}, 10
    s_add_u32 s56, s56, {L_B}
    v_add_u32 v25, s56, v1
    s_mul_i32 s58, s94, 10240
    s_sub_u32 s57, 51200, s58
    s_cmp_eq_u32 s94, 0
    s_cselect_b32 s57, 0, s57
    """) + gen_setup(22, 23, 24, 26, True) + gen_run(10, 88, 96, 104)
def gen_B2():
    return lines(f"""
    s_add_u32 s53, s52, 32
    v_lshrrev_b32 v21, 1, v21
    v_add3_u32 v22, v20, v21, s53
    s_mul_i32 s55, s{sW}, 3
    s_min_u32 s55, s55, 8
    s_mul_i32 s56, s55, 5120
    s_add_u32 s57, s57, s56
    s_sub_u32 s56, s57, 51200
    s_cmp_ge_u32 s57, 51200
    s_cselect_b32 s57, s56, s57
    s_lshl_b32 s55, s55, 5
    v_add_u32 v25, {L_B + 4096}, v1
    """) + gen_setup(22, 23, 24, 26, False) + ['v_cvt_f32_u32 v26, s55', 'v_fma_f32 v24, v26, v23, v24', 'v_fract_f32 v24, v24'] + gen_run(3, 88, 96, 104)

def gen_M2():
    L = lines(f"""
    s_lshl_b32 s50, s{sW}, 3
    v_lshrrev_b32 v20, 1, v2
    v_add_u32 v20, s50, v20
    v_lshrrev_b32 v21, 1, v20
    v_cmp_eq_u32 vcc, 1, v20
    v_sub_u32 v22, 32, v21
    v_and_b32 v23, 2, v0
    v_cndmask_b32 v22, v22, 16, vcc
    v_cmp_ne_u32 vcc, 0, v23
    v_and_b32 v20, 1, v0
    v_lshl_add_u32 v23, v3, 8, s{sCLS}
    v_cndmask_b32 v21, v21, v22, vcc
    v_lshl_add_u32 v21, v20, 5, v21
    v_mul_u32_u24 v22, v21, v23
    v_and_b32 v22, 2047, v22
    v_bfe_i32 v20, v21, 0, 1
    v_and_b32 v20, 0x80008000, v20
    v_cvt_f32_u32 v21, v21
    v_cvt_f32_u32 v22, v22
    v_mul_f32 v21, {fl(1/64)}, v21
    v_mul_f32 v22, {fl(1/2048)}, v22
    """)
    for kap in range(2):
        for jp in range(2):
            for h in range(2): L.append(f'v_fmamk_f32 v{23+h}, v21, {fl(float(kap + 2*(2*jp + h)))}, v22')
            L += ['v_cos_f32 v25, v23', 'v_cos_f32 v26, v24', 'v_sin_f32 v27, v23', 'v_sin_f32 v28, v24']
            L.append(f'v_cvt_pk_bf16_f32 v{M2 + 4*kap + jp}, v25, v26')
            L.append(f'v_cvt_pk_bf16_f32 v{M2 + 8 + 4*kap + jp}, v27, v28')
            L.append(f'v_xor_b32 v{M2 + 4*kap + jp + 2}, v20, v{M2 + 4*kap + jp}')
            L.append(f'v_xor_b32 v{M2 + 8 + 4*kap + jp + 2}, v20, v{M2 + 8 + 4*kap + jp}')
    return L

def a_lds(m):
    return [f'ds_read_b128 {V(A0 + 8*(2*(m >> 1) + od) + 4*(m & 1))}, v{50+od} offset:{(m % 9)*2048}' for od in range(2)]
def init_issue():
    k('v_and_b32 v14, 3, v0'); k('v_lshlrev_b32 v14, 6, v14')
    k('buffer_load_dword v15, v14, s[32:35], 0 offen sc1')
def init_check():
    L = k.label('INI'); X = k.label('INIX')
    k('s_mov_b32 s68, 0')
    k(f'{L}:')
    k('s_waitcnt vmcnt(0)')
    k('v_cmp_gt_u32 vcc, 64, v15')
    k(f's_cbranch_vccz {X}')
    k('s_sleep 10')
    k('buffer_load_dword v15, v14, s[32:35], 0 offen sc1')
    k('s_add_u32 s68, s68, 1')
    k(f's_cmp_lt_u32 s68, {MAXPOLL}'); k(f's_cbranch_scc1 {L}')
    k('s_waitcnt vmcnt(0)')
    k(f'{X}:')

def d1_body(l, aload):
    S1, S2 = 40, 44
    BRL = [72, 76, 80, 84, 16, 20, 24][:opt('br', 7)]; NB = len(BRL)
    mf = []; fixed = {}
    def fx(g, x, first=False):
        L = fixed.setdefault(g, [])
        L.insert(0, x) if first else L.append(x)
    pre = []
    if l == 0:
        pre = ['v_mov_b32 v30, 0', 'v_mov_b32 v31, 0']
    TK = opt('tk', 2)
    border = [(ks, T) for ks in range(10 - TK) for T in range(5)] + [(ks, T) for T in range(5) for ks in range(10 - TK, 10)]
    rd = lambda n: f'ds_read_b128 {V(BRL[n % NB])}, v8 offset:{(border[n][0]*5 + border[n][1])*1024}'
    for n in range(NB-1): k(rd(n))
    tdone = {}
    def head(ks):
        a0, a1 = V(A0 + 8*ks), V(A0 + 8*ks + 4)
        g0 = len(mf)
        if l == 0 and ks % 2 == 0:
            burst = [f'v_dot2c_f32_bf16 v{30 + (n & 1)}, v{A0+8*ks+n}, v{A0+8*ks+n}' for n in range(16)]
            if ks == 8: burst += ['v_add_f32 v30, v30, v31', 'v_mov_b32 v31, 1.0', f'v_mfma_f32_16x16x4_f32 {V(S2)}, v30, v31, 0']
            if ks == 0: pre.extend(burst)
            else:
                for x in burst: fx(g0-1, x)
        if ks and l == 1: fx(g0-2, Need(rr(V(A0 + 8*ks, 8))), True)
        mf.append(f'{MF} {V(P5)}, {a0}, {V(B5)}, {V(P5) if ks else 0}')
        mf.append(f'{MF} {V(P5)}, {a1}, {V(B5)}, {V(P5)}')
        if l == 0 and ks % 2 == 1 and ks < 9:
            fx(g0, Need([], [f'AD{ks+1}', f'AD{ks+2}']), True)
            for c, x in enumerate(a_lds(ks+1) + a_lds(ks+2)): fx(g0 + (0, 1, 3, 5)[c], x)
        if aload:
            for c in range(3):
                n = aload[0] + 3*ks + c
                if n < 20:
                    for x in aload[1](n): fx(g0 + (0, 3, 7)[c], x)
    for n, (ks, T) in enumerate(border):
        if n < 5*(10-TK):
            if T == 0: head(ks)
        elif n == 5*(10-TK):
            for k2 in range(10-TK, 10): head(k2)
            tdone[5] = len(mf)
        b = V(BRL[n % NB])
        fx(len(mf)-1, Need(rr(b)), True)
        if n + NB - 1 < 50: fx(len(mf), rd(n+NB-1))
        mf.append(f'{MF} {V(P0+4*T)}, {V(A0 + 8*ks)}, {b}, {V(P0+4*T) if ks else 0}')
        mf.append(f'{MF} {V(P1+4*T)}, {V(A0 + 8*ks + 4)}, {b}, {V(P1+4*T) if ks else 0}')
        if ks == 9: tdone[T] = len(mf)
    st = []
    if l == 1:
        for x in ['v_add_f32 v32, v32, v33', 'v_add_f32 v34, v34, v35', 'v_add_f32 v32, v32, v34',
                  'v_and_b32 v33, 1, v3', 'v_cvt_f32_u32 v33, v33', 'v_sub_f32 v34, 1.0, v33']: st.append((x, 40))
        fx(59, f'v_mfma_f32_16x16x4_f32 {V(S1)}, v32, v34, 0'); fx(59, f'v_mfma_f32_16x16x4_f32 {V(S2)}, v32, v33, 0')
    for x in ['v_and_b32 v29, 1, v0', 'v_cvt_f32_u32 v29, v29', 'v_fma_f32 v29, v29, -2.0, 1.0',
              f's_and_b32 s50, s{sW}, 1', 's_lshl_b32 s50, s50, 3', f's_lshr_b32 s51, s{sW}, 1', 's_lshl_b32 s51, s51, 10',
              's_add_u32 s50, s50, s51', f's_add_u32 s50, s50, {L_XCH}', 'v_add_u32 v9, s50, v1', f'v_add_u32 v10, {L_XCH}, v1',
              f's_lshl_b32 s50, s{sCS}, 3', f's_add_u32 s50, s50, s{sJ}', 's_mul_i32 s50, s50, 12288',
              f's_lshl_b32 s51, s{sW}, 10', 's_add_u32 s50, s50, s51', f's_add_u32 s70, s50, {WS_Z[l]}',
              'v_lshlrev_b32 v12, 6, v2', 'v_lshl_add_u32 v12, v3, 4, v12']: st.append((x, 62))
    e = tdone[5] + 2 if l == 0 else 70
    for r in range(4):
        if l == 0: st.append((f'v_mov_b32_dpp v{S1+r}, v{P5+r} quad_perm:[1,1,1,1] row_mask:0xf bank_mask:0xf', e))
        st.append((f'v_mul_f32 v{S2+r}, {fl(1/640)}, v{S2+r}', e))
    for r in range(4): st.append((f'v_mul_f32 v{S1+r}, {fl(1/640)}, v{S1+r}', e))
    for r in range(4): st.append((f'v_fma_f32 v{S2+r}, -v{S1+r}, v{S1+r}, v{S2+r}', e))
    for r in range(4): st.append((f'v_max_f32 v{S2+r}, 0, v{S2+r}', e))
    for r in range(4): st.append((f'v_add_f32 v{S2+r}, {fl(1e-5)}, v{S2+r}', e))
    for r in range(4): st.append((f'v_rsq_f32 v{S2+r}, v{S2+r}', e))
    for T in (5, 0, 1, 2, 3, 4):
        p = P0 + 4*T if T < 5 else P5
        e = tdone[T] + 2
        if T < 5:
            for r in range(4): st.append((f'v_fmac_f32 v{p+r}, v29, v{P1+4*T+r}', e))
        for r in range(4): st.append((f'v_mul_f32 v{p+r}, v{p+r}, v{S2+r}', e))
        st.append((f'v_cvt_pk_bf16_f32 v{p}, v{p}, v{p+1}', e)); st.append((f'v_cvt_pk_bf16_f32 v{p+1}, v{p+2}, v{p+3}', e))
        st.append((f'ds_write_b64 v9, {V(p,2)} offset:{T*2048}', e))
    emit(pre)
    if l == 1: k.need(V(A0, 8)); emit(stampL('g1a_1'))
    rest = weave(k, mf, fixed, st, tail=False)
    emit(stampL(f'g1m_{l}'))
    if l == 0:
        k(f's_cmp_lg_u32 s{sW}, 0'); k.begin('w0', 's_cbranch_scc1'); init_issue(); k.end()
    for x, e in rest: k(x)
    if l == 0:
        stamp('g1')
        k(f's_cmp_lg_u32 s{sW}, 0'); k.begin('w0', 's_cbranch_scc1'); init_check(); k.end()
        stamp('inic')
        k('s_waitcnt vmcnt(0)')
    k('s_waitcnt lgkmcnt(0)'); k('s_barrier')
    stamp(f'd1x_{l}')
    FR = A0; AC = 84
    for n in range(12): k(f'ds_read_b128 {V(FR+4*n)}, v10 offset:{n*1024}')
    mf = []; st = []; fixed = {}
    for T in range(6):
        t1, t2 = AC + 8*T, AC + 8*T + 4
        for kap in range(2):
            f = V(FR + 4*(2*T + kap))
            mf.append(f'{MF} {V(t1)}, {f}, {V(M2+4*kap)}, {V(t1) if kap else 0}')
            mf.append(f'{MF} {V(t2)}, {f}, {V(M2+8+4*kap)}, {V(t2) if kap else 0}')
        e = len(mf) + 2
        dst = 16 + 4*(T >> 1) + 2*(T & 1)
        for rp in range(2):
            st.append((f'v_add_f32 v{t1+rp}, v{t1+rp}, v{t2+2+rp}', e))
            st.append((f'v_sub_f32 v{t1+2+rp}, v{t1+2+rp}, v{t2+rp}', e))
        for rp in range(2): st.append((f'v_cvt_pk_bf16_f32 v{dst+rp}, v{t1+rp}, v{t1+2+rp}', e))
        if T & 1:
            st.append((I(f'buffer_store_dwordx4 {V(16 + 4*(T>>1))}, v12, s[4:7], s70 offen sc1', name='ZS'), e))
            st.append(('s_add_u32 s70, s70, 4096', e))
    if l == 0:
        fixed[5] = [Need(rr(V(FR, 48)))]
        for n, x in enumerate(sig_prep('W', sgZ)): fixed[n] = [x]
        for n, x in enumerate(sig_go(sgZ)): fixed[6+n] = [x]
    weave(k, mf, fixed, st)

def prepass_issue():
    k('s_cmp_lg_u32 s75, 0')
    k.begin('pw', 's_cbranch_scc1')
    k(f"""
    v_cmp_lt_u32 vcc, 27, v0
    s_mul_i32 s50, s72, {8*3456}
    s_mul_i32 s51, s{sJ}, 448
    s_add_u32 s50, s50, s51
    v_mov_b32 v21, {3456 - 448}
    v_cndmask_b32 v20, 0, v21, vcc
    v_add_u32 v20, v20, v1
    """)
    setexec(56)
    for rp in range(4):
        for mat in range(2):
            k(f's_add_u32 m0, s73, {mat*3584 + rp*896}')
            k(f'buffer_load_dwordx4 v20, s[{16+4*mat}:{19+4*mat}], s50 offen lds', name='RAW')
        k(f's_add_u32 s50, s50, {2*3456}')
    allexec()
    k.end()
    k('s_cmp_lg_u32 s75, 1')
    k.begin('pd', 's_cbranch_scc1')
    k('s_mul_i32 s50, s2, 10240')
    for n in range(10):
        if n % 4 == 0:
            k(f's_mov_b32 m0, {L_RAW + 3*7168 + n*1024}')
            if n: k('s_add_u32 s50, s50, 4096')
        k(f'buffer_load_dwordx4 v1, s[24:27], s50 offen offset:{(n % 4)*1024} lds', name='RAW')
    k.end()

def prepass_process():
    T0 = 88
    dummy = 'buffer_load_dword v13, off, s[32:35], 0 offset:1024'
    k('v_bfe_u32 v20, v0, 2, 2'); k('v_and_b32 v21, 3, v0'); k('v_and_b32 v22, 1, v0'); k('v_bfe_u32 v23, v0, 1, 1')
    k('s_cmp_lg_u32 s75, 0')
    k.begin('pw', 's_cbranch_scc1')
    k(f"""
    v_mul_u32_u24 v24, 448, v20
    v_mul_u32_u24 v25, 112, v3
    v_add3_u32 v24, v24, v25, s73
    v_lshl_add_u32 v25, v21, 4, v24
    v_lshl_add_u32 v26, v22, 4, v24
    v_lshl_add_u32 v26, v23, 3, v26
    v_mul_u32_u24 v27, 3584, v23
    v_lshl_add_u32 v27, v22, 3, v27
    v_add_u32 v27, v27, v24
    v_mul_u32_u24 v28, 143360, v3
    v_lshl_add_u32 v28, v2, 4, v28
    s_mul_i32 s50, s{sJ}, {4*143360}
    s_lshr_b32 s51, s72, 2
    s_mul_i32 s51, s51, 7168
    s_add_u32 s50, s50, s51
    s_and_b32 s51, s72, 3
    s_lshl_b32 s51, s51, 8
    s_add_u32 s50, s50, s51
    s_add_u32 s50, s50, {WS_WUF}
    s_add_u32 s51, s50, 4096
    """)
    k.need(names=['RAW'])
    for T in range(7):
        a, off = (25, (T >> 1)*3584 + 8*(T & 1)) if T < 4 else ((26, (T-4)*3584 + 64) if T < 6 else (27, 96))
        for h in range(2): k(f'ds_read_b64_tr_b16 {V(T0+4*T+2*h, 2)}, v{a} offset:{off + h*1792}')
    for T in range(7):
        k(f'buffer_store_dwordx4 {V(T0+4*T)}, v28, s[4:7], s{50 + (T >> 2)} offen offset:{(T & 3)*1024} sc1')
    for n in range(3): k(dummy)
    k.end()
    k('s_cmp_lg_u32 s75, 1')
    k.begin('pd', 's_cbranch_scc1')
    k(f"""
    v_mul_u32_u24 v24, 1280, v20
    v_add_u32 v24, {L_RAW + 3*7168}, v24
    v_mul_u32_u24 v28, 80, v3
    v_lshl_add_u32 v26, v21, 4, v24
    v_add_u32 v25, v26, v28
    v_sub_u32 v26, v26, v28
    v_lshl_add_u32 v24, v22, 3, v24
    v_cmp_ne_u32 vcc, 0, v23
    v_sub_u32 v27, 1200, v28
    v_sub_u32 v29, 880, v28
    v_add_u32 v30, 320, v28
    v_cndmask_b32 v27, v28, v27, vcc
    v_cndmask_b32 v29, v30, v29, vcc
    v_add_u32 v27, v27, v24
    v_add_u32 v29, v29, v24
    v_mul_u32_u24 v28, 286720, v3
    v_lshl_add_u32 v28, v2, 4, v28
    s_lshr_b32 s50, s2, 2
    s_mul_i32 s50, s50, 5120
    s_and_b32 s51, s2, 3
    s_lshl_b32 s51, s51, 8
    s_add_u32 s50, s50, s51
    s_add_u32 s50, s50, {WS_WDF}
    s_add_u32 s51, s50, 4096
    s_add_u32 s52, s50, {4*286720}
    s_add_u32 s53, s52, 4096
    """)
    k.need(names=['RAW'])
    for jh in range(2):
        for T in range(5):
            if T < 2: a, off = 25, 320*jh + 8*T
            elif T < 4: a, off = 26, 1200 - 320*jh + 8*(T-2)
            else: a, off = (27 if jh == 0 else 29), 64
            for h in range(2): k(f'ds_read_b64_tr_b16 {V(T0+4*(5*jh+T)+2*h, 2)}, v{a} offset:{off + h*5120}')
    for jh in range(2):
        for T in range(5):
            k(f'buffer_store_dwordx4 {V(T0+4*(5*jh+T))}, v28, s[4:7], s{50 + 2*jh + (T >> 2)} offen offset:{(T & 3)*1024} sc1')
    k.end()
    k('s_cmp_lg_u32 s75, 2')
    k.begin('pi', 's_cbranch_scc1')
    for n in range(10): k(dummy)
    k.end()
    for n in range(10): k('phantom_vm')

def publish(xbase, stbase, pk, nm):
    a = pk + 12
    for n in range(5):
        k(f'v_cvt_pk_bf16_f32 v{pk+2*n}, v{R0+4*n}, v{R0+4*n+1}'); k(f'v_cvt_pk_bf16_f32 v{pk+2*n+1}, v{R0+4*n+2}, v{R0+4*n+3}')
        if n == 1: k(f'buffer_store_dwordx4 {V(pk)}, v1, s[4:7], s57 offen sc1', name=nm)
        if n == 3: k(f'buffer_store_dwordx4 {V(pk+4)}, v1, s[4:7], s58 offen sc1', name=nm)
    k(f'buffer_store_dwordx2 {V(pk+8,2)}, v4, s[4:7], s56 offen sc1', name=nm)
    k(f'v_mov_b32 v{a}, 0'); k(f'v_mov_b32 v{a+1}, 0')
    for n in range(10):
        k(f'v_dot2c_f32_bf16 v{a}, s60, v{pk+n}'); k(f'v_dot2c_f32_bf16 v{a+1}, v{pk+n}, v{pk+n}')
    k(f'v_permlane32_swap_b32 v{a}, v{a+1}')
    k(f'v_add_f32 v{a}, v{a}, v{a+1}'); k(f'v_mov_b32 v{a+1}, v{a}')
    k(f'v_permlane16_swap_b32 v{a}, v{a+1}')
    k(f'v_add_f32 v{a}, v{a}, v{a+1}')
    setexec(32, 16)
    k(f'buffer_store_dword v{a}, v5, s[4:7], s59 offen sc1', name=nm)
    allexec()
def pub_prep(xbase, stbase):
    return [f's_add_u32 s56, s{sXT}, {xbase}', f's_mul_i32 s59, s{sJ}, 1280', 's_add_u32 s57, s56, s59', 's_sub_u32 s58, s56, s59',
            f's_add_u32 s58, s58, {75*256}', f's_lshl_b32 s59, s{sJ}, 7', f's_add_u32 s59, s59, s{sST}', f's_add_u32 s59, s59, {stbase - 64}',
            's_mov_b32 s60, 0x3f803f80']

ML, MU, ZF, AD, ZA = 40, 48, 60, 30, 100
def d2_prep(l):
    L = lines(f"""
    s_and_b32 s50, s{sW}, 1
    s_lshl_b32 s50, s50, 4
    v_add_u32 v104, s50, v2
    s_lshr_b32 s54, s{sW}, 1
    s_or_b32 s51, s54, s{sCLS}
    s_cmp_eq_u32 s51, 0
    s_cselect_b32 s51, 32, 31
    v_sub_u32 v105, s51, v104
    v_cvt_f32_u32 v104, v104
    v_cvt_f32_u32 v105, v105
    v_cvt_f32_u32 v106, v3
    v_mul_f32 v104, {fl(1/32)}, v104
    v_mul_f32 v105, {fl(1/32)}, v105
    v_add_f32 v106, v106, v106
    v_cmp_eq_u32 vcc, 0, v3
    v_mul_f32 v107, v104, v106
    v_mul_f32 v108, v105, v106
    """)
    for (t, b, dst) in ((104, 107, ML), (105, 108, MU)):
        for q_ in range(4):
            kap, jh = q_ >> 1, q_ & 1
            L.append(f'v_fmamk_f32 v{109+q_}, v{t}, {fl(float(8*kap + jh))}, v{b}')
        L.append(f'v_mul_f32 v121, 0x41800000, v{t}')
        for q_ in range(4): L += [f'v_cos_f32 v{113+q_}, v{109+q_}', f'v_sin_f32 v{117+q_}, v{109+q_}']
        L.append('v_cos_f32 v121, v121')
        for q_ in range(4): L.append(f'v_cvt_pk_bf16_f32 v{dst+2*q_}, v{113+q_}, v{117+q_}')
        L.append('v_cndmask_b32 v113, v113, v121, vcc')
        for q_ in range(4): L.append(f'v_cvt_pk_bf16_f32 v{dst+2*q_+1}, v{113+q_}, -v{117+q_}')
    L += lines(f"""
    v_mul_u32_u24 v104, {8*12288}, v3
    s_mul_i32 s50, s{sW}, {64*12288}
    s_mul_i32 s51, s{sJ}, 12288
    s_add_u32 s50, s50, s51
    s_lshr_b32 s51, s{sCS}, 1
    s_lshl_b32 s51, s51, 8
    s_add_u32 s50, s50, s51
    s_add_u32 s70, s50, {WS_Z[l]}
    s_mul_i32 s71, s{sW}, 6144
    """)
    for n, x in enumerate((0, 4, 1, 5)):
        L += [f'v_xor_b32 v105, {x}, v2', f'v_lshl_add_u32 v{ZA+n}, v105, 4, v104']
    n1 = len(L)
    L += lines(f"""
    s_and_b32 s50, s{sCS}, 1
    s_xor_b32 s51, s50, 1
    s_cmp_lt_u32 s{sCS}, 2
    s_cselect_b32 s51, s50, s51
    s_xor_b32 s52, s54, 1
    s_cmp_eq_u32 s{sCS}, 0
    s_cselect_b32 s52, s54, s52
    s_lshl_b32 s50, s50, 7
    s_lshl_b32 s55, s54, 6
    s_add_u32 s50, s50, s55
    s_lshl_b32 s51, s51, 7
    s_lshl_b32 s52, s52, 6
    s_add_u32 s51, s51, s52
    v_lshrrev_b32 v104, 1, v3
    v_mul_u32_u24 v104, 6144, v104
    v_and_b32 v105, 1, v3
    v_lshl_add_u32 v104, v105, 10, v104
    v_add_u32 v104, {L_Z}, v104
    v_lshlrev_b32 v105, 6, v105
    v_xor_b32 v106, s50, v105
    v_xor_b32 v107, s51, v105
    v_add_u32 v106, v106, v104
    v_add_u32 v107, v107, v104
    v_and_b32 v108, 12, v2
    v_add_u32 v108, v108, v2
    """)
    def fin(T, base):
        return ['v_lshrrev_b32 v110, 4, v109', 'v_and_b32 v111, 15, v109', f'v_lshl_add_u32 v{AD+T}, v110, 11, v{base}',
                'v_and_b32 v110, 1, v110', 'v_lshlrev_b32 v110, 2, v110', 'v_xor_b32 v111, v111, v110', f'v_lshl_add_u32 v{AD+T}, v111, 2, v{AD+T}']
    L += ['v_mov_b32 v109, v108'] + fin(0, 106) + [f'v_xor_b32 v{AD+1}, 16, v{AD}']
    for T in (2, 3):
        L += [f'v_sub_u32 v109, {40 - 4*(T-2)}, v108', 'v_cmp_lt_u32 vcc, 31, v109', 'v_and_b32 v110, 6, v109', 'v_add_u32 v110, v110, v109',
              'v_cndmask_b32 v109, v109, v110, vcc']
        if T == 2: L += ['v_cmp_eq_u32 vcc, 0, v2', 'v_nop', 'v_nop', 'v_cndmask_b32 v109, v109, 34, vcc']
        L += fin(T, 107)
    L += ['v_cmp_gt_u32 vcc, 8, v2', 'v_and_b32 v110, 6, v2', 'v_add3_u32 v110, v110, v2, 32', 'v_sub_u32 v109, 16, v2',
          'v_cndmask_b32 v109, v109, v110, vcc', 'v_cndmask_b32 v112, v107, v106, vcc'] + fin(4, 112)
    return L, n1

def wu_dma(f0, f1, sreg_lds, sreg_src):
    L = []
    for c, n in enumerate(range(f0, f1)):
        if c % 4 == 0: L += [f's_add_u32 m0, s{sreg_lds}, {n*1024}', f's_add_u32 s61, s{sreg_src}, {n*1024}']
        L.append(I(f'buffer_load_dwordx4 v1, s[4:7], s61 offen offset:{(c % 4)*1024} sc1 lds', name='WU'))
    return L
CSA = 128
def cs_part(f0, f1):
    for c0 in range(f0, f1, 14):
        c1 = min(f1, c0 + 14)
        for n in range(c0, c1): k(f'ds_read_b128 {V(156+4*(n-c0))}, v8 offset:{n*1024}')
        for n in range(c0, c1):
            T = n % 7
            k(f'{MF} {V(CSA+4*T)}, {V(124)}, {V(156+4*(n-c0))}, {V(CSA+4*T) if n >= 7 else 0}')

def d2(l):
    N1 = opt('n1', 14)
    prep, n1 = d2_prep(l)
    emit(sig_prep(f'Z{l}', sgZ))
    if l == 0: emit(poll_issue('W'))
    k(f's_mul_i32 s76, s{sSIG}, 143360'); k(f's_add_u32 s76, s76, {WS_WUF}')
    if l == 0: k(f's_mul_i32 s77, s{sW}, {5*7168}')
    else: k(f's_mul_i32 s77, s{sW}, {12*1024}'); k(f's_add_u32 s77, s77, {91*1024}')
    k('s_add_u32 s76, s76, s77')
    cut = opt('cut', 150)
    emit(prep[:cut])
    k.need(names=['ZS'])
    stamp(f'd1e_{l}')
    emit(sig_go(sgZ))
    if l == 0:
        emit(poll_wait())
        stamp('wp')
        emit(wu_dma(0, N1, 77, 76))
    emit(prep[cut:])
    emit(pub_prep(WS_X1[l], WS_ST[l]))
    emit(sig_prep(f'X1{l}', sgX1))
    emit(poll_issue(f'Z{l}'))
    emit(poll_wait())
    stamp(f'd2p_{l}')
    for p in range(3):
        for hh in range(2):
            k(f's_add_u32 m0, s71, {L_Z + p*2048 + hh*1024}')
            k(f's_add_u32 s50, s70, {p*4096 + hh*4*8*12288}')
            k(f'buffer_load_dwordx4 v{ZA + 2*(p & 1) + hh}, s[4:7], s50 offen sc1 lds')
    if l == 0:
        k('v_add_u32 v8, s77, v1')
        for r in range(4): k(f'v_mov_b32 v{124+r}, 0x3f803f80')
        k.need(names=['WU'])
        cs_part(0, N1)
    k('s_waitcnt vmcnt(0)'); k('s_barrier')
    stamp(f'd2l_{l}')
    order = [(4, 0), (4, 1)] + [(T, kap) for T in range(4) for kap in range(2)]
    for n, (T, kap) in enumerate(order):
        for h in range(2):
            k(f'ds_read2st64_b32 {V(ZF+4*n+2*h, 2)}, v{AD+T} offset0:{48*kap + 2*h} offset1:{48*kap + 2*h + 1}')
    r4 = V(R0+16)
    k(f'{MF} {V(56)}, {V(ZF)}, {V(ML)}, {r4}')
    k(f'{MF} {r4}, {V(ZF)}, {V(MU)}, {r4}')
    k(f'{MF} {V(56)}, {V(ZF+4)}, {V(ML+4)}, {V(56)}')
    k(f'{MF} {r4}, {V(ZF+4)}, {V(MU+4)}, {r4}')
    for n, (T, kap) in enumerate(order):
        if T < 4: k(f'{MF} {V(R0+4*T)}, {V(ZF+4*n)}, {V((ML if T < 2 else MU) + 4*kap)}, {V(R0+4*T)}')
    k('s_barrier')
    for r in range(4): k(f'v_cndmask_b32 v{R0+16+r}, v{R0+16+r}, v{56+r}, s[66:67]')
    publish(WS_X1[l], WS_ST[l], 12, 'XS')
    N2 = opt('n2', 6)
    f0, f1 = (N1, 35) if l == 0 else (0, 13)
    emit(wu_dma(f0, f0+N2, 77, 76))
    up_prep(l)
    k.need(names=['XS']); k('s_barrier')
    stamp(f'd2e_{l}')
    emit(sig_go(sgX1))
    emit(wu_dma(f0+N2, f1, 77, 76))

ACC = [12, 68]; BRG = 124; XR = 152; XD = 5; K1 = 192; SS = 196; NM = 200; TM = 204
def acc(h, T, mi): return ACC[h] + (2*T + mi)*4
def epi_stream(h, l, e0):
    st = []
    def grp(G, U, k1, ss, dst):
        if h == 1 and opt('pk', 1):
            b1, b2 = k1 & 1, ss & 1
            for r in (0, 2): st.append(f'v_pk_mul_f32 {V(U+r,2)}, {V(G+r,2)}, {V(U+r,2)}')
            for r in (0, 2): st.append(f'v_pk_mul_f32 {V(G+r,2)}, {V(G+r,2)}, {V(k1-b1,2)} op_sel:[0,{b1}] op_sel_hi:[1,{b1}]')
            for r in range(4): st.append(f'v_exp_f32 v{G+r}, v{G+r}')
            for r in (0, 2): st.append(f'v_pk_fma_f32 {V(G+r,2)}, {V(G+r,2)}, {V(ss-b2,2)}, {V(ss-b2,2)} op_sel:[0,{b2},{b2}] op_sel_hi:[1,{b2},{b2}]')
            for r in range(4): st.append(f'v_rcp_f32 v{G+r}, v{G+r}')
            for r in (0, 2): st.append(f'v_pk_mul_f32 {V(U+r,2)}, {V(U+r,2)}, {V(G+r,2)}')
            st.append(f'v_cvt_pk_bf16_f32 v{dst}, v{U}, v{U+1}'); st.append(f'v_cvt_pk_bf16_f32 v{dst+1}, v{U+2}, v{U+3}')
            return
        for r in range(4): st.append(f'v_mul_f32 v{U+r}, v{G+r}, v{U+r}')
        for r in range(4): st.append(f'v_mul_f32 v{G+r}, v{G+r}, v{k1}')
        for r in range(4): st.append(f'v_exp_f32 v{G+r}, v{G+r}')
        for r in range(4): st.append(f'v_fma_f32 v{G+r}, v{G+r}, v{ss}, v{ss}')
        for r in range(4): st.append(f'v_rcp_f32 v{G+r}, v{G+r}')
        for r in range(4): st.append(f'v_mul_f32 v{U+r}, v{U+r}, v{G+r}')
        st.append(f'v_cvt_pk_bf16_f32 v{dst}, v{U}, v{U+1}'); st.append(f'v_cvt_pk_bf16_f32 v{dst+1}, v{U+2}, v{U+3}')
    nm = f'H{h}'
    for mi in range(2):
        d = acc(h, 0, mi)
        grp(acc(h, 0, mi), acc(h, 2, mi), K1+2*h+mi, SS+2*h+mi, d)
        grp(acc(h, 1, mi), acc(h, 3, mi), K1+2*h+mi, SS+2*h+mi, d+2)
        st.append(I(f'buffer_store_dwordx4 {V(d)}, v1, s[4:7], s{76+2*h+mi} offen sc1', name=nm))
    d = acc(h, 4, 0)
    grp(acc(h, 4, 0), acc(h, 5, 0), K1+2*h, SS+2*h, d)
    grp(acc(h, 4, 1), acc(h, 5, 1), K1+2*h+1, SS+2*h+1, d+2)
    for r in range(4): st.append(f'v_permlane32_swap_b32 v{acc(h,6,0)+r}, v{acc(h,6,1)+r}')
    st.append(f'v_cndmask_b32 v{TM+2}, v{K1+2*h+1}, v{K1+2*h}, s[66:67]')
    st.append(f'v_cndmask_b32 v{TM+3}, v{SS+2*h+1}, v{SS+2*h}, s[66:67]')
    st.append(f'v_permlane32_swap_b32 v{d}, v{d+2}'); st.append(f'v_permlane32_swap_b32 v{d+1}, v{d+3}')
    st.append(I(f'buffer_store_dwordx4 {V(d)}, v6, s[4:7], s{76+2*h} offen sc1', name=nm))
    d = acc(h, 6, 0)
    grp(d, acc(h, 6, 1), TM+2, TM+3, d)
    st.append(I(f'buffer_store_dwordx2 {V(d,2)}, v7, s[4:7], s{76+2*h} offen sc1', name=nm))
    return [(x, e0) for x in st]

def up_prep(l):
    k(f'v_add_u32 v9, {63*1024}, v1'); k(f'v_add_u32 v10, {126*1024}, v1')
    k(f's_mul_i32 s50, s{sCSU}, {4*20480}')
    for rt in range(4): k(f's_add_u32 s{72+rt}, s50, {WS_X1[l] + rt*20480}')
    k(f's_lshl_b32 s80, s{sCSU}, 12'); k(f's_add_u32 s80, s80, {WS_ST[l]}')
    if l == 0:
        k(f"""
        v_lshrrev_b32 v30, 5, v0
        v_mul_u32_u24 v30, 57344, v30
        v_lshl_add_u32 v30, v2, 4, v30
        v_and_b32 v31, 1, v3
        v_lshl_add_u32 v6, v31, 8, v30
        v_add_u32 v6, 1024, v6
        v_lshl_add_u32 v7, v31, 3, v30
        v_add_u32 v7, 1536, v7
        s_mul_i32 s81, s{sJ}, 286720
        s_mul_i32 s50, s{sW}, {70*1024}
        s_add_u32 s81, s81, s50
        s_add_u32 s81, s81, {WS_WDF}
        s_mul_i32 s16, s{sJ}, {7*opt('rotd', 1)}
        s_lshr_b32 s16, s16, 2
        s_lshl_b32 s16, s16, 10
        """)
        for n in range(1, 14):
            k(f's_add_u32 s{16+n}, s{15+n}, 1024'); k(f's_cmp_eq_u32 s{16+n}, {14*1024}'); k(f's_cselect_b32 s{16+n}, 0, s{16+n}')
        k('s_mul_i32 s30, s16, 5'); k('s_add_u32 s30, s30, s81')
def wdld(n):
    sl, T = divmod(n, 5)
    L = [f'buffer_load_dwordx4 {wdreg(n)}, v{1 if T < 4 else TM+4}, s[4:7], s30 offen offset:{(T % 4)*1024} sc1']
    if T == 3 and sl < 13: L.append(f's_mul_i32 s31, s{17+sl}, 5')
    if T == 4 and sl < 13: L.append('s_add_u32 s30, s31, s81')
    return L

def up(l):
    def brd(n):
        f = n % 140
        a, off = (1, f) if f < 63 else ((9, f-63) if f < 126 else (10, f-126))
        return f'ds_read_b128 {V(BRG + 4*(n % 7))}, v{a} offset:{off*1024}'
    def xld(n, mi):
        h, ks = divmod(n, 20)
        return f'buffer_load_dwordx4 {V(XR + 8*(n % XD) + 4*mi)}, v1, s[4:7], s{72+2*h+mi} offen offset:{(ks % 4)*1024} sc1'
    def xadv(n):
        h, ks = divmod(n, 20)
        return [f's_add_u32 s{72+2*h+mi}, s{72+2*h+mi}, 4096' for mi in range(2)] if ks % 4 == 3 else []
    SL = ACC[1]
    def first_loads():
        emit(poll_issue(f'X1{l}')); emit(poll_wait())
        stamp(f'upp_{l}')
        for n in range(XD-1):
            for mi in range(2): k(xld(n, mi))
            emit(xadv(n))
    k(f's_mul_i32 s50, s{sCSU}, {4*57344}'); k(f's_mul_i32 s51, s{sSIG}, {7*256}'); k('s_add_u32 s50, s50, s51')
    for rt in range(4): k(f's_add_u32 s{76+rt}, s50, {WS_H[l] + rt*57344}')
    if l == 0:
        k.need(names=['WU'])
        stamp('wu')
        cs_part(opt('n1', 14), 35)
        k(f's_mul_i32 s50, s{sW}, 448'); k(f's_add_u32 s50, s50, {L_CSP}')
        k('v_lshl_add_u32 v12, v2, 2, s50')
        for T in range(7): k(f'ds_write_b32 v12, v{CSA+4*T} offset:{64*T}')
        first_loads()
        k('s_barrier')
        k('v_min_u32 v12, 55, v0'); k('v_lshlrev_b32 v12, 3, v12'); k(f'v_add_u32 v13, {L_CSP}, v12')
        for n in range(4): k(f'ds_read_b64 {V(14+2*n, 2)}, v13 offset:{448*n}')
        for n in range(6): k(brd(n))
        for h in range(2):
            k(f'v_add_f32 v{14+h}, v{14+h}, v{16+h}'); k(f'v_add_f32 v{18+h}, v{18+h}, v{20+h}'); k(f'v_add_f32 v{14+h}, v{14+h}, v{18+h}')
        k(f'v_add_u32 v13, {L_CS}, v12')
        k('ds_write_b64 v13, v[14:15]')
        k('s_waitcnt lgkmcnt(0)')
    else:
        first_loads()
        for n in range(6): k(brd(n))
        k.need(names=['WU']); k('s_barrier')
    wdn = [0]
    if l == 0: k(f'v_add_u32 v{TM+4}, 4096, v1')
    NWD = [opt('wa', 32), opt('wb', 22)] if l == 0 else [0, 0]
    for h in range(2):
        mf = []; fixed = {}
        def fx(g, x, first=False):
            L = fixed.setdefault(g, [])
            L.insert(0, x) if first else L.append(x)
        for ks in range(20):
            n = 20*h + ks
            for T in range(7):
                g = len(mf); f = 7*n + T
                for mi in range(2):
                    a = V(acc(h, T, mi))
                    mf.append(f'{MF} {a}, {V(BRG+4*T)}, {V(XR + 8*(n % XD) + 4*mi)}, {a if (ks or h) else 0}')
                if f + 6 < 280: fx(g, brd(f+6))
                if T % 2 == 0 and f + 1 < 280:
                    nxt = [BRG + 4*((f+1) % 7)] + ([BRG + 4*((f+2) % 7)] if T < 6 else [])
                    fx(g+1, Need([x for b in nxt for x in rr(V(b))]), True)
            g0 = 14*ks
            if n + XD - 1 < 40:
                fx(g0+3, xld(n+XD-1, 0)); fx(g0+7, xld(n+XD-1, 1))
                for q_, x in enumerate(xadv(n+XD-1)): fx(g0+8+2*q_, x, True)
            if n + 1 < 40: fx(g0+12, Need(rr(V(XR + 8*((n+1) % XD), 8))), True)
            if h == 0 and ks < 4:
                for c in range(4): fx(g0 + (1, 5, 9, 13)[c], f'buffer_load_dword v{SL+4*ks+c}, v5, s[4:7], s80 offen offset:{1024*ks + 256*c} sc1')
            k0 = 4 if h == 0 else 0
            if ks >= k0:
                cnt = NWD[h]*(ks-k0+1)//(20-k0) - NWD[h]*(ks-k0)//(20-k0)
                free = [11, 5, 1] + ([3, 7] if n + XD - 1 >= 40 else [])
                for c in range(cnt):
                    w_ = wdld(wdn[0]); wdn[0] += 1
                    fx(g0 + sorted(free[:cnt])[c], w_[0])
                    if len(w_) > 1: fx(g0 + sorted(free[:cnt])[c] + 1, w_[1], True)
        st = []
        if h == 0:
            for rt in range(4):
                b = SL + 4*rt
                st += [(x, 14*(rt+3)) for x in [f'v_add_f32 v{b}, v{b}, v{b+1}', f'v_add_f32 v{b+2}, v{b+2}, v{b+3}', f'v_add_f32 v{b}, v{b}, v{b+2}',
                       f'v_mov_b32 v{b+1}, v{b}', f'v_permlane32_swap_b32 v{b}, v{b+1}', f'v_add_f32 v{b}, v{b}, v{b+1}',
                       f'v_mov_b32 v{b+1}, v{b}', f'v_permlane16_swap_b32 v{b}, v{b+1}',
                       f'v_mul_f32 v{NM+rt}, {fl(-1/640)}, v{b}', f'v_mul_f32 v{b+1}, {fl(1/640)}, v{b+1}',
                       f'v_fma_f32 v{b+1}, -v{NM+rt}, v{NM+rt}, v{b+1}', f'v_max_f32 v{b+1}, 0, v{b+1}',
                       f'v_add_f32 v{SS+rt}, {fl(1e-5)}, v{b+1}', f'v_rsq_f32 v{K1+rt}, v{SS+rt}',
                       f'v_mul_f32 v{K1+rt}, {fl(-1.4426950408889634)}, v{K1+rt}']]
            st = [(f'v_lshlrev_b32 v{TM+7}, 4, v3', 2), (f'v_add_u32 v{TM+7}, {L_CS}, v{TM+7}', 2)] + st
            KS0 = 11
            def capg(g): return 2 - sum(slots(x if isinstance(x, I) else I(x)) for x in fixed.get(g, []) if slots(x if isinstance(x, I) else I(x)) >= 1)
            firstcs = None
            for T in range(7):
                g0 = 14*(KS0 + T) + 2*T
                c = acc(1, T, 1)
                gr = g0 - 3
                while capg(gr) < 2: gr -= 1
                x = I(f'ds_read_b128 {V(c)}, v{TM+7} offset:{64*T}')
                if T == 0: firstcs = x
                fx(gr, x)
                ops = [f'v_fmac_f32 v{acc(0,T,mi)+r}, v{NM+mi}, v{c+r}' for mi in range(2) for r in range(4)]
                g = g0 + 4
                while ops:
                    cap = capg(g)
                    while cap >= 1 and ops: fx(g, ops.pop(0)); cap -= 1
                    g += 1
                if g > g0 + 14: print('warn fmac window', T, g - g0)
                st += [(f'v_mul_f32 v{acc(1,T,mi)+r}, v{NM+2+mi}, v{c+r}', g) for mi in range(2) for r in range(4)]
        else:
            st = epi_stream(0, l, 4) + [(x, 200) for x in sig_prep(f'HA{l}', sgH)]
        n0 = len(k.ins)
        left = weave(k, mf, fixed, st)
        if h == 0:
            pos = k.ins.index(firstcs)
            assert all(not (x.text.startswith(f'v_mul_f32 v{K1+rt},')) for x in k.ins[pos:] for rt in range(4)), 'stats not done before cs'
        print('up half', h, 'leftover', left)
        stamp(f'up{h}_{l}')
    k.need(names=['H0'])
    emit(sig_go(sgH))
    k('s_barrier')
    if l == 0:
        while wdn[0] < 70: emit(wdld(wdn[0])); wdn[0] += 1
    ep = [x for x, e in epi_stream(1, l, 0)]
    cut = opt('pa', 100)
    emit(down_prep(l))
    emit(ep[:cut]); emit(poll_issue(f'HA{l}')); emit(ep[cut:])
    stamp(f'upe_{l}')

HR = 124; DA = 12; HV = 180
def hld(ps, ks): return f'buffer_load_dwordx4 {V(HR + 4*ks)}, v{HV+ps}, s[4:7], s{16+ks} offen sc1'
def down_prep(l):
    L = lines(f"""
    s_mul_i32 s50, s{sCS}, {4*57344}
    s_mul_i32 s51, s{sW}, {14*1024}
    s_add_u32 s50, s50, s51
    s_add_u32 s50, s50, {WS_H[l]}
    s_lshr_b32 s54, s{sW}, 1
    s_xor_b32 s54, s54, s{sW}
    s_and_b32 s54, s54, 1
    """)
    for p in range(4):
        L += [f's_xor_b32 s55, s54, {(1, 0, 2, 3)[p]}', 's_mul_i32 s52, s55, 57344', 's_add_u32 s52, s50, s52', f'v_add_u32 v{TMPV[p]}, s52, v1']
    return L
def down_prep2():
    L = []
    for p in range(4):
        L += [f's_xor_b32 s55, s54, {(1, 0, 2, 3)[p]}', 's_mul_i32 s53, s55, 15360',
              f's_sub_u32 s52, s{sW}, s55', 's_sub_u32 s52, s52, 1', 's_and_b32 s52, s52, 3', 's_mul_i32 s52, s52, 5120',
              's_add_u32 s52, s52, s53', f's_add_u32 s52, s52, {L_RED}', f'v_add_u32 v{184+p}, s52, v1']
    L += [f's_mul_i32 s52, s{sW}, 15360', f's_add_u32 s52, s52, {L_RED}', 'v_add_u32 v188, s52, v1',
          f's_cmp_eq_u32 s{sW}, 3', 's_cselect_b32 s53, 5120, 0', 's_cselect_b32 s55, 0, 10240',
          'v_add_u32 v189, s53, v188', 'v_add_u32 v190, s55, v188']
    return L
TMPV = [HV, HV+1, HV+2, HV+3]
def down_variant(l, isA):
    own = 1 if isA else 3
    aset = {0: DA, 1: DA+20, 2: DA+40} if not isA else {0: DA, 2: DA+20, 3: DA+40}
    aset[own] = R0
    pB = opt('pb', 19); pI = opt('pi', 8); TMJ = opt('tmj', 7)
    HD = 13
    mf = []; fixed = {}
    def fx(g, x, first=False):
        L = fixed.setdefault(g, [])
        L.insert(0, x) if first else L.append(x)
    def mm(p, ks, T):
        a = V(aset[p] + 4*T)
        mf.append(f'{MF} {a}, {wdreg(5*ks+T)}, {V(HR+4*ks)}, {a if (ks or p == own) else 0}')
    nxt = opt('hu', 7)
    for n in range(56 - TMJ):
        p, ks = divmod(n, 14)
        g = len(mf)
        for T in range(5): mm(p, ks, T)
        if n == pB - pI:
            for c, x in enumerate(poll_issue(f'HB{l}')): fx(g + (1, 2, 4)[c], x, True)
        if n == pB - 1:
            for x in stampL(f'dnb4_{l}') + poll_wait() + stampL(f'dnB_{l}'): fx(g + 4, x)
        if n in (27, 41):
            for x in stampL(f'dn{n}_{l}'): fx(g + 4, x)
        for c in range(2):
            if nxt < 56 and nxt <= n + HD and (nxt < 28 or n >= pB):
                fx(g + 2*c, hld(*divmod(nxt, 14))); nxt += 1
        fx(g+3, Need(rr(V(HR + 4*((n+1) % 14)))), True)
    assert nxt == 56
    tdone = {}
    for T in range(5):
        for ks in range(14 - TMJ, 14): mm(3, ks, T)
        tdone[T] = len(mf)
    for c, x in enumerate(sig_go(sgH)): fx((0, 1, 2, 4, 5, 6, 7, 9)[c], x, True)
    wr = lambda p, T: f'ds_write_b128 v{184+p}, {V(aset[p] + 4*T)} offset:{T*1024}'
    for p in range(3):
        if p == own: continue
        for T in range(5):
            g = 70*(p+1) + (4 + 2*T if p == 2 else 9 + 5*T)
            fx(g, wr(p, T))
    ga = 210 + 16
    fx(ga, 's_waitcnt lgkmcnt(0)', True); fx(ga, 's_barrier')
    st = [(x, 12) for x in down_prep2()]
    pre = pub_prep(WS_X2, WS_ST[2]) + sig_prep('X20', sgX2) if l == 0 else nat_addr(92, 93, 94, 95)
    st += [(x, 150) for x in pre]
    tail = []
    if isA:
        dst = [DA, DA+20, 72]
        for T in range(5):
            for s_ in range(3):
                fx(ga + 1 + 3*T + s_, f'ds_read_b128 {V(dst[s_]+4*T)}, v188 offset:{s_*5120 + T*1024}')
            for s_ in range(3):
                for r in range(4): st.append((f'v_add_f32 v{R0+4*T+r}, v{R0+4*T+r}, v{dst[s_]+4*T+r}', ga + 10 + 3*T))
        for T in range(4): fx(tdone[T] + 3, wr(3, T))
        tail = [wr(3, 4), 's_waitcnt lgkmcnt(0)', 's_barrier']
    else:
        for T in range(5):
            for s_ in range(2):
                fx(ga + 1 + 2*T + s_, f'ds_read_b128 {V(DA+20*s_+4*T)}, v189 offset:{s_*5120 + T*1024}')
            for r in range(4): st.append((f'v_add_f32 v{DA+4*T+r}, v{DA+4*T+r}, v{DA+20+4*T+r}', ga + 9 + 2*T))
        for T in range(5):
            for r in range(4): st.append((f'v_add_f32 v{R0+4*T+r}, v{R0+4*T+r}, v{DA+4*T+r}', tdone[T] + 3))
        tail = ['s_barrier'] + [f'ds_read_b128 {V(DA+40+4*T)}, v190 offset:{T*1024}' for T in range(5)]
        tail += [f'v_pk_add_f32 {V(R0+n,2)}, {V(R0+n,2)}, {V(DA+40+n,2)}' for n in range(0, 20, 2)]
    left = weave(k, mf, fixed, st, tail=False)
    print('down leftover', len(left))
    emit(stampL(f'dn55_{l}'))
    if isA: emit(tail); emit([x for x, e in left])
    else: emit([x for x, e in left]); emit(tail)

def down(l):
    emit(poll_wait())
    stamp(f'dnp_{l}')
    for n in range(opt('hu', 7)): k(hld(0, n))
    emit(sig_prep(f'HB{l}', sgH))
    k.need(names=['H1'])
    k.need(V(HR)); emit(stampL(f'dn0_{l}'))
    k(f's_cmp_ge_u32 s{sW}, 2')
    k.begin('dA', 's_cbranch_scc1'); down_variant(l, True); k.end()
    k(f's_cmp_lt_u32 s{sW}, 2')
    k.begin('dB', 's_cbranch_scc1'); down_variant(l, False); k.end()
    k('s_waitcnt vmcnt(0) lgkmcnt(0)')
    stamp(f'dnm_{l}')
    if l == 0:
        publish(WS_X2, WS_ST[2], 32, 'X2S')
        k('s_barrier')
        k(f's_mul_i32 s51, s{sW}, 37'); k('s_mul_i32 s51, s51, 21846'); k('s_lshr_b32 s51, s51, 16'); k('s_lshl_b32 s51, s51, 10')
        k(f's_mul_i32 s50, s{sJ}, 51200'); k('s_add_u32 s50, s50, s51'); k(f's_add_u32 s50, s50, {WS_BF}'); k(f's_add_u32 s51, s51, {L_B}')
        NB = opt('nb', 6)
        k('s_mov_b32 s76, s50'); k('s_mov_b32 s77, s51')
        emit(wu_dma(0, NB, 77, 76))
        emit(gen_M2())
        k.need(names=['X2S'])
        stamp(f'dne_{l}')
        emit(sig_go(sgX2))
        emit(wu_dma(NB, 13, 77, 76))
    else:
        pk = 32
        for n in range(5):
            k(f'v_cvt_pk_bf16_f32 v{pk+2*n}, v{R0+4*n}, v{R0+4*n+1}'); k(f'v_cvt_pk_bf16_f32 v{pk+2*n+1}, v{R0+4*n+2}, v{R0+4*n+3}')
            if n == 1: k(f'buffer_store_dwordx4 {V(pk)}, v92, s[12:15], 0 offen')
            if n == 3: k(f'buffer_store_dwordx4 {V(pk+4)}, v93, s[12:15], 0 offen')
        k(f'buffer_store_dwordx2 {V(pk+8,2)}, v94, s[12:15], 0 offen')
        stamp(f'dne_{l}')

def main():
    prologue()
    k(f's_cmp_lg_u32 s{sW}, 0')
    k.begin('w0', 's_cbranch_scc1')
    k(f'v_lshrrev_b32 v12, 5, v0'); k(f'v_mul_u32_u24 v12, {MBSZ - 512}, v12'); k('v_add_u32 v12, v12, v1')
    for r in range(4): k(f'v_mov_b32 v{16+r}, 0')
    k('s_lshl_b32 s50, s2, 9')
    for n in range(5):
        k('buffer_store_dwordx4 v[16:19], v12, s[4:7], s50 offen sc1')
        k(f's_add_u32 s50, s50, {2*MBSZ}')
    k.end()
    prepass_issue()
    k(f"""
    s_lshl_b32 s50, s{sJ}, 3
    s_lshl_b32 s51, s{sW}, 1
    s_add_u32 s50, s50, s51
    s_lshr_b32 s51, s50, 5
    s_lshl_b32 s51, s51, 5
    s_and_b32 s50, s50, 31
    s_lshl_b32 s50, s50, 6
    s_add_u32 s50, s50, s51
    s_add_u32 s50, s50, s{sCLS}
    s_mul_i32 s50, s50, 1280
    v_cmp_lt_u32 vcc, 9, v0
    v_mov_b32 v21, {64*1280 - 1280}
    v_cndmask_b32 v20, 0, v21, vcc
    v_lshl_add_u32 v20, v0, 7, v20
    """)
    setexec(20); k('buffer_load_dword v15, v20, s[8:11], s50 offen'); allexec()
    stamp('iss0')
    emit(ids1())
    def arrive():
        k(f's_cmp_lg_u32 s{sW}, 0')
        k.begin('w0', 's_cbranch_scc1')
        k('s_and_b32 s50, s2, 3'); k('s_lshl_b32 s50, s50, 6'); k('s_add_u32 s88, s32, s50'); k('s_addc_u32 s89, s33, 0')
        k(I('s_nop 0')); k.ins[-1].text = 's_waitcnt vmcnt(9)'; k.ins[-1].kind = 'salu'
        k('s_atomic_add s90, s[88:89], 0')
        k.end()
    def adma(m):
        L = [f's_lshl_b32 s50, s{94 + (m >> 1)}, 7'] if (m & 1) == 0 or m == 9 else []
        off = (m & 1)*640
        if m == 9: L.append('s_add_u32 s50, s50, 640'); off = 0
        for hf in range(2):
            L.append(f's_add_u32 m0, s74, {(m % 9)*2048 + hf*1024 - off}')
            L.append(I(f'buffer_load_dwordx4 v{48+hf}, s[8:11], s50 offen offset:{off} lds', name=f'AD{m}'))
        return L
    def mid():
        arrive()
        k(f"""
        s_lshr_b32 s50, s{sW}, 1
        s_lshl_b32 s50, s50, 5
        s_and_b32 s51, s{sW}, 1
        s_lshl_b32 s51, s51, 10
        s_add_u32 s50, s50, s51
        s_add_u32 s50, s50, s{sCLS}
        s_mul_i32 s50, s50, 1280
        v_lshrrev_b32 v50, 3, v0
        v_and_b32 v51, 7, v0
        v_xor_b32 v51, v51, v50
        v_mul_u32_u24 v48, 81920, v50
        v_lshl_add_u32 v48, v51, 4, v48
        v_add_u32 v48, s50, v48
        v_add_u32 v49, {8*81920}, v48
        s_mul_i32 s74, s{sW}, 18432
        v_and_b32 v51, 7, v2
        v_xor_b32 v51, v51, v3
        v_lshlrev_b32 v51, 4, v51
        v_lshl_add_u32 v50, v2, 7, v51
        v_add_u32 v50, s74, v50
        v_xor_b32 v51, 64, v50
        """)
        stamp('gen1')
        for m in range(9): emit(adma(m))
        stamp('issA')
    emit(gen_B1()); emit(gen_B2()); emit(gen_T5())
    mid()
    emit(ids2())
    emit(gen_M2())
    emit(nat_addr(32, 33, 34, 35))
    stamp('gen')
    k.need(names=['AD0', 'AD1'])
    stamp('A0land')
    for m in range(2): emit(a_lds(m))
    k('s_waitcnt lgkmcnt(0)')
    emit(adma(9))
    prepass_process()
    stamp('pre')
    k(f'v_add_u32 v8, {L_B}, v1')
    k('s_waitcnt lgkmcnt(0)'); k('s_barrier')
    k(f"""
    s_lshl_b32 s50, s{sCS}, 2
    s_add_u32 s50, s50, s{sW}
    s_min_u32 s50, s50, 99
    s_lshl_b32 s50, s50, 9
    v_add_u32 v12, s50, v8
    ds_read_b128 v[16:19], v12
    s_mul_i32 s51, s{sJ}, 51200
    s_add_u32 s50, s50, s51
    s_add_u32 s50, s50, {WS_BF}
    """)
    setexec(32); k('buffer_store_dwordx4 v[16:19], v1, s[4:7], s50 offen sc1'); allexec()
    k(f'buffer_load_dwordx4 {V(R0+8)}, v32, s[8:11], 0 offen')
    k(f'buffer_load_dwordx4 {V(R0+12)}, v33, s[8:11], 0 offen')
    k(f'buffer_load_dwordx2 {V(R0+18,2)}, v34, s[8:11], 0 offen')
    stamp('ini')
    stop('pre')
    for l in range(2):
        if l == 0:
            d1_body(0, None)
            for n in range(10):
                src = R0 + 8 + n if n < 8 else R0 + 10 + n
                if n in (7, 9):
                    k(f'v_lshlrev_b32 v{R0+2*n}, 16, v{src}'); k(f'v_and_b32 v{R0+2*n+1}, 0xffff0000, v{src}')
                else:
                    k(f'v_and_b32 v{R0+2*n+1}, 0xffff0000, v{src}'); k(f'v_lshlrev_b32 v{R0+2*n}, 16, v{src}')
        else:
            emit(gen_T5())
            k(f'v_add_u32 v8, {L_B}, v1')
            k(f's_add_u32 s72, s{sXT}, {WS_X2}'); k(f's_add_u32 s74, s{sST}, {WS_ST[2]}')
            for n in range(5): k(f's_lshl_b32 s{94+n}, s{94+n}, 11'); k(f's_add_u32 s{94+n}, s{94+n}, s72')
            k('v_add_u32 v36, 10240, v1')
            def ald(n):
                ks, h = n >> 1, n & 1
                return [f'buffer_load_dwordx4 {V(A0 + 4*n)}, v{36 if h else 1}, s[4:7], s{94 + ks//2} offen offset:{(ks & 1)*1024} sc1']
            emit(poll_issue('X20')); emit(poll_wait())
            stamp('d1p_1')
            NUP = opt('nup', 8)
            for n in range(NUP): emit(ald(n))
            for n in range(4): k(f'buffer_load_dword v{32+n}, v5, s[4:7], s74 offen offset:{256*n} sc1')
            k.need(names=['WU']); k('s_barrier')
            stamp('d1b_1')
            d1_body(1, (NUP, ald))
        stop(f'd1_{l}')
        d2(l); stop(f'd2_{l}')
        up(l); stop(f'up_{l}')
        down(l); stop(f'dn_{l}')
try: main()
except Stop: pass
finish()
k('END:'); k('s_endpgm'); k('CODE_END:')
k.finish()
open(sys.argv[1], 'w').write(build([k], [(k.name, 256, 256, LDS)], single=True))
import json
json.dump(dict(WS_BF=WS_BF, stamps=stampnames, WS_TS=WS_TS, WS_WUF=WS_WUF, WS_WDF=WS_WDF, WS_Z=WS_Z, WS_X1=WS_X1, WS_X2=WS_X2, WS_ST=WS_ST, WS_H=WS_H), open(sys.argv[1] + '.json', 'w'))
print('insts', len(k.ins), 'hi', k.hi, 'nops', sum(1 for i in k.ins if i.kind == 'nop'))
```

```python
import sys, struct
from asmx import *
from asmlib import build
o = dict(a.split('=') for a in sys.argv[2:])
STOP = o.get('stop', '')
STAMP = int(o.get('stamp', 0))
def opt(n, d): return int(o.get(n, d))
S, D, F = 2048, 640, 1728
def fl(x): return hex(struct.unpack('<I', struct.pack('<f', x))[0])
MBSZ = 256*4*128
PH = dict(W=0, Z0=1, X10=2, HA0=3, HB0=4, X20=5, Z1=6, X11=7, HA1=8, HB1=9)
WS_TS = 11*MBSZ
WS_WUF = 2 << 20
WS_WDF = WS_WUF + 32*143360
WS_Z = [WS_WDF + 8*286720 + l*3145728 for l in range(2)]
WS_X1 = [WS_Z[1] + 3145728 + l*2621440 for l in range(2)]
WS_X2 = WS_X1[1] + 2621440
WS_ST = [WS_X2 + 2621440 + l*131072 for l in range(3)]
WS_H = [WS_ST[2] + 131072 + l*7340032 for l in range(2)]
WS_BF = WS_H[1] + 7340032
WS_END = WS_BF + 8*51200
L_XCH = 93184
L_B = L_XCH + 12288
L_Z = 132096
L_RED = 93184
L_RAW = 73728
L_CSP = 156672
L_CS = 163328
LDS = 163840
sW, sXCD, sQ, sJ, sCS, sCLS, sSIG, sGAM, sCSU, sMB = range(36, 46)
sXT, sST = 64, 65
sgZ, sgX1, sgH, sgX2 = 84, 85, 86, 87
R0 = 212; WT = 232
def V(a, n=4): return f'v[{a}:{a+n-1}]'
def wdreg(n): return f'a[{4*n}:{4*n+3}]' if n < 64 else V(WT + 4*(n-64))
MF = 'v_mfma_f32_16x16x32_bf16'
k = K(NAME + '_kernel')
nstamp = [0]; stampnames = []
DIAG = o.get('diag')
def stamp(name):
    if DIAG == name:
        k('s_memrealtime s[100:101]'); k('s_waitcnt lgkmcnt(0)')
    if not STAMP: return
    if o.get('only') and name not in o['only'].split(':'): return
    if name in stampnames: n = stampnames.index(name)
    else: n = len(stampnames); stampnames.append(name)
    k('s_memrealtime s[62:63]' if STAMP == 1 else 's_memtime s[62:63]'); k('s_waitcnt lgkmcnt(0)')
    k(f'v_writelane_b32 v11, s62, {n}')
def stampL(name):
    if DIAG == name: return ['s_memrealtime s[100:101]', 's_waitcnt lgkmcnt(0)']
    if not STAMP or not (o.get('fine') or name in o.get('only', '').split(':')): return []
    if name in stampnames: n = stampnames.index(name)
    else: n = len(stampnames); stampnames.append(name)
    return ['s_memrealtime s[62:63]' if STAMP == 1 else 's_memtime s[62:63]', 's_waitcnt lgkmcnt(0)', f'v_writelane_b32 v11, s62, {n}']
def finish():
    if DIAG:
        op = o.get('red', 'max')
        k(f's_cmp_lg_u32 s{sW}, 0'); k('s_cbranch_scc1 END')
        k('v_mov_b32 v12, s100'); k('s_lshl_b32 s48, s2, 2'); k(f's_add_u32 s48, s48, {WS_TS}')
        setexec(1); k('buffer_store_dword v12, off, s[4:7], s48 sc1'); allexec()
        k('s_cmp_lg_u32 s2, 0'); k('s_cbranch_scc1 END')
        k('PADL:'); k('s_memrealtime s[62:63]'); k('s_waitcnt lgkmcnt(0)')
        k('s_sub_u32 s62, s62, s99'); k('s_cmp_lt_u32 s62, 8000'); k('s_cbranch_scc1 PADL')
        k(f's_mov_b32 s48, {WS_TS}')
        k('buffer_load_dwordx4 v[12:15], v1, s[4:7], s48 offen sc1')
        for r in range(4): k(f'v_subrev_u32 v{12+r}, s99, v{12+r}')
        k(f'v_{op}_i32 v12, v12, v13'); k(f'v_{op}_i32 v14, v14, v15'); k(f'v_{op}_i32 v12, v12, v14')
        k('v_readlane_b32 s50, v12, 0')
        for n in range(1, 64):
            k(f'v_readlane_b32 s51, v12, {n}'); k(f's_{op}_i32 s50, s50, s51')
        k('s_mul_i32 s50, s50, 10'); k('s_add_u32 s50, s50, 20000'); k('s_min_u32 s50, s50, 100000')
        k('PADM:'); k('s_memrealtime s[62:63]'); k('s_waitcnt lgkmcnt(0)')
        k('s_sub_u32 s62, s62, s99'); k('s_cmp_lt_u32 s62, s50'); k('s_cbranch_scc1 PADM')
    if STAMP:
        k(f's_lshl_b32 s48, s{sMB}, 1'); k(f's_add_u32 s48, s48, {WS_TS}')
        k('v_lshlrev_b32 v12, 2, v0')
        k('buffer_store_dword v11, v12, s[4:7], s48 offen')
    k('s_endpgm')
class Stop(Exception): pass
def stop(name):
    if STOP == name:
        k('s_waitcnt vmcnt(0) lgkmcnt(0)'); raise Stop()
def setexec(n, lo=0):
    m = ((1 << n) - 1) << lo
    k(f's_mov_b32 exec_lo, {hex(m & 0xffffffff)}'); k(f's_mov_b32 exec_hi, {hex(m >> 32)}')
def allexec(): k('s_mov_b64 exec, -1')
def lines(s): return [l.strip() for l in s.strip().split('\n') if l.strip()]
def emit(L):
    for x in L: k(x)
MAXPOLL = 40000
OF = {'x': '', '1': 'sc1', 'n': 'nt', '01': 'sc0 sc1'}[o.get('of', 'x')]
def poll_issue(ph):
    return [f's_add_u32 s82, s92, {PH[ph]*MBSZ}', 's_addc_u32 s83, s93, 0', 's_load_dword s91, s[82:83], 0 glc']
def poll_wait():
    L = k.label('POLL'); X = k.label('POLLX')
    return ['s_waitcnt lgkmcnt(0)', 's_cmp_ge_u32 s91, 8', f's_cbranch_scc1 {X}', 's_mov_b32 s68, 0', f'{L}:',
            *([f's_sleep {opt("psl", 0)}'] if opt('psl', 0) else []),
            's_load_dword s91, s[82:83], 0 glc', 's_add_u32 s68, s68, 1', 's_waitcnt lgkmcnt(0)',
            's_cmp_ge_u32 s91, 8', f's_cbranch_scc1 {X}', f's_cmp_lt_u32 s68, {MAXPOLL}', f's_cbranch_scc1 {L}', f'{X}:']
SIGOFF = {sgZ: lambda l: (l >> 2)*512 + (l & 3)*32768, sgX1: lambda l: (l & 3)*512 + (l >> 2)*4096, sgH: lambda l: l*4096, sgX2: lambda l: l*4096}
def sig_prep(ph, sg): return [f's_add_u32 s89, s{sg}, {PH[ph]*MBSZ}', 's_add_u32 s88, s4, s89', 's_addc_u32 s89, s5, 0']
def sig_go(sg): return [f's_atomic_add s90, s[88:89], {SIGOFF[sg](l)}' for l in range(8)]

def prologue():
    k('s_cmp_ge_u32 s2, 256'); k('s_cbranch_scc1 END')
    k('s_getpc_b64 s[48:49]')
    k('PC0:')
    for s_, a in ((4, 'ws'), (16, 'wg'), (20, 'wu'), (24, 'wd'), (8, 'x'), (12, 'out'), (32, 'dbg')):
        k(f's_load_dwordx2 s[{s_}:{s_+1}], s[0:1], {KA[a]}')
    if STAMP: k('s_memrealtime s[62:63]' if STAMP == 1 else 's_memtime s[62:63]')
    if DIAG: k('s_memrealtime s[100:101]')
    k(f"""
    s_lshr_b32 s50, s2, 3
    s_lshl_b32 s50, s50, 11
    v_lshrrev_b32 v12, 4, v0
    v_lshl_add_u32 v12, v12, 7, s50
    v_min_u32 v12, CODE_END-PC0-4, v12
    global_load_dword v13, v12, s[48:49]
    v_lshrrev_b32 v3, 6, v0
    v_and_b32 v0, 63, v0
    v_readfirstlane_b32 s{sW}, v3
    """)
    for s_, n in ((4, 1 << 28), (16, D*F*2), (20, D*F*2), (24, D*F*2), (8, S*D*2), (12, S*D*2), (32, 256)):
        k(f's_mov_b32 s{s_+2}, {n}'); k(f's_mov_b32 s{s_+3}, 0x00020000')
    k(f"""
    v_lshlrev_b32 v1, 4, v0
    v_and_b32 v2, 15, v0
    v_lshrrev_b32 v3, 4, v0
    s_and_b32 s{sXCD}, s2, 7
    s_lshr_b32 s{sQ}, s2, 6
    s_bfe_u32 s{sJ}, s2, 0x30003
    s_lshl_b32 s{sCS}, s{sXCD}, 2
    s_add_u32 s{sCS}, s{sCS}, s{sQ}
    s_lshr_b32 s{sCLS}, s{sCS}, 1
    s_sub_u32 s50, 32, s{sCLS}
    s_cmp_eq_u32 s{sCS}, 1
    s_cselect_b32 s50, 16, s50
    s_bitcmp1_b32 s{sCS}, 0
    s_cselect_b32 s{sCLS}, s50, s{sCLS}
    """)
    k(f"""
    s_and_b32 s50, s{sCS}, 7
    s_lshl_b32 s51, s{sW}, 3
    s_add_u32 s50, s50, s51
    s_lshr_b32 s72, s{sCS}, 3
    s_mul_i32 s72, s72, 20
    s_add_u32 s72, s72, s50
    s_cmp_lt_u32 s2, 224
    s_cselect_b32 s75, 1, 2
    s_cmp_eq_u32 s{sW}, 3
    s_cselect_b32 s75, s75, 2
    s_cmp_lt_u32 s50, 20
    s_cselect_b32 s75, 0, s75
    s_mul_i32 s73, s{sW}, 7168
    s_add_u32 s73, s73, {L_RAW}
    """)
    if STAMP: k('v_mov_b32 v11, 0')
    k('s_waitcnt lgkmcnt(0)')
    if DIAG: k('s_mov_b32 s99, s100')
    if STAMP:
        k('v_writelane_b32 v11, s62, 0'); stampnames.append('start')

def ids2():
    return lines(f"""
    s_and_b32 s{sSIG}, s{sXCD}, 3
    s_lshl_b32 s50, s{sJ}, 2
    s_add_u32 s{sSIG}, s{sSIG}, s50
    s_and_b32 s{sGAM}, s{sXCD}, 4
    s_add_u32 s{sGAM}, s{sGAM}, s{sQ}
    s_lshl_b32 s{sCSU}, s{sGAM}, 2
    s_add_u32 s{sCSU}, s{sCSU}, s{sW}
    s_lshl_b32 s{sMB}, s2, 2
    s_add_u32 s{sMB}, s{sMB}, s{sW}
    s_lshl_b32 s{sMB}, s{sMB}, 7
    s_add_u32 s92, s4, s{sMB}
    s_addc_u32 s93, s5, 0
    s_lshl_b32 s50, s{sCS}, 2
    s_add_u32 s50, s50, s{sW}
    s_mul_i32 s{sXT}, s50, 20480
    s_lshl_b32 s{sST}, s50, 10
    s_mov_b32 s66, -1
    s_mov_b32 s67, 0
    s_lshl_b32 s50, s{sW}, 10
    s_lshl_b32 s51, s{sJ}, 12
    s_add_u32 s50, s50, s51
    s_lshr_b32 s51, s{sCS}, 3
    s_lshl_b32 s51, s51, 7
    s_add_u32 s{sgZ}, s50, s51
    s_and_b32 s50, s{sXCD}, 4
    s_and_b32 s51, s{sXCD}, 3
    s_lshl_b32 s51, s51, 6
    s_add_u32 s50, s50, s51
    s_lshl_b32 s51, s{sW}, 4
    s_add_u32 s50, s50, s51
    s_lshl_b32 s50, s50, 2
    s_add_u32 s50, s50, s{sQ}
    s_lshl_b32 s{sgX1}, s50, 7
    s_lshl_b32 s50, s{sW}, 6
    s_add_u32 s50, s50, s{sGAM}
    s_lshl_b32 s50, s50, 2
    s_lshr_b32 s51, s{sJ}, 1
    s_add_u32 s50, s50, s51
    s_lshl_b32 s{sgH}, s50, 7
    s_lshl_b32 s50, s{sQ}, 6
    s_add_u32 s50, s50, s{sXCD}
    s_lshl_b32 s50, s50, 2
    s_add_u32 s50, s50, s{sW}
    s_lshl_b32 s{sgX2}, s50, 7
    s_mul_i32 s50, s{sJ}, 1280
    s_add_u32 s51, s50, 1024
    s_sub_u32 s52, {79*256}, s50
    v_mov_b32 v12, s51
    v_mov_b32 v14, s52
    v_cndmask_b32 v4, v14, v12, s[66:67]
    v_and_b32 v12, 1, v3
    v_lshl_add_u32 v4, v12, 3, v4
    v_lshl_add_u32 v4, v2, 4, v4
    v_lshlrev_b32 v5, 2, v0
    """)
def ids1():
    return lines(f"""
    s_mov_b32 s90, 1
    s_sub_u32 s94, s{sJ}, 5
    s_cmp_lt_u32 s{sJ}, 5
    s_cselect_b32 s94, s{sJ}, s94
    s_mul_i32 s94, s94, {opt('rot', 1)}
    """) + [x for n in range(1, 5) for x in (f's_add_u32 s{94+n}, s{93+n}, 1', f's_cmp_eq_u32 s{94+n}, 5', f's_cselect_b32 s{94+n}, 0, s{94+n}')]

def nat_addr(a01, a23, a4, t):
    return lines(f"""
    s_lshr_b32 s50, s{sW}, 1
    s_lshl_b32 s50, s50, 5
    s_and_b32 s51, s{sW}, 1
    s_lshl_b32 s51, s51, 10
    s_add_u32 s50, s50, s51
    s_add_u32 s50, s50, s{sCLS}
    v_lshl_add_u32 v{t}, v2, 6, s50
    v_mul_u32_u24 v{t}, 1280, v{t}
    s_mul_i32 s50, s{sJ}, 80
    s_sub_u32 s51, 1200, s50
    v_lshl_add_u32 v{a4}, v3, 4, v{t}
    v_add_u32 v{a01}, s50, v{a4}
    v_add_u32 v{a23}, s51, v{a4}
    s_add_u32 s50, s50, 64
    s_add_u32 s51, s51, 48
    v_mov_b32 v{t+1}, s50
    v_mov_b32 v{t+2}, s51
    v_cndmask_b32 v{a4}, v{t+2}, v{t+1}, s[66:67]
    v_lshl_add_u32 v{a4}, v3, 3, v{a4}
    v_add_u32 v{a4}, v{a4}, v{t}
    """)

A0 = 132; P0 = 88; P1 = 108; P5 = 128; BR = 72; B5 = 68; M2 = 52
def gen_vals(t, ef, base):
    L = []
    for jj in range(1, 8): L.append(f'v_fmamk_f32 v{t+jj}, v{ef}, {fl(float(jj))}, v{base}')
    L.append(f'v_cos_f32 v{t}, v{base}')
    for jj in range(1, 8): L.append(f'v_cos_f32 v{t+jj}, v{t+jj}')
    return L
def pack8(dst, t): return [f'v_cvt_pk_bf16_f32 v{dst+p}, v{t+2*p}, v{t+2*p+1}' for p in range(4)]
def gen_setup(e, ef, base, t, zero_dc):
    L = [f'v_and_b32 v{t}, 2, v0', f'v_cvt_f32_u32 v{ef}, v{e}', f'v_cvt_f32_u32 v{t}, v{t}', f'v_mul_f32 v{t}, 0x3e000000, v{t}']
    if zero_dc: L += [f'v_cmp_eq_u32 vcc, 0, v{e}', f'v_mov_b32 v{t+1}, 0x3e800000', f'v_mul_f32 v{ef}, {fl(1/640)}, v{ef}', f'v_cndmask_b32 v{t}, v{t}, v{t+1}, vcc']
    else: L += [f'v_mul_f32 v{ef}, {fl(1/640)}, v{ef}']
    L += [f'v_lshlrev_b32 v{t+1}, 3, v3', f'v_cvt_f32_u32 v{t+1}, v{t+1}', f'v_fma_f32 v{base}, v{ef}, v{t+1}, v{t}']
    return L
def gen_T5():
    return [f's_mul_i32 s53, s{sJ}, 40', 's_add_u32 s53, s53, 40', 'v_and_b32 v20, 1, v0', 'v_sub_u32 v22, 1, v20', 'v_mul_u32_u24 v22, s53, v22'] \
        + gen_setup(22, 23, 24, 26, False) + gen_vals(26, 23, 24) + pack8(B5, 26)
def gen_run(nfr, C0, C1, PK):
    L = gen_vals(C0, 23, 24) + [f'v_fmamk_f32 v24, v23, {fl(32.0)}, v24', f'v_mul_f32 v34, {fl(32.0)}, v23'] + gen_vals(C1, 23, 24) + ['v_cos_f32 v34, v34']
    for n in range(nfr):
        c, o_ = (C0, C1) if n % 2 == 0 else (C1, C0)
        if n == 2: L.append('v_add_f32 v34, v34, v34')
        if n >= 2:
            for p in range(4): L.append(f'v_pk_fma_f32 {V(c+2*p,2)}, {V(o_+2*p,2)}, v[34:35], {V(c+2*p,2)} op_sel_hi:[1,0,1] neg_lo:[0,0,1] neg_hi:[0,0,1]')
        pk = PK + 4*(n % 2)
        if nfr == 3 and n == 2: L += [f's_cmp_lt_u32 s{sW}, 2', f's_cselect_b32 s57, s57, {L_CSP - L_B - 4096}']
        L += ['v_add_u32 v35, s57, v25', 's_add_u32 s57, s57, 5120', 's_cmp_eq_u32 s57, 51200', 's_cselect_b32 s57, 0, s57']
        L += pack8(pk, c) + [f'ds_write_b128 v35, {V(pk)}']
    return L
def gen_B1():
    return lines(f"""
    s_mul_i32 s52, s{sJ}, 40
    s_lshr_b32 s53, s{sW}, 1
    s_lshl_b32 s53, s53, 4
    s_and_b32 s54, s{sW}, 1
    s_lshl_b32 s55, s54, 1
    s_add_u32 s53, s53, s55
    s_add_u32 s53, s53, s52
    v_and_b32 v20, 1, v0
    v_and_b32 v21, 12, v0
    v_add3_u32 v22, v20, v21, s53
    s_lshl_b32 s56, s{sW}, 10
    s_add_u32 s56, s56, {L_B}
    v_add_u32 v25, s56, v1
    s_mul_i32 s58, s94, 10240
    s_sub_u32 s57, 51200, s58
    s_cmp_eq_u32 s94, 0
    s_cselect_b32 s57, 0, s57
    """) + gen_setup(22, 23, 24, 26, True) + gen_run(10, 88, 96, 104)
def gen_B2():
    return lines(f"""
    s_add_u32 s53, s52, 32
    v_lshrrev_b32 v21, 1, v21
    v_add3_u32 v22, v20, v21, s53
    s_mul_i32 s55, s{sW}, 3
    s_min_u32 s55, s55, 8
    s_mul_i32 s56, s55, 5120
    s_add_u32 s57, s57, s56
    s_sub_u32 s56, s57, 51200
    s_cmp_ge_u32 s57, 51200
    s_cselect_b32 s57, s56, s57
    s_lshl_b32 s55, s55, 5
    v_add_u32 v25, {L_B + 4096}, v1
    """) + gen_setup(22, 23, 24, 26, False) + ['v_cvt_f32_u32 v26, s55', 'v_fma_f32 v24, v26, v23, v24', 'v_fract_f32 v24, v24'] + gen_run(3, 88, 96, 104)

def gen_M2():
    L = lines(f"""
    s_lshl_b32 s50, s{sW}, 3
    v_lshrrev_b32 v20, 1, v2
    v_add_u32 v20, s50, v20
    v_lshrrev_b32 v21, 1, v20
    v_cmp_eq_u32 vcc, 1, v20
    v_sub_u32 v22, 32, v21
    v_and_b32 v23, 2, v0
    v_cndmask_b32 v22, v22, 16, vcc
    v_cmp_ne_u32 vcc, 0, v23
    v_and_b32 v20, 1, v0
    v_lshl_add_u32 v23, v3, 8, s{sCLS}
    v_cndmask_b32 v21, v21, v22, vcc
    v_lshl_add_u32 v21, v20, 5, v21
    v_mul_u32_u24 v22, v21, v23
    v_and_b32 v22, 2047, v22
    v_bfe_i32 v20, v21, 0, 1
    v_and_b32 v20, 0x80008000, v20
    v_cvt_f32_u32 v21, v21
    v_cvt_f32_u32 v22, v22
    v_mul_f32 v21, {fl(1/64)}, v21
    v_mul_f32 v22, {fl(1/2048)}, v22
    """)
    for kap in range(2):
        for jp in range(2):
            for h in range(2): L.append(f'v_fmamk_f32 v{23+h}, v21, {fl(float(kap + 2*(2*jp + h)))}, v22')
            L += ['v_cos_f32 v25, v23', 'v_cos_f32 v26, v24', 'v_sin_f32 v27, v23', 'v_sin_f32 v28, v24']
            L.append(f'v_cvt_pk_bf16_f32 v{M2 + 4*kap + jp}, v25, v26')
            L.append(f'v_cvt_pk_bf16_f32 v{M2 + 8 + 4*kap + jp}, v27, v28')
            L.append(f'v_xor_b32 v{M2 + 4*kap + jp + 2}, v20, v{M2 + 4*kap + jp}')
            L.append(f'v_xor_b32 v{M2 + 8 + 4*kap + jp + 2}, v20, v{M2 + 8 + 4*kap + jp}')
    return L

def a_lds(m):
    return [f'ds_read_b128 {V(A0 + 8*(2*(m >> 1) + od) + 4*(m & 1))}, v{50+od} offset:{(m % 9)*2048}' for od in range(2)]
def init_issue():
    k('v_and_b32 v14, 3, v0'); k('v_lshlrev_b32 v14, 6, v14')
    k('buffer_load_dword v15, v14, s[32:35], 0 offen sc1')
def init_check():
    L = k.label('INI'); X = k.label('INIX')
    k('s_mov_b32 s68, 0')
    k(f'{L}:')
    k('s_waitcnt vmcnt(0)')
    k('v_cmp_gt_u32 vcc, 64, v15')
    k(f's_cbranch_vccz {X}')
    k('s_sleep 10')
    k('buffer_load_dword v15, v14, s[32:35], 0 offen sc1')
    k('s_add_u32 s68, s68, 1')
    k(f's_cmp_lt_u32 s68, {MAXPOLL}'); k(f's_cbranch_scc1 {L}')
    k('s_waitcnt vmcnt(0)')
    k(f'{X}:')

def d1_body(l, aload):
    S1, S2 = 40, 44
    BRL = [72, 76, 80, 84, 16, 20, 24][:opt('br', 7)]; NB = len(BRL)
    mf = []; fixed = {}
    def fx(g, x, first=False):
        L = fixed.setdefault(g, [])
        L.insert(0, x) if first else L.append(x)
    pre = []
    if l == 0:
        pre = ['v_mov_b32 v30, 0', 'v_mov_b32 v31, 0']
    TK = opt('tk', 2)
    border = [(ks, T) for ks in range(10 - TK) for T in range(5)] + [(ks, T) for T in range(5) for ks in range(10 - TK, 10)]
    rd = lambda n: f'ds_read_b128 {V(BRL[n % NB])}, v8 offset:{(border[n][0]*5 + border[n][1])*1024}'
    for n in range(NB-1): k(rd(n))
    tdone = {}
    def head(ks):
        a0, a1 = V(A0 + 8*ks), V(A0 + 8*ks + 4)
        g0 = len(mf)
        if l == 0 and ks % 2 == 0:
            burst = [f'v_dot2c_f32_bf16 v{30 + (n & 1)}, v{A0+8*ks+n}, v{A0+8*ks+n}' for n in range(16)]
            if ks == 8: burst += ['v_add_f32 v30, v30, v31', 'v_mov_b32 v31, 1.0', f'v_mfma_f32_16x16x4_f32 {V(S2)}, v30, v31, 0']
            if ks == 0: pre.extend(burst)
            else:
                for x in burst: fx(g0-1, x)
        if ks and l == 1: fx(g0-2, Need(rr(V(A0 + 8*ks, 8))), True)
        mf.append(f'{MF} {V(P5)}, {a0}, {V(B5)}, {V(P5) if ks else 0}')
        mf.append(f'{MF} {V(P5)}, {a1}, {V(B5)}, {V(P5)}')
        if l == 0 and ks % 2 == 1 and ks < 9:
            fx(g0, Need([], [f'AD{ks+1}', f'AD{ks+2}']), True)
            for c, x in enumerate(a_lds(ks+1) + a_lds(ks+2)): fx(g0 + (0, 1, 3, 5)[c], x)
        if aload:
            for c in range(3):
                n = aload[0] + 3*ks + c
                if n < 20:
                    for x in aload[1](n): fx(g0 + (0, 3, 7)[c], x)
    for n, (ks, T) in enumerate(border):
        if n < 5*(10-TK):
            if T == 0: head(ks)
        elif n == 5*(10-TK):
            for k2 in range(10-TK, 10): head(k2)
            tdone[5] = len(mf)
        b = V(BRL[n % NB])
        fx(len(mf)-1, Need(rr(b)), True)
        if n + NB - 1 < 50: fx(len(mf), rd(n+NB-1))
        mf.append(f'{MF} {V(P0+4*T)}, {V(A0 + 8*ks)}, {b}, {V(P0+4*T) if ks else 0}')
        mf.append(f'{MF} {V(P1+4*T)}, {V(A0 + 8*ks + 4)}, {b}, {V(P1+4*T) if ks else 0}')
        if ks == 9: tdone[T] = len(mf)
    st = []
    if l == 1:
        for x in ['v_add_f32 v32, v32, v33', 'v_add_f32 v34, v34, v35', 'v_add_f32 v32, v32, v34',
                  'v_and_b32 v33, 1, v3', 'v_cvt_f32_u32 v33, v33', 'v_sub_f32 v34, 1.0, v33']: st.append((x, 40))
        fx(59, f'v_mfma_f32_16x16x4_f32 {V(S1)}, v32, v34, 0'); fx(59, f'v_mfma_f32_16x16x4_f32 {V(S2)}, v32, v33, 0')
    for x in ['v_and_b32 v29, 1, v0', 'v_cvt_f32_u32 v29, v29', 'v_fma_f32 v29, v29, -2.0, 1.0',
              f's_and_b32 s50, s{sW}, 1', 's_lshl_b32 s50, s50, 3', f's_lshr_b32 s51, s{sW}, 1', 's_lshl_b32 s51, s51, 10',
              's_add_u32 s50, s50, s51', f's_add_u32 s50, s50, {L_XCH}', 'v_add_u32 v9, s50, v1', f'v_add_u32 v10, {L_XCH}, v1',
              f's_lshl_b32 s50, s{sCS}, 3', f's_add_u32 s50, s50, s{sJ}', 's_mul_i32 s50, s50, 12288',
              f's_lshl_b32 s51, s{sW}, 10', 's_add_u32 s50, s50, s51', f's_add_u32 s70, s50, {WS_Z[l]}',
              'v_lshlrev_b32 v12, 6, v2', 'v_lshl_add_u32 v12, v3, 4, v12']: st.append((x, 62))
    e = tdone[5] + 2 if l == 0 else 70
    for r in range(4):
        if l == 0: st.append((f'v_mov_b32_dpp v{S1+r}, v{P5+r} quad_perm:[1,1,1,1] row_mask:0xf bank_mask:0xf', e))
        st.append((f'v_mul_f32 v{S2+r}, {fl(1/640)}, v{S2+r}', e))
    for r in range(4): st.append((f'v_mul_f32 v{S1+r}, {fl(1/640)}, v{S1+r}', e))
    for r in range(4): st.append((f'v_fma_f32 v{S2+r}, -v{S1+r}, v{S1+r}, v{S2+r}', e))
    for r in range(4): st.append((f'v_max_f32 v{S2+r}, 0, v{S2+r}', e))
    for r in range(4): st.append((f'v_add_f32 v{S2+r}, {fl(1e-5)}, v{S2+r}', e))
    for r in range(4): st.append((f'v_rsq_f32 v{S2+r}, v{S2+r}', e))
    for T in (5, 0, 1, 2, 3, 4):
        p = P0 + 4*T if T < 5 else P5
        e = tdone[T] + 2
        if T < 5:
            for r in range(4): st.append((f'v_fmac_f32 v{p+r}, v29, v{P1+4*T+r}', e))
        for r in range(4): st.append((f'v_mul_f32 v{p+r}, v{p+r}, v{S2+r}', e))
        st.append((f'v_cvt_pk_bf16_f32 v{p}, v{p}, v{p+1}', e)); st.append((f'v_cvt_pk_bf16_f32 v{p+1}, v{p+2}, v{p+3}', e))
        st.append((f'ds_write_b64 v9, {V(p,2)} offset:{T*2048}', e))
    emit(pre)
    if l == 1: k.need(V(A0, 8)); emit(stampL('g1a_1'))
    rest = weave(k, mf, fixed, st, tail=False)
    emit(stampL(f'g1m_{l}'))
    if l == 0:
        k(f's_cmp_lg_u32 s{sW}, 0'); k.begin('w0', 's_cbranch_scc1'); init_issue(); k.end()
    for x, e in rest: k(x)
    if l == 0:
        stamp('g1')
        k(f's_cmp_lg_u32 s{sW}, 0'); k.begin('w0', 's_cbranch_scc1'); init_check(); k.end()
        stamp('inic')
        k('s_waitcnt vmcnt(0)')
    k('s_waitcnt lgkmcnt(0)'); k('s_barrier')
    stamp(f'd1x_{l}')
    FR = A0; AC = 84
    for n in range(12): k(f'ds_read_b128 {V(FR+4*n)}, v10 offset:{n*1024}')
    mf = []; st = []; fixed = {}
    for T in range(6):
        t1, t2 = AC + 8*T, AC + 8*T + 4
        for kap in range(2):
            f = V(FR + 4*(2*T + kap))
            mf.append(f'{MF} {V(t1)}, {f}, {V(M2+4*kap)}, {V(t1) if kap else 0}')
            mf.append(f'{MF} {V(t2)}, {f}, {V(M2+8+4*kap)}, {V(t2) if kap else 0}')
        e = len(mf) + 2
        dst = 16 + 4*(T >> 1) + 2*(T & 1)
        for rp in range(2):
            st.append((f'v_add_f32 v{t1+rp}, v{t1+rp}, v{t2+2+rp}', e))
            st.append((f'v_sub_f32 v{t1+2+rp}, v{t1+2+rp}, v{t2+rp}', e))
        for rp in range(2): st.append((f'v_cvt_pk_bf16_f32 v{dst+rp}, v{t1+rp}, v{t1+2+rp}', e))
        if T & 1:
            st.append((I(f'buffer_store_dwordx4 {V(16 + 4*(T>>1))}, v12, s[4:7], s70 offen sc1', name='ZS'), e))
            st.append(('s_add_u32 s70, s70, 4096', e))
    if l == 0:
        fixed[5] = [Need(rr(V(FR, 48)))]
        for n, x in enumerate(sig_prep('W', sgZ)): fixed[n] = [x]
        for n, x in enumerate(sig_go(sgZ)): fixed[6+n] = [x]
    weave(k, mf, fixed, st)

def prepass_issue():
    k('s_cmp_lg_u32 s75, 0')
    k.begin('pw', 's_cbranch_scc1')
    k(f"""
    v_cmp_lt_u32 vcc, 27, v0
    s_mul_i32 s50, s72, {8*3456}
    s_mul_i32 s51, s{sJ}, 448
    s_add_u32 s50, s50, s51
    v_mov_b32 v21, {3456 - 448}
    v_cndmask_b32 v20, 0, v21, vcc
    v_add_u32 v20, v20, v1
    """)
    setexec(56)
    for rp in range(4):
        for mat in range(2):
            k(f's_add_u32 m0, s73, {mat*3584 + rp*896}')
            k(f'buffer_load_dwordx4 v20, s[{16+4*mat}:{19+4*mat}], s50 offen lds', name='RAW')
        k(f's_add_u32 s50, s50, {2*3456}')
    allexec()
    k.end()
    k('s_cmp_lg_u32 s75, 1')
    k.begin('pd', 's_cbranch_scc1')
    k('s_mul_i32 s50, s2, 10240')
    for n in range(10):
        if n % 4 == 0:
            k(f's_mov_b32 m0, {L_RAW + 3*7168 + n*1024}')
            if n: k('s_add_u32 s50, s50, 4096')
        k(f'buffer_load_dwordx4 v1, s[24:27], s50 offen offset:{(n % 4)*1024} lds', name='RAW')
    k.end()

def prepass_process():
    T0 = 88
    dummy = 'buffer_load_dword v13, off, s[32:35], 0 offset:1024'
    k('v_bfe_u32 v20, v0, 2, 2'); k('v_and_b32 v21, 3, v0'); k('v_and_b32 v22, 1, v0'); k('v_bfe_u32 v23, v0, 1, 1')
    k('s_cmp_lg_u32 s75, 0')
    k.begin('pw', 's_cbranch_scc1')
    k(f"""
    v_mul_u32_u24 v24, 448, v20
    v_mul_u32_u24 v25, 112, v3
    v_add3_u32 v24, v24, v25, s73
    v_lshl_add_u32 v25, v21, 4, v24
    v_lshl_add_u32 v26, v22, 4, v24
    v_lshl_add_u32 v26, v23, 3, v26
    v_mul_u32_u24 v27, 3584, v23
    v_lshl_add_u32 v27, v22, 3, v27
    v_add_u32 v27, v27, v24
    v_mul_u32_u24 v28, 143360, v3
    v_lshl_add_u32 v28, v2, 4, v28
    s_mul_i32 s50, s{sJ}, {4*143360}
    s_lshr_b32 s51, s72, 2
    s_mul_i32 s51, s51, 7168
    s_add_u32 s50, s50, s51
    s_and_b32 s51, s72, 3
    s_lshl_b32 s51, s51, 8
    s_add_u32 s50, s50, s51
    s_add_u32 s50, s50, {WS_WUF}
    s_add_u32 s51, s50, 4096
    """)
    k.need(names=['RAW'])
    for T in range(7):
        a, off = (25, (T >> 1)*3584 + 8*(T & 1)) if T < 4 else ((26, (T-4)*3584 + 64) if T < 6 else (27, 96))
        for h in range(2): k(f'ds_read_b64_tr_b16 {V(T0+4*T+2*h, 2)}, v{a} offset:{off + h*1792}')
    for T in range(7):
        k(f'buffer_store_dwordx4 {V(T0+4*T)}, v28, s[4:7], s{50 + (T >> 2)} offen offset:{(T & 3)*1024} sc1')
    for n in range(3): k(dummy)
    k.end()
    k('s_cmp_lg_u32 s75, 1')
    k.begin('pd', 's_cbranch_scc1')
    k(f"""
    v_mul_u32_u24 v24, 1280, v20
    v_add_u32 v24, {L_RAW + 3*7168}, v24
    v_mul_u32_u24 v28, 80, v3
    v_lshl_add_u32 v26, v21, 4, v24
    v_add_u32 v25, v26, v28
    v_sub_u32 v26, v26, v28
    v_lshl_add_u32 v24, v22, 3, v24
    v_cmp_ne_u32 vcc, 0, v23
    v_sub_u32 v27, 1200, v28
    v_sub_u32 v29, 880, v28
    v_add_u32 v30, 320, v28
    v_cndmask_b32 v27, v28, v27, vcc
    v_cndmask_b32 v29, v30, v29, vcc
    v_add_u32 v27, v27, v24
    v_add_u32 v29, v29, v24
    v_mul_u32_u24 v28, 286720, v3
    v_lshl_add_u32 v28, v2, 4, v28
    s_lshr_b32 s50, s2, 2
    s_mul_i32 s50, s50, 5120
    s_and_b32 s51, s2, 3
    s_lshl_b32 s51, s51, 8
    s_add_u32 s50, s50, s51
    s_add_u32 s50, s50, {WS_WDF}
    s_add_u32 s51, s50, 4096
    s_add_u32 s52, s50, {4*286720}
    s_add_u32 s53, s52, 4096
    """)
    k.need(names=['RAW'])
    for jh in range(2):
        for T in range(5):
            if T < 2: a, off = 25, 320*jh + 8*T
            elif T < 4: a, off = 26, 1200 - 320*jh + 8*(T-2)
            else: a, off = (27 if jh == 0 else 29), 64
            for h in range(2): k(f'ds_read_b64_tr_b16 {V(T0+4*(5*jh+T)+2*h, 2)}, v{a} offset:{off + h*5120}')
    for jh in range(2):
        for T in range(5):
            k(f'buffer_store_dwordx4 {V(T0+4*(5*jh+T))}, v28, s[4:7], s{50 + 2*jh + (T >> 2)} offen offset:{(T & 3)*1024} sc1')
    k.end()
    k('s_cmp_lg_u32 s75, 2')
    k.begin('pi', 's_cbranch_scc1')
    for n in range(10): k(dummy)
    k.end()
    for n in range(10): k('phantom_vm')

def publish(xbase, stbase, pk, nm):
    a = pk + 12
    for n in range(5):
        k(f'v_cvt_pk_bf16_f32 v{pk+2*n}, v{R0+4*n}, v{R0+4*n+1}'); k(f'v_cvt_pk_bf16_f32 v{pk+2*n+1}, v{R0+4*n+2}, v{R0+4*n+3}')
        if n == 1: k(f'buffer_store_dwordx4 {V(pk)}, v1, s[4:7], s57 offen sc1', name=nm)
        if n == 3: k(f'buffer_store_dwordx4 {V(pk+4)}, v1, s[4:7], s58 offen sc1', name=nm)
    k(f'buffer_store_dwordx2 {V(pk+8,2)}, v4, s[4:7], s56 offen sc1', name=nm)
    k(f'v_mov_b32 v{a}, 0'); k(f'v_mov_b32 v{a+1}, 0')
    for n in range(10):
        k(f'v_dot2c_f32_bf16 v{a}, s60, v{pk+n}'); k(f'v_dot2c_f32_bf16 v{a+1}, v{pk+n}, v{pk+n}')
    k(f'v_permlane32_swap_b32 v{a}, v{a+1}')
    k(f'v_add_f32 v{a}, v{a}, v{a+1}'); k(f'v_mov_b32 v{a+1}, v{a}')
    k(f'v_permlane16_swap_b32 v{a}, v{a+1}')
    k(f'v_add_f32 v{a}, v{a}, v{a+1}')
    setexec(32, 16)
    k(f'buffer_store_dword v{a}, v5, s[4:7], s59 offen sc1', name=nm)
    allexec()
def pub_prep(xbase, stbase):
    return [f's_add_u32 s56, s{sXT}, {xbase}', f's_mul_i32 s59, s{sJ}, 1280', 's_add_u32 s57, s56, s59', 's_sub_u32 s58, s56, s59',
            f's_add_u32 s58, s58, {75*256}', f's_lshl_b32 s59, s{sJ}, 7', f's_add_u32 s59, s59, s{sST}', f's_add_u32 s59, s59, {stbase - 64}',
            's_mov_b32 s60, 0x3f803f80']

ML, MU, ZF, AD, ZA = 40, 48, 60, 30, 100
def d2_prep(l):
    L = lines(f"""
    s_and_b32 s50, s{sW}, 1
    s_lshl_b32 s50, s50, 4
    v_add_u32 v104, s50, v2
    s_lshr_b32 s54, s{sW}, 1
    s_or_b32 s51, s54, s{sCLS}
    s_cmp_eq_u32 s51, 0
    s_cselect_b32 s51, 32, 31
    v_sub_u32 v105, s51, v104
    v_cvt_f32_u32 v104, v104
    v_cvt_f32_u32 v105, v105
    v_cvt_f32_u32 v106, v3
    v_mul_f32 v104, {fl(1/32)}, v104
    v_mul_f32 v105, {fl(1/32)}, v105
    v_add_f32 v106, v106, v106
    v_cmp_eq_u32 vcc, 0, v3
    v_mul_f32 v107, v104, v106
    v_mul_f32 v108, v105, v106
    """)
    for (t, b, dst) in ((104, 107, ML), (105, 108, MU)):
        for q_ in range(4):
            kap, jh = q_ >> 1, q_ & 1
            L.append(f'v_fmamk_f32 v{109+q_}, v{t}, {fl(float(8*kap + jh))}, v{b}')
        L.append(f'v_mul_f32 v121, 0x41800000, v{t}')
        for q_ in range(4): L += [f'v_cos_f32 v{113+q_}, v{109+q_}', f'v_sin_f32 v{117+q_}, v{109+q_}']
        L.append('v_cos_f32 v121, v121')
        for q_ in range(4): L.append(f'v_cvt_pk_bf16_f32 v{dst+2*q_}, v{113+q_}, v{117+q_}')
        L.append('v_cndmask_b32 v113, v113, v121, vcc')
        for q_ in range(4): L.append(f'v_cvt_pk_bf16_f32 v{dst+2*q_+1}, v{113+q_}, -v{117+q_}')
    L += lines(f"""
    v_mul_u32_u24 v104, {8*12288}, v3
    s_mul_i32 s50, s{sW}, {64*12288}
    s_mul_i32 s51, s{sJ}, 12288
    s_add_u32 s50, s50, s51
    s_lshr_b32 s51, s{sCS}, 1
    s_lshl_b32 s51, s51, 8
    s_add_u32 s50, s50, s51
    s_add_u32 s70, s50, {WS_Z[l]}
    s_mul_i32 s71, s{sW}, 6144
    """)
    for n, x in enumerate((0, 4, 1, 5)):
        L += [f'v_xor_b32 v105, {x}, v2', f'v_lshl_add_u32 v{ZA+n}, v105, 4, v104']
    n1 = len(L)
    L += lines(f"""
    s_and_b32 s50, s{sCS}, 1
    s_xor_b32 s51, s50, 1
    s_cmp_lt_u32 s{sCS}, 2
    s_cselect_b32 s51, s50, s51
    s_xor_b32 s52, s54, 1
    s_cmp_eq_u32 s{sCS}, 0
    s_cselect_b32 s52, s54, s52
    s_lshl_b32 s50, s50, 7
    s_lshl_b32 s55, s54, 6
    s_add_u32 s50, s50, s55
    s_lshl_b32 s51, s51, 7
    s_lshl_b32 s52, s52, 6
    s_add_u32 s51, s51, s52
    v_lshrrev_b32 v104, 1, v3
    v_mul_u32_u24 v104, 6144, v104
    v_and_b32 v105, 1, v3
    v_lshl_add_u32 v104, v105, 10, v104
    v_add_u32 v104, {L_Z}, v104
    v_lshlrev_b32 v105, 6, v105
    v_xor_b32 v106, s50, v105
    v_xor_b32 v107, s51, v105
    v_add_u32 v106, v106, v104
    v_add_u32 v107, v107, v104
    v_and_b32 v108, 12, v2
    v_add_u32 v108, v108, v2
    """)
    def fin(T, base):
        return ['v_lshrrev_b32 v110, 4, v109', 'v_and_b32 v111, 15, v109', f'v_lshl_add_u32 v{AD+T}, v110, 11, v{base}',
                'v_and_b32 v110, 1, v110', 'v_lshlrev_b32 v110, 2, v110', 'v_xor_b32 v111, v111, v110', f'v_lshl_add_u32 v{AD+T}, v111, 2, v{AD+T}']
    L += ['v_mov_b32 v109, v108'] + fin(0, 106) + [f'v_xor_b32 v{AD+1}, 16, v{AD}']
    for T in (2, 3):
        L += [f'v_sub_u32 v109, {40 - 4*(T-2)}, v108', 'v_cmp_lt_u32 vcc, 31, v109', 'v_and_b32 v110, 6, v109', 'v_add_u32 v110, v110, v109',
              'v_cndmask_b32 v109, v109, v110, vcc']
        if T == 2: L += ['v_cmp_eq_u32 vcc, 0, v2', 'v_nop', 'v_nop', 'v_cndmask_b32 v109, v109, 34, vcc']
        L += fin(T, 107)
    L += ['v_cmp_gt_u32 vcc, 8, v2', 'v_and_b32 v110, 6, v2', 'v_add3_u32 v110, v110, v2, 32', 'v_sub_u32 v109, 16, v2',
          'v_cndmask_b32 v109, v109, v110, vcc', 'v_cndmask_b32 v112, v107, v106, vcc'] + fin(4, 112)
    return L, n1

def wu_dma(f0, f1, sreg_lds, sreg_src):
    L = []
    for c, n in enumerate(range(f0, f1)):
        if c % 4 == 0: L += [f's_add_u32 m0, s{sreg_lds}, {n*1024}', f's_add_u32 s61, s{sreg_src}, {n*1024}']
        L.append(I(f'buffer_load_dwordx4 v1, s[4:7], s61 offen offset:{(c % 4)*1024} sc1 lds', name='WU'))
    return L
CSA = 128
def cs_part(f0, f1):
    for c0 in range(f0, f1, 14):
        c1 = min(f1, c0 + 14)
        for n in range(c0, c1): k(f'ds_read_b128 {V(156+4*(n-c0))}, v8 offset:{n*1024}')
        for n in range(c0, c1):
            T = n % 7
            k(f'{MF} {V(CSA+4*T)}, {V(124)}, {V(156+4*(n-c0))}, {V(CSA+4*T) if n >= 7 else 0}')

def d2(l):
    N1 = opt('n1', 14)
    prep, n1 = d2_prep(l)
    emit(sig_prep(f'Z{l}', sgZ))
    if l == 0: emit(poll_issue('W'))
    k(f's_mul_i32 s76, s{sSIG}, 143360'); k(f's_add_u32 s76, s76, {WS_WUF}')
    if l == 0: k(f's_mul_i32 s77, s{sW}, {5*7168}')
    else: k(f's_mul_i32 s77, s{sW}, {12*1024}'); k(f's_add_u32 s77, s77, {91*1024}')
    k('s_add_u32 s76, s76, s77')
    cut = opt('cut', 150)
    emit(prep[:cut])
    k.need(names=['ZS'])
    stamp(f'd1e_{l}')
    emit(sig_go(sgZ))
    if l == 0:
        emit(poll_wait())
        stamp('wp')
        emit(wu_dma(0, N1, 77, 76))
    emit(prep[cut:])
    emit(pub_prep(WS_X1[l], WS_ST[l]))
    emit(sig_prep(f'X1{l}', sgX1))
    emit(poll_issue(f'Z{l}'))
    emit(poll_wait())
    stamp(f'd2p_{l}')
    for p in range(3):
        for hh in range(2):
            k(f's_add_u32 m0, s71, {L_Z + p*2048 + hh*1024}')
            k(f's_add_u32 s50, s70, {p*4096 + hh*4*8*12288}')
            k(f'buffer_load_dwordx4 v{ZA + 2*(p & 1) + hh}, s[4:7], s50 offen sc1 lds')
    if l == 0:
        k('v_add_u32 v8, s77, v1')
        for r in range(4): k(f'v_mov_b32 v{124+r}, 0x3f803f80')
        k.need(names=['WU'])
        cs_part(0, N1)
    k('s_waitcnt vmcnt(0)'); k('s_barrier')
    stamp(f'd2l_{l}')
    order = [(4, 0), (4, 1)] + [(T, kap) for T in range(4) for kap in range(2)]
    for n, (T, kap) in enumerate(order):
        for h in range(2):
            k(f'ds_read2st64_b32 {V(ZF+4*n+2*h, 2)}, v{AD+T} offset0:{48*kap + 2*h} offset1:{48*kap + 2*h + 1}')
    r4 = V(R0+16)
    k(f'{MF} {V(56)}, {V(ZF)}, {V(ML)}, {r4}')
    k(f'{MF} {r4}, {V(ZF)}, {V(MU)}, {r4}')
    k(f'{MF} {V(56)}, {V(ZF+4)}, {V(ML+4)}, {V(56)}')
    k(f'{MF} {r4}, {V(ZF+4)}, {V(MU+4)}, {r4}')
    for n, (T, kap) in enumerate(order):
        if T < 4: k(f'{MF} {V(R0+4*T)}, {V(ZF+4*n)}, {V((ML if T < 2 else MU) + 4*kap)}, {V(R0+4*T)}')
    k('s_barrier')
    for r in range(4): k(f'v_cndmask_b32 v{R0+16+r}, v{R0+16+r}, v{56+r}, s[66:67]')
    publish(WS_X1[l], WS_ST[l], 12, 'XS')
    N2 = opt('n2', 6)
    f0, f1 = (N1, 35) if l == 0 else (0, 13)
    emit(wu_dma(f0, f0+N2, 77, 76))
    up_prep(l)
    k.need(names=['XS']); k('s_barrier')
    stamp(f'd2e_{l}')
    emit(sig_go(sgX1))
    emit(wu_dma(f0+N2, f1, 77, 76))
    if l == 1 and opt('tch', 0) == 2: touch_out(2)
    if l == 1 and opt('tch', 0) == 3: touch_out(40)

ACC = [12, 68]; BRG = 124; XR = 152; XD = 5; K1 = 192; SS = 196; NM = 200; TM = 204
def acc(h, T, mi): return ACC[h] + (2*T + mi)*4
def epi_stream(h, l, e0):
    st = []
    def grp(G, U, k1, ss, dst):
        if h == 1 and opt('pk', 1):
            b1, b2 = k1 & 1, ss & 1
            for r in (0, 2): st.append(f'v_pk_mul_f32 {V(U+r,2)}, {V(G+r,2)}, {V(U+r,2)}')
            for r in (0, 2): st.append(f'v_pk_mul_f32 {V(G+r,2)}, {V(G+r,2)}, {V(k1-b1,2)} op_sel:[0,{b1}] op_sel_hi:[1,{b1}]')
            for r in range(4): st.append(f'v_exp_f32 v{G+r}, v{G+r}')
            for r in (0, 2): st.append(f'v_pk_fma_f32 {V(G+r,2)}, {V(G+r,2)}, {V(ss-b2,2)}, {V(ss-b2,2)} op_sel:[0,{b2},{b2}] op_sel_hi:[1,{b2},{b2}]')
            for r in range(4): st.append(f'v_rcp_f32 v{G+r}, v{G+r}')
            for r in (0, 2): st.append(f'v_pk_mul_f32 {V(U+r,2)}, {V(U+r,2)}, {V(G+r,2)}')
            st.append(f'v_cvt_pk_bf16_f32 v{dst}, v{U}, v{U+1}'); st.append(f'v_cvt_pk_bf16_f32 v{dst+1}, v{U+2}, v{U+3}')
            return
        for r in range(4): st.append(f'v_mul_f32 v{U+r}, v{G+r}, v{U+r}')
        for r in range(4): st.append(f'v_mul_f32 v{G+r}, v{G+r}, v{k1}')
        for r in range(4): st.append(f'v_exp_f32 v{G+r}, v{G+r}')
        for r in range(4): st.append(f'v_fma_f32 v{G+r}, v{G+r}, v{ss}, v{ss}')
        for r in range(4): st.append(f'v_rcp_f32 v{G+r}, v{G+r}')
        for r in range(4): st.append(f'v_mul_f32 v{U+r}, v{U+r}, v{G+r}')
        st.append(f'v_cvt_pk_bf16_f32 v{dst}, v{U}, v{U+1}'); st.append(f'v_cvt_pk_bf16_f32 v{dst+1}, v{U+2}, v{U+3}')
    nm = f'H{h}'
    for mi in range(2):
        d = acc(h, 0, mi)
        grp(acc(h, 0, mi), acc(h, 2, mi), K1+2*h+mi, SS+2*h+mi, d)
        grp(acc(h, 1, mi), acc(h, 3, mi), K1+2*h+mi, SS+2*h+mi, d+2)
        st.append(I(f'buffer_store_dwordx4 {V(d)}, v1, s[4:7], s{76+2*h+mi} offen sc1', name=nm))
    d = acc(h, 4, 0)
    grp(acc(h, 4, 0), acc(h, 5, 0), K1+2*h, SS+2*h, d)
    grp(acc(h, 4, 1), acc(h, 5, 1), K1+2*h+1, SS+2*h+1, d+2)
    for r in range(4): st.append(f'v_permlane32_swap_b32 v{acc(h,6,0)+r}, v{acc(h,6,1)+r}')
    st.append(f'v_cndmask_b32 v{TM+2}, v{K1+2*h+1}, v{K1+2*h}, s[66:67]')
    st.append(f'v_cndmask_b32 v{TM+3}, v{SS+2*h+1}, v{SS+2*h}, s[66:67]')
    st.append(f'v_permlane32_swap_b32 v{d}, v{d+2}'); st.append(f'v_permlane32_swap_b32 v{d+1}, v{d+3}')
    st.append(I(f'buffer_store_dwordx4 {V(d)}, v6, s[4:7], s{76+2*h} offen sc1', name=nm))
    d = acc(h, 6, 0)
    grp(d, acc(h, 6, 1), TM+2, TM+3, d)
    st.append(I(f'buffer_store_dwordx2 {V(d,2)}, v7, s[4:7], s{76+2*h} offen sc1', name=nm))
    return [(x, e0) for x in st]

def up_prep(l):
    k(f'v_add_u32 v9, {63*1024}, v1'); k(f'v_add_u32 v10, {126*1024}, v1')
    k(f's_mul_i32 s50, s{sCSU}, {4*20480}')
    for rt in range(4): k(f's_add_u32 s{72+rt}, s50, {WS_X1[l] + rt*20480}')
    k(f's_lshl_b32 s80, s{sCSU}, 12'); k(f's_add_u32 s80, s80, {WS_ST[l]}')
    if l == 0:
        k(f"""
        v_lshrrev_b32 v30, 5, v0
        v_mul_u32_u24 v30, 57344, v30
        v_lshl_add_u32 v30, v2, 4, v30
        v_and_b32 v31, 1, v3
        v_lshl_add_u32 v6, v31, 8, v30
        v_add_u32 v6, 1024, v6
        v_lshl_add_u32 v7, v31, 3, v30
        v_add_u32 v7, 1536, v7
        s_mul_i32 s81, s{sJ}, 286720
        s_mul_i32 s50, s{sW}, {70*1024}
        s_add_u32 s81, s81, s50
        s_add_u32 s81, s81, {WS_WDF}
        s_mul_i32 s16, s{sJ}, {7*opt('rotd', 1)}
        s_lshr_b32 s16, s16, 2
        s_lshl_b32 s16, s16, 10
        """)
        for n in range(1, 14):
            k(f's_add_u32 s{16+n}, s{15+n}, 1024'); k(f's_cmp_eq_u32 s{16+n}, {14*1024}'); k(f's_cselect_b32 s{16+n}, 0, s{16+n}')
        k('s_mul_i32 s30, s16, 5'); k('s_add_u32 s30, s30, s81')
def wdld(n):
    sl, T = divmod(n, 5)
    L = [f'buffer_load_dwordx4 {wdreg(n)}, v{1 if T < 4 else TM+4}, s[4:7], s30 offen offset:{(T % 4)*1024} sc1']
    if T == 3 and sl < 13: L.append(f's_mul_i32 s31, s{17+sl}, 5')
    if T == 4 and sl < 13: L.append('s_add_u32 s30, s31, s81')
    return L

def up(l):
    def brd(n):
        f = n % 140
        a, off = (1, f) if f < 63 else ((9, f-63) if f < 126 else (10, f-126))
        return f'ds_read_b128 {V(BRG + 4*(n % 7))}, v{a} offset:{off*1024}'
    def xld(n, mi):
        h, ks = divmod(n, 20)
        return f'buffer_load_dwordx4 {V(XR + 8*(n % XD) + 4*mi)}, v1, s[4:7], s{72+2*h+mi} offen offset:{(ks % 4)*1024} sc1'
    def xadv(n):
        h, ks = divmod(n, 20)
        return [f's_add_u32 s{72+2*h+mi}, s{72+2*h+mi}, 4096' for mi in range(2)] if ks % 4 == 3 else []
    SL = ACC[1]
    def first_loads():
        emit(poll_issue(f'X1{l}')); emit(poll_wait())
        stamp(f'upp_{l}')
        for n in range(XD-1):
            for mi in range(2): k(xld(n, mi))
            emit(xadv(n))
    k(f's_mul_i32 s50, s{sCSU}, {4*57344}'); k(f's_mul_i32 s51, s{sSIG}, {7*256}'); k('s_add_u32 s50, s50, s51')
    for rt in range(4): k(f's_add_u32 s{76+rt}, s50, {WS_H[l] + rt*57344}')
    if l == 0:
        k.need(names=['WU'])
        stamp('wu')
        cs_part(opt('n1', 14), 35)
        k(f's_mul_i32 s50, s{sW}, 448'); k(f's_add_u32 s50, s50, {L_CSP}')
        k('v_lshl_add_u32 v12, v2, 2, s50')
        for T in range(7): k(f'ds_write_b32 v12, v{CSA+4*T} offset:{64*T}')
        first_loads()
        k('s_barrier')
        k('v_min_u32 v12, 55, v0'); k('v_lshlrev_b32 v12, 3, v12'); k(f'v_add_u32 v13, {L_CSP}, v12')
        for n in range(4): k(f'ds_read_b64 {V(14+2*n, 2)}, v13 offset:{448*n}')
        for n in range(6): k(brd(n))
        for h in range(2):
            k(f'v_add_f32 v{14+h}, v{14+h}, v{16+h}'); k(f'v_add_f32 v{18+h}, v{18+h}, v{20+h}'); k(f'v_add_f32 v{14+h}, v{14+h}, v{18+h}')
        k(f'v_add_u32 v13, {L_CS}, v12')
        k('ds_write_b64 v13, v[14:15]')
        k('s_waitcnt lgkmcnt(0)')
    else:
        first_loads()
        for n in range(6): k(brd(n))
        k.need(names=['WU']); k('s_barrier')
    wdn = [0]
    if l == 0: k(f'v_add_u32 v{TM+4}, 4096, v1')
    NWD = [opt('wa', 32), opt('wb', 22)] if l == 0 else [0, 0]
    for h in range(2):
        mf = []; fixed = {}
        def fx(g, x, first=False):
            L = fixed.setdefault(g, [])
            L.insert(0, x) if first else L.append(x)
        for ks in range(20):
            n = 20*h + ks
            for T in range(7):
                g = len(mf); f = 7*n + T
                for mi in range(2):
                    a = V(acc(h, T, mi))
                    mf.append(f'{MF} {a}, {V(BRG+4*T)}, {V(XR + 8*(n % XD) + 4*mi)}, {a if (ks or h) else 0}')
                if f + 6 < 280: fx(g, brd(f+6))
                if T % 2 == 0 and f + 1 < 280:
                    nxt = [BRG + 4*((f+1) % 7)] + ([BRG + 4*((f+2) % 7)] if T < 6 else [])
                    fx(g+1, Need([x for b in nxt for x in rr(V(b))]), True)
            g0 = 14*ks
            if n + XD - 1 < 40:
                fx(g0+3, xld(n+XD-1, 0)); fx(g0+7, xld(n+XD-1, 1))
                for q_, x in enumerate(xadv(n+XD-1)): fx(g0+8+2*q_, x, True)
            if n + 1 < 40: fx(g0+12, Need(rr(V(XR + 8*((n+1) % XD), 8))), True)
            if h == 0 and ks < 4:
                for c in range(4): fx(g0 + (1, 5, 9, 13)[c], f'buffer_load_dword v{SL+4*ks+c}, v5, s[4:7], s80 offen offset:{1024*ks + 256*c} sc1')
            k0 = 4 if h == 0 else 0
            if ks >= k0:
                cnt = NWD[h]*(ks-k0+1)//(20-k0) - NWD[h]*(ks-k0)//(20-k0)
                free = [11, 5, 1] + ([3, 7] if n + XD - 1 >= 40 else [])
                for c in range(cnt):
                    w_ = wdld(wdn[0]); wdn[0] += 1
                    fx(g0 + sorted(free[:cnt])[c], w_[0])
                    if len(w_) > 1: fx(g0 + sorted(free[:cnt])[c] + 1, w_[1], True)
        st = []
        if h == 0:
            for rt in range(4):
                b = SL + 4*rt
                st += [(x, 14*(rt+3)) for x in [f'v_add_f32 v{b}, v{b}, v{b+1}', f'v_add_f32 v{b+2}, v{b+2}, v{b+3}', f'v_add_f32 v{b}, v{b}, v{b+2}',
                       f'v_mov_b32 v{b+1}, v{b}', f'v_permlane32_swap_b32 v{b}, v{b+1}', f'v_add_f32 v{b}, v{b}, v{b+1}',
                       f'v_mov_b32 v{b+1}, v{b}', f'v_permlane16_swap_b32 v{b}, v{b+1}',
                       f'v_mul_f32 v{NM+rt}, {fl(-1/640)}, v{b}', f'v_mul_f32 v{b+1}, {fl(1/640)}, v{b+1}',
                       f'v_fma_f32 v{b+1}, -v{NM+rt}, v{NM+rt}, v{b+1}', f'v_max_f32 v{b+1}, 0, v{b+1}',
                       f'v_add_f32 v{SS+rt}, {fl(1e-5)}, v{b+1}', f'v_rsq_f32 v{K1+rt}, v{SS+rt}',
                       f'v_mul_f32 v{K1+rt}, {fl(-1.4426950408889634)}, v{K1+rt}']]
            st = [(f'v_lshlrev_b32 v{TM+7}, 4, v3', 2), (f'v_add_u32 v{TM+7}, {L_CS}, v{TM+7}', 2)] + st
            KS0 = 11
            def capg(g): return 2 - sum(slots(x if isinstance(x, I) else I(x)) for x in fixed.get(g, []) if slots(x if isinstance(x, I) else I(x)) >= 1)
            firstcs = None
            for T in range(7):
                g0 = 14*(KS0 + T) + 2*T
                c = acc(1, T, 1)
                gr = g0 - 3
                while capg(gr) < 2: gr -= 1
                x = I(f'ds_read_b128 {V(c)}, v{TM+7} offset:{64*T}')
                if T == 0: firstcs = x
                fx(gr, x)
                ops = [f'v_fmac_f32 v{acc(0,T,mi)+r}, v{NM+mi}, v{c+r}' for mi in range(2) for r in range(4)]
                g = g0 + 4
                while ops:
                    cap = capg(g)
                    while cap >= 1 and ops: fx(g, ops.pop(0)); cap -= 1
                    g += 1
                if g > g0 + 14: print('warn fmac window', T, g - g0)
                st += [(f'v_mul_f32 v{acc(1,T,mi)+r}, v{NM+2+mi}, v{c+r}', g) for mi in range(2) for r in range(4)]
        else:
            st = epi_stream(0, l, 4) + [(x, 200) for x in sig_prep(f'HA{l}', sgH)]
        n0 = len(k.ins)
        left = weave(k, mf, fixed, st)
        if h == 0:
            pos = k.ins.index(firstcs)
            assert all(not (x.text.startswith(f'v_mul_f32 v{K1+rt},')) for x in k.ins[pos:] for rt in range(4)), 'stats not done before cs'
        print('up half', h, 'leftover', left)
        stamp(f'up{h}_{l}')
    k.need(names=['H0'])
    emit(sig_go(sgH))
    k('s_barrier')
    if l == 0:
        while wdn[0] < 70: emit(wdld(wdn[0])); wdn[0] += 1
    ep = [x for x, e in epi_stream(1, l, 0)]
    cut = opt('pa', 100)
    emit(down_prep(l))
    emit(ep[:cut]); emit(poll_issue(f'HA{l}')); emit(ep[cut:])
    stamp(f'upe_{l}')

HR = 124; DA = 12; HV = 180
def hld(ps, ks): return f'buffer_load_dwordx4 {V(HR + 4*ks)}, v{HV+ps}, s[4:7], s{16+ks} offen sc1'
def down_prep(l):
    L = lines(f"""
    s_mul_i32 s50, s{sCS}, {4*57344}
    s_mul_i32 s51, s{sW}, {14*1024}
    s_add_u32 s50, s50, s51
    s_add_u32 s50, s50, {WS_H[l]}
    s_lshr_b32 s54, s{sW}, 1
    s_xor_b32 s54, s54, s{sW}
    s_and_b32 s54, s54, 1
    """)
    for p in range(4):
        L += [f's_xor_b32 s55, s54, {(1, 0, 2, 3)[p]}', 's_mul_i32 s52, s55, 57344', 's_add_u32 s52, s50, s52', f'v_add_u32 v{TMPV[p]}, s52, v1']
    return L
def down_prep2():
    L = []
    for p in range(4):
        L += [f's_xor_b32 s55, s54, {(1, 0, 2, 3)[p]}', 's_mul_i32 s53, s55, 15360',
              f's_sub_u32 s52, s{sW}, s55', 's_sub_u32 s52, s52, 1', 's_and_b32 s52, s52, 3', 's_mul_i32 s52, s52, 5120',
              's_add_u32 s52, s52, s53', f's_add_u32 s52, s52, {L_RED}', f'v_add_u32 v{184+p}, s52, v1']
    L += [f's_mul_i32 s52, s{sW}, 15360', f's_add_u32 s52, s52, {L_RED}', 'v_add_u32 v188, s52, v1',
          f's_cmp_eq_u32 s{sW}, 3', 's_cselect_b32 s53, 5120, 0', 's_cselect_b32 s55, 0, 10240',
          'v_add_u32 v189, s53, v188', 'v_add_u32 v190, s55, v188']
    return L
TMPV = [HV, HV+1, HV+2, HV+3]
def down_variant(l, isA):
    own = 1 if isA else 3
    aset = {0: DA, 1: DA+20, 2: DA+40} if not isA else {0: DA, 2: DA+20, 3: DA+40}
    aset[own] = R0
    pB = opt('pb', 19); pI = opt('pi', 8); TMJ = opt('tmj', 7)
    HD = 13
    mf = []; fixed = {}
    def fx(g, x, first=False):
        L = fixed.setdefault(g, [])
        L.insert(0, x) if first else L.append(x)
    def mm(p, ks, T):
        a = V(aset[p] + 4*T)
        mf.append(f'{MF} {a}, {wdreg(5*ks+T)}, {V(HR+4*ks)}, {a if (ks or p == own) else 0}')
    nxt = opt('hu', 7)
    for n in range(56 - TMJ):
        p, ks = divmod(n, 14)
        g = len(mf)
        for T in range(5): mm(p, ks, T)
        if n == pB - pI:
            for c, x in enumerate(poll_issue(f'HB{l}')): fx(g + (1, 2, 4)[c], x, True)
        if n == pB - 1:
            for x in stampL(f'dnb4_{l}') + poll_wait() + stampL(f'dnB_{l}'): fx(g + 4, x)
        if n in (27, 41):
            for x in stampL(f'dn{n}_{l}'): fx(g + 4, x)
        for c in range(2):
            if nxt < 56 and nxt <= n + HD and (nxt < 28 or n >= pB):
                fx(g + 2*c, hld(*divmod(nxt, 14))); nxt += 1
        fx(g+3, Need(rr(V(HR + 4*((n+1) % 14)))), True)
    assert nxt == 56
    tdone = {}
    for T in range(5):
        for ks in range(14 - TMJ, 14): mm(3, ks, T)
        tdone[T] = len(mf)
    for c, x in enumerate(sig_go(sgH)): fx((0, 1, 2, 4, 5, 6, 7, 9)[c], x, True)
    wr = lambda p, T: f'ds_write_b128 v{184+p}, {V(aset[p] + 4*T)} offset:{T*1024}'
    for p in range(3):
        if p == own: continue
        for T in range(5):
            g = 70*(p+1) + (4 + 2*T if p == 2 else 9 + 5*T)
            fx(g, wr(p, T))
    ga = 210 + 16
    fx(ga, 's_waitcnt lgkmcnt(0)', True); fx(ga, 's_barrier')
    st = [(x, 12) for x in down_prep2()]
    pre = pub_prep(WS_X2, WS_ST[2]) + sig_prep('X20', sgX2) if l == 0 else nat_addr(92, 93, 94, 95)
    st += [(x, 150) for x in pre]
    tail = []
    if isA:
        dst = [DA, DA+20, 72]
        for T in range(5):
            for s_ in range(3):
                fx(ga + 1 + 3*T + s_, f'ds_read_b128 {V(dst[s_]+4*T)}, v188 offset:{s_*5120 + T*1024}')
            for s_ in range(3):
                for r in range(4): st.append((f'v_add_f32 v{R0+4*T+r}, v{R0+4*T+r}, v{dst[s_]+4*T+r}', ga + 10 + 3*T))
        for T in range(4): fx(tdone[T] + 3, wr(3, T))
        tail = [wr(3, 4), 's_waitcnt lgkmcnt(0)', 's_barrier']
    else:
        for T in range(5):
            for s_ in range(2):
                fx(ga + 1 + 2*T + s_, f'ds_read_b128 {V(DA+20*s_+4*T)}, v189 offset:{s_*5120 + T*1024}')
            for r in range(4): st.append((f'v_add_f32 v{DA+4*T+r}, v{DA+4*T+r}, v{DA+20+4*T+r}', ga + 9 + 2*T))
        for T in range(5):
            for r in range(4): st.append((f'v_add_f32 v{R0+4*T+r}, v{R0+4*T+r}, v{DA+4*T+r}', tdone[T] + 3))
        tail = ['s_barrier'] + [f'ds_read_b128 {V(DA+40+4*T)}, v190 offset:{T*1024}' for T in range(5)]
        tail += [f'v_pk_add_f32 {V(R0+n,2)}, {V(R0+n,2)}, {V(DA+40+n,2)}' for n in range(0, 20, 2)]
    left = weave(k, mf, fixed, st, tail=False)
    print('down leftover', len(left))
    emit(stampL(f'dn55_{l}'))
    if isA: emit(tail); emit([x for x, e in left])
    else: emit([x for x, e in left]); emit(tail)

def down(l):
    emit(poll_wait())
    stamp(f'dnp_{l}')
    for n in range(opt('hu', 7)): k(hld(0, n))
    emit(sig_prep(f'HB{l}', sgH))
    k.need(names=['H1'])
    k.need(V(HR)); emit(stampL(f'dn0_{l}'))
    k(f's_cmp_ge_u32 s{sW}, 2')
    k.begin('dA', 's_cbranch_scc1'); down_variant(l, True); k.end()
    k(f's_cmp_lt_u32 s{sW}, 2')
    k.begin('dB', 's_cbranch_scc1'); down_variant(l, False); k.end()
    k('s_waitcnt vmcnt(0) lgkmcnt(0)')
    stamp(f'dnm_{l}')
    if l == 0:
        publish(WS_X2, WS_ST[2], 32, 'X2S')
        k('s_barrier')
        k(f's_mul_i32 s51, s{sW}, 37'); k('s_mul_i32 s51, s51, 21846'); k('s_lshr_b32 s51, s51, 16'); k('s_lshl_b32 s51, s51, 10')
        k(f's_mul_i32 s50, s{sJ}, 51200'); k('s_add_u32 s50, s50, s51'); k(f's_add_u32 s50, s50, {WS_BF}'); k(f's_add_u32 s51, s51, {L_B}')
        NB = opt('nb', 6)
        k('s_mov_b32 s76, s50'); k('s_mov_b32 s77, s51')
        emit(wu_dma(0, NB, 77, 76))
        emit(gen_M2())
        k.need(names=['X2S'])
        stamp(f'dne_{l}')
        emit(sig_go(sgX2))
        emit(wu_dma(NB, 13, 77, 76))
    else:
        pk = 32
        for n in range(5):
            k(f'v_cvt_pk_bf16_f32 v{pk+2*n}, v{R0+4*n}, v{R0+4*n+1}'); k(f'v_cvt_pk_bf16_f32 v{pk+2*n+1}, v{R0+4*n+2}, v{R0+4*n+3}')
            if n == 1: k(f'buffer_store_dwordx4 {V(pk)}, v92, s[12:15], 0 offen {OF}')
            if n == 3: k(f'buffer_store_dwordx4 {V(pk+4)}, v93, s[12:15], 0 offen {OF}')
        k(f'buffer_store_dwordx2 {V(pk+8,2)}, v94, s[12:15], 0 offen {OF}')
        stamp(f'dne_{l}')
        if DIAG == 'fin' or STAMP: k('s_waitcnt vmcnt(0)'); stamp('fin')

def touch_out(n=16):
    k(f'v_mul_u32_u24 v12, {S*D*2//n}, v0')
    setexec(n); k('buffer_load_dword v13, v12, s[12:15], 0 offen'); allexec()
def main():
    prologue()
    k(f's_cmp_lg_u32 s{sW}, 0')
    k.begin('w0', 's_cbranch_scc1')
    k(f'v_lshrrev_b32 v12, 5, v0'); k(f'v_mul_u32_u24 v12, {MBSZ - 512}, v12'); k('v_add_u32 v12, v12, v1')
    for r in range(4): k(f'v_mov_b32 v{16+r}, 0')
    k('s_lshl_b32 s50, s2, 9')
    for n in range(5):
        k('buffer_store_dwordx4 v[16:19], v12, s[4:7], s50 offen sc1')
        k(f's_add_u32 s50, s50, {2*MBSZ}')
    k.end()
    prepass_issue()
    k(f"""
    s_lshl_b32 s50, s{sJ}, 3
    s_lshl_b32 s51, s{sW}, 1
    s_add_u32 s50, s50, s51
    s_lshr_b32 s51, s50, 5
    s_lshl_b32 s51, s51, 5
    s_and_b32 s50, s50, 31
    s_lshl_b32 s50, s50, 6
    s_add_u32 s50, s50, s51
    s_add_u32 s50, s50, s{sCLS}
    s_mul_i32 s50, s50, 1280
    v_cmp_lt_u32 vcc, 9, v0
    v_mov_b32 v21, {64*1280 - 1280}
    v_cndmask_b32 v20, 0, v21, vcc
    v_lshl_add_u32 v20, v0, 7, v20
    """)
    setexec(20); k('buffer_load_dword v15, v20, s[8:11], s50 offen'); allexec()
    stamp('iss0')
    emit(ids1())
    def arrive():
        k(f's_cmp_lg_u32 s{sW}, 0')
        k.begin('w0', 's_cbranch_scc1')
        k('s_and_b32 s50, s2, 3'); k('s_lshl_b32 s50, s50, 6'); k('s_add_u32 s88, s32, s50'); k('s_addc_u32 s89, s33, 0')
        k(I('s_nop 0')); k.ins[-1].text = 's_waitcnt vmcnt(9)'; k.ins[-1].kind = 'salu'
        k('s_atomic_add s90, s[88:89], 0')
        k.end()
    def adma(m):
        L = [f's_lshl_b32 s50, s{94 + (m >> 1)}, 7'] if (m & 1) == 0 or m == 9 else []
        off = (m & 1)*640
        if m == 9: L.append('s_add_u32 s50, s50, 640'); off = 0
        for hf in range(2):
            L.append(f's_add_u32 m0, s74, {(m % 9)*2048 + hf*1024 - off}')
            L.append(I(f'buffer_load_dwordx4 v{48+hf}, s[8:11], s50 offen offset:{off} lds', name=f'AD{m}'))
        return L
    def mid():
        arrive()
        k(f"""
        s_lshr_b32 s50, s{sW}, 1
        s_lshl_b32 s50, s50, 5
        s_and_b32 s51, s{sW}, 1
        s_lshl_b32 s51, s51, 10
        s_add_u32 s50, s50, s51
        s_add_u32 s50, s50, s{sCLS}
        s_mul_i32 s50, s50, 1280
        v_lshrrev_b32 v50, 3, v0
        v_and_b32 v51, 7, v0
        v_xor_b32 v51, v51, v50
        v_mul_u32_u24 v48, 81920, v50
        v_lshl_add_u32 v48, v51, 4, v48
        v_add_u32 v48, s50, v48
        v_add_u32 v49, {8*81920}, v48
        s_mul_i32 s74, s{sW}, 18432
        v_and_b32 v51, 7, v2
        v_xor_b32 v51, v51, v3
        v_lshlrev_b32 v51, 4, v51
        v_lshl_add_u32 v50, v2, 7, v51
        v_add_u32 v50, s74, v50
        v_xor_b32 v51, 64, v50
        """)
        stamp('gen1')
        for m in range(9): emit(adma(m))
        stamp('issA')
    emit(gen_B1()); emit(gen_B2()); emit(gen_T5())
    mid()
    emit(ids2())
    emit(gen_M2())
    emit(nat_addr(32, 33, 34, 35))
    stamp('gen')
    k.need(names=['AD0', 'AD1'])
    stamp('A0land')
    for m in range(2): emit(a_lds(m))
    k('s_waitcnt lgkmcnt(0)')
    emit(adma(9))
    prepass_process()
    stamp('pre')
    k(f'v_add_u32 v8, {L_B}, v1')
    k('s_waitcnt lgkmcnt(0)'); k('s_barrier')
    k(f"""
    s_lshl_b32 s50, s{sCS}, 2
    s_add_u32 s50, s50, s{sW}
    s_min_u32 s50, s50, 99
    s_lshl_b32 s50, s50, 9
    v_add_u32 v12, s50, v8
    ds_read_b128 v[16:19], v12
    s_mul_i32 s51, s{sJ}, 51200
    s_add_u32 s50, s50, s51
    s_add_u32 s50, s50, {WS_BF}
    """)
    setexec(32); k('buffer_store_dwordx4 v[16:19], v1, s[4:7], s50 offen sc1'); allexec()
    k(f'buffer_load_dwordx4 {V(R0+8)}, v32, s[8:11], 0 offen')
    k(f'buffer_load_dwordx4 {V(R0+12)}, v33, s[8:11], 0 offen')
    k(f'buffer_load_dwordx2 {V(R0+18,2)}, v34, s[8:11], 0 offen')
    if opt('tch', 0) == 1: touch_out()
    stamp('ini')
    stop('pre')
    for l in range(2):
        if l == 0:
            d1_body(0, None)
            for n in range(10):
                src = R0 + 8 + n if n < 8 else R0 + 10 + n
                if n in (7, 9):
                    k(f'v_lshlrev_b32 v{R0+2*n}, 16, v{src}'); k(f'v_and_b32 v{R0+2*n+1}, 0xffff0000, v{src}')
                else:
                    k(f'v_and_b32 v{R0+2*n+1}, 0xffff0000, v{src}'); k(f'v_lshlrev_b32 v{R0+2*n}, 16, v{src}')
        else:
            emit(gen_T5())
            k(f'v_add_u32 v8, {L_B}, v1')
            k(f's_add_u32 s72, s{sXT}, {WS_X2}'); k(f's_add_u32 s74, s{sST}, {WS_ST[2]}')
            for n in range(5): k(f's_lshl_b32 s{94+n}, s{94+n}, 11'); k(f's_add_u32 s{94+n}, s{94+n}, s72')
            k('v_add_u32 v36, 10240, v1')
            def ald(n):
                ks, h = n >> 1, n & 1
                return [f'buffer_load_dwordx4 {V(A0 + 4*n)}, v{36 if h else 1}, s[4:7], s{94 + ks//2} offen offset:{(ks & 1)*1024} sc1']
            emit(poll_issue('X20')); emit(poll_wait())
            stamp('d1p_1')
            NUP = opt('nup', 8)
            for n in range(NUP): emit(ald(n))
            for n in range(4): k(f'buffer_load_dword v{32+n}, v5, s[4:7], s74 offen offset:{256*n} sc1')
            k.need(names=['WU']); k('s_barrier')
            stamp('d1b_1')
            d1_body(1, (NUP, ald))
        stop(f'd1_{l}')
        d2(l); stop(f'd2_{l}')
        up(l); stop(f'up_{l}')
        down(l); stop(f'dn_{l}')
try: main()
except Stop: pass
finish()
k('END:'); k('s_endpgm'); k('CODE_END:')
k.finish()
open(sys.argv[1], 'w').write(build([k], [(k.name, 256, 256, LDS)], single=True))
import json
json.dump(dict(WS_BF=WS_BF, stamps=stampnames, WS_TS=WS_TS, WS_WUF=WS_WUF, WS_WDF=WS_WDF, WS_Z=WS_Z, WS_X1=WS_X1, WS_X2=WS_X2, WS_ST=WS_ST, WS_H=WS_H), open(sys.argv[1] + '.json', 'w'))
print('insts', len(k.ins), 'hi', k.hi, 'nops', sum(1 for i in k.ins if i.kind == 'nop'))
```

```python
import re
from asmlib import NAME, HEADER_COMMENT, KA

REG = re.compile(r'^(-?)(abs\()?([vas])(\d+|\[(\d+):(\d+)\])\)?$')
def regs_of(tok):
    tok = tok.strip()
    if tok == 'vcc': return [('s', 'vcc_lo'), ('s', 'vcc_hi')]
    if tok in ('vcc_lo', 'vcc_hi', 'm0', 'exec_lo', 'exec_hi'): return [('s', tok)]
    if tok == 'exec': return [('s', 'exec_lo'), ('s', 'exec_hi')]
    m = REG.match(tok)
    if not m: return []
    if m.group(5) is not None: return [(m.group(3), n) for n in range(int(m.group(5)), int(m.group(6))+1)]
    return [(m.group(3), int(m.group(4)))]

TRANS = ('v_exp_f32', 'v_log_f32', 'v_rcp_f32', 'v_rsq_f32', 'v_sqrt_f32', 'v_sin_f32', 'v_cos_f32')
class I:
    __slots__ = ('items', 'text', 'op', 'kind', 'w', 'r', 'tag', 'name', 'c', 'ab', 'data', 'dpp', 'passes', 'xdl', 'need')
    def __init__(s, text, tag=None, name=None):
        s.text = text; s.tag = tag; s.name = name; s.w = []; s.r = []; s.c = []; s.ab = []; s.data = []
        s.dpp = False; s.passes = 0; s.xdl = False; s.need = None
        t = text.split(';')[0].strip()
        if t.endswith(':'): s.op = t; s.kind = 'label'; return
        if t.startswith('.'): s.op = t; s.kind = 'dir'; return
        parts = t.split(None, 1); op = s.op = parts[0]
        rest = parts[1] if len(parts) > 1 else ''
        rest2 = re.sub(r'(quad_perm|op_sel|op_sel_hi|neg_lo|neg_hi):\[[^\]]*\]', 'mod', rest)
        toks = [x.strip() for x in rest2.split(',')] if rest2 else []
        mods = []
        if toks:
            last = toks[-1].split(); toks[-1] = last[0]; mods = last[1:]
        R = [regs_of(x) for x in toks]
        flat = lambda L: [x for l in L for x in l]
        if op.startswith('v_mfma'):
            s.kind = 'mfma'; s.w = R[0]; s.ab = R[1] + R[2]; s.c = R[3]; s.r = s.ab + s.c
            if '16x16x32_bf16' in op: s.passes, s.xdl = 4, True
            elif '32x32x16_bf16' in op: s.passes, s.xdl = 8, True
            elif '16x16x4_f32' in op: s.passes, s.xdl = 8, False
            else: raise ValueError(op)
        elif op.startswith('v_'):
            s.kind = 'valu'
            s.dpp = op.endswith('_dpp')
            if op.startswith(('v_permlane', 'v_swap')): s.w = R[0] + R[1]; s.r = list(s.w)
            elif op.startswith(('v_add_co', 'v_addc_co', 'v_sub_co')): s.w = R[0] + R[1]; s.r = flat(R[2:])
            elif op.startswith(('v_fmac', 'v_dot2c', 'v_writelane')) or s.dpp: s.w = R[0]; s.r = flat(R)
            elif op == 'v_nop': pass
            else: s.w = R[0]; s.r = flat(R[1:])
        elif op.startswith('ds_read') or op.startswith('ds_bpermute') or op.startswith('ds_swizzle'):
            s.kind = 'dsr'; s.w = R[0]; s.r = flat(R[1:])
        elif op.startswith('ds_'):
            s.kind = 'dsw'; s.r = flat(R)
        elif op.startswith(('buffer_load', 'global_load')):
            if 'lds' in mods or '_lds_' in op: s.kind = 'dma'; s.r = flat(R) + [('s', 'm0')]
            else: s.kind = 'vld'; s.w = R[0]; s.r = flat(R[1:])
        elif op.startswith('buffer_store'):
            s.kind = 'vst'; s.r = flat(R); s.data = R[0]
        elif op.startswith('global_store'):
            s.kind = 'vst'; s.r = flat(R); s.data = R[1]
        elif op.startswith('buffer_atomic'):
            s.r = flat(R)
            if 'sc0' in mods: s.kind = 'vld'; s.w = R[0]
            else: s.kind = 'vst'
        elif op.startswith('s_atomic'):
            s.kind = 'smem'; s.r = flat(R)
            if 'glc' in mods: s.w = R[0]
        elif op == 'phantom_vm': s.kind = 'vst'
        elif op.startswith(('s_load', 's_memtime', 's_memrealtime')):
            s.kind = 'smem'; s.w = R[0]; s.r = flat(R[1:])
        elif op == 's_waitcnt': s.kind = 'wait'
        elif op == 's_nop': s.kind = 'nop'
        elif op == 's_barrier': s.kind = 'barrier'
        elif op.startswith(('s_cbranch', 's_branch', 's_endpgm', 's_setpc', 's_swappc')): s.kind = 'branch'
        elif op.startswith(('s_cmp', 's_bitcmp', 's_sleep', 's_setprio')): s.kind = 'salu'; s.r = flat(R)
        elif op.startswith('s_'):
            s.kind = 'salu'; s.w = R[0]; s.r = flat(R[1:])
        else: raise ValueError('unknown op ' + text)
    def states(s):
        if s.kind in ('label', 'dir', 'need') or s.op == 'phantom_vm': return 0
        if s.kind == 'nop': return int(s.text.split()[1]) + 1
        return 1

class Need(I):
    def __init__(s, regs=(), names=(), tag=None):
        s.text = ''; s.op = 'need'; s.kind = 'need'; s.tag = tag; s.name = None
        s.w = []; s.r = list(regs); s.c = []; s.ab = []; s.data = []; s.dpp = False; s.passes = 0; s.xdl = False; s.need = list(names)

class G(I):
    def __init__(s, items):
        s.items = [x if isinstance(x, I) else I(x) for x in items]
        s.text = ''; s.op = 'group'; s.kind = 'salu'; s.tag = None; s.name = None
        s.w = [x for i in s.items for x in i.w]; s.r = [x for i in s.items for x in i.r]
        s.c = []; s.ab = []; s.data = []; s.dpp = False; s.passes = 0; s.xdl = False; s.need = None
SCC_R = ('s_addc', 's_subb', 's_cselect', 's_cbranch_scc')
def grp(L):
    out = []
    for x in L:
        t = x.text if isinstance(x, I) else x
        if t.startswith(SCC_R):
            p = out.pop()
            out.append(G((p.items if isinstance(p, G) else [p]) + [x]))
        else: out.append(x)
    return out

def rr(spec):
    return regs_of(spec)

class K:
    def __init__(s, name, vgpr=512, sgpr=102, accum=256):
        s.name = name; s.vgpr = vgpr; s.sgpr = sgpr; s.accum = accum
        s.ins = []; s.tag = None; s._lab = 0
    def __call__(s, text, name=None):
        if isinstance(text, G):
            for x in text.items: s(x)
            return
        if isinstance(text, I):
            text.tag = s.tag; s.ins.append(text); return
        for l in text.strip('\n').split('\n'):
            l = l.strip()
            if not l or l.startswith(';'): continue
            s.ins.append(I(l, s.tag, name))
    def need(s, *specs, names=()):
        regs = [x for sp in specs for x in regs_of(sp)]
        s.ins.append(Need(regs, names, s.tag))
    def label(s, base='L'):
        s._lab += 1; return f'{base}{s._lab}'
    def begin(s, tag, branch_text):
        assert s.tag is None
        s._end = s.label('SKIP')
        s(f'{branch_text} {s._end}')
        s.ins.append(('begin', tag)); s.tag = tag
    def end(s):
        s.ins.append(('end', s.tag)); s.tag = None
        s(f'{s._end}:')
    def do_waits(s):
        out = []
        ops = {'vm': [], 'lg': []}
        done = {'vm': set(), 'lg': set()}
        pend = {}
        named = {}
        smem_out = False
        snap = None
        MAXC = {'vm': 63, 'lg': 15}
        def count_after(c, idx, cur):
            x = ops[c][idx]
            if x.kind == 'smem': return 0
            return sum(1 for y in ops[c][idx+1:] if y.kind != 'smem' and (y.tag is None or y.tag == x.tag or y.tag == cur))
        def apply_wait(c, n, cur):
            for idx in range(len(ops[c])):
                if idx not in done[c] and count_after(c, idx, cur) >= n: done[c].add(idx)
        for it in s.ins:
            if isinstance(it, tuple):
                if it[0] == 'begin': snap = {c: set(done[c]) for c in done}; snap_smem = smem_out; snap_pend = {r_: list(v_) for r_, v_ in pend.items()}
                else:
                    for c in done: done[c] = snap[c] | {i for i in done[c] if ops[c][i].tag == it[1]}
                    smem_out = smem_out or snap_smem
                    for r_, v_ in snap_pend.items():
                        for e_ in v_:
                            if e_ not in pend[r_]: pend[r_].append(e_)
                out.append(it); continue
            if it.kind == 'wait':
                m = re.search(r'vmcnt\((\d+)\)', it.text)
                if m: apply_wait('vm', int(m.group(1)), it.tag)
                m = re.search(r'lgkmcnt\((\d+)\)', it.text)
                if m:
                    n = int(m.group(1))
                    if n == 0: smem_out = False; apply_wait('lg', 0, it.tag)
                    else: apply_wait('lg', n, it.tag)
                out.append(it); continue
            req = {}
            def want(c, idx):
                if idx in done[c]: return
                n = min(count_after(c, idx, it.tag), MAXC[c])
                req[c] = min(req.get(c, 99), n)
            touched = list(it.r) + list(it.w)
            for rg in touched:
                for (c, idx) in pend.get(rg, []):
                    if rg not in it.r and ((c == 'vm' and it.kind == 'vld') or (c == 'lg' and it.kind == 'dsr' and ops[c][idx].kind == 'dsr')): continue
                    want(c, idx)
            if it.kind == 'need':
                for nm in it.need:
                    for (c, idx) in named.get(nm, []): want(c, idx)
            if req:
                txt = 's_waitcnt ' + ' '.join(f'{"vmcnt" if c == "vm" else "lgkmcnt"}({n})' for c, n in sorted(req.items(), reverse=True))
                out.append(I(txt, it.tag))
                for c, n in req.items():
                    apply_wait(c, n, it.tag)
                    if c == 'lg' and n == 0: smem_out = False
            if it.kind == 'need': continue
            c = {'vld': 'vm', 'vst': 'vm', 'dma': 'vm', 'dsr': 'lg', 'dsw': 'lg', 'smem': 'lg'}.get(it.kind)
            if c:
                ops[c].append(it); idx = len(ops[c]) - 1
                if it.kind == 'smem': smem_out = True
                for rg in it.w: pend[rg] = [(c, idx)]
                if it.name: named.setdefault(it.name, []).append((c, idx))
            out.append(it)
        s.ins = out
    def do_hazards(s):
        out = []
        def need_states(p, c):
            n = 0
            pw = set(p.w)
            if p.kind == 'valu':
                vw = {x for x in pw if x[0] != 's'}; sw = {x for x in pw if x[0] == 's'}
                isdot = p.op.startswith('v_dot2')
                if vw:
                    if c.kind == 'mfma' and vw & set(c.r): n = max(n, 3 if isdot else 2)
                    if c.kind == 'valu':
                        if vw & set(c.r):
                            if c.op.startswith('v_permlane') or c.dpp: n = max(n, 2)
                            if c.op.startswith(('v_readlane', 'v_readfirstlane')): n = max(n, 1)
                            if p.op.startswith(TRANS) and not c.op.startswith(TRANS): n = max(n, 1)
                        if isdot and c.op != p.op and vw & (set(c.r) | set(c.w)): n = max(n, 3)
                    if isdot and c.kind in ('vst', 'vld', 'dsw', 'dsr', 'dma') and vw & set(c.r): n = max(n, 3)
                if sw:
                    if c.kind == 'valu' and sw & set(c.r): n = max(n, 4 if c.op.startswith(('v_readlane', 'v_writelane')) else 2)
                    if c.kind in ('vld', 'vst', 'dma') and sw & set(c.r): n = max(n, 5)
            elif p.kind == 'mfma':
                base = {4: 8, 8: 12}[p.passes] if p.xdl else {8: 10}[p.passes]
                if c.kind == 'mfma':
                    if pw & set(c.ab): n = max(n, base)
                    if pw & set(c.c):
                        if p.w == c.c and p.op == c.op: pass
                        elif p.xdl: n = max(n, base - 2)
                        elif not c.xdl: n = max(n, 8)
                    elif pw & set(c.w) and not (p.w == c.w and p.op == c.op): n = max(n, base)
                elif c.kind in ('valu', 'vld', 'vst', 'dsr', 'dsw', 'dma'):
                    if pw & (set(c.r) | set(c.w)): n = max(n, base)
                    if c.kind == 'valu' and p.xdl and set(p.c) & set(c.w): n = max(n, p.passes - 1)
            elif p.kind == 'salu':
                if ('s', 'm0') in pw and (c.kind == 'dma' or c.op.startswith('v_writelane')): n = max(n, 1)
            elif p.kind == 'vst':
                if len(p.data) >= 3 and set(p.data) & set(c.w): n = max(n, 2 if c.kind in ('valu', 'mfma') else 1)
            return n
        for it in s.ins:
            if isinstance(it, tuple): continue
            if it.kind not in ('label', 'dir', 'nop', 'wait', 'barrier', 'branch'):
                while True:
                    pad = 0; ppos = None
                    k = len(out) - 1
                    back = []; tot = 0
                    while k >= 0 and tot < 24:
                        y = out[k]; back.append(y); k -= 1
                        if y.tag is None or y.tag == it.tag: tot += y.states()
                    for pi, p in enumerate(back):
                        if p.kind in ('valu', 'mfma', 'salu', 'vst'):
                            n = need_states(p, it)
                            if n:
                                d = sum(y.states() for y in back[:pi] if y.tag is None or y.tag == p.tag or y.tag == it.tag)
                                if n - d > pad: pad = n - d; ppos = len(out) - 1 - pi
                    if pad <= 0: break
                    spot = None
                    for q in range(len(out) - 2, ppos - 1, -1):
                        if out[q].kind == 'mfma' and out[q+1].kind == 'mfma' and out[q].tag == it.tag and out[q+1].tag == it.tag:
                            spot = q; break
                    if spot is None:
                        out.append(I(f's_nop {pad-1}', it.tag)); break
                    out.insert(spot + 1, I(f's_nop {min(pad, 2)-1}', it.tag))
            out.append(it)
        s.ins = out
    def check_scc(s):
        NOW = ('s_mov', 's_mul_i32', 's_mul_hi', 's_cselect', 's_waitcnt', 's_nop', 's_load', 's_atomic', 's_mem', 's_barrier', 's_sleep', 's_getpc', 's_cbranch', 's_branch', 's_bitset', 's_endpgm')
        for n, it in enumerate(s.ins):
            if it.op.startswith(SCC_R):
                q = n - 1
                while True:
                    p = s.ins[q]
                    assert p.kind not in ('mfma', 'label'), ('SCC chain broken', it.text, n)
                    if p.op.startswith('s_') and not p.op.startswith(NOW): break
                    q -= 1
                if it.op.startswith('s_addc'): assert p.op == 's_add_u32' and p.w[0][1] + 1 == it.w[0][1], (p.text, it.text)
                else: assert p.op.startswith(('s_cmp', 's_bitcmp')), (p.text, it.text)
    def finish(s):
        s.do_waits(); s.do_hazards(); s.check_scc()
        hi = {'v': -1, 'a': -1, 's': -1}
        for it in s.ins:
            for (t, n) in list(it.r) + list(it.w):
                if isinstance(n, int): hi[t] = max(hi[t], n)
        assert hi['v'] < s.accum and s.accum + hi['a'] < s.vgpr and hi['s'] < s.sgpr, hi
        s.hi = hi
    def text(s):
        n = s.name
        out = [f'.globl {n}', '.p2align 8', f'.type {n},@function', f'{n}:']
        for it in s.ins:
            if it.op == 'phantom_vm': continue
            out.append(it.text if it.kind == 'label' else '    ' + it.text)
        return '\n'.join(out) + '\n'
    def desc(s):
        return f""".p2align 6
.amdhsa_kernel {s.name}
  .amdhsa_next_free_vgpr {s.vgpr}
  .amdhsa_next_free_sgpr {s.sgpr}
  .amdhsa_accum_offset {s.accum}
  .amdhsa_group_segment_fixed_size 0
  .amdhsa_kernarg_size 96
  .amdhsa_user_sgpr_count 2
  .amdhsa_user_sgpr_kernarg_segment_ptr 1
  .amdhsa_system_sgpr_workgroup_id_x 1
.end_amdhsa_kernel
"""

def slots(i):
    if i.kind == 'need': return 0
    if isinstance(i, G): return len(i.items) - 1
    if i.kind in ('salu', 'wait', 'nop', 'barrier', 'smem', 'branch', 'label'): return 0.5
    if i.kind == 'valu': return 2 if i.op.startswith(TRANS) or i.op.startswith('v_permlane') else 1
    if i.kind == 'dsr': return 1
    return 2


def deps(a, b):
    aw, ar, bw, br = set(a.w), set(a.r), set(b.w), set(b.r)
    if aw & (br | bw) or ar & bw: return True
    mem = ('vld', 'vst', 'dma', 'dsr', 'dsw', 'need', 'salu', 'wait', 'smem', 'barrier', 'branch', 'label')
    return a.kind in mem and b.kind in mem

def weave(k, mf, fixed=None, stream=None, window=24, tail=True, extra=None, log=None):
    mk = lambda x: x if isinstance(x, I) else I(x)
    fixed = {g: [mk(x) for x in v] for g, v in (fixed or {}).items()}
    st = [(mk(x), e) for x, e in (stream or [])]
    for g, m in enumerate(mf):
        k(mk(m))
        cap = 2 + (extra(g) if extra else 0); free_scalar = 1; nvec = 0
        for x in fixed.get(g, []):
            c = slots(x)
            if c == 0:
                if nvec == 0 and free_scalar: free_scalar = 0
            elif c == 0.5:
                if nvec == 0 and free_scalar: free_scalar = 0
                else: cap -= 1
            else: cap -= c; nvec += 1
            k(x)
        last = None
        while st:
            cand = []
            for idx in range(min(window, len(st))):
                x, e = st[idx]
                if e > g: continue
                if any(deps(st[p][0], x) for p in range(idx)): continue
                c = slots(x)
                if c <= 0.5:
                    if nvec == 0 and free_scalar: cand.append((-1, idx)); break
                    c = 1 if c else 0
                    if x.kind == 'need' and nvec: continue
                if x.kind == 'dsr' and nvec: continue
                if c > cap: continue
                if last is not None and (x.op.startswith('v_permlane') or x.dpp) and set(last.w) & set(x.r): continue
                cand.append((0 if (c == 2) else 1, idx))
            if not cand: break
            cand.sort()
            idx = cand[0][1]
            x, e = st.pop(idx)
            c = slots(x)
            if c <= 0.5 and nvec == 0 and free_scalar: free_scalar = 0
            elif c <= 0.5: cap -= (1 if c else 0)
            else: cap -= c; nvec += 1
            k(x); last = x
            if log is not None and x.name: log[x.name] = g
            if cap <= 0: break
    if tail:
        for x, e in st: k(x)
        return len(st)
    return st
```

```python
import sys, struct, re
from asmx import *
from asmlib import build
o = dict(a.split('=') for a in sys.argv[2:])
STOP = o.get('stop', '')
STAMP = int(o.get('stamp', 0))
def opt(n, d): return int(o.get(n, d))
S, D, F = 2048, 640, 1728
def fl(x): return hex(struct.unpack('<I', struct.pack('<f', x))[0])
MBSZ = 256*4*128
PH = {n: (i & 1)*MBSZ + (i >> 1)*4 for i, n in enumerate(['Z0', 'X10', 'HA0', 'HB0', 'X20', 'Z1', 'X11', 'HA1', 'HB1'])}
WS_TS = 11*MBSZ
WS_WUF = 2 << 20
WS_WDF = WS_WUF + 32*143360
WS_Z = [WS_WDF + 8*286720 + l*3145728 for l in range(2)]
WS_X1 = [WS_Z[1] + 3145728 + l*2621440 for l in range(2)]
WS_X2 = WS_X1[1] + 2621440
WS_ST = [WS_X2 + 2621440 + l*131072 for l in range(3)]
WS_H = [WS_ST[2] + 131072 + l*7340032 for l in range(2)]
WS_BF = WS_H[1] + 7340032
WS_END = WS_BF + 8*51200
L_XCH = 93184
L_B = L_XCH + 12288
L_Z = 132096
L_RED = 93184
L_RAW = 81920
L_CSP = 156672
L_CS = 163328
LDS = 163840
sW, sXCD, sQ, sJ, sCS, sCLS, sSIG, sGAM, sCSU, sMB = range(36, 46)
sXT, sST = 64, 65
sgZ, sgX1, sgH, sgX2 = 82, 84, 86, 88
R0 = 212; WT = 232
def V(a, n=4): return f'v[{a}:{a+n-1}]'
def wdreg(n): return f'a[{4*n}:{4*n+3}]' if n < 64 else V(WT + 4*(n-64))
MF = 'v_mfma_f32_16x16x32_bf16'
k = K(NAME + '_kernel')
nstamp = [0]; stampnames = []
DIAG = o.get('diag')
def stamp(name):
    if DIAG == name:
        k('s_memrealtime s[100:101]'); k('s_waitcnt lgkmcnt(0)')
    if not STAMP: return
    if o.get('only') and name not in o['only'].split(':'): return
    if name in stampnames: n = stampnames.index(name)
    else: n = len(stampnames); stampnames.append(name)
    k('s_memrealtime s[62:63]' if STAMP == 1 else 's_memtime s[62:63]'); k('s_waitcnt lgkmcnt(0)')
    k(f'v_writelane_b32 v11, s62, {n}')
def stampL(name):
    if DIAG == name: return ['s_memrealtime s[100:101]', 's_waitcnt lgkmcnt(0)']
    if not STAMP or not (o.get('fine') or name in o.get('only', '').split(':')): return []
    if name in stampnames: n = stampnames.index(name)
    else: n = len(stampnames); stampnames.append(name)
    return ['s_memrealtime s[62:63]' if STAMP == 1 else 's_memtime s[62:63]', 's_waitcnt lgkmcnt(0)', f'v_writelane_b32 v11, s62, {n}']
def finish():
    if DIAG:
        op = o.get('red', 'max')
        k(f's_cmp_lg_u32 s{sW}, 0'); k('s_cbranch_scc1 END')
        k('v_mov_b32 v12, s100'); k('s_lshl_b32 s48, s2, 2'); k(f's_add_u32 s48, s48, {WS_TS}')
        setexec(1); k('buffer_store_dword v12, off, s[4:7], s48 sc1'); allexec()
        k('s_cmp_lg_u32 s2, 0'); k('s_cbranch_scc1 END')
        k('PADL:'); k('s_memrealtime s[62:63]'); k('s_waitcnt lgkmcnt(0)')
        k('s_sub_u32 s62, s62, s99'); k('s_cmp_lt_u32 s62, 8000'); k('s_cbranch_scc1 PADL')
        k(f's_mov_b32 s48, {WS_TS}')
        k('buffer_load_dwordx4 v[12:15], v1, s[4:7], s48 offen sc1')
        for r in range(4): k(f'v_subrev_u32 v{12+r}, s99, v{12+r}')
        k(f'v_{op}_i32 v12, v12, v13'); k(f'v_{op}_i32 v14, v14, v15'); k(f'v_{op}_i32 v12, v12, v14')
        k('v_readlane_b32 s50, v12, 0')
        for n in range(1, 64):
            k(f'v_readlane_b32 s51, v12, {n}'); k(f's_{op}_i32 s50, s50, s51')
        k('s_mul_i32 s50, s50, 10'); k('s_add_u32 s50, s50, 20000'); k('s_min_u32 s50, s50, 100000')
        k('PADM:'); k('s_memrealtime s[62:63]'); k('s_waitcnt lgkmcnt(0)')
        k('s_sub_u32 s62, s62, s99'); k('s_cmp_lt_u32 s62, s50'); k('s_cbranch_scc1 PADM')
    if STAMP:
        k(f's_lshl_b32 s48, s{sMB}, 1'); k(f's_add_u32 s48, s48, {WS_TS}')
        k('v_lshlrev_b32 v12, 2, v0')
        k('buffer_store_dword v11, v12, s[4:7], s48 offen')
    k('s_endpgm')
class Stop(Exception): pass
def stop(name):
    if STOP == name:
        k('s_waitcnt vmcnt(0) lgkmcnt(0)'); raise Stop()
def setexec(n, lo=0):
    m = ((1 << n) - 1) << lo
    k(f's_mov_b32 exec_lo, {hex(m & 0xffffffff)}'); k(f's_mov_b32 exec_hi, {hex(m >> 32)}')
def allexec(): k('s_mov_b64 exec, -1')
def align(nm):
    a = opt('al', 0)
    if a:
        k(f'.p2align {a}')
        for n in range(opt('al' + nm, 0)): k('s_nop 0')
def cpf(bit, t=28):
    if not (opt('cpf', 6) >> bit) & 1: return
    k(f"""
    s_lshr_b32 s50, s2, 3
    s_lshl_b32 s50, s50, 2
    s_add_u32 s50, s50, s{sW}
    s_lshl_b32 s50, s50, 9
    v_lshl_add_u32 v{t}, v3, 7, s50
    v_min_u32 v{t}, CODE_END-PC0-4, v{t}
    global_load_dword v{t+1}, v{t}, s[94:95] sc1
    """)
def lines(s): return [l.strip() for l in s.strip().split('\n') if l.strip()]
def emit(L):
    for x in L: k(x)
MAXPOLL = 40000
OF = {'x': '', '1': 'sc1', 'n': 'nt', '01': 'sc0 sc1'}[o.get('of', 'x')]
def poll_issue(ph): return [f's_load_dword s91, s[92:93], {PH[ph]} glc']
def poll_wait(ph):
    L = k.label('POLL'); X = k.label('POLLX')
    return ['s_waitcnt lgkmcnt(0)', 's_cmp_ge_u32 s91, 8', f's_cbranch_scc1 {X}', 's_mov_b32 s68, 0', f'{L}:',
            f's_load_dword s91, s[92:93], {PH[ph]} glc', 's_add_u32 s68, s68, 1', 's_waitcnt lgkmcnt(0)',
            's_cmp_ge_u32 s91, 8', f's_cbranch_scc1 {X}', f's_cmp_lt_u32 s68, {MAXPOLL}', f's_cbranch_scc1 {L}', f'{X}:']
SIGOFF = {sgZ: lambda l: (l >> 2)*512 + (l & 3)*32768, sgX1: lambda l: l*4096, sgH: lambda l: l*4096, sgX2: lambda l: l*4096}
def sig_go(ph, sg): return [f's_atomic_add s90, s[{sg}:{sg+1}], {SIGOFF[sg](l) + PH[ph]}' for l in range(8)]
VS = o.get('vs', 'ZXYH')
def vs_prep(key, ph, sg, va):
    if key not in VS: return []
    if sg == sgZ: L = [f'v_and_b32 v{va}, 3, v0', f'v_bfe_u32 v{va+1}, v0, 2, 1', f'v_lshlrev_b32 v{va}, 15, v{va}', f'v_lshl_add_u32 v{va}, v{va+1}, 9, v{va}']
    else: L = [f'v_and_b32 v{va}, 7, v0', f'v_lshlrev_b32 v{va}, 12, v{va}']
    return L + [f'v_lshrrev_b32 v{va+1}, 3, v0', f'v_lshl_add_u32 v{va}, v{va+1}, 28, v{va}', f'v_mov_b32 v{va+1}, 1',
                f's_sub_u32 s69, s{sg}, s4', f's_add_u32 s69, s69, {PH[ph]}']
def vs_go(key, ph, sg, va):
    if key not in VS: return sig_go(ph, sg)
    return [f'buffer_atomic_add v{va+1}, v{va}, s[4:7], s69 offen sc1']
def mix(a, b):
    a = grp(a); out = []; nb = len(b); done = 0
    for n, x in enumerate(a):
        while done < nb and done*len(a) <= n*nb: out += b[done]; done += 1
        out.append(x)
    for g_ in b[done:]: out += g_
    return out

def prologue():
    k('s_cmp_ge_u32 s2, 256'); k('s_cbranch_scc1 END')
    k('s_getpc_b64 s[94:95]')
    k('PC0:')
    for s_, a in ((4, 'ws'), (16, 'wg'), (20, 'wu'), (24, 'wd'), (8, 'x'), (12, 'out'), (32, 'dbg')):
        k(f's_load_dwordx2 s[{s_}:{s_+1}], s[0:1], {KA[a]}')
    if STAMP: k('s_memrealtime s[62:63]' if STAMP == 1 else 's_memtime s[62:63]')
    if DIAG: k('s_memrealtime s[100:101]')
    k(f"""
    s_lshr_b32 s50, s2, 3
    s_lshl_b32 s50, s50, 11
    v_lshrrev_b32 v12, 4, v0
    v_lshl_add_u32 v12, v12, 7, s50
    v_min_u32 v12, CODE_END-PC0-4, v12
    global_load_dword v13, v12, s[94:95]
    v_lshrrev_b32 v3, 6, v0
    v_and_b32 v0, 63, v0
    v_readfirstlane_b32 s{sW}, v3
    """)
    for s_, n in ((4, 1 << 28), (16, D*F*2), (20, D*F*2), (24, D*F*2), (8, S*D*2), (12, S*D*2), (32, 256)):
        k(f's_mov_b32 s{s_+2}, {n}'); k(f's_mov_b32 s{s_+3}, 0x00020000')
    k(f"""
    v_lshlrev_b32 v1, 4, v0
    v_and_b32 v2, 15, v0
    v_lshrrev_b32 v3, 4, v0
    s_and_b32 s{sXCD}, s2, 7
    s_lshr_b32 s{sQ}, s2, 6
    s_bfe_u32 s{sJ}, s2, 0x30003
    s_lshl_b32 s{sCS}, s{sXCD}, 2
    s_add_u32 s{sCS}, s{sCS}, s{sQ}
    s_lshr_b32 s{sCLS}, s{sCS}, 1
    s_sub_u32 s50, 32, s{sCLS}
    s_cmp_eq_u32 s{sCS}, 1
    s_cselect_b32 s50, 16, s50
    s_bitcmp1_b32 s{sCS}, 0
    s_cselect_b32 s{sCLS}, s50, s{sCLS}
    """)
    k(f"""
    s_lshl_b32 s50, s{sJ}, 3
    s_lshl_b32 s51, s{sW}, 1
    s_add_u32 s50, s50, s51
    s_lshr_b32 s51, s50, 5
    s_lshl_b32 s51, s51, 5
    s_and_b32 s50, s50, 31
    s_lshl_b32 s50, s50, 6
    s_add_u32 s50, s50, s51
    s_add_u32 s50, s50, s{sCLS}
    s_mul_i32 s60, s50, 1280
    v_cmp_lt_u32 vcc, 9, v0
    v_mov_b32 v21, {64*1280 - 1280}
    s_lshr_b32 s50, s{sW}, 1
    s_lshl_b32 s50, s50, 5
    v_cndmask_b32 v20, 0, v21, vcc
    v_lshl_add_u32 v20, v0, 7, v20
    s_and_b32 s51, s{sW}, 1
    s_lshl_b32 s51, s51, 10
    s_add_u32 s50, s50, s51
    s_add_u32 s50, s50, s{sCLS}
    s_mul_i32 s50, s50, 1280
    v_lshrrev_b32 v50, 3, v0
    v_and_b32 v51, 7, v0
    v_xor_b32 v51, v51, v50
    v_mul_u32_u24 v48, 81920, v50
    v_lshl_add_u32 v48, v51, 4, v48
    v_add_u32 v48, s50, v48
    v_add_u32 v49, {8*81920}, v48
    s_mul_i32 s74, s{sW}, 20480
    """)
    if STAMP: k('v_mov_b32 v11, 0')
    k('s_waitcnt lgkmcnt(0)')
    if DIAG: k('s_mov_b32 s99, s100')
    if STAMP:
        k('v_writelane_b32 v11, s62, 0'); stampnames.append('start')

def ids2():
    return lines(f"""
    s_and_b32 s{sGAM}, s{sXCD}, 4
    s_add_u32 s{sGAM}, s{sGAM}, s{sQ}
    s_lshl_b32 s{sCSU}, s{sGAM}, 2
    s_add_u32 s{sCSU}, s{sCSU}, s{sW}
    s_lshl_b32 s{sMB}, s2, 2
    s_add_u32 s{sMB}, s{sMB}, s{sW}
    s_lshl_b32 s{sMB}, s{sMB}, 7
    s_add_u32 s92, s4, s{sMB}
    s_addc_u32 s93, s5, 0
    s_lshl_b32 s50, s{sCS}, 2
    s_add_u32 s50, s50, s{sW}
    s_mul_i32 s{sXT}, s50, 20480
    s_lshl_b32 s{sST}, s50, 10
    s_lshl_b32 s50, s{sW}, 10
    s_lshl_b32 s51, s{sJ}, 12
    s_add_u32 s50, s50, s51
    s_lshr_b32 s51, s{sCS}, 3
    s_lshl_b32 s51, s51, 7
    s_add_u32 s{sgZ}, s50, s51
    s_and_b32 s50, s{sXCD}, 4
    s_and_b32 s51, s{sXCD}, 3
    s_lshl_b32 s51, s51, 6
    s_add_u32 s50, s50, s51
    s_add_u32 s50, s50, s{sW}
    s_lshl_b32 s50, s50, 2
    s_add_u32 s50, s50, s{sQ}
    s_lshl_b32 s{sgX1}, s50, 7
    s_lshl_b32 s50, s{sW}, 6
    s_add_u32 s50, s50, s{sGAM}
    s_lshl_b32 s50, s50, 2
    s_and_b32 s51, s{sXCD}, 3
    s_add_u32 s50, s50, s51
    s_lshl_b32 s{sgH}, s50, 7
    s_lshl_b32 s50, s{sQ}, 6
    s_add_u32 s50, s50, s{sXCD}
    s_lshl_b32 s50, s50, 2
    s_add_u32 s50, s50, s{sW}
    s_lshl_b32 s{sgX2}, s50, 7
    s_mul_i32 s50, s{sJ}, 1280
    s_add_u32 s51, s50, 1024
    s_sub_u32 s52, {79*256}, s50
    v_mov_b32 v12, s51
    v_mov_b32 v13, s52
    v_cndmask_b32 v4, v13, v12, s[66:67]
    v_and_b32 v12, 1, v3
    v_lshl_add_u32 v4, v12, 3, v4
    v_lshl_add_u32 v4, v2, 4, v4
    v_lshlrev_b32 v5, 2, v0
    """) + [x for sg in (sgZ, sgX1, sgH, sgX2) for x in (f's_add_u32 s{sg}, s4, s{sg}', f's_addc_u32 s{sg+1}, s5, 0')]

def nat_addr(a01, a23, a4, t):
    return lines(f"""
    s_lshr_b32 s50, s{sW}, 1
    s_lshl_b32 s50, s50, 5
    s_and_b32 s51, s{sW}, 1
    s_lshl_b32 s51, s51, 10
    s_add_u32 s50, s50, s51
    s_add_u32 s50, s50, s{sCLS}
    v_lshl_add_u32 v{t}, v2, 6, s50
    v_mul_u32_u24 v{t}, 1280, v{t}
    s_mul_i32 s50, s{sJ}, 80
    s_sub_u32 s51, 1200, s50
    v_lshl_add_u32 v{a4}, v3, 4, v{t}
    v_add_u32 v{a01}, s50, v{a4}
    v_add_u32 v{a23}, s51, v{a4}
    s_add_u32 s50, s50, 64
    s_add_u32 s51, s51, 48
    v_mov_b32 v{t+1}, s50
    v_mov_b32 v{t+2}, s51
    v_cndmask_b32 v{a4}, v{t+2}, v{t+1}, s[66:67]
    v_lshl_add_u32 v{a4}, v3, 3, v{a4}
    v_add_u32 v{a4}, v{a4}, v{t}
    """)

A0 = 132; P0 = 88; P1 = 108; P5 = 128; BR = 72; B5 = 68; M2 = 52
def gen_vals(t, ef, base):
    L = []
    for jj in range(1, 8): L.append(f'v_fmamk_f32 v{t+jj}, v{ef}, {fl(float(jj))}, v{base}')
    L.append(f'v_cos_f32 v{t}, v{base}')
    for jj in range(1, 8): L.append(f'v_cos_f32 v{t+jj}, v{t+jj}')
    return L
def pack8(dst, t): return [f'v_cvt_pk_bf16_f32 v{dst+p}, v{t+2*p}, v{t+2*p+1}' for p in range(4)]
def gen_setup(e, ef, base, t, zero_dc):
    L = [f'v_and_b32 v{t}, 2, v0', f'v_cvt_f32_u32 v{ef}, v{e}', f'v_cvt_f32_u32 v{t}, v{t}', f'v_mul_f32 v{t}, 0x3e000000, v{t}']
    if zero_dc: L += [f'v_cmp_eq_u32 vcc, 0, v{e}', f'v_mov_b32 v{t+1}, 0x3e800000', f'v_mul_f32 v{ef}, {fl(1/640)}, v{ef}', f'v_cndmask_b32 v{t}, v{t}, v{t+1}, vcc']
    else: L += [f'v_mul_f32 v{ef}, {fl(1/640)}, v{ef}']
    L += [f'v_lshlrev_b32 v{t+1}, 3, v3', f'v_cvt_f32_u32 v{t+1}, v{t+1}', f'v_fma_f32 v{base}, v{ef}, v{t+1}, v{t}']
    return L
def gen_T5():
    return [f's_mul_i32 s53, s{sJ}, 40', 's_add_u32 s53, s53, 40', 'v_and_b32 v20, 1, v0', 'v_sub_u32 v22, 1, v20', 'v_mul_u32_u24 v22, s53, v22'] \
        + gen_setup(22, 23, 24, 26, False) + gen_vals(26, 23, 24) + pack8(B5, 26)
def gen_run(nfr, C0, C1, PK):
    L = gen_vals(C0, 23, 24) + [f'v_fmamk_f32 v24, v23, {fl(32.0)}, v24', f'v_mul_f32 v34, {fl(32.0)}, v23'] + gen_vals(C1, 23, 24) + ['v_cos_f32 v34, v34']
    for n in range(nfr):
        c, o_ = (C0, C1) if n % 2 == 0 else (C1, C0)
        if n == 2: L.append('v_add_f32 v34, v34, v34')
        if n >= 2:
            for p in range(4): L.append(f'v_pk_fma_f32 {V(c+2*p,2)}, {V(o_+2*p,2)}, v[34:35], {V(c+2*p,2)} op_sel_hi:[1,0,1] neg_lo:[0,0,1] neg_hi:[0,0,1]')
        pk = PK + 4*(n % 2)
        if nfr == 3 and n == 2: L.append('v_add_u32 v25, s57, v1')
        L += pack8(pk, c) + [f'ds_write_b128 v25, {V(pk)} offset:{n*5120}']
    return L
def gen_B1():
    return lines(f"""
    s_mul_i32 s52, s{sJ}, 40
    s_lshr_b32 s53, s{sW}, 1
    s_lshl_b32 s53, s53, 4
    s_and_b32 s54, s{sW}, 1
    s_lshl_b32 s55, s54, 1
    s_add_u32 s53, s53, s55
    s_add_u32 s53, s53, s52
    v_and_b32 v20, 1, v0
    v_and_b32 v21, 12, v0
    v_add3_u32 v22, v20, v21, s53
    s_lshl_b32 s56, s{sW}, 10
    s_add_u32 s56, s56, {L_B}
    v_add_u32 v25, s56, v1
    v_mov_b32 v35, 0
    """) + gen_setup(22, 23, 24, 26, True) + gen_run(10, 88, 96, 104)
def gen_B2():
    return lines(f"""
    s_add_u32 s53, s52, 32
    v_lshrrev_b32 v21, 1, v21
    v_add3_u32 v22, v20, v21, s53
    s_mul_i32 s55, s{sW}, 3
    s_min_u32 s55, s55, 8
    s_mul_i32 s56, s55, 5120
    s_add_u32 s56, s56, {L_B + 4096}
    s_cmp_lt_u32 s{sW}, 2
    s_cselect_b32 s57, s56, {L_CSP - 10240}
    s_lshl_b32 s55, s55, 5
    v_add_u32 v25, s56, v1
    """) + gen_setup(22, 23, 24, 26, False) + ['v_cvt_f32_u32 v26, s55', 'v_fma_f32 v24, v26, v23, v24', 'v_fract_f32 v24, v24'] + gen_run(3, 88, 96, 104)

def gen_M2(tmap=None):
    L = lines(f"""
    s_lshl_b32 s50, s{sW}, 3
    v_lshrrev_b32 v20, 1, v2
    v_add_u32 v20, s50, v20
    v_lshrrev_b32 v21, 1, v20
    v_cmp_eq_u32 vcc, 1, v20
    v_sub_u32 v22, 32, v21
    v_and_b32 v23, 2, v0
    v_cndmask_b32 v22, v22, 16, vcc
    v_cmp_ne_u32 vcc, 0, v23
    v_and_b32 v20, 1, v0
    v_lshl_add_u32 v23, v3, 8, s{sCLS}
    v_cndmask_b32 v21, v21, v22, vcc
    v_lshl_add_u32 v21, v20, 5, v21
    v_mul_u32_u24 v22, v21, v23
    v_and_b32 v22, 2047, v22
    v_bfe_i32 v20, v21, 0, 1
    v_and_b32 v20, 0x80008000, v20
    v_cvt_f32_u32 v21, v21
    v_cvt_f32_u32 v22, v22
    v_mul_f32 v21, {fl(1/64)}, v21
    v_mul_f32 v22, {fl(1/2048)}, v22
    """)
    for kap in range(2):
        for jp in range(2):
            for h in range(2): L.append(f'v_fmamk_f32 v{23+h}, v21, {fl(float(kap + 2*(2*jp + h)))}, v22')
            L += ['v_cos_f32 v25, v23', 'v_cos_f32 v26, v24', 'v_sin_f32 v27, v23', 'v_sin_f32 v28, v24']
            L.append(f'v_cvt_pk_bf16_f32 v{M2 + 4*kap + jp}, v25, v26')
            L.append(f'v_cvt_pk_bf16_f32 v{M2 + 8 + 4*kap + jp}, v27, v28')
            L.append(f'v_xor_b32 v{M2 + 4*kap + jp + 2}, v20, v{M2 + 4*kap + jp}')
            L.append(f'v_xor_b32 v{M2 + 8 + 4*kap + jp + 2}, v20, v{M2 + 8 + 4*kap + jp}')
    if tmap: L = [re.sub(r'\bv(2[0-8])\b', lambda m_: f'v{tmap[int(m_.group(1))-20]}', x).replace('s50', 's69') for x in L]
    return L

def a_lds(m):
    return [f'ds_read_b128 {V(A0 + 8*(2*(m >> 1) + od) + 4*(m & 1))}, v{50+od} offset:{m*2048}' for od in range(2)]
def init_issue():
    k('buffer_load_dword v15, v14, s[32:35], 0 offen sc1')
def init_check():
    L = k.label('INI'); X = k.label('INIX')
    k('s_mov_b32 s68, 0')
    k.need('v15')
    k(f'{L}:')
    k('v_cmp_gt_u32 s[96:97], 64, v15')
    k('s_cmp_eq_u64 s[96:97], 0')
    k(f's_cbranch_scc1 {X}')
    k('s_sleep 10')
    k('buffer_load_dword v15, v14, s[32:35], 0 offen sc1')
    k.ins[-1].kind = 'salu'; k.ins[-1].w = []
    k('s_add_u32 s68, s68, 1')
    k('s_waitcnt vmcnt(0)'); k.ins[-1].kind = 'salu'
    k(f's_cmp_lt_u32 s68, {MAXPOLL}'); k(f's_cbranch_scc1 {L}')
    k(f'{X}:')

PSO = [76, 77, 78, 79, 80, 81, 46, 47, 48, 49]
def d1_body(l, aload):
    S1, S2 = 40, 44
    BRL = [72, 76, 80, 84, 16, 20, 24]; NB = len(BRL)
    XB = L_XCH
    mf = []; fixed = {}
    def fx(g, x, first=False):
        L = fixed.setdefault(g, [])
        L.insert(0, x) if first else L.append(x)
    def p5(ks):
        mf.append(f'{MF} {V(P5)}, {V(A0 + 8*ks)}, {V(B5)}, {V(P5) if ks else 0}')
        mf.append(f'{MF} {V(P5)}, {V(A0 + 8*ks + 4)}, {V(B5)}, {V(P5)}')
    pre = ['v_mov_b32 v30, 0', 'v_mov_b32 v31, 0'] if l == 0 else []
    TK = opt(f'tk{l}', 3)
    border = [(ks, T) for ks in range(10 - TK) for T in range(5)] + [(ks, T) for T in range(5) for ks in range(10 - TK, 10)]
    rd = lambda n: f'ds_read_b128 {V(BRL[n % NB])}, v8 offset:{(border[n][0]*5 + border[n][1])*1024}'
    for n in range(NB-1): k(rd(n))
    tdone = {}; kstart = {}
    def head(ks):
        g0 = len(mf); kstart[ks] = g0
        if l == 0:
            if ks < 5:
                burst = [f'v_dot2c_f32_bf16 v{30 + (n & 1)}, v{A0+16*ks+n}, v{A0+16*ks+n}' for n in range(16)]
                if ks == 4: burst += ['v_add_f32 v30, v30, v31', 'v_mov_b32 v31, 1.0', f'v_mfma_f32_16x16x4_f32 {V(S2)}, v30, v31, 0']
                if ks == 0: pre.extend(burst)
                else:
                    for x in burst: fx(g0-1, x)
                p5(2*ks); p5(2*ks+1); tdone[5] = len(mf)
            if ks < 4:
                fx(g0, Need([], [f'AD{2*ks+2}', f'AD{2*ks+3}']), True)
                for c, x in enumerate(a_lds(2*ks+2) + a_lds(2*ks+3)): fx(g0 + c, x)
        else:
            if ks: fx(g0-2, Need(rr(V(A0 + 8*ks, 8))), True)
            p5(ks); tdone[5] = len(mf)
            for c in range(3):
                n = aload[0] + 3*ks + c
                if n < 20:
                    for x in aload[1](n): fx(g0 + (0, 3, 7)[c], x)
    for n, (ks, T) in enumerate(border):
        if n < 5*(10-TK):
            if T == 0: head(ks)
        elif n == 5*(10-TK):
            for k2 in range(10-TK, 10): head(k2)
        b = V(BRL[n % NB])
        fx(len(mf)-1, Need(rr(b)), True)
        if n + NB - 1 < 50: fx(len(mf), rd(n+NB-1))
        mf.append(f'{MF} {V(P0+4*T)}, {V(A0 + 8*ks)}, {b}, {V(P0+4*T) if ks else 0}')
        mf.append(f'{MF} {V(P1+4*T)}, {V(A0 + 8*ks + 4)}, {b}, {V(P1+4*T) if ks else 0}')
        if ks == 9: tdone[T] = len(mf)
    st = []
    if l == 0:
        isfree = lambda g: all((x if isinstance(x, I) else I(x)).kind == 'need' for x in fixed.get(g, []))
        st += [(x, 0) for x in lines(f"""
        s_lshl_b32 s50, s{sCS}, 2
        s_add_u32 s50, s50, s{sW}
        s_min_u32 s50, s50, 99
        s_lshl_b32 s50, s50, 9
        v_add_u32 v38, s50, v8
        s_mul_i32 s51, s{sJ}, 51200
        s_add_u32 s50, s50, s51
        s_add_u32 s71, s50, {WS_BF}
        v_mov_b32 v39, 0x10000000
        v_cndmask_b32 v39, v39, v1, s[66:67]
        ds_read_b128 {V(40)}, v38
        """)]
        if opt('m2w', 0): st += [(x, 0) for x in gen_M2([28, 32, 33, 34, 35, 36, 13, 14, 38])]
        st.append((f'buffer_store_dwordx4 {V(40)}, v39, s[4:7], s71 offen sc1', 24))
        st += [(I(x.text if isinstance(x, I) and not isinstance(x, G) else x, name='PA2') if not isinstance(x, G) else x, 0) for x in pre_addr2()]
        for c, x in enumerate((f'ds_read_b128 {V(RS[0])}, v13', f'ds_read_b128 {V(RS[4])}, v14 offset:2048', f'ds_read_b64 {V(6,2)}, v28')):
            fx(kstart[3] + 5 + 2*c, I(x, name='RSL'))
        fx(tdone[5] - 2, 's_barrier', True); fx(tdone[5] - 2, Need([], ['RSL']), True)
        late = []
        def put(g, items):
            while g < len(mf) and not isfree(g): g += 1
            if g >= len(mf): late.append(items); return None
            for x in items: fx(g, x)
            return g
        PG = opt('pg', 72)
        fx(PG-1, Need([], ['RAW']), True)
        for p in range(3):
            put(PG, [f'ds_read_b64_tr_b16 {V(R0+4+4*p+2*h, 2)}, v{R0 + (p >> 1)} offset:{(80 if p == 1 else 64 if p == 2 else 0) + 640*h}' for h in range(2)])
        for p in range(3):
            put(PG + 10 + 8*p, [f'buffer_store_dwordx4 {V(R0+4+4*p)}, v{R0 + 2 + (p >> 1)}, s[4:7], s{76 + (p >> 1)} offen offset:{2048*(p & 1)} sc1'])
        assert not late
        W0, WS_ = opt('w0', 68), opt('ws', 7)
        for x in stampL('wpfb') + ([Need([], ['WPF'])] + stampL('wpf') if stampL('wpf') else []): fx(opt('wpg', 40), x)
        for c in range(opt('r1n', 10)):
            a, b = wdma(1, c)
            g = put(W0 + WS_*c, [b])
            if g is None: late[-1] = [a, b]
            else: fx(g-1, a, True)
        print('round1 late', len(late))
    else:
        for x in ['v_add_f32 v32, v32, v33', 'v_add_f32 v34, v34, v35', 'v_add_f32 v32, v32, v34',
                  'v_and_b32 v33, 1, v3', 'v_cvt_f32_u32 v33, v33', 'v_sub_f32 v34, 1.0, v33']: st.append((x, 30))
        fx(47, f'v_mfma_f32_16x16x4_f32 {V(S1)}, v32, v34, 0'); fx(47, f'v_mfma_f32_16x16x4_f32 {V(S2)}, v32, v33, 0')
    for x in ['v_and_b32 v29, 1, v0', 'v_cvt_f32_u32 v29, v29', 'v_fma_f32 v29, v29, -2.0, 1.0',
              f's_and_b32 s50, s{sW}, 1', 's_lshl_b32 s50, s50, 3', f's_lshr_b32 s51, s{sW}, 1', 's_lshl_b32 s51, s51, 10',
              's_add_u32 s50, s50, s51', f'v_add_u32 v10, {XB}, v1', 'v_add_u32 v9, s50, v10',
              f's_lshl_b32 s50, s{sCS}, 3', f's_add_u32 s50, s50, s{sJ}', 's_mul_i32 s50, s50, 12288',
              f's_lshl_b32 s51, s{sW}, 10', 's_add_u32 s50, s50, s51', f's_add_u32 s70, s50, {WS_Z[l]}',
              'v_lshlrev_b32 v12, 6, v2', 'v_lshl_add_u32 v12, v3, 4, v12']: st.append((x, 6 if l == 0 else 48))
    e = tdone[5] + 3 if l == 0 else 54
    for r in range(4):
        if l == 0: st.append((f'v_mov_b32_dpp v{S1+r}, v{P5+r} quad_perm:[1,1,1,1] row_mask:0xf bank_mask:0xf', e))
        st.append((f'v_mul_f32 v{S2+r}, {fl(1/640)}, v{S2+r}', e))
    for r in range(4): st.append((f'v_mul_f32 v{S1+r}, {fl(1/640)}, v{S1+r}', e))
    for r in range(4): st.append((f'v_fma_f32 v{S2+r}, -v{S1+r}, v{S1+r}, v{S2+r}', e))
    for r in range(4): st.append((f'v_max_f32 v{S2+r}, 0, v{S2+r}', e))
    for r in range(4): st.append((f'v_add_f32 v{S2+r}, {fl(1e-5)}, v{S2+r}', e))
    for r in range(4): st.append((f'v_rsq_f32 v{S2+r}, v{S2+r}', e))
    for T in (5, 0, 1, 2, 3, 4):
        p = P0 + 4*T if T < 5 else P5
        e = tdone[T] + 2
        if T < 5:
            for r in range(4): st.append((f'v_fmac_f32 v{p+r}, v29, v{P1+4*T+r}', e))
        for r in range(4): st.append((f'v_mul_f32 v{p+r}, v{p+r}, v{S2+r}', e))
        st.append((f'v_cvt_pk_bf16_f32 v{p}, v{p}, v{p+1}', e)); st.append((f'v_cvt_pk_bf16_f32 v{p+1}, v{p+2}, v{p+3}', e))
        st.append((f'ds_write_b64 v9, {V(p,2)} offset:{T*2048}', e))
    align('g')
    emit(pre)
    if l == 1: k.need(V(A0, 8)); emit(stampL('g1a_1'))
    log = {}
    rest = weave(k, mf, fixed, st, tail=False, log=log)
    print('gemm1 leftover', len(rest), log)
    if l == 0: assert log['PA2'] < min(W0, PG) - 2
    emit(stampL(f'g1m_{l}'))
    if l == 0:
        nt = opt('wt', 2)
        emit(mix([x for x, e in rest], late[:nt])); late = late[nt:]
    else: emit([x for x, e in rest])
    k('s_waitcnt lgkmcnt(0)'); k('s_barrier')
    stamp(f'd1x_{l}')
    FR = A0; AC = 84
    for n in range(12): k(f'ds_read_b128 {V(FR+4*n)}, v10 offset:{n*1024}')
    mf = []; st = []
    for T in range(6):
        t1, t2 = AC + 8*T, AC + 8*T + 4
        for kap in range(2):
            f = V(FR + 4*(2*T + kap))
            mf.append(f'{MF} {V(t1)}, {f}, {V(M2+4*kap)}, {V(t1) if kap else 0}')
            mf.append(f'{MF} {V(t2)}, {f}, {V(M2+8+4*kap)}, {V(t2) if kap else 0}')
        e = len(mf) + 2
        dst = 16 + 4*(T >> 1) + 2*(T & 1)
        for rp in range(2):
            st.append((f'v_add_f32 v{t1+rp}, v{t1+rp}, v{t2+2+rp}', e))
            st.append((f'v_sub_f32 v{t1+2+rp}, v{t1+2+rp}, v{t2+rp}', e))
        for rp in range(2): st.append((f'v_cvt_pk_bf16_f32 v{dst+rp}, v{t1+rp}, v{t1+2+rp}', e))
        if T & 1:
            st.append((I(f'buffer_store_dwordx4 {V(16 + 4*(T>>1))}, v12, s[4:7], s70 offen sc1', name='ZS'), e))
            st.append(('s_add_u32 s70, s70, 4096', e))
    fixed = {}
    if l == 0:
        for c, (a, b) in enumerate(late): fixed[2*c] = [a]; fixed[2*c+1] = [b]
    weave(k, mf, fixed, st)

WA = WT; TA = WT + 7; CSO = WT + 12; CSA = 124
def pre_addr1():
    L = lines(f"""
    s_and_b32 s{sSIG}, s{sXCD}, 3
    s_mul_i32 s75, s{sSIG}, 896
    s_lshl_b32 s{sSIG}, s{sSIG}, 3
    s_add_u32 s{sSIG}, s{sSIG}, s{sJ}
    s_and_b32 s46, s{sCS}, 7
    s_lshl_b32 s46, s46, 2
    s_add_u32 s46, s46, s{sW}
    s_lshr_b32 s47, s{sCS}, 3
    s_mul_i32 s72, s47, 28
    s_add_u32 s48, s72, s46
    s_mul_i32 s72, s48, {16*1280}
    s_cmp_lt_u32 s46, 28
    s_cselect_b32 s72, s72, 0x10000000
    s_mul_i32 s73, s{sW}, 2560
    s_add_u32 s73, s73, {L_RAW}
    s_mul_i32 s76, s{sJ}, 80
    s_mul_i32 s77, s{sJ}, 160
    s_sub_u32 s77, 1120, s77
    s_add_u32 s72, s72, s76
    s_lshr_b32 s78, s2, 3
    s_and_b32 s78, s78, 15
    s_lshl_b32 s78, s78, 2
    s_add_u32 s78, s78, s{sW}
    s_mul_i32 s78, s78, {10*3456}
    s_add_u32 s75, s75, s78
    s_add_u32 s79, s75, {5*3456}
    s_mov_b32 s30, {D*F*2}
    s_mov_b32 s31, 0x00020000
    s_cmp_lt_u32 s{sQ}, 2
    s_cselect_b64 s[28:29], s[16:17], s[20:21]
    v_mov_b32 v47, s77
    """)
    for n in range(3):
        L += [f'v_add_u32 v44, {64*n}, v0', 'v_mul_u32_u24 v45, 6554, v44', 'v_lshrrev_b32 v45, 16, v45', 'v_mul_u32_u24 v46, 10, v45', 'v_sub_u32 v46, v44, v46',
              'v_cmp_lt_u32 vcc, 4, v46', f'v_mul_u32_u24 v{40+n}, 1280, v45', f'v_lshl_add_u32 v{40+n}, v46, 4, v{40+n}', 'v_cndmask_b32 v44, 0, v47, vcc', f'v_add_u32 v{40+n}, v{40+n}, v44']
    L += ['v_min_u32 v44, 34, v0', 'v_mul_u32_u24 v45, 9363, v44', 'v_lshrrev_b32 v45, 16, v45', f'v_mul_u32_u24 v45, {3456 - 896}, v45', 'v_lshl_add_u32 v43, v44, 7, v45']
    return L
def res_addr():
    L = lines(f"""
    s_mul_i32 s50, s{sJ}, 5
    s_sub_u32 s51, 35, s50
    s_add_u32 s52, s50, 4
    s_add_u32 s53, s51, 4
    v_lshl_add_u32 v44, v2, 7, s74
    v_add_u32 v13, s50, v3
    v_add_u32 v14, s51, v3
    v_mov_b32 v28, s52
    v_mov_b32 v45, s53
    v_cndmask_b32 v28, v45, v28, s[66:67]
    """)
    for r in (13, 14, 28):
        L += [f'v_xor_b32 v45, v{r}, v2', f'v_lshrrev_b32 v{r}, 3, v{r}', 'v_and_b32 v45, 7, v45', f'v_lshl_add_u32 v{r}, v{r}, 12, v44', f'v_lshl_add_u32 v{r}, v45, 4, v{r}']
    L += ['v_lshrrev_b32 v45, 1, v3', 'v_lshl_add_u32 v28, v45, 11, v28', 'v_and_b32 v45, 1, v3', 'v_lshl_add_u32 v28, v45, 3, v28']
    return L
RS = [WT+16+n for n in range(8)] + [6, 7]
def pre_issue():
    for n in range(3):
        if n == 2: setexec(32)
        k(f's_add_u32 m0, s73, {n*1024}')
        k(f'buffer_load_dwordx4 v{40+n}, s[24:27], s72 offen lds', name='RAW')
    allexec()
    k('buffer_load_dword v15, v43, s[28:31], s75 offen', name='WPF')
    k('buffer_load_dword v15, v43, s[28:31], s79 offen', name='WPF')
def pre_addr2():
    L = []
    for n in range(7):
        L += [f'v_add_u32 v32, {64*n}, v0', 'v_mul_u32_u24 v33, 9363, v32', 'v_lshrrev_b32 v33, 16, v33', f'v_mul_u32_u24 v33, {3456 - 112}, v33', f'v_lshl_add_u32 v{WA+n}, v32, 4, v33']
    L += lines(f"""
    s_mul_i32 s78, s{sW}, {64*3456}
    s_mul_i32 s79, s{sSIG}, 112
    s_add_u32 s78, s78, s79
    s_mul_i32 s79, s{sW}, 14336
    v_bfe_u32 v32, v0, 2, 2
    v_and_b32 v33, 1, v3
    v_lshl_add_u32 v32, v33, 3, v32
    v_mul_u32_u24 v32, 160, v32
    v_add_u32 v32, s73, v32
    v_and_b32 v34, 3, v0
    v_lshrrev_b32 v35, 1, v3
    v_lshl_add_u32 v{R0}, v34, 4, v32
    v_lshl_add_u32 v{R0}, v35, 3, v{R0}
    v_and_b32 v36, 1, v0
    v_lshl_add_u32 v{R0+1}, v36, 3, v32
    v_bfe_u32 v36, v0, 1, 1
    v_mul_u32_u24 v36, 80, v36
    v_add_u32 v{R0+1}, v{R0+1}, v36
    v_lshlrev_b32 v{R0+3}, 4, v2
    v_lshl_add_u32 v{R0+3}, v33, 8, v{R0+3}
    v_lshl_add_u32 v{R0+2}, v35, 10, v{R0+3}
    v_lshl_add_u32 v{R0+3}, v35, 28, v{R0+3}
    s_lshr_b32 s76, s48, 1
    s_mul_i32 s76, s76, 5120
    s_and_b32 s77, s48, 1
    s_lshl_b32 s77, s77, 9
    s_add_u32 s76, s76, s77
    s_mul_i32 s77, s{sJ}, 286720
    s_add_u32 s76, s76, s77
    s_add_u32 s76, s76, {WS_WDF}
    s_cmp_lt_u32 s46, 28
    s_cselect_b32 s76, s76, 0x10000000
    s_add_u32 s77, s76, 4096
    """)
    return grp(L)
def wdma(rd, c):
    mat, n = divmod(c, 7)
    srd = 28 if rd == 3 else 16 + 4*mat
    return [f's_add_u32 m0, s79, {c*1024 + (4*14336 if rd == 2 else 0)}', I(f'buffer_load_dwordx4 v{WA+n}, s[{srd}:{srd+3}], s{80 if rd == 2 else 78} offen lds', name=f'WR{rd}')]
def wd12(c): return wdma(1 + c//14, c % 14)
def tr_addr():
    return lines(f"""
    v_bfe_u32 v32, v0, 2, 2
    v_lshl_add_u32 v32, v3, 3, v32
    v_mul_u32_u24 v32, 112, v32
    s_mul_i32 s50, s{sW}, 14336
    v_add_u32 v32, s50, v32
    v_and_b32 v33, 3, v0
    v_and_b32 v34, 1, v0
    v_bfe_u32 v35, v0, 1, 1
    v_lshl_add_u32 v{TA}, v33, 4, v32
    v_lshl_add_u32 v{TA+1}, v34, 4, v32
    v_lshl_add_u32 v{TA+1}, v35, 3, v{TA+1}
    v_mul_u32_u24 v35, 7168, v35
    v_lshl_add_u32 v{TA+2}, v34, 3, v32
    v_add_u32 v{TA+2}, v{TA+2}, v35
    v_add_u32 v{TA+3}, s50, v1
    """) + [f'v_mov_b32 v{CSO+r}, 0x3f803f80' for r in range(4)]
def relay_rd(F0, kks):
    L = []
    for kk in kks:
        for T in range(7):
            a, off = (0, (T >> 1)*7168 + 8*(T & 1)) if T < 4 else ((1, (T-4)*7168 + 64) if T < 6 else (2, 96))
            for h in range(2): L.append(f'ds_read_b64_tr_b16 {V(F0 + 28*kk + 4*T + 2*h, 2)}, v{TA+a} offset:{off + kk*3584 + h*448}')
    return L
def relay_wr(F0, kks, first):
    L = []
    for kk in kks:
        for T in range(7):
            f = V(F0 + 28*kk + 4*T)
            L += [f'{MF} {V(CSA+4*T)}, {V(CSO)}, {f}, {0 if (first and kk == 0) else V(CSA+4*T)}', f'ds_write_b128 v{TA+3}, {f} offset:{(7*kk + T)*1024}']
    return L

def pub_parts(pk, nm):
    a = pk + 12
    cvt = lambda T: [f'v_cvt_pk_bf16_f32 v{pk+2*T}, v{R0+4*T}, v{R0+4*T+1}', f'v_cvt_pk_bf16_f32 v{pk+2*T+1}, v{R0+4*T+2}, v{R0+4*T+3}']
    store = lambda n: [I((f'buffer_store_dwordx4 {V(pk)}, v1, s[4:7], s57 offen sc1', f'buffer_store_dwordx4 {V(pk+4)}, v1, s[4:7], s58 offen sc1',
                          f'buffer_store_dwordx2 {V(pk+8,2)}, v4, s[4:7], s56 offen sc1')[n], name=nm)]
    dots = lambda T: [x for n in (2*T, 2*T+1) for x in (f'v_dot2c_f32_bf16 v{a}, s60, v{pk+n}', f'v_dot2c_f32_bf16 v{a+1}, v{pk+n}, v{pk+n}')]
    init = [f'v_mov_b32 v{a}, 0', f'v_mov_b32 v{a+1}, 0', f'v_subrev_u32 v{a+2}, 16, v0', f'v_lshrrev_b32 v{a+3}, 5, v{a+2}', f'v_min_u32 v{a+3}, 1, v{a+3}',
            f'v_lshlrev_b32 v{a+3}, 28, v{a+3}', f'v_add_u32 v{a+2}, v{a+3}, v5']
    tail = [f'v_permlane32_swap_b32 v{a}, v{a+1}', f'v_add_f32 v{a}, v{a}, v{a+1}', f'v_mov_b32 v{a+1}, v{a}',
            f'v_permlane16_swap_b32 v{a}, v{a+1}', f'v_add_f32 v{a}, v{a}, v{a+1}', I(f'buffer_store_dword v{a}, v{a+2}, s[4:7], s59 offen sc1', name=nm)]
    return cvt, store, dots, init, tail
def pub_prep(xbase, stbase):
    return [f's_add_u32 s56, s{sXT}, {xbase}', f's_mul_i32 s59, s{sJ}, 1280', 's_add_u32 s57, s56, s59', 's_sub_u32 s58, s56, s59',
            f's_add_u32 s58, s58, {75*256}', f's_lshl_b32 s59, s{sJ}, 7', f's_add_u32 s59, s59, s{sST}', f's_add_u32 s59, s59, {stbase - 64}',
            's_mov_b32 s60, 0x3f803f80']

ML, MU, ZF, AD, ZA = 40, 48, 60, 30, 100
def d2_prep(l):
    L = lines(f"""
    s_and_b32 s50, s{sW}, 1
    s_lshl_b32 s50, s50, 4
    v_add_u32 v104, s50, v2
    s_lshr_b32 s54, s{sW}, 1
    s_or_b32 s51, s54, s{sCLS}
    s_cmp_eq_u32 s51, 0
    s_cselect_b32 s51, 32, 31
    v_sub_u32 v105, s51, v104
    v_cvt_f32_u32 v104, v104
    v_cvt_f32_u32 v105, v105
    v_cvt_f32_u32 v106, v3
    v_mul_f32 v104, {fl(1/32)}, v104
    v_mul_f32 v105, {fl(1/32)}, v105
    v_add_f32 v106, v106, v106
    v_cmp_eq_u32 vcc, 0, v3
    v_mul_f32 v107, v104, v106
    v_mul_f32 v108, v105, v106
    """)
    for (t, b, dst) in ((104, 107, ML), (105, 108, MU)):
        for q_ in range(4):
            kap, jh = q_ >> 1, q_ & 1
            L.append(f'v_fmamk_f32 v{109+q_}, v{t}, {fl(float(8*kap + jh))}, v{b}')
        L.append(f'v_mul_f32 v121, 0x41800000, v{t}')
        for q_ in range(4): L += [f'v_cos_f32 v{113+q_}, v{109+q_}', f'v_sin_f32 v{117+q_}, v{109+q_}']
        L.append('v_cos_f32 v121, v121')
        for q_ in range(4): L.append(f'v_cvt_pk_bf16_f32 v{dst+2*q_}, v{113+q_}, v{117+q_}')
        L.append('v_cndmask_b32 v113, v113, v121, vcc')
        for q_ in range(4): L.append(f'v_cvt_pk_bf16_f32 v{dst+2*q_+1}, v{113+q_}, -v{117+q_}')
    L += lines(f"""
    v_mul_u32_u24 v104, {8*12288}, v3
    s_mul_i32 s50, s{sW}, {64*12288}
    s_mul_i32 s51, s{sJ}, 12288
    s_add_u32 s50, s50, s51
    s_lshr_b32 s51, s{sCS}, 1
    s_lshl_b32 s51, s51, 8
    s_add_u32 s50, s50, s51
    s_add_u32 s70, s50, {WS_Z[l]}
    s_mul_i32 s71, s{sW}, 6144
    """)
    for n, x in enumerate((0, 4, 1, 5)):
        L += [f'v_xor_b32 v105, {x}, v2', f'v_lshl_add_u32 v{ZA+n}, v105, 4, v104']
    n1 = len(L)
    L += lines(f"""
    s_and_b32 s50, s{sCS}, 1
    s_xor_b32 s51, s50, 1
    s_cmp_lt_u32 s{sCS}, 2
    s_cselect_b32 s51, s50, s51
    s_xor_b32 s52, s54, 1
    s_cmp_eq_u32 s{sCS}, 0
    s_cselect_b32 s52, s54, s52
    s_lshl_b32 s50, s50, 7
    s_lshl_b32 s55, s54, 6
    s_add_u32 s50, s50, s55
    s_lshl_b32 s51, s51, 7
    s_lshl_b32 s52, s52, 6
    s_add_u32 s51, s51, s52
    v_lshrrev_b32 v104, 1, v3
    v_mul_u32_u24 v104, 6144, v104
    v_and_b32 v105, 1, v3
    v_lshl_add_u32 v104, v105, 10, v104
    v_add_u32 v104, {L_Z}, v104
    v_lshlrev_b32 v105, 6, v105
    v_xor_b32 v106, s50, v105
    v_xor_b32 v107, s51, v105
    v_add_u32 v106, v106, v104
    v_add_u32 v107, v107, v104
    v_and_b32 v108, 12, v2
    v_add_u32 v108, v108, v2
    """)
    def fin(T, base):
        return ['v_lshrrev_b32 v110, 4, v109', 'v_and_b32 v111, 15, v109', f'v_lshl_add_u32 v{AD+T}, v110, 11, v{base}',
                'v_and_b32 v110, 1, v110', 'v_lshlrev_b32 v110, 2, v110', 'v_xor_b32 v111, v111, v110', f'v_lshl_add_u32 v{AD+T}, v111, 2, v{AD+T}']
    L += ['v_mov_b32 v109, v108'] + fin(0, 106) + [f'v_xor_b32 v{AD+1}, 16, v{AD}']
    for T in (2, 3):
        L += [f'v_sub_u32 v109, {40 - 4*(T-2)}, v108', 'v_cmp_lt_u32 vcc, 31, v109', 'v_and_b32 v110, 6, v109', 'v_add_u32 v110, v110, v109',
              'v_cndmask_b32 v109, v109, v110, vcc']
        if T == 2: L += ['v_cmp_eq_u32 vcc, 0, v2', 'v_nop', 'v_nop', 'v_cndmask_b32 v109, v109, 34, vcc']
        L += fin(T, 107)
    L += ['v_cmp_gt_u32 vcc, 8, v2', 'v_and_b32 v110, 6, v2', 'v_add3_u32 v110, v110, v2, 32', 'v_sub_u32 v109, 16, v2',
          'v_cndmask_b32 v109, v109, v110, vcc', 'v_cndmask_b32 v112, v107, v106, vcc'] + fin(4, 112)
    return L, n1

def wu_dma(f0, f1, sreg_lds, sreg_src, nm='WU'):
    L = []
    for c, n in enumerate(range(f0, f1)):
        if c % 4 == 0: L += [f's_add_u32 m0, s{sreg_lds}, {n*1024}', f's_add_u32 s61, s{sreg_src}, {n*1024}']
        L.append(I(f'buffer_load_dwordx4 v1, s[4:7], s61 offen offset:{(c % 4)*1024} sc1 lds', name=nm or f'WB{n//7}'))
    return L

def d2(l):
    prep, n1 = d2_prep(l)
    prep = grp(prep + pub_prep(WS_X1[l], WS_ST[l]))
    R1N = opt('r1n', 10); R2A = R1N + opt('r2a', 4); R2B = opt('r2b', 24); R2C = opt('r2c', 25)
    if l == 0:
        k('v_and_b32 v14, 3, v0'); k('v_lshlrev_b32 v14, 6, v14')
        k(f's_add_u32 s80, s78, {4*64*3456}')
        k(f's_cmp_lg_u32 s{sW}, 0'); k.begin('w0', 's_cbranch_scc1'); init_issue(); k.end()
        k('s_barrier')
        emit(stampL('zst0'))
        cut = opt('cut0', 50)
        emit(mix(tr_addr() + ids2() + vs_prep('Z', f'Z{l}', sgZ, 28), [wd12(c) for c in range(R1N, R2A)]))
        emit(prep[:cut])
        emit(stampL('prep0'))
        k(f's_cmp_lg_u32 s{sW}, 0'); k.begin('w0', 's_cbranch_scc1'); init_check(); k.end()
        k.need(names=['ZS']); k('s_barrier')
    else:
        k(f's_mul_i32 s76, s{sSIG}, 143360'); k(f's_add_u32 s76, s76, {WS_WUF}')
        k(f's_mul_i32 s77, s{sW}, {12*1024}'); k(f's_add_u32 s77, s77, {91*1024}')
        k('s_add_u32 s76, s76, s77')
        cut = opt('cut1', 30)
        emit(vs_prep('Z', f'Z{l}', sgZ, 28))
        emit(prep[:cut])
        k.need(names=['ZS'])
    stamp(f'd1e_{l}')
    emit(vs_go('Z', f'Z{l}', sgZ, 28))
    if l == 0:
        PZ = cut + opt('pz0', 90)
        emit(mix(prep[cut:PZ] + poll_issue('Z0') + prep[PZ:], [wd12(c) for c in range(R2A, R2B)]))
    else:
        PZ = cut + opt('pz1', 150)
        emit(prep[cut:PZ] + poll_issue('Z1') + prep[PZ:])
    cvt, store, dots, pinit, ptail = pub_parts(12, 'XS')
    emit(pinit)
    if l == 0:
        assert R2B >= 14
        k.need(names=['WR1'])
        emit(relay_rd(152, (0, 1)))
        emit(stampL('rl1'))
    def unpack():
        for n in range(10):
            k(f'v_lshlrev_b32 v{R0+2*n}, 16, v{RS[n]}'); k(f'v_and_b32 v{R0+2*n+1}, 0xffff0000, v{RS[n]}')
    emit(poll_wait(f'Z{l}'))
    stamp(f'd2p_{l}')
    for p in range(3):
        for hh in range(2):
            k(f's_add_u32 m0, s71, {L_Z + p*2048 + hh*1024}')
            k(f's_add_u32 s50, s70, {p*4096 + hh*4*8*12288}')
            k(f'buffer_load_dwordx4 v{ZA + 2*(p & 1) + hh}, s[4:7], s50 offen sc1 lds', name='ZL')
    if l == 0:
        for c in range(R2B, R2C): emit(wd12(c))
        emit(relay_wr(152, (0, 1), True))
        for a in range(4): k(f'v_add_u32 v{TA+a}, {4*14336}, v{TA+a}')
        unpack()
    k.need(names=['ZL']); k('s_barrier')
    stamp(f'd2l_{l}')
    for T in range(5):
        for kap in range(2):
            for h in range(2):
                k(f'ds_read2st64_b32 {V(ZF+8*T+4*kap+2*h, 2)}, v{AD+T} offset0:{48*kap + 2*h} offset1:{48*kap + 2*h + 1}')
    if l == 0:
        for c in range(R2C, 28): emit(wd12(c))
    r4 = V(R0+16)
    mf = [f'{MF} {V(R0+4*T)}, {V(ZF+8*T+4*kap)}, {V((ML if T < 2 else MU) + 4*kap)}, {V(R0+4*T)}' for T in range(4) for kap in range(2)]
    mf += [f'{MF} {V(56)}, {V(ZF+32)}, {V(ML)}, {r4}', f'{MF} {r4}, {V(ZF+32)}, {V(MU)}, {r4}',
           f'{MF} {V(56)}, {V(ZF+36)}, {V(ML+4)}, {V(56)}', f'{MF} {r4}, {V(ZF+36)}, {V(MU+4)}, {r4}']
    weave(k, mf, {4: cvt(0), 6: cvt(1), 7: store(0), 8: cvt(2), 10: cvt(3), 11: store(1)})
    emit(dots(0) + dots(1))
    for r in range(4): k(f'v_cndmask_b32 v{R0+16+r}, v{R0+16+r}, v{56+r}, s[66:67]')
    emit(cvt(4) + store(2) + dots(2) + dots(3) + dots(4) + ptail)
    k('s_barrier')
    cpf(2*l, 30)
    N2 = opt('n2', 6)
    if l == 0:
        k(f"""
        s_lshr_b32 s50, s{sW}, 1
        s_add_u32 s50, s50, 8
        s_mul_i32 s78, s50, {64*3456}
        s_mul_i32 s51, s{sSIG}, 112
        s_add_u32 s78, s78, s51
        s_mul_i32 s79, s{sW}, 7168
        s_add_u32 s79, s79, {8*14336}
        s_bitcmp1_b32 s{sW}, 0
        s_cselect_b64 s[28:29], s[20:21], s[16:17]
        """)
        R3A = opt('r3a', 4)
        for c in range(R3A): emit(wdma(3, c))
        emit(vs_prep('X', f'X1{l}', sgX1, 28))
        RL = opt('rl', 1)
        if RL >= 1: k.need(names=['WR2']); emit(relay_rd(152, (0, 1)))
        if RL >= 2: k('s_waitcnt lgkmcnt(0)'); emit(relay_wr(152, (0, 1), False))
    else:
        emit(wu_dma(0, N2, 77, 76))
        up_prep(l)
        emit(vs_prep('X', f'X1{l}', sgX1, 28))
    k.need(names=['XS']); k('s_barrier')
    stamp(f'd2e_{l}')
    emit(vs_go('X', f'X1{l}', sgX1, 28))
    if l == 0:
        for c in range(R3A, 7): emit(wdma(3, c))
        if RL < 1: emit(relay_rd(152, (0, 1)))
        up_prep(l)
        wl = [wdld(n) for n in range(opt('wp', 12))]
        if RL < 2:
            k('s_waitcnt lgkmcnt(0)')
            rw = relay_wr(152, (0, 1), False); px = opt('px0', 12)
            emit(mix(rw[:px] + poll_issue('X10') + rw[px:], wl))
        else:
            for x in wl: emit(x)
        k(f"""
        s_lshr_b32 s50, s{sW}, 1
        s_sub_u32 s50, s50, s{sW}
        s_add_u32 s50, s50, 4
        s_mul_i32 s50, s50, 14336
        s_and_b32 s51, s{sW}, 1
        s_mul_i32 s51, s51, 3584
        s_add_u32 s50, s50, s51
        v_add_u32 v{TA}, s50, v{TA}
        v_add_u32 v{TA+1}, s50, v{TA+1}
        v_add_u32 v{TA+2}, s50, v{TA+2}
        v_add_u32 v{TA+3}, s79, v1
        """)
    else: emit(wu_dma(N2, 13, 77, 76))

ACC = [12, 68]; BRG = 124; XR = 152; XD = 5; K1 = 192; SS = 196; NM = 200; TM = 204
def acc(h, T, mi): return ACC[h] + (2*T + mi)*4
def epi_stream(h, l, e0):
    st = []
    def grp(G, U, k1, ss, dst):
        if h == 1 and opt('pk', 1):
            b1, b2 = k1 & 1, ss & 1
            for r in (0, 2): st.append(f'v_pk_mul_f32 {V(U+r,2)}, {V(G+r,2)}, {V(U+r,2)}')
            for r in (0, 2): st.append(f'v_pk_mul_f32 {V(G+r,2)}, {V(G+r,2)}, {V(k1-b1,2)} op_sel:[0,{b1}] op_sel_hi:[1,{b1}]')
            for r in range(4): st.append(f'v_exp_f32 v{G+r}, v{G+r}')
            for r in (0, 2): st.append(f'v_pk_fma_f32 {V(G+r,2)}, {V(G+r,2)}, {V(ss-b2,2)}, {V(ss-b2,2)} op_sel:[0,{b2},{b2}] op_sel_hi:[1,{b2},{b2}]')
            for r in range(4): st.append(f'v_rcp_f32 v{G+r}, v{G+r}')
            for r in (0, 2): st.append(f'v_pk_mul_f32 {V(U+r,2)}, {V(U+r,2)}, {V(G+r,2)}')
            st.append(f'v_cvt_pk_bf16_f32 v{dst}, v{U}, v{U+1}'); st.append(f'v_cvt_pk_bf16_f32 v{dst+1}, v{U+2}, v{U+3}')
            return
        for r in range(4): st.append(f'v_mul_f32 v{U+r}, v{G+r}, v{U+r}')
        for r in range(4): st.append(f'v_mul_f32 v{G+r}, v{G+r}, v{k1}')
        for r in range(4): st.append(f'v_exp_f32 v{G+r}, v{G+r}')
        for r in range(4): st.append(f'v_fma_f32 v{G+r}, v{G+r}, v{ss}, v{ss}')
        for r in range(4): st.append(f'v_rcp_f32 v{G+r}, v{G+r}')
        for r in range(4): st.append(f'v_mul_f32 v{U+r}, v{U+r}, v{G+r}')
        st.append(f'v_cvt_pk_bf16_f32 v{dst}, v{U}, v{U+1}'); st.append(f'v_cvt_pk_bf16_f32 v{dst+1}, v{U+2}, v{U+3}')
    nm = f'H{h}'
    for mi in range(2):
        d = acc(h, 0, mi)
        grp(acc(h, 0, mi), acc(h, 2, mi), K1+2*h+mi, SS+2*h+mi, d)
        grp(acc(h, 1, mi), acc(h, 3, mi), K1+2*h+mi, SS+2*h+mi, d+2)
        st.append(I(f'buffer_store_dwordx4 {V(d)}, v1, s[4:7], s{76+2*h+mi} offen sc1', name=nm))
    d = acc(h, 4, 0)
    grp(acc(h, 4, 0), acc(h, 5, 0), K1+2*h, SS+2*h, d)
    grp(acc(h, 4, 1), acc(h, 5, 1), K1+2*h+1, SS+2*h+1, d+2)
    for r in range(4): st.append(f'v_permlane32_swap_b32 v{acc(h,6,0)+r}, v{acc(h,6,1)+r}')
    st.append(f'v_cndmask_b32 v{TM+2}, v{K1+2*h+1}, v{K1+2*h}, s[66:67]')
    st.append(f'v_cndmask_b32 v{TM+3}, v{SS+2*h+1}, v{SS+2*h}, s[66:67]')
    st.append(f'v_permlane32_swap_b32 v{d}, v{d+2}'); st.append(f'v_permlane32_swap_b32 v{d+1}, v{d+3}')
    st.append(I(f'buffer_store_dwordx4 {V(d)}, v6, s[4:7], s{76+2*h} offen sc1', name=nm))
    d = acc(h, 6, 0)
    grp(d, acc(h, 6, 1), TM+2, TM+3, d)
    st.append(I(f'buffer_store_dwordx2 {V(d,2)}, v7, s[4:7], s{76+2*h} offen sc1', name=nm))
    return [(x, e0) for x in st]

def up_prep(l):
    k(f'v_add_u32 v9, {63*1024}, v1'); k(f'v_add_u32 v10, {126*1024}, v1')
    k(f's_mul_i32 s50, s{sCSU}, {4*20480}')
    for rt in range(4): k(f's_add_u32 s{72+rt}, s50, {WS_X1[l] + rt*20480}')
    k(f's_lshl_b32 s80, s{sCSU}, 12'); k(f's_add_u32 s80, s80, {WS_ST[l]}')
    if l == 0:
        k(f"""
        v_lshrrev_b32 v30, 5, v0
        v_mul_u32_u24 v30, 57344, v30
        v_lshl_add_u32 v30, v2, 4, v30
        v_and_b32 v31, 1, v3
        v_lshl_add_u32 v6, v31, 8, v30
        v_add_u32 v6, 1024, v6
        v_lshl_add_u32 v7, v31, 3, v30
        v_add_u32 v7, 1536, v7
        s_mul_i32 s81, s{sJ}, 286720
        s_mul_i32 s50, s{sW}, {70*1024}
        s_add_u32 s81, s81, s50
        s_add_u32 s81, s81, {WS_WDF}
        """)
        for n in range(3): k(f's_mov_b32 s{16+n}, {4096*(n+1)}')
def wdld(n): return [f'buffer_load_dwordx4 {wdreg(n)}, v1, s[4:7], s81 offen offset:{(n % 4)*1024} sc1'] + (['s_add_u32 s81, s81, 4096'] if n % 4 == 3 else [])

def up(l):
    def brd(n):
        f = n % 140
        a, off = (1, f) if f < 63 else ((9, f-63) if f < 126 else (10, f-126))
        return f'ds_read_b128 {V(BRG + 4*(n % 7))}, v{a} offset:{off*1024}'
    def xld(n, mi):
        h, ks = divmod(n, 20)
        return f'buffer_load_dwordx4 {V(XR + 8*(n % XD) + 4*mi)}, v1, s[4:7], s{72+2*h+mi} offen offset:{(ks % 4)*1024} sc1'
    def xadv(n):
        h, ks = divmod(n, 20)
        return [f's_add_u32 s{72+2*h+mi}, s{72+2*h+mi}, 4096' for mi in range(2)] if ks % 4 == 3 else []
    SL = ACC[1]
    def first_loads():
        if l == 1: emit(poll_issue(f'X1{l}'))
        emit(poll_wait(f'X1{l}'))
        stamp(f'upp_{l}')
        for n in range(XD-1):
            for mi in range(2): k(xld(n, mi))
            emit(xadv(n))
    k(f's_mul_i32 s50, s{sCSU}, {4*57344}'); k(f's_mul_i32 s51, s{sSIG}, {7*256}'); k('s_add_u32 s50, s50, s51')
    for rt in range(4): k(f's_add_u32 s{76+rt}, s50, {WS_H[l] + rt*57344}')
    wdn = [0]
    if l == 0:
        wdn[0] = opt('wp', 12)
        k(f's_mul_i32 s50, s{sW}, 448'); k(f's_add_u32 s50, s50, {L_CSP}')
        k(f'v_lshl_add_u32 v{TM+4}, v2, 2, s50')
        k(f'v_min_u32 v{TM+6}, 55, v0'); k(f'v_lshlrev_b32 v{TM+6}, 3, v{TM+6}'); k(f'v_add_u32 v{TM+5}, {L_CSP}, v{TM+6}'); k(f'v_add_u32 v{TM+6}, {L_CS}, v{TM+6}')
        k(f"""
        s_min_u32 s50, s{sGAM}, 6
        s_add_u32 s50, s50, 13
        s_mul_i32 s50, s50, 7168
        s_lshl_b32 s51, s{sW}, 11
        s_min_u32 s51, s51, 5120
        s_add_u32 s50, s50, s51
        v_add_u32 v8, s50, v1
        s_mul_i32 s71, s{sSIG}, 143360
        s_add_u32 s71, s71, {WS_WUF}
        """)
        for T in range(7): k(f'ds_write_b32 v{TM+4}, v{CSA+4*T} offset:{64*T}')
        emit(stampL('rl2'))
        first_loads()
        k('s_barrier')
        for n in range(6): k(brd(n))
    else:
        first_loads()
        for n in range(6): k(brd(n))
        k.need(names=['WU']); k('s_barrier')
    if stampL(f'ux0_{l}'): k.need(V(XR, 8)); emit(stampL(f'ux0_{l}'))
    NWD = [opt('wa', 24), opt('wb', 22)] if l == 0 else [0, 0]
    if opt('nowd', 0): NWD = [0, 0]; wdn[0] = 70
    for h in range(2):
        mf = []; fixed = {}
        def fx(g, x, first=False):
            L = fixed.setdefault(g, [])
            L.insert(0, x) if first else L.append(x)
        for ks in range(20):
            n = 20*h + ks
            for T in range(7):
                g = len(mf); f = 7*n + T
                for mi in range(2):
                    a = V(acc(h, T, mi))
                    mf.append(f'{MF} {a}, {V(BRG+4*T)}, {V(XR + 8*(n % XD) + 4*mi)}, {a if (ks or h) else 0}')
                if f + 6 < 280: fx(g, brd(f+6))
                if T % 2 == 0 and f + 1 < 280:
                    nxt = [BRG + 4*((f+1) % 7)] + ([BRG + 4*((f+2) % 7)] if T < 6 else [])
                    fx(g+1, Need([x for b in nxt for x in rr(V(b))]), True)
            g0 = 14*ks
            if n + XD - 1 < 40:
                fx(g0+3, xld(n+XD-1, 0)); fx(g0+7, xld(n+XD-1, 1))
                for q_, x in enumerate(xadv(n+XD-1)): fx(g0+8+2*q_, x, True)
            if n + 1 < 40: fx(g0+12, Need(rr(V(XR + 8*((n+1) % XD), 8))), True)
            if h == 0 and ks < 4:
                for c in range(4): fx(g0 + (1, 5, 9, 13)[c], f'buffer_load_dword v{SL+4*ks+c}, v5, s[4:7], s80 offen offset:{1024*ks + 256*c} sc1')
            k0 = 4 if h == 0 else 0
            if ks >= k0:
                cnt = NWD[h]*(ks-k0+1)//(20-k0) - NWD[h]*(ks-k0)//(20-k0)
            else: cnt = 1 if (l == 0 and opt('we', 1)) else 0
            if True:
                free = [11, 5, 1] + ([3, 7] if n + XD - 1 >= 40 else [])
                for c in range(cnt):
                    w_ = wdld(wdn[0]); wdn[0] += 1
                    fx(g0 + sorted(free[:cnt])[c], w_[0])
                    if len(w_) > 1: fx(g0 + sorted(free[:cnt])[c] + 1, w_[1], True)
        st = []
        if h == 0:
            for rt in range(4):
                b = SL + 4*rt
                st += [(x, 14*(rt+3)) for x in [f'v_add_f32 v{b}, v{b}, v{b+1}', f'v_add_f32 v{b+2}, v{b+2}, v{b+3}', f'v_add_f32 v{b}, v{b}, v{b+2}',
                       f'v_mov_b32 v{b+1}, v{b}', f'v_permlane32_swap_b32 v{b}, v{b+1}', f'v_add_f32 v{b}, v{b}, v{b+1}',
                       f'v_mov_b32 v{b+1}, v{b}', f'v_permlane16_swap_b32 v{b}, v{b+1}',
                       f'v_mul_f32 v{NM+rt}, {fl(-1/640)}, v{b}', f'v_mul_f32 v{b+1}, {fl(1/640)}, v{b+1}',
                       f'v_fma_f32 v{b+1}, -v{NM+rt}, v{NM+rt}, v{b+1}', f'v_max_f32 v{b+1}, 0, v{b+1}',
                       f'v_add_f32 v{SS+rt}, {fl(1e-5)}, v{b+1}', f'v_rsq_f32 v{K1+rt}, v{SS+rt}',
                       f'v_mul_f32 v{K1+rt}, {fl(-1.4426950408889634)}, v{K1+rt}']]
            st = [(f'v_lshlrev_b32 v{TM+7}, 4, v3', 2), (f'v_add_u32 v{TM+7}, {L_CS}, v{TM+7}', 2)] + st
            if l == 0:
                F3 = 84; g = opt('g3', 8)
                fx(g, Need([], ['WR3']), True); fx(g, 's_barrier')
                rdl = relay_rd(F3, (0,))
                for n, x in enumerate(rdl): fx(g + 2 + 2*n, I(x, name='T3'))
                g += 2 + 28 + 6
                fx(g, Need([], ['T3']), True); fx(g, 's_barrier')
                dst = lambda T: (112, 116)[T] if T < 2 else F3 + 4*(T-2)
                for T in range(7):
                    fx(g + 1 + 2*T, I(f'ds_write_b128 v{TA+3}, {V(F3+4*T)} offset:{T*1024}', name='T3W'))
                    fx(g + 1 + 2*T, f'{MF} {V(dst(T))}, {V(CSO)}, {V(F3+4*T)}, 0')
                g += 18
                for T in range(7): fx(g + T, I(f'ds_write_b32 v{TM+4}, v{dst(T)} offset:{1792 + 64*T}', name='T3W'))
                g += 12
                fx(g, Need([], ['T3W']), True); fx(g, 's_barrier')
                for n in range(8): fx(g + 2 + 2*n, f'ds_read_b64 {V(F3+2*n, 2)}, v{TM+5} offset:{448*n}')
                for n in range(2):
                    fx(g + 18 + 2*n, f'ds_read_b128 {V(112+4*n)}, v8 offset:{n*1024}')
                    fx(14*(8+2*n) + 9, f'buffer_store_dwordx4 {V(112+4*n)}, v8, s[4:7], s71 offen offset:{n*1024} sc1')
                assert g + 24 < 14*8 + 9
                g += 24
                for c, (a_, b_) in enumerate(((0, 1), (2, 3), (4, 5), (6, 7), (0, 2), (4, 6), (0, 4))):
                    for hh in range(2): fx(g + 4*c + 2*hh, f'v_add_f32 v{F3+2*a_+hh}, v{F3+2*a_+hh}, v{F3+2*b_+hh}')
                g += 28
                fx(g, f'ds_write_b64 v{TM+6}, {V(F3, 2)}')
                print('cs done at gap', g)
                assert g < 14*11 - 6
            KS0 = 11
            def capg(g): return 2 - sum(slots(x if isinstance(x, I) else I(x)) for x in fixed.get(g, []) if slots(x if isinstance(x, I) else I(x)) >= 1)
            firstcs = None
            for T in range(7):
                g0 = 14*(KS0 + T) + 2*T
                c = acc(1, T, 1)
                gr = g0 - 3
                while capg(gr) < 2: gr -= 1
                x = I(f'ds_read_b128 {V(c)}, v{TM+7} offset:{64*T}')
                if T == 0: firstcs = x
                fx(gr, x)
                ops = [f'v_fmac_f32 v{acc(0,T,mi)+r}, v{NM+mi}, v{c+r}' for mi in range(2) for r in range(4)]
                g = g0 + 4
                while ops:
                    cap = capg(g)
                    while cap >= 1 and ops: fx(g, ops.pop(0)); cap -= 1
                    g += 1
                if g > g0 + 14: print('warn fmac window', T, g - g0)
                st += [(f'v_mul_f32 v{acc(1,T,mi)+r}, v{NM+2+mi}, v{c+r}', g) for mi in range(2) for r in range(4)]
        else:
            st = epi_stream(0, l, 4) + [(x, 150) for x in down_prep(l)]
            st += [(x, 150) for x in vs_prep('H' if 'H' in VS else 'B', f'HA{l}', sgH, NM)]
        align('u')
        log = {}
        XE = opt('xe', 0)
        left = weave(k, mf, fixed, st, extra=(lambda g: 1 if ((h == 1 and XE and g % XE == 0) or (h == 0 and l == 0 and 80 <= g < 150 and g % opt('xa', 2) == 0)) else 0), log=log)
        if h == 0:
            pos = k.ins.index(firstcs)
            assert all(not (x.text.startswith(f'v_mul_f32 v{K1+rt},')) for x in k.ins[pos:] for rt in range(4)), 'stats not done before cs'
        print('up half', h, 'leftover', left, log)
        stamp(f'up{h}_{l}')
    k.need(names=['H0'])
    emit(vs_go('H', f'HA{l}', sgH, NM))
    k(f's_add_u32 s69, s69, {(PH[f"HB{l}"] - PH[f"HA{l}"]) & 0xffffffff}')
    if l == 0:
        while wdn[0] < 70: emit(wdld(wdn[0])); wdn[0] += 1
    ep = [x for x, e in epi_stream(1, l, 0)]
    c1, c2 = opt('pa', 100), opt('pw', 999)
    emit(ep[:c1]); emit(poll_issue(f'HA{l}')); emit(ep[c1:c2])
    stamp(f'upe_{l}')
    emit(poll_wait(f'HA{l}'))
    stamp(f'dnp_{l}')
    emit(mix(ep[c2:], [[hld(0, n)] for n in range(opt('hu', 7))]) if c2 < len(ep) else [hld(0, n) for n in range(opt('hu', 7))])

HR = 124; DA = 12; HVL = [8, 208, 209, 210]
def hld(ps, ks): return f'buffer_load_dwordx4 {V(HR + 4*ks)}, v{HVL[ps]}, s[4:7], {f"s{15 + ks//4}" if ks >= 4 else 0} offen offset:{(ks % 4)*1024} sc1'
def down_prep(l):
    L = lines(f"""
    s_mul_i32 s50, s{sCS}, {4*57344}
    s_mul_i32 s51, s{sW}, {14*1024}
    s_add_u32 s50, s50, s51
    s_add_u32 s50, s50, {WS_H[l]}
    s_lshr_b32 s54, s{sW}, 1
    s_xor_b32 s54, s54, s{sW}
    s_and_b32 s54, s54, 1
    s_lshl_b32 s51, s{sJ}, 7
    """)
    for p in range(4):
        L += [f's_xor_b32 s55, s54, {(1, 0, 2, 3)[p]}', 's_mul_i32 s52, s55, 57344', 's_add_u32 s52, s50, s52', f'v_add_u32 v{HVL[p]}, s52, v1']
        if opt('spf', 0): L += ['s_add_u32 s52, s52, s51', f's_add_u32 s{22+2*p}, s4, s52', f's_addc_u32 s{23+2*p}, s5, 0']
    return grp(L)
def spf(n):
    p, ks = divmod(n, 14)
    return f's_load_dword s30, s[{22+2*p}:{23+2*p}], {ks*1024}'
def down_prep2():
    L = []
    for p in range(4):
        L += [f's_xor_b32 s55, s54, {(1, 0, 2, 3)[p]}', 's_mul_i32 s53, s55, 15360',
              f's_sub_u32 s52, s{sW}, s55', 's_sub_u32 s52, s52, 1', 's_and_b32 s52, s52, 3', 's_mul_i32 s52, s52, 5120',
              's_add_u32 s52, s52, s53', f's_add_u32 s52, s52, {L_RED}']
        if p & 1: L += [f's_cmp_eq_u32 s55, s{sW}', f's_cselect_b32 s52, {L_CSP}, s52', f's_cselect_b32 s{20 + (p >> 1)}, 1.0, 0']
        L.append(f'v_add_u32 v{184+p}, s52, v1')
    L += [f's_mul_i32 s52, s{sW}, 15360', f's_add_u32 s52, s52, {L_RED}', 'v_add_u32 v188, s52, v1',
          f's_cmp_eq_u32 s{sW}, 3', 's_cselect_b32 s53, 5120, 0', 's_cselect_b32 s55, 0, 10240',
          'v_add_u32 v189, s53, v188', 'v_add_u32 v190, s55, v188']
    return grp(L)
def down(l):
    pB = opt('pb', 19); pI = opt('pi', 8); TMJ = opt('tmj', 7); SB = opt('sb', 0)
    HD = 13
    mf = []; fixed = {}
    def fx(g, x, first=False):
        L = fixed.setdefault(g, [])
        L.insert(0, x) if first else L.append(x)
    def mm(p, ks, T):
        a = V(DA + 20*p + 4*T)
        mf.append(f'{MF} {a}, {wdreg(5*ks+T)}, {V(HR+4*ks)}, {a if ks else 0}')
    nxt = opt('hu', 7)
    for n in range(56 - TMJ):
        p, ks = divmod(n, 14)
        g = len(mf)
        for T in range(5): mm(p, ks, T)
        if n == pB - pI:
            for x in poll_issue(f'HB{l}'): fx(g + 1, x, True)
        if n == pB - 1:
            for x in stampL(f'dnb4_{l}') + poll_wait(f'HB{l}') + stampL(f'dnB_{l}'): fx(g + 4, x)
        if n in (27, 41):
            for x in stampL(f'dn{n}_{l}'): fx(g + 4, x)
        for c in range(2):
            if nxt < 56 and nxt <= n + HD and (nxt < 28 or n >= pB):
                fx(g + 2*c, hld(*divmod(nxt, 14))); nxt += 1
        fx(g+3, Need(rr(V(HR + 4*((n+1) % 14)))), True)
    assert nxt == 56
    if opt('spf', 0):
        a0, a1, b0, dg = opt('sa0', 8), opt('sa1', 20), opt('sb0', 34), opt('sdg', 2)
        def place(g, ns):
            for n in ns:
                while g % 5 == 3: g += 1
                fx(g, I(spf(n)), True); fixed[g][0].w = []; g += dg
        place(10, range(a1, 28)); place(5*pB, range(b0, 56))
    tdone = {}
    for T in range(5):
        for ks in range(14 - TMJ, 14): mm(3, ks, T)
        tdone[T] = len(mf)
    if 'B' not in VS:
        for c, x in enumerate(sig_go(f'HB{l}', sgH)): fx((0, 1, 2, 4, 5, 6, 7, 9)[c], x, True)
    wr = lambda p, T: f'ds_write_b128 v{184+p}, {V(DA + 20*p + 4*T)} offset:{T*1024}'
    for p in range(3):
        for T in range(5): fx(70*(p+1) + (4 + 2*T if p == 2 else 9 + 5*T), wr(p, T))
    ga = 210 + opt('ga', 18)
    fx(ga, 's_waitcnt lgkmcnt(0)', True); fx(ga, 's_barrier')
    st = [(x, 12) for x in down_prep2()]
    cvt, store, dots, pinit, ptail = pub_parts(100, 'X2S')
    pre = pub_prep(WS_X2, WS_ST[2]) + pinit if l == 0 else nat_addr(92, 93, 94, 95)
    st += [(x, 100) for x in pre]
    for n in range(20): st.append((f'v_fmac_f32 v{R0+n}, s20, v{DA+20+n}', 146))
    for T in range(5):
        for s_ in range(2):
            fx(ga + 1 + 2*T + s_, f'ds_read_b128 {V(DA+20*s_+4*T)}, v189 offset:{s_*5120 + T*1024}')
        for s_ in range(2):
            for r in range(4): st.append((f'v_add_f32 v{R0+4*T+r}, v{R0+4*T+r}, v{DA+20*s_+4*T+r}', ga + 9 + 2*T))
    for T in range(4):
        fx(tdone[T] + 3, wr(3, T))
        for r in range(4): st.append((f'v_fmac_f32 v{R0+4*T+r}, s21, v{DA+60+4*T+r}', tdone[T] + 4))
    if opt('spf', 0):
        for n in range(a0, a1): k(spf(n)); k.ins[-1].w = []
    k.need(names=['H1'])
    if 'B' in VS: emit(vs_go('B', f'HB{l}', sgH, NM))
    k('s_barrier')
    k.need(V(HR)); emit(stampL(f'dn0_{l}'))
    align('d')
    X = o.get('exp', '')
    if X and l == 1:
        def keep(x):
            t = x.text if isinstance(x, I) else x
            if 'L' in X and t.startswith('buffer_load'): return False
            if 'W' in X and t.startswith('ds_write'): return False
            if 'B' in X and t.startswith('s_barrier'): return False
            if 'P' in X and (t.startswith(('s_load', 's_cbranch', 's_cmp', 'POLL', 's_waitcnt', 's_mov_b32 s68', 's_add_u32 s68'))): return False
            if 'A' in X and t.startswith('s_atomic'): return False
            if 'R' in X and t.startswith('ds_read'): return False
            return True
        fixed = {g: [x for x in v if keep(x)] for g, v in fixed.items()}
        if 'S' in X: st = [(x, 999) for x, e in st]
    left = weave(k, mf, fixed, st, tail=False)
    print('down leftover', len(left))
    emit(stampL(f'dn55_{l}'))
    k(wr(3, 4))
    emit([x for x, e in left])
    for r in range(4): k(f'v_fmac_f32 v{R0+16+r}, s21, v{DA+76+r}')
    k('s_waitcnt lgkmcnt(0)'); k('s_barrier')
    for T in range(5): k(f'ds_read_b128 {V(DA+40+4*T)}, v190 offset:{T*1024}')
    add = lambda T: [f'v_pk_add_f32 {V(R0+n,2)}, {V(R0+n,2)}, {V(DA+40+n,2)}' for n in (4*T, 4*T+2)]
    if l == 1:
        store = lambda n: [(f'buffer_store_dwordx4 {V(100)}, v92, s[12:15], 0 offen {OF}', f'buffer_store_dwordx4 {V(104)}, v93, s[12:15], 0 offen {OF}',
                            f'buffer_store_dwordx2 {V(108,2)}, v94, s[12:15], 0 offen {OF}')[n]]
    emit(add(0) + cvt(0) + add(1) + cvt(1) + store(0) + add(2) + cvt(2) + add(3) + cvt(3) + store(1) + add(4) + cvt(4) + store(2))
    if l == 0:
        emit([x for T in range(5) for x in dots(T)] + ptail)
        stamp(f'dnm_{l}')
        cpf(1, 50)
        k('s_barrier')
        k(f's_mul_i32 s51, s{sW}, 37'); k('s_mul_i32 s51, s51, 21846'); k('s_lshr_b32 s51, s51, 16'); k('s_lshl_b32 s51, s51, 10')
        k(f's_mul_i32 s50, s{sJ}, 51200'); k('s_add_u32 s50, s50, s51'); k(f's_add_u32 s50, s50, {WS_BF}'); k(f's_add_u32 s51, s51, {L_B}')
        NB = opt('nb', 6)
        k('s_mov_b32 s76, s50'); k('s_mov_b32 s77, s51')
        if not opt('nobf', 0): emit(wu_dma(0, NB, 77, 76))
        if not opt('m2a', 0): emit(gen_M2())
        emit(vs_prep('Y', 'X20', sgX2, 48))
        k.need(names=['X2S'])
        stamp(f'dne_{l}')
        emit(vs_go('Y', 'X20', sgX2, 48))
        if not opt('nobf', 0): emit(wu_dma(NB, 13, 77, 76))
        if opt('m2a', 0): emit(gen_M2())
    else:
        stamp(f'dne_{l}')
        if DIAG == 'fin' or (STAMP and not o.get('only')): k('s_waitcnt vmcnt(0)'); stamp('fin')

def main():
    prologue()
    k(f's_cmp_lg_u32 s{sW}, 0')
    k.begin('w0', 's_cbranch_scc1')
    k(f'v_lshrrev_b32 v12, 5, v0'); k(f'v_mul_u32_u24 v12, {MBSZ - 512}, v12'); k('v_add_u32 v12, v12, v1')
    for r in range(4): k(f'v_mov_b32 v{16+r}, 0')
    k('s_lshl_b32 s50, s2, 9')
    k('buffer_store_dwordx4 v[16:19], v12, s[4:7], s50 offen sc1', name='CLR')
    k.end()
    setexec(20); k('buffer_load_dword v15, v20, s[8:11], s60 offen'); allexec()
    def adma(m):
        off = (m >> 1)*128 + (m & 1)*640
        L = []
        for hf in range(2):
            L.append([f's_add_u32 m0, s74, {m*2048 + hf*1024 - off}', I(f'buffer_load_dwordx4 v{48+hf}, s[8:11], 0 offen offset:{off} lds', name=f'AD{m}')])
        return L
    NA = opt('na', 3)
    for m in range(NA):
        for g_ in adma(m): emit(g_)
    stamp('iss0')
    k('s_mov_b32 s90, 1'); k('s_mov_b32 s66, -1'); k('s_mov_b32 s67, 0')
    k(f"""
    v_and_b32 v51, 7, v2
    v_xor_b32 v51, v51, v3
    v_lshlrev_b32 v51, 4, v51
    v_lshl_add_u32 v50, v2, 7, v51
    v_add_u32 v50, s74, v50
    v_xor_b32 v51, 64, v50
    """)
    emit(gen_B1())
    stamp('gen1')
    k(f's_cmp_lg_u32 s{sW}, 0')
    k.begin('w0', 's_cbranch_scc1')
    k('s_and_b32 s50, s2, 3'); k('s_lshl_b32 s50, s50, 6'); k('s_add_u32 s50, s32, s50'); k('s_addc_u32 s51, s33, 0')
    k.need(names=['CLR'])
    k('s_atomic_add s90, s[50:51], 0')
    k.end()
    emit(mix(gen_B2() + gen_T5() + pre_addr1(), [g_ for m in range(NA, 10) for g_ in adma(m)]))
    stamp('issA')
    pre_issue()
    stamp('issP')
    emit(gen_M2())
    emit(res_addr())
    k(f'v_add_u32 v8, {L_B}, v1')
    k.need(names=['AD0', 'AD1'])
    for m in range(2): emit(a_lds(m))
    k('s_waitcnt lgkmcnt(4)')
    k('s_barrier')
    stamp('ini')
    for l in range(2):
        if l == 0: d1_body(0, None)
        else:
            emit(gen_T5())
            k(f'v_add_u32 v8, {L_B}, v1')
            k(f's_add_u32 s72, s{sXT}, {WS_X2}'); k(f's_add_u32 s74, s{sST}, {WS_ST[2]}')
            k('v_add_u32 v36, s72, v1'); k('v_add_u32 v37, 10240, v36')
            def ald(n):
                ks, h = n >> 1, n & 1
                return [f'buffer_load_dwordx4 {V(A0 + 4*n)}, v{36+h}, s[4:7], {f"s{15 + ks//4}" if ks >= 4 else 0} offen offset:{(ks % 4)*1024} sc1']
            emit(poll_issue('X20')); emit(poll_wait('X20'))
            stamp('d1p_1')
            NUP = opt('nup', 8)
            for n in range(NUP): emit(ald(n))
            for n in range(4): k(f'buffer_load_dword v{32+n}, v5, s[4:7], s74 offen offset:{256*n} sc1')
            k.need(names=['WU']); k('s_barrier')
            stamp('d1b_1')
            d1_body(1, (NUP, ald))
        stop(f'd1_{l}')
        d2(l); stop(f'd2_{l}')
        up(l); stop(f'up_{l}')
        down(l); stop(f'dn_{l}')
try: main()
except Stop: pass
finish()
k('END:'); k('s_endpgm'); k('CODE_END:')
k.finish()
open(sys.argv[1], 'w').write(build([k], [(k.name, 256, 256, LDS)], single=True))
import json
json.dump(dict(WS_BF=WS_BF, stamps=stampnames, WS_TS=WS_TS, WS_WUF=WS_WUF, WS_WDF=WS_WDF, WS_Z=WS_Z, WS_X1=WS_X1, WS_X2=WS_X2, WS_ST=WS_ST, WS_H=WS_H), open(sys.argv[1] + '.json', 'w'))
print('insts', len(k.ins), 'hi', k.hi, 'nops', sum(1 for i in k.ins if i.kind == 'nop'))
```

```python
import sys, struct, re
from asmx import *
from asmlib import build
o = dict(a.split('=') for a in sys.argv[2:])
STOP = o.get('stop', '')
STAMP = int(o.get('stamp', 0))
def opt(n, d): return int(o.get(n, d))
S, D, F = 2048, 640, 1728
def fl(x): return hex(struct.unpack('<I', struct.pack('<f', x))[0])
MBSZ = 256*4*128
PH = {n: (i & 1)*MBSZ + (i >> 1)*4 for i, n in enumerate(['Z0', 'X10', 'HA0', 'HB0', 'X20', 'Z1', 'X11', 'HA1', 'HB1'])}
WS_TS = 11*MBSZ
WS_WUF = 2 << 20
WS_WDF = WS_WUF + 32*143360
WS_Z = [WS_WDF + 8*286720 + l*3145728 for l in range(2)]
WS_X1 = [WS_Z[1] + 3145728 + l*2621440 for l in range(2)]
WS_X2 = WS_X1[1] + 2621440
WS_ST = [WS_X2 + 2621440 + l*131072 for l in range(3)]
WS_H = [WS_ST[2] + 131072 + l*7340032 for l in range(2)]
WS_BF = WS_H[1] + 7340032
WS_END = WS_BF + 8*51200
L_XCH = 93184
L_B = L_XCH + 12288
L_Z = 132096
L_RED = 93184
L_RAW = 81920
L_CSP = 156672
L_CS = 163328
LDS = 163840
sW, sXCD, sQ, sJ, sCS, sCLS, sSIG, sGAM, sCSU, sMB = range(36, 46)
sXT, sST = 64, 65
sgZ, sgX1, sgH, sgX2 = 82, 84, 86, 88
R0 = 212; WT = 232
def V(a, n=4): return f'v[{a}:{a+n-1}]'
def wdreg(n): return f'a[{4*n}:{4*n+3}]' if n < 64 else V(WT + 4*(n-64))
MF = 'v_mfma_f32_16x16x32_bf16'
k = K(NAME + '_kernel')
nstamp = [0]; stampnames = []
DIAG = o.get('diag')
def stamp(name):
    if o.get('from') == name:
        k('s_memrealtime s[100:101]'); k('s_waitcnt lgkmcnt(0)'); k('s_mov_b32 s98, s100')
    if DIAG == name:
        k('s_memrealtime s[100:101]'); k('s_waitcnt lgkmcnt(0)')
    if not STAMP: return
    if o.get('only') and name not in o['only'].split(':'): return
    if name in stampnames: n = stampnames.index(name)
    else: n = len(stampnames); stampnames.append(name)
    k('s_memrealtime s[62:63]' if STAMP == 1 else 's_memtime s[62:63]'); k('s_waitcnt lgkmcnt(0)')
    k(f'v_writelane_b32 v11, s62, {n}')
def stampL(name):
    if DIAG == name: return ['s_memrealtime s[100:101]', 's_waitcnt lgkmcnt(0)']
    if not STAMP or not (o.get('fine') or name in o.get('only', '').split(':')): return []
    if name in stampnames: n = stampnames.index(name)
    else: n = len(stampnames); stampnames.append(name)
    return ['s_memrealtime s[62:63]' if STAMP == 1 else 's_memtime s[62:63]', 's_waitcnt lgkmcnt(0)', f'v_writelane_b32 v11, s62, {n}']
def finish():
    if DIAG:
        op = o.get('red', 'max')
        k(f's_cmp_lg_u32 s{sW}, 0'); k('s_cbranch_scc1 END')
        if o.get('from'): k('s_sub_u32 s100, s100, s98')
        k('v_mov_b32 v12, s100'); k('s_lshl_b32 s48, s2, 2'); k(f's_add_u32 s48, s48, {WS_TS}')
        setexec(1); k('buffer_store_dword v12, off, s[4:7], s48 sc1'); allexec()
        k('s_cmp_lg_u32 s2, 0'); k('s_cbranch_scc1 END')
        k('PADL:'); k('s_memrealtime s[62:63]'); k('s_waitcnt lgkmcnt(0)')
        k('s_sub_u32 s62, s62, s99'); k('s_cmp_lt_u32 s62, 8000'); k('s_cbranch_scc1 PADL')
        k(f's_mov_b32 s48, {WS_TS}')
        k('buffer_load_dwordx4 v[12:15], v1, s[4:7], s48 offen sc1')
        if not o.get('from'):
            for r in range(4): k(f'v_subrev_u32 v{12+r}, s99, v{12+r}')
        k(f'v_{op}_i32 v12, v12, v13'); k(f'v_{op}_i32 v14, v14, v15'); k(f'v_{op}_i32 v12, v12, v14')
        k('v_readlane_b32 s50, v12, 0')
        for n in range(1, 64):
            k(f'v_readlane_b32 s51, v12, {n}'); k(f's_{op}_i32 s50, s50, s51')
        k(f's_mul_i32 s50, s50, {100 if o.get("from") else 10}'); k('s_add_u32 s50, s50, 20000'); k('s_min_u32 s50, s50, 100000')
        k('PADM:'); k('s_memrealtime s[62:63]'); k('s_waitcnt lgkmcnt(0)')
        k('s_sub_u32 s62, s62, s99'); k('s_cmp_lt_u32 s62, s50'); k('s_cbranch_scc1 PADM')
    if STAMP:
        k(f's_lshl_b32 s48, s{sMB}, 1'); k(f's_add_u32 s48, s48, {WS_TS}')
        k('v_lshlrev_b32 v12, 2, v0')
        k('buffer_store_dword v11, v12, s[4:7], s48 offen')
    k('s_endpgm')
class Stop(Exception): pass
def stop(name):
    if STOP == name:
        k('s_waitcnt vmcnt(0) lgkmcnt(0)'); raise Stop()
def setexec(n, lo=0):
    m = ((1 << n) - 1) << lo
    k(f's_mov_b32 exec_lo, {hex(m & 0xffffffff)}'); k(f's_mov_b32 exec_hi, {hex(m >> 32)}')
def allexec(): k('s_mov_b64 exec, -1')
def align(nm):
    a = opt('al', 0)
    if a:
        k(f'.p2align {a}')
        for n in range(opt('al' + nm, 0)): k('s_nop 0')
def cpf(bit, t=28):
    if not (opt('cpf', 6) >> bit) & 1: return
    k(f"""
    s_lshr_b32 s50, s2, 3
    s_lshl_b32 s50, s50, 2
    s_add_u32 s50, s50, s{sW}
    s_lshl_b32 s50, s50, 9
    v_lshl_add_u32 v{t}, v3, 7, s50
    v_min_u32 v{t}, CODE_END-PC0-4, v{t}
    global_load_dword v{t+1}, v{t}, s[94:95] sc1
    """)
def lines(s): return [l.strip() for l in s.strip().split('\n') if l.strip()]
def emit(L):
    for x in L: k(x)
MAXPOLL = 40000
OF = {'x': '', '1': 'sc1', 'n': 'nt', '01': 'sc0 sc1'}[o.get('of', 'x')]
def poll_issue(ph): return [f's_load_dword s91, s[92:93], {PH[ph]} glc']
def poll_wait(ph):
    L = k.label('POLL'); X = k.label('POLLX')
    return ['s_waitcnt lgkmcnt(0)', 's_cmp_ge_u32 s91, 8', f's_cbranch_scc1 {X}', 's_mov_b32 s68, 0', f'{L}:',
            f's_load_dword s91, s[92:93], {PH[ph]} glc', 's_add_u32 s68, s68, 1', 's_waitcnt lgkmcnt(0)',
            's_cmp_ge_u32 s91, 8', f's_cbranch_scc1 {X}', f's_cmp_lt_u32 s68, {MAXPOLL}', f's_cbranch_scc1 {L}', f'{X}:']
SIGOFF = {sgZ: lambda l: (l >> 2)*512 + (l & 3)*32768, sgX1: lambda l: l*4096, sgH: lambda l: l*4096, sgX2: lambda l: l*4096}
def sig_go(ph, sg): return [f's_atomic_add s90, s[{sg}:{sg+1}], {SIGOFF[sg](l) + PH[ph]}' for l in range(8)]
VS = o.get('vs', 'ZXYH')
def vs_prep(key, ph, sg, va):
    if key not in VS: return []
    if sg == sgZ: L = [f'v_and_b32 v{va}, 3, v0', f'v_bfe_u32 v{va+1}, v0, 2, 1', f'v_lshlrev_b32 v{va}, 15, v{va}', f'v_lshl_add_u32 v{va}, v{va+1}, 9, v{va}']
    else: L = [f'v_and_b32 v{va}, 7, v0', f'v_lshlrev_b32 v{va}, 12, v{va}']
    return L + [f'v_lshrrev_b32 v{va+1}, 3, v0', f'v_lshl_add_u32 v{va}, v{va+1}, 28, v{va}', f'v_mov_b32 v{va+1}, 1',
                f's_sub_u32 s69, s{sg}, s4', f's_add_u32 s69, s69, {PH[ph]}']
def vs_go(key, ph, sg, va):
    if key not in VS: return sig_go(ph, sg)
    return [f'buffer_atomic_add v{va+1}, v{va}, s[4:7], s69 offen sc1']
def mix(a, b):
    a = grp(a); out = []; nb = len(b); done = 0
    for n, x in enumerate(a):
        while done < nb and done*len(a) <= n*nb: out += b[done]; done += 1
        out.append(x)
    for g_ in b[done:]: out += g_
    return out

def prologue():
    k('s_cmp_ge_u32 s2, 256'); k('s_cbranch_scc1 END')
    k('s_getpc_b64 s[94:95]')
    k('PC0:')
    for s_, a in ((4, 'ws'), (16, 'wg'), (20, 'wu'), (24, 'wd'), (8, 'x'), (12, 'out'), (32, 'dbg')):
        k(f's_load_dwordx2 s[{s_}:{s_+1}], s[0:1], {KA[a]}')
    if STAMP: k('s_memrealtime s[62:63]' if STAMP == 1 else 's_memtime s[62:63]')
    if DIAG: k('s_memrealtime s[100:101]')
    k(f"""
    s_lshr_b32 s50, s2, 3
    s_lshl_b32 s50, s50, 11
    v_lshrrev_b32 v12, 4, v0
    v_lshl_add_u32 v12, v12, 7, s50
    v_min_u32 v12, CODE_END-PC0-4, v12
    global_load_dword v13, v12, s[94:95]
    v_lshrrev_b32 v3, 6, v0
    v_and_b32 v0, 63, v0
    v_readfirstlane_b32 s{sW}, v3
    """)
    for s_, n in ((4, 1 << 28), (16, D*F*2), (20, D*F*2), (24, D*F*2), (8, S*D*2), (12, S*D*2), (32, 256)):
        k(f's_mov_b32 s{s_+2}, {n}'); k(f's_mov_b32 s{s_+3}, 0x00020000')
    k(f"""
    v_lshlrev_b32 v1, 4, v0
    v_and_b32 v2, 15, v0
    v_lshrrev_b32 v3, 4, v0
    s_and_b32 s{sXCD}, s2, 7
    s_lshr_b32 s{sQ}, s2, 6
    s_bfe_u32 s{sJ}, s2, 0x30003
    s_lshl_b32 s{sCS}, s{sXCD}, 2
    s_add_u32 s{sCS}, s{sCS}, s{sQ}
    s_lshr_b32 s{sCLS}, s{sCS}, 1
    s_sub_u32 s50, 32, s{sCLS}
    s_cmp_eq_u32 s{sCS}, 1
    s_cselect_b32 s50, 16, s50
    s_bitcmp1_b32 s{sCS}, 0
    s_cselect_b32 s{sCLS}, s50, s{sCLS}
    """)
    k(f"""
    s_lshl_b32 s50, s{sJ}, 3
    s_lshl_b32 s51, s{sW}, 1
    s_add_u32 s50, s50, s51
    s_lshr_b32 s51, s50, 5
    s_lshl_b32 s51, s51, 5
    s_and_b32 s50, s50, 31
    s_lshl_b32 s50, s50, 6
    s_add_u32 s50, s50, s51
    s_add_u32 s50, s50, s{sCLS}
    s_mul_i32 s60, s50, 1280
    v_cmp_lt_u32 vcc, 9, v0
    v_mov_b32 v21, {64*1280 - 1280}
    s_lshr_b32 s50, s{sW}, 1
    s_lshl_b32 s50, s50, 5
    v_cndmask_b32 v20, 0, v21, vcc
    v_lshl_add_u32 v20, v0, 7, v20
    s_and_b32 s51, s{sW}, 1
    s_lshl_b32 s51, s51, 10
    s_add_u32 s50, s50, s51
    s_add_u32 s50, s50, s{sCLS}
    s_mul_i32 s50, s50, 1280
    v_lshrrev_b32 v50, 3, v0
    v_and_b32 v51, 7, v0
    v_xor_b32 v51, v51, v50
    v_mul_u32_u24 v48, 81920, v50
    v_lshl_add_u32 v48, v51, 4, v48
    v_add_u32 v48, s50, v48
    v_add_u32 v49, {8*81920}, v48
    s_mul_i32 s74, s{sW}, 20480
    """)
    if STAMP: k('v_mov_b32 v11, 0')
    k('s_waitcnt lgkmcnt(0)')
    if DIAG: k('s_mov_b32 s99, s100')
    if STAMP:
        k('v_writelane_b32 v11, s62, 0'); stampnames.append('start')

def ids2():
    return lines(f"""
    s_and_b32 s{sGAM}, s{sXCD}, 4
    s_add_u32 s{sGAM}, s{sGAM}, s{sQ}
    s_lshl_b32 s{sCSU}, s{sGAM}, 2
    s_add_u32 s{sCSU}, s{sCSU}, s{sW}
    s_lshl_b32 s{sMB}, s2, 2
    s_add_u32 s{sMB}, s{sMB}, s{sW}
    s_lshl_b32 s{sMB}, s{sMB}, 7
    s_add_u32 s92, s4, s{sMB}
    s_addc_u32 s93, s5, 0
    s_lshl_b32 s50, s{sCS}, 2
    s_add_u32 s50, s50, s{sW}
    s_mul_i32 s{sXT}, s50, 20480
    s_lshl_b32 s{sST}, s50, 10
    s_lshl_b32 s50, s{sW}, 10
    s_lshl_b32 s51, s{sJ}, 12
    s_add_u32 s50, s50, s51
    s_lshr_b32 s51, s{sCS}, 3
    s_lshl_b32 s51, s51, 7
    s_add_u32 s{sgZ}, s50, s51
    s_and_b32 s50, s{sXCD}, 4
    s_and_b32 s51, s{sXCD}, 3
    s_lshl_b32 s51, s51, 6
    s_add_u32 s50, s50, s51
    s_add_u32 s50, s50, s{sW}
    s_lshl_b32 s50, s50, 2
    s_add_u32 s50, s50, s{sQ}
    s_lshl_b32 s{sgX1}, s50, 7
    s_lshl_b32 s50, s{sW}, 6
    s_add_u32 s50, s50, s{sGAM}
    s_lshl_b32 s50, s50, 2
    s_and_b32 s51, s{sXCD}, 3
    s_add_u32 s50, s50, s51
    s_lshl_b32 s{sgH}, s50, 7
    s_lshl_b32 s50, s{sQ}, 6
    s_add_u32 s50, s50, s{sXCD}
    s_lshl_b32 s50, s50, 2
    s_add_u32 s50, s50, s{sW}
    s_lshl_b32 s{sgX2}, s50, 7
    s_mul_i32 s50, s{sJ}, 1280
    s_add_u32 s51, s50, 1024
    s_sub_u32 s52, {79*256}, s50
    v_mov_b32 v12, s51
    v_mov_b32 v13, s52
    v_cndmask_b32 v4, v13, v12, s[66:67]
    v_and_b32 v12, 1, v3
    v_lshl_add_u32 v4, v12, 3, v4
    v_lshl_add_u32 v4, v2, 4, v4
    v_lshlrev_b32 v5, 2, v0
    """) + [x for sg in (sgZ, sgX1, sgH, sgX2) for x in (f's_add_u32 s{sg}, s4, s{sg}', f's_addc_u32 s{sg+1}, s5, 0')]

def nat_addr(a01, a23, a4, t):
    return lines(f"""
    s_lshr_b32 s50, s{sW}, 1
    s_lshl_b32 s50, s50, 5
    s_and_b32 s51, s{sW}, 1
    s_lshl_b32 s51, s51, 10
    s_add_u32 s50, s50, s51
    s_add_u32 s50, s50, s{sCLS}
    v_lshl_add_u32 v{t}, v2, 6, s50
    v_mul_u32_u24 v{t}, 1280, v{t}
    s_mul_i32 s50, s{sJ}, 80
    s_sub_u32 s51, 1200, s50
    v_lshl_add_u32 v{a4}, v3, 4, v{t}
    v_add_u32 v{a01}, s50, v{a4}
    v_add_u32 v{a23}, s51, v{a4}
    s_add_u32 s50, s50, 64
    s_add_u32 s51, s51, 48
    v_mov_b32 v{t+1}, s50
    v_mov_b32 v{t+2}, s51
    v_cndmask_b32 v{a4}, v{t+2}, v{t+1}, s[66:67]
    v_lshl_add_u32 v{a4}, v3, 3, v{a4}
    v_add_u32 v{a4}, v{a4}, v{t}
    """)

A0 = 132; P0 = 88; P1 = 108; P5 = 128; BR = 72; B5 = 68; M2 = 52
def gen_vals(t, ef, base):
    L = []
    for jj in range(1, 8): L.append(f'v_fmamk_f32 v{t+jj}, v{ef}, {fl(float(jj))}, v{base}')
    L.append(f'v_cos_f32 v{t}, v{base}')
    for jj in range(1, 8): L.append(f'v_cos_f32 v{t+jj}, v{t+jj}')
    return L
def pack8(dst, t): return [f'v_cvt_pk_bf16_f32 v{dst+p}, v{t+2*p}, v{t+2*p+1}' for p in range(4)]
def gen_setup(e, ef, base, t, zero_dc):
    L = [f'v_and_b32 v{t}, 2, v0', f'v_cvt_f32_u32 v{ef}, v{e}', f'v_cvt_f32_u32 v{t}, v{t}', f'v_mul_f32 v{t}, 0x3e000000, v{t}']
    if zero_dc: L += [f'v_cmp_eq_u32 vcc, 0, v{e}', f'v_mov_b32 v{t+1}, 0x3e800000', f'v_mul_f32 v{ef}, {fl(1/640)}, v{ef}', f'v_cndmask_b32 v{t}, v{t}, v{t+1}, vcc']
    else: L += [f'v_mul_f32 v{ef}, {fl(1/640)}, v{ef}']
    L += [f'v_lshlrev_b32 v{t+1}, 3, v3', f'v_cvt_f32_u32 v{t+1}, v{t+1}', f'v_fma_f32 v{base}, v{ef}, v{t+1}, v{t}']
    return L
def gen_T5():
    return [f's_mul_i32 s53, s{sJ}, 40', 's_add_u32 s53, s53, 40', 'v_and_b32 v20, 1, v0', 'v_sub_u32 v22, 1, v20', 'v_mul_u32_u24 v22, s53, v22'] \
        + gen_setup(22, 23, 24, 26, False) + gen_vals(26, 23, 24) + pack8(B5, 26)
def gen_run(nfr, C0, C1, PK):
    L = gen_vals(C0, 23, 24) + [f'v_fmamk_f32 v24, v23, {fl(32.0)}, v24', f'v_mul_f32 v34, {fl(32.0)}, v23'] + gen_vals(C1, 23, 24) + ['v_cos_f32 v34, v34']
    for n in range(nfr):
        c, o_ = (C0, C1) if n % 2 == 0 else (C1, C0)
        if n == 2: L.append('v_add_f32 v34, v34, v34')
        if n >= 2:
            for p in range(4): L.append(f'v_pk_fma_f32 {V(c+2*p,2)}, {V(o_+2*p,2)}, v[34:35], {V(c+2*p,2)} op_sel_hi:[1,0,1] neg_lo:[0,0,1] neg_hi:[0,0,1]')
        pk = PK + 4*(n % 2)
        if nfr == 3 and n == 2: L.append('v_add_u32 v25, s57, v1')
        L += pack8(pk, c) + [f'ds_write_b128 v25, {V(pk)} offset:{n*5120}']
    return L
def gen_B1():
    return lines(f"""
    s_mul_i32 s52, s{sJ}, 40
    s_lshr_b32 s53, s{sW}, 1
    s_lshl_b32 s53, s53, 4
    s_and_b32 s54, s{sW}, 1
    s_lshl_b32 s55, s54, 1
    s_add_u32 s53, s53, s55
    s_add_u32 s53, s53, s52
    v_and_b32 v20, 1, v0
    v_and_b32 v21, 12, v0
    v_add3_u32 v22, v20, v21, s53
    s_lshl_b32 s56, s{sW}, 10
    s_add_u32 s56, s56, {L_B}
    v_add_u32 v25, s56, v1
    v_mov_b32 v35, 0
    """) + gen_setup(22, 23, 24, 26, True) + gen_run(10, 88, 96, 104)
def gen_B2():
    return lines(f"""
    s_add_u32 s53, s52, 32
    v_lshrrev_b32 v21, 1, v21
    v_add3_u32 v22, v20, v21, s53
    s_mul_i32 s55, s{sW}, 3
    s_min_u32 s55, s55, 8
    s_mul_i32 s56, s55, 5120
    s_add_u32 s56, s56, {L_B + 4096}
    s_cmp_lt_u32 s{sW}, 2
    s_cselect_b32 s57, s56, {L_CSP - 10240}
    s_lshl_b32 s55, s55, 5
    v_add_u32 v25, s56, v1
    """) + gen_setup(22, 23, 24, 26, False) + ['v_cvt_f32_u32 v26, s55', 'v_fma_f32 v24, v26, v23, v24', 'v_fract_f32 v24, v24'] + gen_run(3, 88, 96, 104)

def gen_M2(tmap=None):
    L = lines(f"""
    s_lshl_b32 s50, s{sW}, 3
    v_lshrrev_b32 v20, 1, v2
    v_add_u32 v20, s50, v20
    v_lshrrev_b32 v21, 1, v20
    v_cmp_eq_u32 vcc, 1, v20
    v_sub_u32 v22, 32, v21
    v_and_b32 v23, 2, v0
    v_cndmask_b32 v22, v22, 16, vcc
    v_cmp_ne_u32 vcc, 0, v23
    v_and_b32 v20, 1, v0
    v_lshl_add_u32 v23, v3, 8, s{sCLS}
    v_cndmask_b32 v21, v21, v22, vcc
    v_lshl_add_u32 v21, v20, 5, v21
    v_mul_u32_u24 v22, v21, v23
    v_and_b32 v22, 2047, v22
    v_bfe_i32 v20, v21, 0, 1
    v_and_b32 v20, 0x80008000, v20
    v_cvt_f32_u32 v21, v21
    v_cvt_f32_u32 v22, v22
    v_mul_f32 v21, {fl(1/64)}, v21
    v_mul_f32 v22, {fl(1/2048)}, v22
    """)
    for kap in range(2):
        for jp in range(2):
            for h in range(2): L.append(f'v_fmamk_f32 v{23+h}, v21, {fl(float(kap + 2*(2*jp + h)))}, v22')
            L += ['v_cos_f32 v25, v23', 'v_cos_f32 v26, v24', 'v_sin_f32 v27, v23', 'v_sin_f32 v28, v24']
            L.append(f'v_cvt_pk_bf16_f32 v{M2 + 4*kap + jp}, v25, v26')
            L.append(f'v_cvt_pk_bf16_f32 v{M2 + 8 + 4*kap + jp}, v27, v28')
            L.append(f'v_xor_b32 v{M2 + 4*kap + jp + 2}, v20, v{M2 + 4*kap + jp}')
            L.append(f'v_xor_b32 v{M2 + 8 + 4*kap + jp + 2}, v20, v{M2 + 8 + 4*kap + jp}')
    if tmap: L = [re.sub(r'\bv(2[0-8])\b', lambda m_: f'v{tmap[int(m_.group(1))-20]}', x).replace('s50', 's69') for x in L]
    return L

def a_lds(m):
    return [f'ds_read_b128 {V(A0 + 8*(2*(m >> 1) + od) + 4*(m & 1))}, v{50+od} offset:{m*2048}' for od in range(2)]
def init_issue():
    k('buffer_load_dword v15, v14, s[32:35], 0 offen sc1')
def init_check():
    L = k.label('INI'); X = k.label('INIX')
    k('s_mov_b32 s68, 0')
    k.need('v15')
    k(f'{L}:')
    k('v_cmp_gt_u32 s[96:97], 64, v15')
    k('s_cmp_eq_u64 s[96:97], 0')
    k(f's_cbranch_scc1 {X}')
    k('s_sleep 10')
    k('buffer_load_dword v15, v14, s[32:35], 0 offen sc1')
    k.ins[-1].kind = 'salu'; k.ins[-1].w = []
    k('s_add_u32 s68, s68, 1')
    k('s_waitcnt vmcnt(0)'); k.ins[-1].kind = 'salu'
    k(f's_cmp_lt_u32 s68, {MAXPOLL}'); k(f's_cbranch_scc1 {L}')
    k(f'{X}:')

PSO = [76, 77, 78, 79, 80, 81, 46, 47, 48, 49]
def d1_body(l, aload):
    S1, S2 = 40, 44
    BRL = [72, 76, 80, 84, 16, 20, 24]; NB = len(BRL)
    XB = L_XCH
    mf = []; fixed = {}
    def fx(g, x, first=False):
        L = fixed.setdefault(g, [])
        L.insert(0, x) if first else L.append(x)
    def p5(ks):
        mf.append(f'{MF} {V(P5)}, {V(A0 + 8*ks)}, {V(B5)}, {V(P5) if ks else 0}')
        mf.append(f'{MF} {V(P5)}, {V(A0 + 8*ks + 4)}, {V(B5)}, {V(P5)}')
    pre = ['v_mov_b32 v30, 0', 'v_mov_b32 v31, 0'] if l == 0 else []
    TK = opt(f'tk{l}', 3)
    border = [(ks, T) for ks in range(10 - TK) for T in range(5)] + [(ks, T) for T in range(5) for ks in range(10 - TK, 10)]
    rd = lambda n: f'ds_read_b128 {V(BRL[n % NB])}, v8 offset:{(border[n][0]*5 + border[n][1])*1024}'
    for n in range(NB-1): k(rd(n))
    tdone = {}; kstart = {}
    def head(ks):
        g0 = len(mf); kstart[ks] = g0
        if l == 0:
            if ks < 5:
                burst = [f'v_dot2c_f32_bf16 v{30 + (n & 1)}, v{A0+16*ks+n}, v{A0+16*ks+n}' for n in range(16)]
                if ks == 4: burst += ['v_add_f32 v30, v30, v31', 'v_mov_b32 v31, 1.0', f'v_mfma_f32_16x16x4_f32 {V(S2)}, v30, v31, 0']
                if ks == 0: pre.extend(burst)
                else:
                    for x in burst: fx(g0-1, x)
                p5(2*ks); p5(2*ks+1); tdone[5] = len(mf)
            if ks < 4:
                fx(g0, Need([], [f'AD{2*ks+2}', f'AD{2*ks+3}']), True)
                for c, x in enumerate(a_lds(2*ks+2) + a_lds(2*ks+3)): fx(g0 + c, x)
        else:
            if ks: fx(g0-2, Need(rr(V(A0 + 8*ks, 8))), True)
            p5(ks); tdone[5] = len(mf)
            for c in range(3):
                n = aload[0] + 3*ks + c
                if n < 20:
                    for x in aload[1](n): fx(g0 + (0, 3, 7)[c], x)
    for n, (ks, T) in enumerate(border):
        if n < 5*(10-TK):
            if T == 0: head(ks)
        elif n == 5*(10-TK):
            for k2 in range(10-TK, 10): head(k2)
        b = V(BRL[n % NB])
        fx(len(mf)-1, Need(rr(b)), True)
        if n + NB - 1 < 50: fx(len(mf), rd(n+NB-1))
        mf.append(f'{MF} {V(P0+4*T)}, {V(A0 + 8*ks)}, {b}, {V(P0+4*T) if ks else 0}')
        mf.append(f'{MF} {V(P1+4*T)}, {V(A0 + 8*ks + 4)}, {b}, {V(P1+4*T) if ks else 0}')
        if ks == 9: tdone[T] = len(mf)
    st = []
    if l == 0:
        isfree = lambda g: all((x if isinstance(x, I) else I(x)).kind == 'need' for x in fixed.get(g, []))
        st += [(x, 0) for x in lines(f"""
        s_lshl_b32 s50, s{sCS}, 2
        s_add_u32 s50, s50, s{sW}
        s_min_u32 s50, s50, 99
        s_lshl_b32 s50, s50, 9
        v_add_u32 v38, s50, v8
        s_mul_i32 s51, s{sJ}, 51200
        s_add_u32 s50, s50, s51
        s_add_u32 s71, s50, {WS_BF}
        v_mov_b32 v39, 0x10000000
        v_cndmask_b32 v39, v39, v1, s[66:67]
        ds_read_b128 {V(40)}, v38
        """)]
        if opt('m2w', 0): st += [(x, 0) for x in gen_M2([28, 32, 33, 34, 35, 36, 13, 14, 38])]
        st.append((f'buffer_store_dwordx4 {V(40)}, v39, s[4:7], s71 offen sc1', 24))
        st += [(I(x.text if isinstance(x, I) and not isinstance(x, G) else x, name='PA2') if not isinstance(x, G) else x, 0) for x in pre_addr2()]
        for c, x in enumerate((f'ds_read_b128 {V(RS[0])}, v13', f'ds_read_b128 {V(RS[4])}, v14 offset:2048', f'ds_read_b64 {V(6,2)}, v28')):
            fx(kstart[3] + 5 + 2*c, I(x, name='RSL'))
        fx(tdone[5] - 2, 's_barrier', True); fx(tdone[5] - 2, Need([], ['RSL']), True)
        late = []
        def put(g, items):
            while g < len(mf) and not isfree(g): g += 1
            if g >= len(mf): late.append(items); return None
            for x in items: fx(g, x)
            return g
        PG = opt('pg', 72)
        fx(PG-1, Need([], ['RAW']), True)
        for p in range(3):
            put(PG, [f'ds_read_b64_tr_b16 {V(R0+4+4*p+2*h, 2)}, v{R0 + (p >> 1)} offset:{(80 if p == 1 else 64 if p == 2 else 0) + 640*h}' for h in range(2)])
        for p in range(3):
            put(PG + 10 + 8*p, [f'buffer_store_dwordx4 {V(R0+4+4*p)}, v{R0 + 2 + (p >> 1)}, s[4:7], s{76 + (p >> 1)} offen offset:{2048*(p & 1)} sc1'])
        assert not late
        W0, WS_ = opt('w0', 68), opt('ws', 7)
        for x in stampL('wpfb') + ([Need([], ['WPF'])] + stampL('wpf') if stampL('wpf') else []): fx(opt('wpg', 40), x)
        for c in range(opt('r1n', 10)):
            a, b = wdma(1, c)
            g = put(W0 + WS_*c, [b])
            if g is None: late[-1] = [a, b]
            else: fx(g-1, a, True)
        print('round1 late', len(late))
    else:
        for x in ['v_add_f32 v32, v32, v33', 'v_add_f32 v34, v34, v35', 'v_add_f32 v32, v32, v34',
                  'v_and_b32 v33, 1, v3', 'v_cvt_f32_u32 v33, v33', 'v_sub_f32 v34, 1.0, v33']: st.append((x, 30))
        fx(47, f'v_mfma_f32_16x16x4_f32 {V(S1)}, v32, v34, 0'); fx(47, f'v_mfma_f32_16x16x4_f32 {V(S2)}, v32, v33, 0')
    for x in ['v_and_b32 v29, 1, v0', 'v_cvt_f32_u32 v29, v29', 'v_fma_f32 v29, v29, -2.0, 1.0',
              f's_and_b32 s50, s{sW}, 1', 's_lshl_b32 s50, s50, 3', f's_lshr_b32 s51, s{sW}, 1', 's_lshl_b32 s51, s51, 10',
              's_add_u32 s50, s50, s51', f'v_add_u32 v10, {XB}, v1', 'v_add_u32 v9, s50, v10',
              f's_lshl_b32 s50, s{sCS}, 3', f's_add_u32 s50, s50, s{sJ}', 's_mul_i32 s50, s50, 12288',
              f's_lshl_b32 s51, s{sW}, 10', 's_add_u32 s50, s50, s51', f's_add_u32 s70, s50, {WS_Z[l]}',
              'v_lshlrev_b32 v12, 6, v2', 'v_lshl_add_u32 v12, v3, 4, v12']: st.append((x, 6 if l == 0 else 48))
    e = tdone[5] + 3 if l == 0 else 54
    for r in range(4):
        if l == 0: st.append((f'v_mov_b32_dpp v{S1+r}, v{P5+r} quad_perm:[1,1,1,1] row_mask:0xf bank_mask:0xf', e))
        st.append((f'v_mul_f32 v{S2+r}, {fl(1/640)}, v{S2+r}', e))
    for r in range(4): st.append((f'v_mul_f32 v{S1+r}, {fl(1/640)}, v{S1+r}', e))
    for r in range(4): st.append((f'v_fma_f32 v{S2+r}, -v{S1+r}, v{S1+r}, v{S2+r}', e))
    for r in range(4): st.append((f'v_max_f32 v{S2+r}, 0, v{S2+r}', e))
    for r in range(4): st.append((f'v_add_f32 v{S2+r}, {fl(1e-5)}, v{S2+r}', e))
    for r in range(4): st.append((f'v_rsq_f32 v{S2+r}, v{S2+r}', e))
    for T in (5, 0, 1, 2, 3, 4):
        p = P0 + 4*T if T < 5 else P5
        e = tdone[T] + 2
        if T < 5:
            for r in range(4): st.append((f'v_fmac_f32 v{p+r}, v29, v{P1+4*T+r}', e))
        for r in range(4): st.append((f'v_mul_f32 v{p+r}, v{p+r}, v{S2+r}', e))
        st.append((f'v_cvt_pk_bf16_f32 v{p}, v{p}, v{p+1}', e)); st.append((f'v_cvt_pk_bf16_f32 v{p+1}, v{p+2}, v{p+3}', e))
        st.append((f'ds_write_b64 v9, {V(p,2)} offset:{T*2048}', e))
    align('g')
    emit(pre)
    if l == 1: k.need(V(A0, 8)); emit(stampL('g1a_1'))
    log = {}
    rest = weave(k, mf, fixed, st, tail=False, log=log)
    print('gemm1 leftover', len(rest), log)
    if l == 0: assert log['PA2'] < min(W0, PG) - 2
    emit(stampL(f'g1m_{l}'))
    if l == 0:
        nt = opt('wt', 2)
        emit(mix([x for x, e in rest], late[:nt])); late = late[nt:]
    else: emit([x for x, e in rest])
    k('s_waitcnt lgkmcnt(0)'); k('s_barrier')
    stamp(f'd1x_{l}')
    FR = A0; AC = 84
    for n in range(12): k(f'ds_read_b128 {V(FR+4*n)}, v10 offset:{n*1024}')
    mf = []; st = []
    for T in range(6):
        t1, t2 = AC + 8*T, AC + 8*T + 4
        for kap in range(2):
            f = V(FR + 4*(2*T + kap))
            mf.append(f'{MF} {V(t1)}, {f}, {V(M2+4*kap)}, {V(t1) if kap else 0}')
            mf.append(f'{MF} {V(t2)}, {f}, {V(M2+8+4*kap)}, {V(t2) if kap else 0}')
        e = len(mf) + 2
        dst = 16 + 4*(T >> 1) + 2*(T & 1)
        for rp in range(2):
            st.append((f'v_add_f32 v{t1+rp}, v{t1+rp}, v{t2+2+rp}', e))
            st.append((f'v_sub_f32 v{t1+2+rp}, v{t1+2+rp}, v{t2+rp}', e))
        for rp in range(2): st.append((f'v_cvt_pk_bf16_f32 v{dst+rp}, v{t1+rp}, v{t1+2+rp}', e))
        if T & 1:
            st.append((I(f'buffer_store_dwordx4 {V(16 + 4*(T>>1))}, v12, s[4:7], s70 offen sc1', name='ZS'), e))
            st.append(('s_add_u32 s70, s70, 4096', e))
    fixed = {}
    if l == 0:
        for c, (a, b) in enumerate(late): fixed[2*c] = [a]; fixed[2*c+1] = [b]
    weave(k, mf, fixed, st)

WA = WT; TA = WT + 7; CSO = WT + 12; CSA = 124
def pre_addr1():
    L = lines(f"""
    s_and_b32 s{sSIG}, s{sXCD}, 3
    s_mul_i32 s75, s{sSIG}, 896
    s_lshl_b32 s{sSIG}, s{sSIG}, 3
    s_add_u32 s{sSIG}, s{sSIG}, s{sJ}
    s_and_b32 s46, s{sCS}, 7
    s_lshl_b32 s46, s46, 2
    s_add_u32 s46, s46, s{sW}
    s_lshr_b32 s47, s{sCS}, 3
    s_mul_i32 s72, s47, 28
    s_add_u32 s48, s72, s46
    s_mul_i32 s72, s48, {16*1280}
    s_cmp_lt_u32 s46, 28
    s_cselect_b32 s72, s72, 0x10000000
    s_mul_i32 s73, s{sW}, 2560
    s_add_u32 s73, s73, {L_RAW}
    s_mul_i32 s76, s{sJ}, 80
    s_mul_i32 s77, s{sJ}, 160
    s_sub_u32 s77, 1120, s77
    s_add_u32 s72, s72, s76
    s_lshr_b32 s78, s2, 3
    s_and_b32 s78, s78, 15
    s_lshl_b32 s78, s78, 2
    s_add_u32 s78, s78, s{sW}
    s_mul_i32 s78, s78, {10*3456}
    s_add_u32 s75, s75, s78
    s_add_u32 s79, s75, {5*3456}
    s_mov_b32 s30, {D*F*2}
    s_mov_b32 s31, 0x00020000
    s_cmp_lt_u32 s{sQ}, 2
    s_cselect_b64 s[28:29], s[16:17], s[20:21]
    v_mov_b32 v47, s77
    """)
    for n in range(3):
        L += [f'v_add_u32 v44, {64*n}, v0', 'v_mul_u32_u24 v45, 6554, v44', 'v_lshrrev_b32 v45, 16, v45', 'v_mul_u32_u24 v46, 10, v45', 'v_sub_u32 v46, v44, v46',
              'v_cmp_lt_u32 vcc, 4, v46', f'v_mul_u32_u24 v{40+n}, 1280, v45', f'v_lshl_add_u32 v{40+n}, v46, 4, v{40+n}', 'v_cndmask_b32 v44, 0, v47, vcc', f'v_add_u32 v{40+n}, v{40+n}, v44']
    L += ['v_min_u32 v44, 34, v0', 'v_mul_u32_u24 v45, 9363, v44', 'v_lshrrev_b32 v45, 16, v45', f'v_mul_u32_u24 v45, {3456 - 896}, v45', 'v_lshl_add_u32 v43, v44, 7, v45']
    return L
def res_addr():
    L = lines(f"""
    s_mul_i32 s50, s{sJ}, 5
    s_sub_u32 s51, 35, s50
    s_add_u32 s52, s50, 4
    s_add_u32 s53, s51, 4
    v_lshl_add_u32 v44, v2, 7, s74
    v_add_u32 v13, s50, v3
    v_add_u32 v14, s51, v3
    v_mov_b32 v28, s52
    v_mov_b32 v45, s53
    v_cndmask_b32 v28, v45, v28, s[66:67]
    """)
    for r in (13, 14, 28):
        L += [f'v_xor_b32 v45, v{r}, v2', f'v_lshrrev_b32 v{r}, 3, v{r}', 'v_and_b32 v45, 7, v45', f'v_lshl_add_u32 v{r}, v{r}, 12, v44', f'v_lshl_add_u32 v{r}, v45, 4, v{r}']
    L += ['v_lshrrev_b32 v45, 1, v3', 'v_lshl_add_u32 v28, v45, 11, v28', 'v_and_b32 v45, 1, v3', 'v_lshl_add_u32 v28, v45, 3, v28']
    return L
RS = [WT+16+n for n in range(8)] + [6, 7]
def pre_issue():
    for n in range(3):
        if n == 2: setexec(32)
        k(f's_add_u32 m0, s73, {n*1024}')
        k(f'buffer_load_dwordx4 v{40+n}, s[24:27], s72 offen lds', name='RAW')
    allexec()
    k('buffer_load_dword v15, v43, s[28:31], s75 offen', name='WPF')
    k('buffer_load_dword v15, v43, s[28:31], s79 offen', name='WPF')
def pre_addr2():
    L = []
    for n in range(7):
        L += [f'v_add_u32 v32, {64*n}, v0', 'v_mul_u32_u24 v33, 9363, v32', 'v_lshrrev_b32 v33, 16, v33', f'v_mul_u32_u24 v33, {3456 - 112}, v33', f'v_lshl_add_u32 v{WA+n}, v32, 4, v33']
    L += lines(f"""
    s_mul_i32 s78, s{sW}, {64*3456}
    s_mul_i32 s79, s{sSIG}, 112
    s_add_u32 s78, s78, s79
    s_mul_i32 s79, s{sW}, 14336
    v_bfe_u32 v32, v0, 2, 2
    v_and_b32 v33, 1, v3
    v_lshl_add_u32 v32, v33, 3, v32
    v_mul_u32_u24 v32, 160, v32
    v_add_u32 v32, s73, v32
    v_and_b32 v34, 3, v0
    v_lshrrev_b32 v35, 1, v3
    v_lshl_add_u32 v{R0}, v34, 4, v32
    v_lshl_add_u32 v{R0}, v35, 3, v{R0}
    v_and_b32 v36, 1, v0
    v_lshl_add_u32 v{R0+1}, v36, 3, v32
    v_bfe_u32 v36, v0, 1, 1
    v_mul_u32_u24 v36, 80, v36
    v_add_u32 v{R0+1}, v{R0+1}, v36
    v_lshlrev_b32 v{R0+3}, 4, v2
    v_lshl_add_u32 v{R0+3}, v33, 8, v{R0+3}
    v_lshl_add_u32 v{R0+2}, v35, 10, v{R0+3}
    v_lshl_add_u32 v{R0+3}, v35, 28, v{R0+3}
    s_lshr_b32 s76, s48, 1
    s_mul_i32 s76, s76, 5120
    s_and_b32 s77, s48, 1
    s_lshl_b32 s77, s77, 9
    s_add_u32 s76, s76, s77
    s_mul_i32 s77, s{sJ}, 286720
    s_add_u32 s76, s76, s77
    s_add_u32 s76, s76, {WS_WDF}
    s_cmp_lt_u32 s46, 28
    s_cselect_b32 s76, s76, 0x10000000
    s_add_u32 s77, s76, 4096
    """)
    return grp(L)
def wdma(rd, c):
    mat, n = divmod(c, 7)
    srd = 28 if rd == 3 else 16 + 4*mat
    return [f's_add_u32 m0, s79, {c*1024 + (4*14336 if rd == 2 else 0)}', I(f'buffer_load_dwordx4 v{WA+n}, s[{srd}:{srd+3}], s{80 if rd == 2 else 78} offen lds', name=f'WR{rd}')]
def wd12(c): return wdma(1 + c//14, c % 14)
def tr_addr():
    return lines(f"""
    v_bfe_u32 v32, v0, 2, 2
    v_lshl_add_u32 v32, v3, 3, v32
    v_mul_u32_u24 v32, 112, v32
    s_mul_i32 s50, s{sW}, 14336
    v_add_u32 v32, s50, v32
    v_and_b32 v33, 3, v0
    v_and_b32 v34, 1, v0
    v_bfe_u32 v35, v0, 1, 1
    v_lshl_add_u32 v{TA}, v33, 4, v32
    v_lshl_add_u32 v{TA+1}, v34, 4, v32
    v_lshl_add_u32 v{TA+1}, v35, 3, v{TA+1}
    v_mul_u32_u24 v35, 7168, v35
    v_lshl_add_u32 v{TA+2}, v34, 3, v32
    v_add_u32 v{TA+2}, v{TA+2}, v35
    v_add_u32 v{TA+3}, s50, v1
    """) + [f'v_mov_b32 v{CSO+r}, 0x3f803f80' for r in range(4)]
def relay_rd(F0, kks):
    L = []
    for kk in kks:
        for T in range(7):
            a, off = (0, (T >> 1)*7168 + 8*(T & 1)) if T < 4 else ((1, (T-4)*7168 + 64) if T < 6 else (2, 96))
            for h in range(2): L.append(f'ds_read_b64_tr_b16 {V(F0 + 28*kk + 4*T + 2*h, 2)}, v{TA+a} offset:{off + kk*3584 + h*448}')
    return L
def relay_wr(F0, kks, first):
    L = []
    for kk in kks:
        for T in range(7):
            f = V(F0 + 28*kk + 4*T)
            L += [f'{MF} {V(CSA+4*T)}, {V(CSO)}, {f}, {0 if (first and kk == 0) else V(CSA+4*T)}', f'ds_write_b128 v{TA+3}, {f} offset:{(7*kk + T)*1024}']
    return L

def pub_parts(pk, nm):
    a = pk + 12
    cvt = lambda T: [f'v_cvt_pk_bf16_f32 v{pk+2*T}, v{R0+4*T}, v{R0+4*T+1}', f'v_cvt_pk_bf16_f32 v{pk+2*T+1}, v{R0+4*T+2}, v{R0+4*T+3}']
    store = lambda n: [I((f'buffer_store_dwordx4 {V(pk)}, v1, s[4:7], s57 offen sc1', f'buffer_store_dwordx4 {V(pk+4)}, v1, s[4:7], s58 offen sc1',
                          f'buffer_store_dwordx2 {V(pk+8,2)}, v4, s[4:7], s56 offen sc1')[n], name=nm)]
    dots = lambda T: [x for n in (2*T, 2*T+1) for x in (f'v_dot2c_f32_bf16 v{a}, s60, v{pk+n}', f'v_dot2c_f32_bf16 v{a+1}, v{pk+n}, v{pk+n}')]
    init = [f'v_mov_b32 v{a}, 0', f'v_mov_b32 v{a+1}, 0', f'v_subrev_u32 v{a+2}, 16, v0', f'v_lshrrev_b32 v{a+3}, 5, v{a+2}', f'v_min_u32 v{a+3}, 1, v{a+3}',
            f'v_lshlrev_b32 v{a+3}, 28, v{a+3}', f'v_add_u32 v{a+2}, v{a+3}, v5']
    tail = [f'v_permlane32_swap_b32 v{a}, v{a+1}', f'v_add_f32 v{a}, v{a}, v{a+1}', f'v_mov_b32 v{a+1}, v{a}',
            f'v_permlane16_swap_b32 v{a}, v{a+1}', f'v_add_f32 v{a}, v{a}, v{a+1}', I(f'buffer_store_dword v{a}, v{a+2}, s[4:7], s59 offen sc1', name=nm)]
    return cvt, store, dots, init, tail
def pub_prep(xbase, stbase):
    return [f's_add_u32 s56, s{sXT}, {xbase}', f's_mul_i32 s59, s{sJ}, 1280', 's_add_u32 s57, s56, s59', 's_sub_u32 s58, s56, s59',
            f's_add_u32 s58, s58, {75*256}', f's_lshl_b32 s59, s{sJ}, 7', f's_add_u32 s59, s59, s{sST}', f's_add_u32 s59, s59, {stbase - 64}',
            's_mov_b32 s60, 0x3f803f80']

ML, MU, ZF, AD, ZA = 40, 48, 60, 30, 100
def d2_prep(l):
    L = lines(f"""
    s_and_b32 s50, s{sW}, 1
    s_lshl_b32 s50, s50, 4
    v_add_u32 v104, s50, v2
    s_lshr_b32 s54, s{sW}, 1
    s_or_b32 s51, s54, s{sCLS}
    s_cmp_eq_u32 s51, 0
    s_cselect_b32 s51, 32, 31
    v_sub_u32 v105, s51, v104
    v_cvt_f32_u32 v104, v104
    v_cvt_f32_u32 v105, v105
    v_cvt_f32_u32 v106, v3
    v_mul_f32 v104, {fl(1/32)}, v104
    v_mul_f32 v105, {fl(1/32)}, v105
    v_add_f32 v106, v106, v106
    v_cmp_eq_u32 vcc, 0, v3
    v_mul_f32 v107, v104, v106
    v_mul_f32 v108, v105, v106
    """)
    for (t, b, dst) in ((104, 107, ML), (105, 108, MU)):
        for q_ in range(4):
            kap, jh = q_ >> 1, q_ & 1
            L.append(f'v_fmamk_f32 v{109+q_}, v{t}, {fl(float(8*kap + jh))}, v{b}')
        L.append(f'v_mul_f32 v121, 0x41800000, v{t}')
        for q_ in range(4): L += [f'v_cos_f32 v{113+q_}, v{109+q_}', f'v_sin_f32 v{117+q_}, v{109+q_}']
        L.append('v_cos_f32 v121, v121')
        for q_ in range(4): L.append(f'v_cvt_pk_bf16_f32 v{dst+2*q_}, v{113+q_}, v{117+q_}')
        L.append('v_cndmask_b32 v113, v113, v121, vcc')
        for q_ in range(4): L.append(f'v_cvt_pk_bf16_f32 v{dst+2*q_+1}, v{113+q_}, -v{117+q_}')
    L += lines(f"""
    v_mul_u32_u24 v104, {8*12288}, v3
    s_mul_i32 s50, s{sW}, {64*12288}
    s_mul_i32 s51, s{sJ}, 12288
    s_add_u32 s50, s50, s51
    s_lshr_b32 s51, s{sCS}, 1
    s_lshl_b32 s51, s51, 8
    s_add_u32 s50, s50, s51
    s_add_u32 s70, s50, {WS_Z[l]}
    s_mul_i32 s71, s{sW}, 6144
    """)
    for n, x in enumerate((0, 4, 1, 5)):
        L += [f'v_xor_b32 v105, {x}, v2', f'v_lshl_add_u32 v{ZA+n}, v105, 4, v104']
    n1 = len(L)
    L += lines(f"""
    s_and_b32 s50, s{sCS}, 1
    s_xor_b32 s51, s50, 1
    s_cmp_lt_u32 s{sCS}, 2
    s_cselect_b32 s51, s50, s51
    s_xor_b32 s52, s54, 1
    s_cmp_eq_u32 s{sCS}, 0
    s_cselect_b32 s52, s54, s52
    s_lshl_b32 s50, s50, 7
    s_lshl_b32 s55, s54, 6
    s_add_u32 s50, s50, s55
    s_lshl_b32 s51, s51, 7
    s_lshl_b32 s52, s52, 6
    s_add_u32 s51, s51, s52
    v_lshrrev_b32 v104, 1, v3
    v_mul_u32_u24 v104, 6144, v104
    v_and_b32 v105, 1, v3
    v_lshl_add_u32 v104, v105, 10, v104
    v_add_u32 v104, {L_Z}, v104
    v_lshlrev_b32 v105, 6, v105
    v_xor_b32 v106, s50, v105
    v_xor_b32 v107, s51, v105
    v_add_u32 v106, v106, v104
    v_add_u32 v107, v107, v104
    v_and_b32 v108, 12, v2
    v_add_u32 v108, v108, v2
    """)
    def fin(T, base):
        return ['v_lshrrev_b32 v110, 4, v109', 'v_and_b32 v111, 15, v109', f'v_lshl_add_u32 v{AD+T}, v110, 11, v{base}',
                'v_and_b32 v110, 1, v110', 'v_lshlrev_b32 v110, 2, v110', 'v_xor_b32 v111, v111, v110', f'v_lshl_add_u32 v{AD+T}, v111, 2, v{AD+T}']
    L += ['v_mov_b32 v109, v108'] + fin(0, 106) + [f'v_xor_b32 v{AD+1}, 16, v{AD}']
    for T in (2, 3):
        L += [f'v_sub_u32 v109, {40 - 4*(T-2)}, v108', 'v_cmp_lt_u32 vcc, 31, v109', 'v_and_b32 v110, 6, v109', 'v_add_u32 v110, v110, v109',
              'v_cndmask_b32 v109, v109, v110, vcc']
        if T == 2: L += ['v_cmp_eq_u32 vcc, 0, v2', 'v_nop', 'v_nop', 'v_cndmask_b32 v109, v109, 34, vcc']
        L += fin(T, 107)
    L += ['v_cmp_gt_u32 vcc, 8, v2', 'v_and_b32 v110, 6, v2', 'v_add3_u32 v110, v110, v2, 32', 'v_sub_u32 v109, 16, v2',
          'v_cndmask_b32 v109, v109, v110, vcc', 'v_cndmask_b32 v112, v107, v106, vcc'] + fin(4, 112)
    return L, n1

def wu_dma(f0, f1, sreg_lds, sreg_src, nm='WU'):
    L = []
    for c, n in enumerate(range(f0, f1)):
        if c % 4 == 0: L += [f's_add_u32 m0, s{sreg_lds}, {n*1024}', f's_add_u32 s61, s{sreg_src}, {n*1024}']
        L.append(I(f'buffer_load_dwordx4 v1, s[4:7], s61 offen offset:{(c % 4)*1024} sc1 lds', name=nm or f'WB{n//7}'))
    return L

def d2(l):
    prep, n1 = d2_prep(l)
    prep = grp(prep + pub_prep(WS_X1[l], WS_ST[l]))
    R1N = opt('r1n', 10); R2A = R1N + opt('r2a', 4); R2B = opt('r2b', 24); R2C = opt('r2c', 25)
    if l == 0:
        k('v_and_b32 v14, 3, v0'); k('v_lshlrev_b32 v14, 6, v14')
        k(f's_add_u32 s80, s78, {4*64*3456}')
        k(f's_cmp_lg_u32 s{sW}, 0'); k.begin('w0', 's_cbranch_scc1'); init_issue(); k.end()
        k('s_barrier')
        emit(stampL('zst0'))
        cut = opt('cut0', 50)
        emit(mix(tr_addr() + ids2() + vs_prep('Z', f'Z{l}', sgZ, 28), [wd12(c) for c in range(R1N, R2A)]))
        emit(prep[:cut])
        emit(stampL('prep0'))
        k(f's_cmp_lg_u32 s{sW}, 0'); k.begin('w0', 's_cbranch_scc1'); init_check(); k.end()
        k.need(names=['ZS']); k('s_barrier')
    else:
        k(f's_mul_i32 s76, s{sSIG}, 143360'); k(f's_add_u32 s76, s76, {WS_WUF}')
        k(f's_mul_i32 s77, s{sW}, {12*1024}'); k(f's_add_u32 s77, s77, {91*1024}')
        k('s_add_u32 s76, s76, s77')
        cut = opt('cut1', 30)
        emit(vs_prep('Z', f'Z{l}', sgZ, 28))
        emit(prep[:cut])
        k.need(names=['ZS'])
    stamp(f'd1e_{l}')
    emit(vs_go('Z', f'Z{l}', sgZ, 28))
    if l == 0:
        PZ = cut + opt('pz0', 90)
        emit(mix(prep[cut:PZ] + poll_issue('Z0') + prep[PZ:], [wd12(c) for c in range(R2A, R2B)]))
    else:
        PZ = cut + opt('pz1', 150)
        emit(prep[cut:PZ] + poll_issue('Z1') + prep[PZ:])
    cvt, store, dots, pinit, ptail = pub_parts(12, 'XS')
    emit(pinit)
    if l == 0:
        assert R2B >= 14
        k.need(names=['WR1'])
        emit(relay_rd(152, (0, 1)))
        emit(stampL('rl1'))
    def unpack():
        for n in range(10):
            k(f'v_lshlrev_b32 v{R0+2*n}, 16, v{RS[n]}'); k(f'v_and_b32 v{R0+2*n+1}, 0xffff0000, v{RS[n]}')
    emit(poll_wait(f'Z{l}'))
    stamp(f'd2p_{l}')
    for p in range(3):
        for hh in range(2):
            k(f's_add_u32 m0, s71, {L_Z + p*2048 + hh*1024}')
            k(f's_add_u32 s50, s70, {p*4096 + hh*4*8*12288}')
            k(f'buffer_load_dwordx4 v{ZA + 2*(p & 1) + hh}, s[4:7], s50 offen sc1 lds', name='ZL')
    if l == 0:
        for c in range(R2B, R2C): emit(wd12(c))
        emit(relay_wr(152, (0, 1), True))
        for a in range(4): k(f'v_add_u32 v{TA+a}, {4*14336}, v{TA+a}')
        unpack()
    k.need(names=['ZL']); k('s_barrier')
    stamp(f'd2l_{l}')
    for T in range(5):
        for kap in range(2):
            for h in range(2):
                k(f'ds_read2st64_b32 {V(ZF+8*T+4*kap+2*h, 2)}, v{AD+T} offset0:{48*kap + 2*h} offset1:{48*kap + 2*h + 1}')
    if l == 0:
        for c in range(R2C, 28): emit(wd12(c))
    r4 = V(R0+16)
    mf = [f'{MF} {V(R0+4*T)}, {V(ZF+8*T+4*kap)}, {V((ML if T < 2 else MU) + 4*kap)}, {V(R0+4*T)}' for T in range(4) for kap in range(2)]
    mf += [f'{MF} {V(56)}, {V(ZF+32)}, {V(ML)}, {r4}', f'{MF} {r4}, {V(ZF+32)}, {V(MU)}, {r4}',
           f'{MF} {V(56)}, {V(ZF+36)}, {V(ML+4)}, {V(56)}', f'{MF} {r4}, {V(ZF+36)}, {V(MU+4)}, {r4}']
    weave(k, mf, {4: cvt(0), 6: cvt(1), 7: store(0), 8: cvt(2), 10: cvt(3), 11: store(1)})
    emit(dots(0) + dots(1))
    for r in range(4): k(f'v_cndmask_b32 v{R0+16+r}, v{R0+16+r}, v{56+r}, s[66:67]')
    emit(cvt(4) + store(2) + dots(2) + dots(3) + dots(4) + ptail)
    k('s_barrier')
    cpf(2*l, 30)
    N2 = opt('n2', 6)
    if l == 0:
        k(f"""
        s_lshr_b32 s50, s{sW}, 1
        s_add_u32 s50, s50, 8
        s_mul_i32 s78, s50, {64*3456}
        s_mul_i32 s51, s{sSIG}, 112
        s_add_u32 s78, s78, s51
        s_mul_i32 s79, s{sW}, 7168
        s_add_u32 s79, s79, {8*14336}
        s_bitcmp1_b32 s{sW}, 0
        s_cselect_b64 s[28:29], s[20:21], s[16:17]
        """)
        R3A = opt('r3a', 4)
        for c in range(R3A): emit(wdma(3, c))
        emit(vs_prep('X', f'X1{l}', sgX1, 28))
        RL = opt('rl', 1)
        if RL >= 1: k.need(names=['WR2']); emit(relay_rd(152, (0, 1)))
        if RL >= 2: k('s_waitcnt lgkmcnt(0)'); emit(relay_wr(152, (0, 1), False))
    else:
        emit(wu_dma(0, N2, 77, 76))
        up_prep(l)
        emit(vs_prep('X', f'X1{l}', sgX1, 28))
    k.need(names=['XS']); k('s_barrier')
    stamp(f'd2e_{l}')
    emit(vs_go('X', f'X1{l}', sgX1, 28))
    if l == 0:
        for c in range(R3A, 7): emit(wdma(3, c))
        if RL < 1: emit(relay_rd(152, (0, 1)))
        up_prep(l)
        wl = [wdld(n) for n in range(opt('wp', 12))]
        if RL < 2:
            k('s_waitcnt lgkmcnt(0)')
            rw = relay_wr(152, (0, 1), False); px = opt('px0', 12)
            emit(mix(rw[:px] + poll_issue('X10') + rw[px:], wl))
        else:
            for x in wl: emit(x)
        k(f"""
        s_lshr_b32 s50, s{sW}, 1
        s_sub_u32 s50, s50, s{sW}
        s_add_u32 s50, s50, 4
        s_mul_i32 s50, s50, 14336
        s_and_b32 s51, s{sW}, 1
        s_mul_i32 s51, s51, 3584
        s_add_u32 s50, s50, s51
        v_add_u32 v{TA}, s50, v{TA}
        v_add_u32 v{TA+1}, s50, v{TA+1}
        v_add_u32 v{TA+2}, s50, v{TA+2}
        v_add_u32 v{TA+3}, s79, v1
        """)
    else:
        emit(wu_dma(N2, 13, 77, 76))
        if opt('tch', 0):
            n = opt('tch', 0)
            k(f'v_min_u32 v32, {n-1}, v0'); k(f'v_mul_u32_u24 v32, {S*D*2//n}, v32'); k('buffer_load_dword v33, v32, s[12:15], 0 offen')

ACC = [12, 68]; BRG = 124; XR = 152; XD = 5; K1 = 192; SS = 196; NM = 200; TM = 204
def acc(h, T, mi): return ACC[h] + (2*T + mi)*4
def epi_stream(h, l, e0):
    st = []
    def grp(G, U, k1, ss, dst):
        if h == 1 and opt('pk', 1):
            b1, b2 = k1 & 1, ss & 1
            for r in (0, 2): st.append(f'v_pk_mul_f32 {V(U+r,2)}, {V(G+r,2)}, {V(U+r,2)}')
            for r in (0, 2): st.append(f'v_pk_mul_f32 {V(G+r,2)}, {V(G+r,2)}, {V(k1-b1,2)} op_sel:[0,{b1}] op_sel_hi:[1,{b1}]')
            for r in range(4): st.append(f'v_exp_f32 v{G+r}, v{G+r}')
            for r in (0, 2): st.append(f'v_pk_fma_f32 {V(G+r,2)}, {V(G+r,2)}, {V(ss-b2,2)}, {V(ss-b2,2)} op_sel:[0,{b2},{b2}] op_sel_hi:[1,{b2},{b2}]')
            for r in range(4): st.append(f'v_rcp_f32 v{G+r}, v{G+r}')
            for r in (0, 2): st.append(f'v_pk_mul_f32 {V(U+r,2)}, {V(U+r,2)}, {V(G+r,2)}')
            st.append(f'v_cvt_pk_bf16_f32 v{dst}, v{U}, v{U+1}'); st.append(f'v_cvt_pk_bf16_f32 v{dst+1}, v{U+2}, v{U+3}')
            return
        for r in range(4): st.append(f'v_mul_f32 v{U+r}, v{G+r}, v{U+r}')
        for r in range(4): st.append(f'v_mul_f32 v{G+r}, v{G+r}, v{k1}')
        for r in range(4): st.append(f'v_exp_f32 v{G+r}, v{G+r}')
        for r in range(4): st.append(f'v_fma_f32 v{G+r}, v{G+r}, v{ss}, v{ss}')
        for r in range(4): st.append(f'v_rcp_f32 v{G+r}, v{G+r}')
        for r in range(4): st.append(f'v_mul_f32 v{U+r}, v{U+r}, v{G+r}')
        st.append(f'v_cvt_pk_bf16_f32 v{dst}, v{U}, v{U+1}'); st.append(f'v_cvt_pk_bf16_f32 v{dst+1}, v{U+2}, v{U+3}')
    nm = f'H{h}'
    for mi in range(2):
        d = acc(h, 0, mi)
        grp(acc(h, 0, mi), acc(h, 2, mi), K1+2*h+mi, SS+2*h+mi, d)
        grp(acc(h, 1, mi), acc(h, 3, mi), K1+2*h+mi, SS+2*h+mi, d+2)
        st.append(I(f'buffer_store_dwordx4 {V(d)}, v1, s[4:7], s{76+2*h+mi} offen sc1', name=nm))
    d = acc(h, 4, 0)
    grp(acc(h, 4, 0), acc(h, 5, 0), K1+2*h, SS+2*h, d)
    grp(acc(h, 4, 1), acc(h, 5, 1), K1+2*h+1, SS+2*h+1, d+2)
    for r in range(4): st.append(f'v_permlane32_swap_b32 v{acc(h,6,0)+r}, v{acc(h,6,1)+r}')
    st.append(f'v_cndmask_b32 v{TM+2}, v{K1+2*h+1}, v{K1+2*h}, s[66:67]')
    st.append(f'v_cndmask_b32 v{TM+3}, v{SS+2*h+1}, v{SS+2*h}, s[66:67]')
    st.append(f'v_permlane32_swap_b32 v{d}, v{d+2}'); st.append(f'v_permlane32_swap_b32 v{d+1}, v{d+3}')
    st.append(I(f'buffer_store_dwordx4 {V(d)}, v6, s[4:7], s{76+2*h} offen sc1', name=nm))
    d = acc(h, 6, 0)
    grp(d, acc(h, 6, 1), TM+2, TM+3, d)
    st.append(I(f'buffer_store_dwordx2 {V(d,2)}, v7, s[4:7], s{76+2*h} offen sc1', name=nm))
    return [(x, e0) for x in st]

def up_prep(l):
    k(f'v_add_u32 v9, {63*1024}, v1'); k(f'v_add_u32 v10, {126*1024}, v1')
    k(f's_mul_i32 s50, s{sCSU}, {4*20480}')
    for rt in range(4): k(f's_add_u32 s{72+rt}, s50, {WS_X1[l] + rt*20480}')
    k(f's_lshl_b32 s80, s{sCSU}, 12'); k(f's_add_u32 s80, s80, {WS_ST[l]}')
    if l == 0:
        k(f"""
        v_lshrrev_b32 v30, 5, v0
        v_mul_u32_u24 v30, 57344, v30
        v_lshl_add_u32 v30, v2, 4, v30
        v_and_b32 v31, 1, v3
        v_lshl_add_u32 v6, v31, 8, v30
        v_add_u32 v6, 1024, v6
        v_lshl_add_u32 v7, v31, 3, v30
        v_add_u32 v7, 1536, v7
        s_mul_i32 s81, s{sJ}, 286720
        s_mul_i32 s50, s{sW}, {70*1024}
        s_add_u32 s81, s81, s50
        s_add_u32 s81, s81, {WS_WDF}
        """)
        for n in range(3): k(f's_mov_b32 s{16+n}, {4096*(n+1)}')
def wdld(n): return [f'buffer_load_dwordx4 {wdreg(n)}, v1, s[4:7], s81 offen offset:{(n % 4)*1024} sc1'] + (['s_add_u32 s81, s81, 4096'] if n % 4 == 3 else [])

def up(l):
    def brd(n):
        f = n % 140
        a, off = (1, f) if f < 63 else ((9, f-63) if f < 126 else (10, f-126))
        return f'ds_read_b128 {V(BRG + 4*(n % 7))}, v{a} offset:{off*1024}'
    def xld(n, mi):
        h, ks = divmod(n, 20)
        return f'buffer_load_dwordx4 {V(XR + 8*(n % XD) + 4*mi)}, v1, s[4:7], s{72+2*h+mi} offen offset:{(ks % 4)*1024} sc1'
    def xadv(n):
        h, ks = divmod(n, 20)
        return [f's_add_u32 s{72+2*h+mi}, s{72+2*h+mi}, 4096' for mi in range(2)] if ks % 4 == 3 else []
    SL = ACC[1]
    def first_loads():
        if l == 1: emit(poll_issue(f'X1{l}'))
        emit(poll_wait(f'X1{l}'))
        stamp(f'upp_{l}')
        for n in range(XD-1):
            for mi in range(2): k(xld(n, mi))
            emit(xadv(n))
    k(f's_mul_i32 s50, s{sCSU}, {4*57344}'); k(f's_mul_i32 s51, s{sSIG}, {7*256}'); k('s_add_u32 s50, s50, s51')
    for rt in range(4): k(f's_add_u32 s{76+rt}, s50, {WS_H[l] + rt*57344}')
    wdn = [0]
    if l == 0:
        wdn[0] = opt('wp', 12)
        k(f's_mul_i32 s50, s{sW}, 448'); k(f's_add_u32 s50, s50, {L_CSP}')
        k(f'v_lshl_add_u32 v{TM+4}, v2, 2, s50')
        k(f'v_min_u32 v{TM+6}, 55, v0'); k(f'v_lshlrev_b32 v{TM+6}, 3, v{TM+6}'); k(f'v_add_u32 v{TM+5}, {L_CSP}, v{TM+6}'); k(f'v_add_u32 v{TM+6}, {L_CS}, v{TM+6}')
        k(f"""
        s_min_u32 s50, s{sGAM}, 6
        s_add_u32 s50, s50, 13
        s_mul_i32 s50, s50, 7168
        s_lshl_b32 s51, s{sW}, 11
        s_min_u32 s51, s51, 5120
        s_add_u32 s50, s50, s51
        v_add_u32 v8, s50, v1
        s_mul_i32 s71, s{sSIG}, 143360
        s_add_u32 s71, s71, {WS_WUF}
        """)
        for T in range(7): k(f'ds_write_b32 v{TM+4}, v{CSA+4*T} offset:{64*T}')
        emit(stampL('rl2'))
        first_loads()
        k('s_barrier')
        for n in range(6): k(brd(n))
    else:
        first_loads()
        for n in range(6): k(brd(n))
        k.need(names=['WU']); k('s_barrier')
    if stampL(f'ux0_{l}'): k.need(V(XR, 8)); emit(stampL(f'ux0_{l}'))
    NWD = [opt('wa', 24), opt('wb', 22)] if l == 0 else [0, 0]
    if opt('nowd', 0): NWD = [0, 0]; wdn[0] = 70
    for h in range(2):
        mf = []; fixed = {}
        def fx(g, x, first=False):
            L = fixed.setdefault(g, [])
            L.insert(0, x) if first else L.append(x)
        for ks in range(20):
            n = 20*h + ks
            for T in range(7):
                g = len(mf); f = 7*n + T
                for mi in range(2):
                    a = V(acc(h, T, mi))
                    mf.append(f'{MF} {a}, {V(BRG+4*T)}, {V(XR + 8*(n % XD) + 4*mi)}, {a if (ks or h) else 0}')
                if f + 6 < 280: fx(g, brd(f+6))
                if T % 2 == 0 and f + 1 < 280:
                    nxt = [BRG + 4*((f+1) % 7)] + ([BRG + 4*((f+2) % 7)] if T < 6 else [])
                    fx(g+1, Need([x for b in nxt for x in rr(V(b))]), True)
            g0 = 14*ks
            if n + XD - 1 < 40:
                fx(g0+3, xld(n+XD-1, 0)); fx(g0+7, xld(n+XD-1, 1))
                for q_, x in enumerate(xadv(n+XD-1)): fx(g0+8+2*q_, x, True)
            if n + 1 < 40: fx(g0+12, Need(rr(V(XR + 8*((n+1) % XD), 8))), True)
            if h == 0 and ks < 4:
                for c in range(4): fx(g0 + (1, 5, 9, 13)[c], f'buffer_load_dword v{SL+4*ks+c}, v5, s[4:7], s80 offen offset:{1024*ks + 256*c} sc1')
            k0 = 4 if h == 0 else 0
            if ks >= k0:
                cnt = NWD[h]*(ks-k0+1)//(20-k0) - NWD[h]*(ks-k0)//(20-k0)
            else: cnt = 1 if (l == 0 and opt('we', 1)) else 0
            if True:
                free = [11, 5, 1] + ([3, 7] if n + XD - 1 >= 40 else [])
                for c in range(cnt):
                    w_ = wdld(wdn[0]); wdn[0] += 1
                    fx(g0 + sorted(free[:cnt])[c], w_[0])
                    if len(w_) > 1: fx(g0 + sorted(free[:cnt])[c] + 1, w_[1], True)
        st = []
        if h == 0:
            for rt in range(4):
                b = SL + 4*rt
                st += [(x, 14*(rt+3)) for x in [f'v_add_f32 v{b}, v{b}, v{b+1}', f'v_add_f32 v{b+2}, v{b+2}, v{b+3}', f'v_add_f32 v{b}, v{b}, v{b+2}',
                       f'v_mov_b32 v{b+1}, v{b}', f'v_permlane32_swap_b32 v{b}, v{b+1}', f'v_add_f32 v{b}, v{b}, v{b+1}',
                       f'v_mov_b32 v{b+1}, v{b}', f'v_permlane16_swap_b32 v{b}, v{b+1}',
                       f'v_mul_f32 v{NM+rt}, {fl(-1/640)}, v{b}', f'v_mul_f32 v{b+1}, {fl(1/640)}, v{b+1}',
                       f'v_fma_f32 v{b+1}, -v{NM+rt}, v{NM+rt}, v{b+1}', f'v_max_f32 v{b+1}, 0, v{b+1}',
                       f'v_add_f32 v{SS+rt}, {fl(1e-5)}, v{b+1}', f'v_rsq_f32 v{K1+rt}, v{SS+rt}',
                       f'v_mul_f32 v{K1+rt}, {fl(-1.4426950408889634)}, v{K1+rt}']]
            st = [(f'v_lshlrev_b32 v{TM+7}, 4, v3', 2), (f'v_add_u32 v{TM+7}, {L_CS}, v{TM+7}', 2)] + st
            if l == 0:
                F3 = 84; g = opt('g3', 8)
                fx(g, Need([], ['WR3']), True); fx(g, 's_barrier')
                rdl = relay_rd(F3, (0,))
                for n, x in enumerate(rdl): fx(g + 2 + 2*n, I(x, name='T3'))
                g += 2 + 28 + 6
                fx(g, Need([], ['T3']), True); fx(g, 's_barrier')
                dst = lambda T: (112, 116)[T] if T < 2 else F3 + 4*(T-2)
                for T in range(7):
                    fx(g + 1 + 2*T, I(f'ds_write_b128 v{TA+3}, {V(F3+4*T)} offset:{T*1024}', name='T3W'))
                    fx(g + 1 + 2*T, f'{MF} {V(dst(T))}, {V(CSO)}, {V(F3+4*T)}, 0')
                g += 18
                for T in range(7): fx(g + T, I(f'ds_write_b32 v{TM+4}, v{dst(T)} offset:{1792 + 64*T}', name='T3W'))
                g += 12
                fx(g, Need([], ['T3W']), True); fx(g, 's_barrier')
                for n in range(8): fx(g + 2 + 2*n, f'ds_read_b64 {V(F3+2*n, 2)}, v{TM+5} offset:{448*n}')
                for n in range(2):
                    fx(g + 18 + 2*n, f'ds_read_b128 {V(112+4*n)}, v8 offset:{n*1024}')
                    fx(14*(8+2*n) + 9, f'buffer_store_dwordx4 {V(112+4*n)}, v8, s[4:7], s71 offen offset:{n*1024} sc1')
                assert g + 24 < 14*8 + 9
                g += 24
                for c, (a_, b_) in enumerate(((0, 1), (2, 3), (4, 5), (6, 7), (0, 2), (4, 6), (0, 4))):
                    for hh in range(2): fx(g + 4*c + 2*hh, f'v_add_f32 v{F3+2*a_+hh}, v{F3+2*a_+hh}, v{F3+2*b_+hh}')
                g += 28
                fx(g, f'ds_write_b64 v{TM+6}, {V(F3, 2)}')
                print('cs done at gap', g)
                assert g < 14*11 - 6
            KS0 = 11
            def capg(g): return 2 - sum(slots(x if isinstance(x, I) else I(x)) for x in fixed.get(g, []) if slots(x if isinstance(x, I) else I(x)) >= 1)
            firstcs = None
            for T in range(7):
                g0 = 14*(KS0 + T) + 2*T
                c = acc(1, T, 1)
                gr = g0 - 3
                while capg(gr) < 2: gr -= 1
                x = I(f'ds_read_b128 {V(c)}, v{TM+7} offset:{64*T}')
                if T == 0: firstcs = x
                fx(gr, x)
                ops = [f'v_fmac_f32 v{acc(0,T,mi)+r}, v{NM+mi}, v{c+r}' for mi in range(2) for r in range(4)]
                g = g0 + 4
                while ops:
                    cap = capg(g)
                    while cap >= 1 and ops: fx(g, ops.pop(0)); cap -= 1
                    g += 1
                if g > g0 + 14: print('warn fmac window', T, g - g0)
                st += [(f'v_mul_f32 v{acc(1,T,mi)+r}, v{NM+2+mi}, v{c+r}', g) for mi in range(2) for r in range(4)]
        else:
            st = epi_stream(0, l, 4) + [(x, 150) for x in down_prep(l)]
            st += [(x, 150) for x in vs_prep('H' if 'H' in VS else 'B', f'HA{l}', sgH, NM)]
        align('u')
        log = {}
        XE = opt('xe', 0)
        left = weave(k, mf, fixed, st, extra=(lambda g: 1 if ((h == 1 and XE and g % XE == 0) or (h == 0 and l == 0 and 80 <= g < 150 and g % opt('xa', 2) == 0)) else 0), log=log)
        if h == 0:
            pos = k.ins.index(firstcs)
            assert all(not (x.text.startswith(f'v_mul_f32 v{K1+rt},')) for x in k.ins[pos:] for rt in range(4)), 'stats not done before cs'
        print('up half', h, 'leftover', left, log)
        stamp(f'up{h}_{l}')
    k.need(names=['H0'])
    emit(vs_go('H', f'HA{l}', sgH, NM))
    k(f's_add_u32 s69, s69, {(PH[f"HB{l}"] - PH[f"HA{l}"]) & 0xffffffff}')
    if l == 0:
        while wdn[0] < 70: emit(wdld(wdn[0])); wdn[0] += 1
    ep = [x for x, e in epi_stream(1, l, 0)]
    c1, c2 = opt('pa', 100), opt('pw', 999)
    emit(ep[:c1]); emit(poll_issue(f'HA{l}')); emit(ep[c1:c2])
    stamp(f'upe_{l}')
    emit(poll_wait(f'HA{l}'))
    stamp(f'dnp_{l}')
    emit(mix(ep[c2:], [[hld(0, n)] for n in range(opt('hu', 7))]) if c2 < len(ep) else [hld(0, n) for n in range(opt('hu', 7))])

HR = 124; DA = 12; HVL = [8, 208, 209, 210]
def hld(ps, ks): return f'buffer_load_dwordx4 {V(HR + 4*ks)}, v{HVL[ps]}, s[4:7], {f"s{15 + ks//4}" if ks >= 4 else 0} offen offset:{(ks % 4)*1024} sc1'
def down_prep(l):
    L = lines(f"""
    s_mul_i32 s50, s{sCS}, {4*57344}
    s_mul_i32 s51, s{sW}, {14*1024}
    s_add_u32 s50, s50, s51
    s_add_u32 s50, s50, {WS_H[l]}
    s_lshr_b32 s54, s{sW}, 1
    s_xor_b32 s54, s54, s{sW}
    s_and_b32 s54, s54, 1
    s_lshl_b32 s51, s{sJ}, 7
    """)
    for p in range(4):
        L += [f's_xor_b32 s55, s54, {(1, 0, 2, 3)[p]}', 's_mul_i32 s52, s55, 57344', 's_add_u32 s52, s50, s52', f'v_add_u32 v{HVL[p]}, s52, v1']
        if opt('spf', 0): L += ['s_add_u32 s52, s52, s51', f's_add_u32 s{22+2*p}, s4, s52', f's_addc_u32 s{23+2*p}, s5, 0']
    return grp(L)
def spf(n):
    p, ks = divmod(n, 14)
    return f's_load_dword s30, s[{22+2*p}:{23+2*p}], {ks*1024}'
def down_prep2():
    L = []
    for p in range(4):
        L += [f's_xor_b32 s55, s54, {(1, 0, 2, 3)[p]}', 's_mul_i32 s53, s55, 15360',
              f's_sub_u32 s52, s{sW}, s55', 's_sub_u32 s52, s52, 1', 's_and_b32 s52, s52, 3', 's_mul_i32 s52, s52, 5120',
              's_add_u32 s52, s52, s53', f's_add_u32 s52, s52, {L_RED}']
        if p & 1: L += [f's_cmp_eq_u32 s55, s{sW}', f's_cselect_b32 s52, {L_CSP}, s52', f's_cselect_b32 s{20 + (p >> 1)}, 1.0, 0']
        L.append(f'v_add_u32 v{184+p}, s52, v1')
    L += [f's_mul_i32 s52, s{sW}, 15360', f's_add_u32 s52, s52, {L_RED}', 'v_add_u32 v188, s52, v1',
          f's_cmp_eq_u32 s{sW}, 3', 's_cselect_b32 s53, 5120, 0', 's_cselect_b32 s55, 0, 10240',
          'v_add_u32 v189, s53, v188', 'v_add_u32 v190, s55, v188']
    return grp(L)
def down(l):
    pB = opt('pb', 19); pI = opt('pi', 8); TMJ = opt('tmj', 7); SB = opt('sb', 0)
    HD = 13
    mf = []; fixed = {}
    def fx(g, x, first=False):
        L = fixed.setdefault(g, [])
        L.insert(0, x) if first else L.append(x)
    def mm(p, ks, T):
        a = V(DA + 20*p + 4*T)
        mf.append(f'{MF} {a}, {wdreg(5*ks+T)}, {V(HR+4*ks)}, {a if ks else 0}')
    nxt = opt('hu', 7)
    for n in range(56 - TMJ):
        p, ks = divmod(n, 14)
        g = len(mf)
        for T in range(5): mm(p, ks, T)
        if n == pB - pI:
            for x in poll_issue(f'HB{l}'): fx(g + 1, x, True)
        if n == pB - 1:
            for x in stampL(f'dnb4_{l}') + poll_wait(f'HB{l}') + stampL(f'dnB_{l}'): fx(g + 4, x)
        if n in (27, 41):
            for x in stampL(f'dn{n}_{l}'): fx(g + 4, x)
        for c in range(2):
            if nxt < 56 and nxt <= n + HD and (nxt < 28 or n >= pB):
                fx(g + 2*c, hld(*divmod(nxt, 14))); nxt += 1
        fx(g+3, Need(rr(V(HR + 4*((n+1) % 14)))), True)
    assert nxt == 56
    if opt('spf', 0):
        a0, a1, b0, dg = opt('sa0', 8), opt('sa1', 20), opt('sb0', 34), opt('sdg', 2)
        def place(g, ns):
            for n in ns:
                while g % 5 == 3: g += 1
                fx(g, I(spf(n)), True); fixed[g][0].w = []; g += dg
        place(10, range(a1, 28)); place(5*pB, range(b0, 56))
    tdone = {}
    for T in range(5):
        for ks in range(14 - TMJ, 14): mm(3, ks, T)
        tdone[T] = len(mf)
    if 'B' not in VS:
        for c, x in enumerate(sig_go(f'HB{l}', sgH)): fx((0, 1, 2, 4, 5, 6, 7, 9)[c], x, True)
    wr = lambda p, T: f'ds_write_b128 v{184+p}, {V(DA + 20*p + 4*T)} offset:{T*1024}'
    for p in range(3):
        for T in range(5): fx(70*(p+1) + (4 + 2*T if p == 2 else 9 + 5*T), wr(p, T))
    ga = 210 + opt('ga', 18)
    fx(ga, 's_waitcnt lgkmcnt(0)', True); fx(ga, 's_barrier')
    st = [(x, 12) for x in down_prep2()]
    cvt, store, dots, pinit, ptail = pub_parts(100, 'X2S')
    pre = pub_prep(WS_X2, WS_ST[2]) + pinit if l == 0 else nat_addr(92, 93, 94, 95)
    st += [(x, 100) for x in pre]
    for n in range(20): st.append((f'v_fmac_f32 v{R0+n}, s20, v{DA+20+n}', 146))
    for T in range(5):
        for s_ in range(2):
            fx(ga + 1 + 2*T + s_, f'ds_read_b128 {V(DA+20*s_+4*T)}, v189 offset:{s_*5120 + T*1024}')
        for s_ in range(2):
            for r in range(4): st.append((f'v_add_f32 v{R0+4*T+r}, v{R0+4*T+r}, v{DA+20*s_+4*T+r}', ga + 9 + 2*T))
    for T in range(4):
        fx(tdone[T] + 3, wr(3, T))
        for r in range(4): st.append((f'v_fmac_f32 v{R0+4*T+r}, s21, v{DA+60+4*T+r}', tdone[T] + 4))
    if opt('spf', 0):
        for n in range(a0, a1): k(spf(n)); k.ins[-1].w = []
    k.need(names=['H1'])
    if 'B' in VS: emit(vs_go('B', f'HB{l}', sgH, NM))
    k('s_barrier')
    k.need(V(HR)); emit(stampL(f'dn0_{l}'))
    align('d')
    X = o.get('exp', '')
    if X and l == 1:
        def keep(x):
            t = x.text if isinstance(x, I) else x
            if 'L' in X and t.startswith('buffer_load'): return False
            if 'W' in X and t.startswith('ds_write'): return False
            if 'B' in X and t.startswith('s_barrier'): return False
            if 'P' in X and (t.startswith(('s_load', 's_cbranch', 's_cmp', 'POLL', 's_waitcnt', 's_mov_b32 s68', 's_add_u32 s68'))): return False
            if 'A' in X and t.startswith('s_atomic'): return False
            if 'R' in X and t.startswith('ds_read'): return False
            return True
        fixed = {g: [x for x in v if keep(x)] for g, v in fixed.items()}
        if 'S' in X: st = [(x, 999) for x, e in st]
    left = weave(k, mf, fixed, st, tail=False)
    print('down leftover', len(left))
    emit(stampL(f'dn55_{l}'))
    k(wr(3, 4))
    emit([x for x, e in left])
    for r in range(4): k(f'v_fmac_f32 v{R0+16+r}, s21, v{DA+76+r}')
    k('s_waitcnt lgkmcnt(0)'); k('s_barrier')
    for T in range(5): k(f'ds_read_b128 {V(DA+40+4*T)}, v190 offset:{T*1024}')
    add = lambda T: [f'v_pk_add_f32 {V(R0+n,2)}, {V(R0+n,2)}, {V(DA+40+n,2)}' for n in (4*T, 4*T+2)]
    if l == 1:
        store = lambda n: [(f'buffer_store_dwordx4 {V(100)}, v92, s[12:15], 0 offen {OF}', f'buffer_store_dwordx4 {V(104)}, v93, s[12:15], 0 offen {OF}',
                            f'buffer_store_dwordx2 {V(108,2)}, v94, s[12:15], 0 offen {OF}')[n]]
    emit(add(0) + cvt(0) + add(1) + cvt(1) + store(0) + add(2) + cvt(2) + add(3) + cvt(3) + store(1) + add(4) + cvt(4) + store(2))
    if l == 0:
        emit([x for T in range(5) for x in dots(T)] + ptail)
        stamp(f'dnm_{l}')
        cpf(1, 50)
        k('s_barrier')
        k(f's_mul_i32 s51, s{sW}, 37'); k('s_mul_i32 s51, s51, 21846'); k('s_lshr_b32 s51, s51, 16'); k('s_lshl_b32 s51, s51, 10')
        k(f's_mul_i32 s50, s{sJ}, 51200'); k('s_add_u32 s50, s50, s51'); k(f's_add_u32 s50, s50, {WS_BF}'); k(f's_add_u32 s51, s51, {L_B}')
        NB = opt('nb', 6)
        k('s_mov_b32 s76, s50'); k('s_mov_b32 s77, s51')
        if not opt('nobf', 0): emit(wu_dma(0, NB, 77, 76))
        if not opt('m2a', 0): emit(gen_M2())
        emit(vs_prep('Y', 'X20', sgX2, 48))
        k.need(names=['X2S'])
        stamp(f'dne_{l}')
        emit(vs_go('Y', 'X20', sgX2, 48))
        if not opt('nobf', 0): emit(wu_dma(NB, 13, 77, 76))
        if opt('m2a', 0): emit(gen_M2())
    else:
        stamp(f'dne_{l}')
        if DIAG == 'fin' or (STAMP and not o.get('only')): k('s_waitcnt vmcnt(0)'); stamp('fin')

def main():
    prologue()
    k(f's_cmp_lg_u32 s{sW}, 0')
    k.begin('w0', 's_cbranch_scc1')
    k(f'v_lshrrev_b32 v12, 5, v0'); k(f'v_mul_u32_u24 v12, {MBSZ - 512}, v12'); k('v_add_u32 v12, v12, v1')
    for r in range(4): k(f'v_mov_b32 v{16+r}, 0')
    k('s_lshl_b32 s50, s2, 9')
    k('buffer_store_dwordx4 v[16:19], v12, s[4:7], s50 offen sc1', name='CLR')
    k.end()
    setexec(20); k('buffer_load_dword v15, v20, s[8:11], s60 offen'); allexec()
    def adma(m):
        off = (m >> 1)*128 + (m & 1)*640
        L = []
        for hf in range(2):
            L.append([f's_add_u32 m0, s74, {m*2048 + hf*1024 - off}', I(f'buffer_load_dwordx4 v{48+hf}, s[8:11], 0 offen offset:{off} lds', name=f'AD{m}')])
        return L
    NA = opt('na', 3)
    for m in range(NA):
        for g_ in adma(m): emit(g_)
    stamp('iss0')
    k('s_mov_b32 s90, 1'); k('s_mov_b32 s66, -1'); k('s_mov_b32 s67, 0')
    k(f"""
    v_and_b32 v51, 7, v2
    v_xor_b32 v51, v51, v3
    v_lshlrev_b32 v51, 4, v51
    v_lshl_add_u32 v50, v2, 7, v51
    v_add_u32 v50, s74, v50
    v_xor_b32 v51, 64, v50
    """)
    emit(gen_B1())
    stamp('gen1')
    k(f's_cmp_lg_u32 s{sW}, 0')
    k.begin('w0', 's_cbranch_scc1')
    k('s_and_b32 s50, s2, 3'); k('s_lshl_b32 s50, s50, 6'); k('s_add_u32 s50, s32, s50'); k('s_addc_u32 s51, s33, 0')
    k.need(names=['CLR'])
    k('s_atomic_add s90, s[50:51], 0')
    k.end()
    emit(mix(gen_B2() + gen_T5() + pre_addr1(), [g_ for m in range(NA, 10) for g_ in adma(m)]))
    stamp('issA')
    pre_issue()
    stamp('issP')
    emit(gen_M2())
    emit(res_addr())
    k(f'v_add_u32 v8, {L_B}, v1')
    k.need(names=['AD0', 'AD1'])
    for m in range(2): emit(a_lds(m))
    k('s_waitcnt lgkmcnt(4)')
    k('s_barrier')
    stamp('ini')
    for l in range(2):
        if l == 0: d1_body(0, None)
        else:
            emit(gen_T5())
            k(f'v_add_u32 v8, {L_B}, v1')
            k(f's_add_u32 s72, s{sXT}, {WS_X2}'); k(f's_add_u32 s74, s{sST}, {WS_ST[2]}')
            k('v_add_u32 v36, s72, v1'); k('v_add_u32 v37, 10240, v36')
            def ald(n):
                ks, h = n >> 1, n & 1
                return [f'buffer_load_dwordx4 {V(A0 + 4*n)}, v{36+h}, s[4:7], {f"s{15 + ks//4}" if ks >= 4 else 0} offen offset:{(ks % 4)*1024} sc1']
            emit(poll_issue('X20')); emit(poll_wait('X20'))
            stamp('d1p_1')
            NUP = opt('nup', 8)
            for n in range(NUP): emit(ald(n))
            for n in range(4): k(f'buffer_load_dword v{32+n}, v5, s[4:7], s74 offen offset:{256*n} sc1')
            k.need(names=['WU']); k('s_barrier')
            stamp('d1b_1')
            d1_body(1, (NUP, ald))
        stop(f'd1_{l}')
        d2(l); stop(f'd2_{l}')
        up(l); stop(f'up_{l}')
        down(l); stop(f'dn_{l}')
try: main()
except Stop: pass
finish()
k('END:'); k('s_endpgm'); k('CODE_END:')
k.finish()
open(sys.argv[1], 'w').write(build([k], [(k.name, 256, 256, LDS)], single=True))
import json
json.dump(dict(WS_BF=WS_BF, stamps=stampnames, WS_TS=WS_TS, WS_WUF=WS_WUF, WS_WDF=WS_WDF, WS_Z=WS_Z, WS_X1=WS_X1, WS_X2=WS_X2, WS_ST=WS_ST, WS_H=WS_H), open(sys.argv[1] + '.json', 'w'))
print('insts', len(k.ins), 'hi', k.hi, 'nops', sum(1 for i in k.ins if i.kind == 'nop'))
```

```python
import re
from asmlib import NAME, HEADER_COMMENT, KA

REG = re.compile(r'^(-?)(abs\()?([vas])(\d+|\[(\d+):(\d+)\])\)?$')
def regs_of(tok):
    tok = tok.strip()
    if tok == 'vcc': return [('s', 'vcc_lo'), ('s', 'vcc_hi')]
    if tok in ('vcc_lo', 'vcc_hi', 'm0', 'exec_lo', 'exec_hi'): return [('s', tok)]
    if tok == 'exec': return [('s', 'exec_lo'), ('s', 'exec_hi')]
    m = REG.match(tok)
    if not m: return []
    if m.group(5) is not None: return [(m.group(3), n) for n in range(int(m.group(5)), int(m.group(6))+1)]
    return [(m.group(3), int(m.group(4)))]

TRANS = ('v_exp_f32', 'v_log_f32', 'v_rcp_f32', 'v_rsq_f32', 'v_sqrt_f32', 'v_sin_f32', 'v_cos_f32')
class I:
    __slots__ = ('items', 'text', 'op', 'kind', 'w', 'r', 'tag', 'name', 'c', 'ab', 'data', 'dpp', 'passes', 'xdl', 'need')
    def __init__(s, text, tag=None, name=None):
        s.text = text; s.tag = tag; s.name = name; s.w = []; s.r = []; s.c = []; s.ab = []; s.data = []
        s.dpp = False; s.passes = 0; s.xdl = False; s.need = None
        t = text.split(';')[0].strip()
        if t.endswith(':'): s.op = t; s.kind = 'label'; return
        if t.startswith('.'): s.op = t; s.kind = 'dir'; return
        parts = t.split(None, 1); op = s.op = parts[0]
        rest = parts[1] if len(parts) > 1 else ''
        rest2 = re.sub(r'(quad_perm|op_sel|op_sel_hi|neg_lo|neg_hi):\[[^\]]*\]', 'mod', rest)
        toks = [x.strip() for x in rest2.split(',')] if rest2 else []
        mods = []
        if toks:
            last = toks[-1].split(); toks[-1] = last[0]; mods = last[1:]
        R = [regs_of(x) for x in toks]
        flat = lambda L: [x for l in L for x in l]
        if op.startswith('v_mfma'):
            s.kind = 'mfma'; s.w = R[0]; s.ab = R[1] + R[2]; s.c = R[3]; s.r = s.ab + s.c
            if '16x16x32_bf16' in op: s.passes, s.xdl = 4, True
            elif '32x32x16_bf16' in op: s.passes, s.xdl = 8, True
            elif '16x16x4_f32' in op: s.passes, s.xdl = 8, False
            else: raise ValueError(op)
        elif op.startswith('v_'):
            s.kind = 'valu'
            s.dpp = op.endswith('_dpp')
            if op.startswith(('v_permlane', 'v_swap')): s.w = R[0] + R[1]; s.r = list(s.w)
            elif op.startswith(('v_add_co', 'v_addc_co', 'v_sub_co')): s.w = R[0] + R[1]; s.r = flat(R[2:])
            elif op.startswith(('v_fmac', 'v_dot2c', 'v_writelane')) or s.dpp: s.w = R[0]; s.r = flat(R)
            elif op == 'v_nop': pass
            else: s.w = R[0]; s.r = flat(R[1:])
        elif op.startswith('ds_read') or op.startswith('ds_bpermute') or op.startswith('ds_swizzle'):
            s.kind = 'dsr'; s.w = R[0]; s.r = flat(R[1:])
        elif op.startswith('ds_'):
            s.kind = 'dsw'; s.r = flat(R)
        elif op.startswith(('buffer_load', 'global_load')):
            if 'lds' in mods or '_lds_' in op: s.kind = 'dma'; s.r = flat(R) + [('s', 'm0')]
            else: s.kind = 'vld'; s.w = R[0]; s.r = flat(R[1:])
        elif op.startswith('buffer_store'):
            s.kind = 'vst'; s.r = flat(R); s.data = R[0]
        elif op.startswith('global_store'):
            s.kind = 'vst'; s.r = flat(R); s.data = R[1]
        elif op.startswith('buffer_atomic'):
            s.r = flat(R)
            if 'sc0' in mods: s.kind = 'vld'; s.w = R[0]
            else: s.kind = 'vst'
        elif op.startswith('s_atomic'):
            s.kind = 'smem'; s.r = flat(R)
            if 'glc' in mods: s.w = R[0]
        elif op == 'phantom_vm': s.kind = 'vst'
        elif op.startswith(('s_load', 's_memtime', 's_memrealtime')):
            s.kind = 'smem'; s.w = R[0]; s.r = flat(R[1:])
        elif op == 's_waitcnt': s.kind = 'wait'
        elif op == 's_nop': s.kind = 'nop'
        elif op == 's_barrier': s.kind = 'barrier'
        elif op.startswith(('s_cbranch', 's_branch', 's_endpgm', 's_setpc', 's_swappc')): s.kind = 'branch'
        elif op.startswith(('s_cmp', 's_bitcmp', 's_sleep', 's_setprio')): s.kind = 'salu'; s.r = flat(R)
        elif op.startswith('s_'):
            s.kind = 'salu'; s.w = R[0]; s.r = flat(R[1:])
        else: raise ValueError('unknown op ' + text)
    def states(s):
        if s.kind in ('label', 'dir', 'need') or s.op == 'phantom_vm': return 0
        if s.kind == 'nop': return int(s.text.split()[1]) + 1
        return 1

class Need(I):
    def __init__(s, regs=(), names=(), tag=None):
        s.text = ''; s.op = 'need'; s.kind = 'need'; s.tag = tag; s.name = None
        s.w = []; s.r = list(regs); s.c = []; s.ab = []; s.data = []; s.dpp = False; s.passes = 0; s.xdl = False; s.need = list(names)

class G(I):
    def __init__(s, items):
        s.items = [x if isinstance(x, I) else I(x) for x in items]
        s.text = ''; s.op = 'group'; s.kind = 'salu'; s.tag = None; s.name = None
        s.w = [x for i in s.items for x in i.w]; s.r = [x for i in s.items for x in i.r]
        s.c = []; s.ab = []; s.data = []; s.dpp = False; s.passes = 0; s.xdl = False; s.need = None
SCC_R = ('s_addc', 's_subb', 's_cselect', 's_cbranch_scc')
def grp(L):
    out = []
    for x in L:
        t = x.text if isinstance(x, I) else x
        if t.startswith(SCC_R):
            p = out.pop()
            out.append(G((p.items if isinstance(p, G) else [p]) + [x]))
        else: out.append(x)
    return out

def rr(spec):
    return regs_of(spec)

class K:
    def __init__(s, name, vgpr=512, sgpr=102, accum=256):
        s.name = name; s.vgpr = vgpr; s.sgpr = sgpr; s.accum = accum
        s.ins = []; s.tag = None; s._lab = 0
    def __call__(s, text, name=None):
        if isinstance(text, G):
            for x in text.items: s(x)
            return
        if isinstance(text, I):
            text.tag = s.tag; s.ins.append(text); return
        for l in text.strip('\n').split('\n'):
            l = l.strip()
            if not l or l.startswith(';'): continue
            s.ins.append(I(l, s.tag, name))
    def need(s, *specs, names=()):
        regs = [x for sp in specs for x in regs_of(sp)]
        s.ins.append(Need(regs, names, s.tag))
    def label(s, base='L'):
        s._lab += 1; return f'{base}{s._lab}'
    def begin(s, tag, branch_text):
        assert s.tag is None
        s._end = s.label('SKIP')
        s(f'{branch_text} {s._end}')
        s.ins.append(('begin', tag)); s.tag = tag
    def end(s):
        s.ins.append(('end', s.tag)); s.tag = None
        s(f'{s._end}:')
    def do_waits(s):
        out = []
        ops = {'vm': [], 'lg': []}
        done = {'vm': set(), 'lg': set()}
        pend = {}
        named = {}
        smem_out = False
        snap = None
        MAXC = {'vm': 63, 'lg': 15}
        def count_after(c, idx, cur):
            x = ops[c][idx]
            if x.kind == 'smem': return 0
            return sum(1 for y in ops[c][idx+1:] if y.kind != 'smem' and (y.tag is None or y.tag == x.tag or y.tag == cur))
        def apply_wait(c, n, cur):
            for idx in range(len(ops[c])):
                if idx not in done[c] and count_after(c, idx, cur) >= n: done[c].add(idx)
        for it in s.ins:
            if isinstance(it, tuple):
                if it[0] == 'begin': snap = {c: set(done[c]) for c in done}; snap_smem = smem_out; snap_pend = {r_: list(v_) for r_, v_ in pend.items()}
                else:
                    for c in done: done[c] = snap[c] | {i for i in done[c] if ops[c][i].tag == it[1]}
                    smem_out = smem_out or snap_smem
                    for r_, v_ in snap_pend.items():
                        for e_ in v_:
                            if e_ not in pend[r_]: pend[r_].append(e_)
                out.append(it); continue
            if it.kind == 'wait':
                m = re.search(r'vmcnt\((\d+)\)', it.text)
                if m: apply_wait('vm', int(m.group(1)), it.tag)
                m = re.search(r'lgkmcnt\((\d+)\)', it.text)
                if m:
                    n = int(m.group(1))
                    if n == 0: smem_out = False; apply_wait('lg', 0, it.tag)
                    else: apply_wait('lg', n, it.tag)
                out.append(it); continue
            req = {}
            def want(c, idx):
                if idx in done[c]: return
                n = min(count_after(c, idx, it.tag), MAXC[c])
                req[c] = min(req.get(c, 99), n)
            touched = list(it.r) + list(it.w)
            for rg in touched:
                for (c, idx) in pend.get(rg, []):
                    if rg not in it.r and ((c == 'vm' and it.kind == 'vld') or (c == 'lg' and it.kind == 'dsr' and ops[c][idx].kind == 'dsr')): continue
                    want(c, idx)
            if it.kind == 'need':
                for nm in it.need:
                    for (c, idx) in named.get(nm, []): want(c, idx)
            if req:
                txt = 's_waitcnt ' + ' '.join(f'{"vmcnt" if c == "vm" else "lgkmcnt"}({n})' for c, n in sorted(req.items(), reverse=True))
                out.append(I(txt, it.tag))
                for c, n in req.items():
                    apply_wait(c, n, it.tag)
                    if c == 'lg' and n == 0: smem_out = False
            if it.kind == 'need': continue
            c = {'vld': 'vm', 'vst': 'vm', 'dma': 'vm', 'dsr': 'lg', 'dsw': 'lg', 'smem': 'lg'}.get(it.kind)
            if c:
                ops[c].append(it); idx = len(ops[c]) - 1
                if it.kind == 'smem': smem_out = True
                for rg in it.w: pend[rg] = [(c, idx)]
                if it.name: named.setdefault(it.name, []).append((c, idx))
            out.append(it)
        s.ins = out
    def do_hazards(s):
        out = []
        def need_states(p, c):
            n = 0
            pw = set(p.w)
            if p.kind == 'valu':
                vw = {x for x in pw if x[0] != 's'}; sw = {x for x in pw if x[0] == 's'}
                isdot = p.op.startswith('v_dot2')
                if vw:
                    if c.kind == 'mfma' and vw & set(c.r): n = max(n, 3 if isdot else 2)
                    if c.kind == 'valu':
                        if vw & set(c.r):
                            if c.op.startswith('v_permlane') or c.dpp: n = max(n, 2)
                            if c.op.startswith(('v_readlane', 'v_readfirstlane')): n = max(n, 1)
                            if p.op.startswith(TRANS) and not c.op.startswith(TRANS): n = max(n, 1)
                        if isdot and c.op != p.op and vw & (set(c.r) | set(c.w)): n = max(n, 3)
                    if isdot and c.kind in ('vst', 'vld', 'dsw', 'dsr', 'dma') and vw & set(c.r): n = max(n, 3)
                if sw:
                    if c.kind == 'valu' and sw & set(c.r): n = max(n, 4 if c.op.startswith(('v_readlane', 'v_writelane')) else 2)
                    if c.kind in ('vld', 'vst', 'dma') and sw & set(c.r): n = max(n, 5)
            elif p.kind == 'mfma':
                base = {4: 8, 8: 12}[p.passes] if p.xdl else {8: 10}[p.passes]
                if c.kind == 'mfma':
                    if pw & set(c.ab): n = max(n, base)
                    if pw & set(c.c):
                        if p.w == c.c and p.op == c.op: pass
                        elif p.xdl: n = max(n, base - 2)
                        elif not c.xdl: n = max(n, 8)
                    elif pw & set(c.w) and not (p.w == c.w and p.op == c.op): n = max(n, base)
                elif c.kind in ('valu', 'vld', 'vst', 'dsr', 'dsw', 'dma'):
                    if pw & (set(c.r) | set(c.w)): n = max(n, base)
                    if c.kind == 'valu' and p.xdl and set(p.c) & set(c.w): n = max(n, p.passes - 1)
            elif p.kind == 'salu':
                if ('s', 'm0') in pw and (c.kind == 'dma' or c.op.startswith('v_writelane')): n = max(n, 1)
            elif p.kind == 'vst':
                if len(p.data) >= 3 and set(p.data) & set(c.w): n = max(n, 2 if c.kind in ('valu', 'mfma') else 1)
            return n
        for it in s.ins:
            if isinstance(it, tuple): continue
            if it.kind not in ('label', 'dir', 'nop', 'wait', 'barrier', 'branch'):
                while True:
                    pad = 0; ppos = None
                    k = len(out) - 1
                    back = []; tot = 0
                    while k >= 0 and tot < 24:
                        y = out[k]; back.append(y); k -= 1
                        if y.tag is None or y.tag == it.tag: tot += y.states()
                    for pi, p in enumerate(back):
                        if p.kind in ('valu', 'mfma', 'salu', 'vst'):
                            n = need_states(p, it)
                            if n:
                                d = sum(y.states() for y in back[:pi] if y.tag is None or y.tag == p.tag or y.tag == it.tag)
                                if n - d > pad: pad = n - d; ppos = len(out) - 1 - pi
                    if pad <= 0: break
                    spot = None
                    for q in range(len(out) - 2, ppos - 1, -1):
                        if out[q].kind == 'mfma' and out[q+1].kind == 'mfma' and out[q].tag == it.tag and out[q+1].tag == it.tag:
                            spot = q; break
                    if spot is None:
                        out.append(I(f's_nop {pad-1}', it.tag)); break
                    out.insert(spot + 1, I(f's_nop {min(pad, 2)-1}', it.tag))
            out.append(it)
        s.ins = out
    def check_scc(s):
        NOW = ('s_mov', 's_mul_i32', 's_mul_hi', 's_cselect', 's_waitcnt', 's_nop', 's_load', 's_atomic', 's_mem', 's_barrier', 's_sleep', 's_getpc', 's_cbranch', 's_branch', 's_bitset', 's_endpgm')
        for n, it in enumerate(s.ins):
            if it.op.startswith(SCC_R):
                q = n - 1
                while True:
                    p = s.ins[q]
                    assert p.kind not in ('mfma', 'label'), ('SCC chain broken', it.text, n)
                    if p.op.startswith('s_') and not p.op.startswith(NOW): break
                    q -= 1
                if it.op.startswith('s_addc'): assert p.op == 's_add_u32' and p.w[0][1] + 1 == it.w[0][1], (p.text, it.text)
                else: assert p.op.startswith(('s_cmp', 's_bitcmp')), (p.text, it.text)
    def finish(s):
        s.do_waits(); s.do_hazards(); s.check_scc()
        hi = {'v': -1, 'a': -1, 's': -1}
        for it in s.ins:
            for (t, n) in list(it.r) + list(it.w):
                if isinstance(n, int): hi[t] = max(hi[t], n)
        assert hi['v'] < s.accum and s.accum + hi['a'] < s.vgpr and hi['s'] < s.sgpr, hi
        s.hi = hi
    def text(s):
        n = s.name
        out = [f'.globl {n}', '.p2align 8', f'.type {n},@function', f'{n}:']
        for it in s.ins:
            if it.op == 'phantom_vm': continue
            out.append(it.text if it.kind == 'label' else '    ' + it.text)
        return '\n'.join(out) + '\n'
    def desc(s):
        return f""".p2align 6
.amdhsa_kernel {s.name}
  .amdhsa_next_free_vgpr {s.vgpr}
  .amdhsa_next_free_sgpr {s.sgpr}
  .amdhsa_accum_offset {s.accum}
  .amdhsa_group_segment_fixed_size 0
  .amdhsa_kernarg_size 96
  .amdhsa_user_sgpr_count 2
  .amdhsa_user_sgpr_kernarg_segment_ptr 1
  .amdhsa_system_sgpr_workgroup_id_x 1
.end_amdhsa_kernel
"""

def slots(i):
    if i.kind == 'need': return 0
    if isinstance(i, G): return len(i.items) - 1
    if i.kind in ('salu', 'wait', 'nop', 'barrier', 'smem', 'branch', 'label'): return 0.5
    if i.kind == 'valu': return 2 if i.op.startswith(TRANS) or i.op.startswith('v_permlane') else 1
    if i.kind == 'dsr': return 1
    return 2


def deps(a, b):
    aw, ar, bw, br = set(a.w), set(a.r), set(b.w), set(b.r)
    if aw & (br | bw) or ar & bw: return True
    mem = ('vld', 'vst', 'dma', 'dsr', 'dsw', 'need', 'salu', 'wait', 'smem', 'barrier', 'branch', 'label')
    return a.kind in mem and b.kind in mem

def weave(k, mf, fixed=None, stream=None, window=24, tail=True, extra=None, log=None, deadline=None):
    mk = lambda x: x if isinstance(x, I) else I(x)
    fixed = {g: [mk(x) for x in v] for g, v in (fixed or {}).items()}
    st = [(mk(x), e) for x, e in (stream or [])]
    for g, m in enumerate(mf):
        if deadline and g in deadline:
            idx = [n for n, (x, e) in enumerate(st) if x.name == deadline[g]]
            if idx:
                for x, e in st[:idx[-1]+1]:
                    assert callable(e) or e <= g + 4, ('deadline pulls item too early', x.text, e, g)
                    k(x)
                if log is not None: log['forced@%d' % g] = idx[-1] + 1
                st = st[idx[-1]+1:]
        k(mk(m))
        cap = 2 + (extra(g) if extra else 0); free_scalar = 1; nvec = 0
        for x in fixed.get(g, []):
            c = slots(x)
            if c == 0:
                if nvec == 0 and free_scalar: free_scalar = 0
            elif c == 0.5:
                if nvec == 0 and free_scalar: free_scalar = 0
                else: cap -= 1
            else: cap -= c; nvec += 1
            k(x)
        last = None
        while st:
            cand = []
            for idx in range(min(window, len(st))):
                x, e = st[idx]
                if (e(log) if callable(e) else e) > g: continue
                if any(deps(st[p][0], x) for p in range(idx)): continue
                c = slots(x)
                if c <= 0.5:
                    if nvec == 0 and free_scalar: cand.append((-1, idx)); break
                    c = 1 if c else 0
                    if x.kind == 'need' and nvec: continue
                if x.kind == 'dsr' and nvec: continue
                if c > cap: continue
                if last is not None and (x.op.startswith('v_permlane') or x.dpp) and set(last.w) & set(x.r): continue
                cand.append((0 if (c == 2) else 1, idx))
            if not cand: break
            cand.sort()
            idx = cand[0][1]
            x, e = st.pop(idx)
            c = slots(x)
            if c <= 0.5 and nvec == 0 and free_scalar: free_scalar = 0
            elif c <= 0.5: cap -= (1 if c else 0)
            else: cap -= c; nvec += 1
            k(x); last = x
            if log is not None and x.name: log[x.name] = g
            if cap <= 0: break
    if tail:
        for x, e in st: k(x)
        return len(st)
    return st
```

```python
import sys, struct, re
from asmx import *
from asmlib import build
o = dict(a.split('=') for a in sys.argv[2:])
STOP = o.get('stop', '')
STAMP = int(o.get('stamp', 0))
def opt(n, d): return int(o.get(n, d))
S, D, F = 2048, 640, 1728
def fl(x): return hex(struct.unpack('<I', struct.pack('<f', x))[0])
MBSZ = 256*4*128
PH = {n: (i & 1)*MBSZ + (i >> 1)*4 for i, n in enumerate(['Z0', 'X10', 'HA0', 'HB0', 'X20', 'Z1', 'X11', 'HA1', 'HB1'])}
WS_TS = 11*MBSZ
WS_WUF = 2 << 20
WS_WDF = WS_WUF + 32*143360
WS_Z = [WS_WDF + 8*286720 + l*3145728 for l in range(2)]
WS_X1 = [WS_Z[1] + 3145728 + l*2621440 for l in range(2)]
WS_X2 = WS_X1[1] + 2621440
WS_ST = [WS_X2 + 2621440 + l*131072 for l in range(3)]
WS_H = [WS_ST[2] + 131072 + l*7340032 for l in range(2)]
WS_BF = WS_H[1] + 7340032
WS_END = WS_BF + 8*51200
L_XCH = 93184
L_B = L_XCH + 12288
L_Z = 132096
L_RED = 93184
L_RAW = 81920
L_CSP = 156672
L_CS = 163328
LDS = 163840
sW, sXCD, sQ, sJ, sCS, sCLS, sSIG, sGAM, sCSU, sMB = range(36, 46)
sXT, sST = 64, 65
sgZ, sgX1, sgH, sgX2 = 82, 84, 86, 88
R0 = 212; WT = 232
def V(a, n=4): return f'v[{a}:{a+n-1}]'
def wdreg(n): return f'a[{4*n}:{4*n+3}]' if n < 64 else V(WT + 4*(n-64))
MF = 'v_mfma_f32_16x16x32_bf16'
k = K(NAME + '_kernel')
nstamp = [0]; stampnames = []
DIAG = o.get('diag')
def stamp(name):
    if o.get('from') == name:
        k('s_memrealtime s[100:101]'); k('s_waitcnt lgkmcnt(0)'); k('s_mov_b32 s98, s100')
    if DIAG == name:
        k('s_memrealtime s[100:101]'); k('s_waitcnt lgkmcnt(0)')
    if not STAMP: return
    if o.get('only') and name not in o['only'].split(':'): return
    if name in stampnames: n = stampnames.index(name)
    else: n = len(stampnames); stampnames.append(name)
    k('s_memrealtime s[62:63]' if STAMP == 1 else 's_memtime s[62:63]'); k('s_waitcnt lgkmcnt(0)')
    k(f'v_writelane_b32 v11, s62, {n}')
def stampL(name):
    if DIAG == name: return ['s_memrealtime s[100:101]', 's_waitcnt lgkmcnt(0)']
    if not STAMP or not (o.get('fine') or name in o.get('only', '').split(':')): return []
    if name in stampnames: n = stampnames.index(name)
    else: n = len(stampnames); stampnames.append(name)
    return ['s_memrealtime s[62:63]' if STAMP == 1 else 's_memtime s[62:63]', 's_waitcnt lgkmcnt(0)', f'v_writelane_b32 v11, s62, {n}']
def finish():
    if DIAG:
        op = o.get('red', 'max')
        k(f's_cmp_lg_u32 s{sW}, 0'); k('s_cbranch_scc1 END')
        if o.get('from'): k('s_sub_u32 s100, s100, s98')
        k('v_mov_b32 v12, s100'); k('s_lshl_b32 s48, s2, 2'); k(f's_add_u32 s48, s48, {WS_TS}')
        setexec(1); k('buffer_store_dword v12, off, s[4:7], s48 sc1'); allexec()
        k('s_cmp_lg_u32 s2, 0'); k('s_cbranch_scc1 END')
        k('PADL:'); k('s_memrealtime s[62:63]'); k('s_waitcnt lgkmcnt(0)')
        k('s_sub_u32 s62, s62, s99'); k('s_cmp_lt_u32 s62, 8000'); k('s_cbranch_scc1 PADL')
        k(f's_mov_b32 s48, {WS_TS}')
        k('buffer_load_dwordx4 v[12:15], v1, s[4:7], s48 offen sc1')
        if not o.get('from'):
            for r in range(4): k(f'v_subrev_u32 v{12+r}, s99, v{12+r}')
        k(f'v_{op}_i32 v12, v12, v13'); k(f'v_{op}_i32 v14, v14, v15'); k(f'v_{op}_i32 v12, v12, v14')
        k('v_readlane_b32 s50, v12, 0')
        for n in range(1, 64):
            k(f'v_readlane_b32 s51, v12, {n}'); k(f's_{op}_i32 s50, s50, s51')
        k(f's_mul_i32 s50, s50, {100 if o.get("from") else 10}'); k('s_add_u32 s50, s50, 20000'); k('s_min_u32 s50, s50, 100000')
        k('PADM:'); k('s_memrealtime s[62:63]'); k('s_waitcnt lgkmcnt(0)')
        k('s_sub_u32 s62, s62, s99'); k('s_cmp_lt_u32 s62, s50'); k('s_cbranch_scc1 PADM')
    if STAMP:
        k(f's_lshl_b32 s48, s{sMB}, 1'); k(f's_add_u32 s48, s48, {WS_TS}')
        k('v_lshlrev_b32 v12, 2, v0')
        k('buffer_store_dword v11, v12, s[4:7], s48 offen')
    k('s_endpgm')
class Stop(Exception): pass
def stop(name):
    if STOP == name:
        k('s_waitcnt vmcnt(0) lgkmcnt(0)'); raise Stop()
def setexec(n, lo=0):
    m = ((1 << n) - 1) << lo
    k(f's_mov_b32 exec_lo, {hex(m & 0xffffffff)}'); k(f's_mov_b32 exec_hi, {hex(m >> 32)}')
def allexec(): k('s_mov_b64 exec, -1')
def align(nm):
    a = opt('al', 0)
    if a:
        k(f'.p2align {a}')
        for n in range(opt('al' + nm, 0)): k('s_nop 0')
def cpf(bit, t=28):
    if not (opt('cpf', 6) >> bit) & 1: return
    k(f"""
    s_lshr_b32 s50, s2, 3
    s_lshl_b32 s50, s50, 2
    s_add_u32 s50, s50, s{sW}
    s_lshl_b32 s50, s50, 9
    v_lshl_add_u32 v{t}, v3, 7, s50
    v_min_u32 v{t}, CODE_END-PC0-4, v{t}
    global_load_dword v{t+1}, v{t}, s[94:95] sc1
    """)
def lines(s): return [l.strip() for l in s.strip().split('\n') if l.strip()]
def emit(L):
    for x in L: k(x)
MAXPOLL = 40000
LF = {'x': '', '1': 'sc1', 'n': 'nt', '1n': 'sc1 nt', '01': 'sc0 sc1'}[o.get('lf', '1')]
OF = {'x': '', '1': 'sc1', 'n': 'nt', '01': 'sc0 sc1'}[o.get('of', 'x')]
def poll_issue(ph): return [f's_load_dword s91, s[92:93], {PH[ph]} glc']
def poll_wait(ph):
    L = k.label('POLL'); X = k.label('POLLX')
    return ['s_waitcnt lgkmcnt(0)', 's_cmp_ge_u32 s91, 8', f's_cbranch_scc1 {X}', 's_mov_b32 s68, 0', f'{L}:',
            f's_load_dword s91, s[92:93], {PH[ph]} glc', 's_add_u32 s68, s68, 1', 's_waitcnt lgkmcnt(0)',
            's_cmp_ge_u32 s91, 8', f's_cbranch_scc1 {X}', f's_cmp_lt_u32 s68, {MAXPOLL}', f's_cbranch_scc1 {L}', f'{X}:']
SIGOFF = {sgZ: lambda l: (l >> 2)*512 + (l & 3)*32768, sgX1: lambda l: l*4096, sgH: lambda l: l*4096, sgX2: lambda l: l*4096}
def sig_go(ph, sg): return [f's_atomic_add s90, s[{sg}:{sg+1}], {SIGOFF[sg](l) + PH[ph]}' for l in range(8)]
VS = o.get('vs', 'ZXYH')
def vs_prep(key, ph, sg, va):
    if key not in VS: return []
    if sg == sgZ: L = [f'v_and_b32 v{va}, 3, v0', f'v_bfe_u32 v{va+1}, v0, 2, 1', f'v_lshlrev_b32 v{va}, 15, v{va}', f'v_lshl_add_u32 v{va}, v{va+1}, 9, v{va}']
    else: L = [f'v_and_b32 v{va}, 7, v0', f'v_lshlrev_b32 v{va}, 12, v{va}']
    return L + [f'v_lshrrev_b32 v{va+1}, 3, v0', f'v_lshl_add_u32 v{va}, v{va+1}, 28, v{va}', f'v_mov_b32 v{va+1}, 1',
                f's_sub_u32 s69, s{sg}, s4', f's_add_u32 s69, s69, {PH[ph]}']
def vs_go(key, ph, sg, va):
    if key not in VS: return sig_go(ph, sg)
    return [f'buffer_atomic_add v{va+1}, v{va}, s[4:7], s69 offen sc1']
def mix(a, b):
    a = grp(a); out = []; nb = len(b); done = 0
    for n, x in enumerate(a):
        while done < nb and done*len(a) <= n*nb: out += b[done]; done += 1
        out.append(x)
    for g_ in b[done:]: out += g_
    return out

def prologue():
    k('s_cmp_ge_u32 s2, 256'); k('s_cbranch_scc1 END')
    k('s_getpc_b64 s[94:95]')
    k('PC0:')
    for s_, a in ((4, 'ws'), (16, 'wg'), (20, 'wu'), (24, 'wd'), (8, 'x'), (12, 'out'), (32, 'dbg')):
        k(f's_load_dwordx2 s[{s_}:{s_+1}], s[0:1], {KA[a]}')
    if STAMP: k('s_memrealtime s[62:63]' if STAMP == 1 else 's_memtime s[62:63]')
    if DIAG: k('s_memrealtime s[100:101]')
    k(f"""
    s_lshr_b32 s50, s2, 3
    s_lshl_b32 s50, s50, 11
    v_lshrrev_b32 v12, 4, v0
    v_lshl_add_u32 v12, v12, 7, s50
    v_min_u32 v12, CODE_END-PC0-4, v12
    global_load_dword v13, v12, s[94:95]
    v_lshrrev_b32 v3, 6, v0
    v_and_b32 v0, 63, v0
    v_readfirstlane_b32 s{sW}, v3
    """)
    for s_, n in ((4, 1 << 28), (16, D*F*2), (20, D*F*2), (24, D*F*2), (8, S*D*2), (12, S*D*2), (32, 256)):
        k(f's_mov_b32 s{s_+2}, {n}'); k(f's_mov_b32 s{s_+3}, 0x00020000')
    k(f"""
    v_lshlrev_b32 v1, 4, v0
    v_and_b32 v2, 15, v0
    v_lshrrev_b32 v3, 4, v0
    s_and_b32 s{sXCD}, s2, 7
    s_lshr_b32 s{sQ}, s2, 6
    s_bfe_u32 s{sJ}, s2, 0x30003
    s_lshl_b32 s{sCS}, s{sXCD}, 2
    s_add_u32 s{sCS}, s{sCS}, s{sQ}
    s_lshr_b32 s{sCLS}, s{sCS}, 1
    s_sub_u32 s50, 32, s{sCLS}
    s_cmp_eq_u32 s{sCS}, 1
    s_cselect_b32 s50, 16, s50
    s_bitcmp1_b32 s{sCS}, 0
    s_cselect_b32 s{sCLS}, s50, s{sCLS}
    """)
    k(f"""
    s_lshl_b32 s50, s{sJ}, 3
    s_lshl_b32 s51, s{sW}, 1
    s_add_u32 s50, s50, s51
    s_lshr_b32 s51, s50, 5
    s_lshl_b32 s51, s51, 5
    s_and_b32 s50, s50, 31
    s_lshl_b32 s50, s50, 6
    s_add_u32 s50, s50, s51
    s_add_u32 s50, s50, s{sCLS}
    s_mul_i32 s60, s50, 1280
    v_cmp_lt_u32 vcc, 9, v0
    v_mov_b32 v21, {64*1280 - 1280}
    s_lshr_b32 s50, s{sW}, 1
    s_lshl_b32 s50, s50, 5
    v_cndmask_b32 v20, 0, v21, vcc
    v_lshl_add_u32 v20, v0, 7, v20
    s_and_b32 s51, s{sW}, 1
    s_lshl_b32 s51, s51, 10
    s_add_u32 s50, s50, s51
    s_add_u32 s50, s50, s{sCLS}
    s_mul_i32 s50, s50, 1280
    v_lshrrev_b32 v50, 3, v0
    v_and_b32 v51, 7, v0
    v_xor_b32 v51, v51, v50
    v_mul_u32_u24 v48, 81920, v50
    v_lshl_add_u32 v48, v51, 4, v48
    v_add_u32 v48, s50, v48
    v_add_u32 v49, {8*81920}, v48
    s_mul_i32 s74, s{sW}, 20480
    """)
    if STAMP: k('v_mov_b32 v11, 0')
    k('s_waitcnt lgkmcnt(0)')
    if DIAG: k('s_mov_b32 s99, s100')
    if STAMP:
        k('v_writelane_b32 v11, s62, 0'); stampnames.append('start')

def ids2():
    return lines(f"""
    s_and_b32 s{sGAM}, s{sXCD}, 4
    s_add_u32 s{sGAM}, s{sGAM}, s{sQ}
    s_lshl_b32 s{sCSU}, s{sGAM}, 2
    s_add_u32 s{sCSU}, s{sCSU}, s{sW}
    s_lshl_b32 s{sMB}, s2, 2
    s_add_u32 s{sMB}, s{sMB}, s{sW}
    s_lshl_b32 s{sMB}, s{sMB}, 7
    s_add_u32 s92, s4, s{sMB}
    s_addc_u32 s93, s5, 0
    s_lshl_b32 s50, s{sCS}, 2
    s_add_u32 s50, s50, s{sW}
    s_mul_i32 s{sXT}, s50, 20480
    s_lshl_b32 s{sST}, s50, 10
    s_lshl_b32 s50, s{sW}, 10
    s_lshl_b32 s51, s{sJ}, 12
    s_add_u32 s50, s50, s51
    s_lshr_b32 s51, s{sCS}, 3
    s_lshl_b32 s51, s51, 7
    s_add_u32 s{sgZ}, s50, s51
    s_and_b32 s50, s{sXCD}, 4
    s_and_b32 s51, s{sXCD}, 3
    s_lshl_b32 s51, s51, 6
    s_add_u32 s50, s50, s51
    s_add_u32 s50, s50, s{sW}
    s_lshl_b32 s50, s50, 2
    s_add_u32 s50, s50, s{sQ}
    s_lshl_b32 s{sgX1}, s50, 7
    s_lshl_b32 s50, s{sW}, 6
    s_add_u32 s50, s50, s{sGAM}
    s_lshl_b32 s50, s50, 2
    s_and_b32 s51, s{sXCD}, 3
    s_add_u32 s50, s50, s51
    s_lshl_b32 s{sgH}, s50, 7
    s_lshl_b32 s50, s{sQ}, 6
    s_add_u32 s50, s50, s{sXCD}
    s_lshl_b32 s50, s50, 2
    s_add_u32 s50, s50, s{sW}
    s_lshl_b32 s{sgX2}, s50, 7
    s_mul_i32 s50, s{sJ}, 1280
    s_add_u32 s51, s50, 1024
    s_sub_u32 s52, {79*256}, s50
    v_mov_b32 v12, s51
    v_mov_b32 v13, s52
    v_cndmask_b32 v4, v13, v12, s[66:67]
    v_and_b32 v12, 1, v3
    v_lshl_add_u32 v4, v12, 3, v4
    v_lshl_add_u32 v4, v2, 4, v4
    v_lshlrev_b32 v5, 2, v0
    """) + [x for sg in (sgZ, sgX1, sgH, sgX2) for x in (f's_add_u32 s{sg}, s4, s{sg}', f's_addc_u32 s{sg+1}, s5, 0')]

def nat_addr(a01, a23, a4, t):
    return lines(f"""
    s_lshr_b32 s50, s{sW}, 1
    s_lshl_b32 s50, s50, 5
    s_and_b32 s51, s{sW}, 1
    s_lshl_b32 s51, s51, 10
    s_add_u32 s50, s50, s51
    s_add_u32 s50, s50, s{sCLS}
    v_lshl_add_u32 v{t}, v2, 6, s50
    v_mul_u32_u24 v{t}, 1280, v{t}
    s_mul_i32 s50, s{sJ}, 80
    s_sub_u32 s51, 1200, s50
    v_lshl_add_u32 v{a4}, v3, 4, v{t}
    v_add_u32 v{a01}, s50, v{a4}
    v_add_u32 v{a23}, s51, v{a4}
    s_add_u32 s50, s50, 64
    s_add_u32 s51, s51, 48
    v_mov_b32 v{t+1}, s50
    v_mov_b32 v{t+2}, s51
    v_cndmask_b32 v{a4}, v{t+2}, v{t+1}, s[66:67]
    v_lshl_add_u32 v{a4}, v3, 3, v{a4}
    v_add_u32 v{a4}, v{a4}, v{t}
    """)

A0 = 132; P0 = 88; P1 = 108; P5 = 128; BR = 72; B5 = 68; M2 = 52
def gen_vals(t, ef, base):
    L = []
    for jj in range(1, 8): L.append(f'v_fmamk_f32 v{t+jj}, v{ef}, {fl(float(jj))}, v{base}')
    L.append(f'v_cos_f32 v{t}, v{base}')
    for jj in range(1, 8): L.append(f'v_cos_f32 v{t+jj}, v{t+jj}')
    return L
def pack8(dst, t): return [f'v_cvt_pk_bf16_f32 v{dst+p}, v{t+2*p}, v{t+2*p+1}' for p in range(4)]
def gen_setup(e, ef, base, t, zero_dc):
    L = [f'v_and_b32 v{t}, 2, v0', f'v_cvt_f32_u32 v{ef}, v{e}', f'v_cvt_f32_u32 v{t}, v{t}', f'v_mul_f32 v{t}, 0x3e000000, v{t}']
    if zero_dc: L += [f'v_cmp_eq_u32 vcc, 0, v{e}', f'v_mov_b32 v{t+1}, 0x3e800000', f'v_mul_f32 v{ef}, {fl(1/640)}, v{ef}', f'v_cndmask_b32 v{t}, v{t}, v{t+1}, vcc']
    else: L += [f'v_mul_f32 v{ef}, {fl(1/640)}, v{ef}']
    L += [f'v_lshlrev_b32 v{t+1}, 3, v3', f'v_cvt_f32_u32 v{t+1}, v{t+1}', f'v_fma_f32 v{base}, v{ef}, v{t+1}, v{t}']
    return L
def gen_T5():
    return [f's_mul_i32 s53, s{sJ}, 40', 's_add_u32 s53, s53, 40', 'v_and_b32 v20, 1, v0', 'v_sub_u32 v22, 1, v20', 'v_mul_u32_u24 v22, s53, v22'] \
        + gen_setup(22, 23, 24, 26, False) + gen_vals(26, 23, 24) + pack8(B5, 26)
def gen_run(nfr, C0, C1, PK):
    L = gen_vals(C0, 23, 24) + [f'v_fmamk_f32 v24, v23, {fl(32.0)}, v24', f'v_mul_f32 v34, {fl(32.0)}, v23'] + gen_vals(C1, 23, 24) + ['v_cos_f32 v34, v34']
    for n in range(nfr):
        c, o_ = (C0, C1) if n % 2 == 0 else (C1, C0)
        if n == 2: L.append('v_add_f32 v34, v34, v34')
        if n >= 2:
            for p in range(4): L.append(f'v_pk_fma_f32 {V(c+2*p,2)}, {V(o_+2*p,2)}, v[34:35], {V(c+2*p,2)} op_sel_hi:[1,0,1] neg_lo:[0,0,1] neg_hi:[0,0,1]')
        pk = PK + 4*(n % 2)
        if nfr == 3 and n == 2: L.append('v_add_u32 v25, s57, v1')
        L += pack8(pk, c) + [f'ds_write_b128 v25, {V(pk)} offset:{n*5120}']
    return L
def gen_B1():
    return lines(f"""
    s_mul_i32 s52, s{sJ}, 40
    s_lshr_b32 s53, s{sW}, 1
    s_lshl_b32 s53, s53, 4
    s_and_b32 s54, s{sW}, 1
    s_lshl_b32 s55, s54, 1
    s_add_u32 s53, s53, s55
    s_add_u32 s53, s53, s52
    v_and_b32 v20, 1, v0
    v_and_b32 v21, 12, v0
    v_add3_u32 v22, v20, v21, s53
    s_lshl_b32 s56, s{sW}, 10
    s_add_u32 s56, s56, {L_B}
    v_add_u32 v25, s56, v1
    v_mov_b32 v35, 0
    """) + gen_setup(22, 23, 24, 26, True) + gen_run(10, 88, 96, 104)
def gen_B2():
    return lines(f"""
    s_add_u32 s53, s52, 32
    v_lshrrev_b32 v21, 1, v21
    v_add3_u32 v22, v20, v21, s53
    s_mul_i32 s55, s{sW}, 3
    s_min_u32 s55, s55, 8
    s_mul_i32 s56, s55, 5120
    s_add_u32 s56, s56, {L_B + 4096}
    s_cmp_lt_u32 s{sW}, 2
    s_cselect_b32 s57, s56, {L_CSP - 10240}
    s_lshl_b32 s55, s55, 5
    v_add_u32 v25, s56, v1
    """) + gen_setup(22, 23, 24, 26, False) + ['v_cvt_f32_u32 v26, s55', 'v_fma_f32 v24, v26, v23, v24', 'v_fract_f32 v24, v24'] + gen_run(3, 88, 96, 104)

def gen_M2(tmap=None):
    L = lines(f"""
    s_lshl_b32 s50, s{sW}, 3
    v_lshrrev_b32 v20, 1, v2
    v_add_u32 v20, s50, v20
    v_lshrrev_b32 v21, 1, v20
    v_cmp_eq_u32 vcc, 1, v20
    v_sub_u32 v22, 32, v21
    v_and_b32 v23, 2, v0
    v_cndmask_b32 v22, v22, 16, vcc
    v_cmp_ne_u32 vcc, 0, v23
    v_and_b32 v20, 1, v0
    v_lshl_add_u32 v23, v3, 8, s{sCLS}
    v_cndmask_b32 v21, v21, v22, vcc
    v_lshl_add_u32 v21, v20, 5, v21
    v_mul_u32_u24 v22, v21, v23
    v_and_b32 v22, 2047, v22
    v_bfe_i32 v20, v21, 0, 1
    v_and_b32 v20, 0x80008000, v20
    v_cvt_f32_u32 v21, v21
    v_cvt_f32_u32 v22, v22
    v_mul_f32 v21, {fl(1/64)}, v21
    v_mul_f32 v22, {fl(1/2048)}, v22
    """)
    for kap in range(2):
        for jp in range(2):
            for h in range(2): L.append(f'v_fmamk_f32 v{23+h}, v21, {fl(float(kap + 2*(2*jp + h)))}, v22')
            L += ['v_cos_f32 v25, v23', 'v_cos_f32 v26, v24', 'v_sin_f32 v27, v23', 'v_sin_f32 v28, v24']
            L.append(f'v_cvt_pk_bf16_f32 v{M2 + 4*kap + jp}, v25, v26')
            L.append(f'v_cvt_pk_bf16_f32 v{M2 + 8 + 4*kap + jp}, v27, v28')
            L.append(f'v_xor_b32 v{M2 + 4*kap + jp + 2}, v20, v{M2 + 4*kap + jp}')
            L.append(f'v_xor_b32 v{M2 + 8 + 4*kap + jp + 2}, v20, v{M2 + 8 + 4*kap + jp}')
    if tmap: L = [re.sub(r'\bv(2[0-8])\b', lambda m_: f'v{tmap[int(m_.group(1))-20]}', x).replace('s50', 's69') for x in L]
    return L

def a_lds(m):
    return [f'ds_read_b128 {V(A0 + 8*(2*(m >> 1) + od) + 4*(m & 1))}, v{50+od} offset:{m*2048}' for od in range(2)]
def init_issue():
    k('buffer_load_dword v15, v14, s[32:35], 0 offen sc1')
def init_check():
    L = k.label('INI'); X = k.label('INIX')
    k('s_mov_b32 s68, 0')
    k.need('v15')
    k(f'{L}:')
    k('v_cmp_gt_u32 s[96:97], 64, v15')
    k('s_cmp_eq_u64 s[96:97], 0')
    k(f's_cbranch_scc1 {X}')
    k('s_sleep 10')
    k('buffer_load_dword v15, v14, s[32:35], 0 offen sc1')
    k.ins[-1].kind = 'salu'; k.ins[-1].w = []
    k('s_add_u32 s68, s68, 1')
    k('s_waitcnt vmcnt(0)'); k.ins[-1].kind = 'salu'
    k(f's_cmp_lt_u32 s68, {MAXPOLL}'); k(f's_cbranch_scc1 {L}')
    k(f'{X}:')

PSO = [76, 77, 78, 79, 80, 81, 46, 47, 48, 49]
def d1_body(l, aload):
    S1, S2 = 40, 44
    BRL = [72, 76, 80, 84, 16, 20, 24]; NB = len(BRL)
    XB = L_XCH
    mf = []; fixed = {}
    def fx(g, x, first=False):
        L = fixed.setdefault(g, [])
        L.insert(0, x) if first else L.append(x)
    def p5(ks):
        mf.append(f'{MF} {V(P5)}, {V(A0 + 8*ks)}, {V(B5)}, {V(P5) if ks else 0}')
        mf.append(f'{MF} {V(P5)}, {V(A0 + 8*ks + 4)}, {V(B5)}, {V(P5)}')
    GG = R0 + 16
    TK = opt(f'tk{l}', 3)
    border = [(ks, T) for ks in range(10 - TK) for T in range(5)] + [(ks, T) for T in (4, 0, 1, 2, 3) for ks in range(10 - TK, 10)]
    rd = lambda n: f'ds_read_b128 {V(BRL[n % NB])}, v8 offset:{(border[n][0]*5 + border[n][1])*1024}'
    for n in range(NB-1): k(rd(n))
    tdone = {}; kstart = {}
    def head(ks):
        g0 = len(mf); kstart[ks] = g0
        if l == 0:
            if ks < 5:
                for c in range(4): mf.append(f'{MF} {V(GG)}, {V(A0+16*ks+4*c)}, {V(A0+16*ks+4*c)}, {V(GG) if (ks or c) else 0}')
                tdone['g'] = len(mf)
                p5(2*ks); p5(2*ks+1); tdone[5] = len(mf)
            if ks < 4:
                fx(g0, Need([], [f'AD{2*ks+2}', f'AD{2*ks+3}']), True)
                for c, x in enumerate(a_lds(2*ks+2) + a_lds(2*ks+3)): fx(g0 + c, x)
        else:
            if ks: fx(g0-2, Need(rr(V(A0 + 8*ks, 8))), True)
            p5(ks); tdone[5] = len(mf)
            for c in range(3):
                n = aload[0] + 3*ks + c
                if n < 20:
                    for x in aload[1](n): fx(g0 + (0, 3, 7)[c], x)
    for n, (ks, T) in enumerate(border):
        if n < 5*(10-TK):
            if T == 0: head(ks)
        elif n == 5*(10-TK):
            for k2 in range(10-TK, 10): head(k2)
        b = V(BRL[n % NB])
        fx(len(mf)-1, Need(rr(b)), True)
        if n + NB - 1 < 50: fx(len(mf), rd(n+NB-1))
        mf.append(f'{MF} {V(P0+4*T)}, {V(A0 + 8*ks)}, {b}, {V(P0+4*T) if ks else 0}')
        mf.append(f'{MF} {V(P1+4*T)}, {V(A0 + 8*ks + 4)}, {b}, {V(P1+4*T) if ks else 0}')
        if ks == 9: tdone[T] = len(mf)
    st = []
    if l == 0:
        isfree = lambda g: all((x if isinstance(x, I) else I(x)).kind == 'need' for x in fixed.get(g, []))
        st += [(x, 0) for x in lines(f"""
        s_lshl_b32 s50, s{sCS}, 2
        s_add_u32 s50, s50, s{sW}
        s_min_u32 s50, s50, 99
        s_lshl_b32 s50, s50, 9
        v_add_u32 v38, s50, v8
        s_mul_i32 s51, s{sJ}, 51200
        s_add_u32 s50, s50, s51
        s_add_u32 s71, s50, {WS_BF}
        v_mov_b32 v39, 0x10000000
        v_cndmask_b32 v39, v39, v1, s[66:67]
        ds_read_b128 {V(40)}, v38
        """)]
        st.append((f'buffer_store_dwordx4 {V(40)}, v39, s[4:7], s71 offen sc1', 24))
        if opt('m2w', 0): st += [(x, 0) for x in gen_M2([28, 32, 33, 34, 35, 36, 13, 14, 38])]
        st += [(I(x.text if isinstance(x, I) and not isinstance(x, G) else x, name='PA2') if not isinstance(x, G) else x, 0) for x in pre_addr2()]
        for c, x in enumerate((f'ds_read_b128 {V(RS[0])}, v13', f'ds_read_b128 {V(RS[4])}, v14 offset:2048', f'ds_read_b64 {V(6,2)}, v28')):
            fx(kstart[3] + 4 + c, I(x, name='RSL'))
        MB_ = kstart[3] + 14; fx(MB_, 's_barrier', True); fx(MB_, Need([], ['RSL']), True)
        late = []
        def put(g, items):
            while g < len(mf) and not isfree(g): g += 1
            if g >= len(mf): late.append(items); return None
            for x in items: fx(g, x)
            return g
        for c, n in enumerate(COLD[opt('c0', 5):]): put(opt('rg', 22) + opt('rs', 2)*c, cold(n))
        PG = opt('pg', 84)
        for x in stampL('rawb'): fx(PG-2, x)
        fx(PG-1, Need([], ['RAW']), True)
        for x in stampL('raw'): fx(PG-1, x)
        for p in range(3):
            put(PG, [f'ds_read_b64_tr_b16 {V(R0+4+4*p+2*h, 2)}, v{R0 + (p >> 1)} offset:{(80 if p == 1 else 64 if p == 2 else 0) + 640*h}' for h in range(2)])
        for p in range(3):
            put(PG + 10 + 8*p, [f'buffer_store_dwordx4 {V(R0+4+4*p)}, v{R0 + 2 + (p >> 1)}, s[4:7], s{76 + (p >> 1)} offen offset:{2048*(p & 1)} sc1'])
        assert not late
        W0, WS_ = opt('w0', 76), opt('ws', 8)
        assert W0 > MB_ + 1
        for x in stampL('wpfb') + ([Need([], ['WPF'])] + stampL('wpf') if stampL('wpf') else []): fx(opt('wpg', 40), x)
        for c in range(opt('r1n', 10)):
            a, b = wdma(1, c)
            g = put(W0 + WS_*c, [b])
            if g is None: late[-1] = [a, b]
            else: fx(g-1, a, True)
        print('round1 late', len(late))
    else:
        for x in ['v_add_f32 v32, v32, v33', 'v_add_f32 v34, v34, v35', 'v_add_f32 v32, v32, v34',
                  'v_and_b32 v33, 1, v3', 'v_cvt_f32_u32 v33, v33', 'v_sub_f32 v34, 1.0, v33']: st.append((x, 30))
        fx(47, f'v_mfma_f32_16x16x4_f32 {V(S1)}, v32, v34, 0'); fx(47, f'v_mfma_f32_16x16x4_f32 {V(S2)}, v32, v33, 0')
    for x in ['v_and_b32 v29, 1, v0', 'v_cvt_f32_u32 v29, v29', 'v_fma_f32 v29, v29, -2.0, 1.0',
              f's_and_b32 s50, s{sW}, 1', 's_lshl_b32 s50, s50, 3', f's_lshr_b32 s51, s{sW}, 1', 's_lshl_b32 s51, s51, 10',
              's_add_u32 s50, s50, s51', f'v_add_u32 v10, {XB}, v1', 'v_add_u32 v9, s50, v10',
              f's_lshl_b32 s50, s{sCS}, 3', f's_add_u32 s50, s50, s{sJ}', 's_mul_i32 s50, s50, 12288',
              f's_lshl_b32 s51, s{sW}, 10', 's_add_u32 s50, s50, s51', f's_add_u32 s70, s50, {WS_Z[l]}', 's_add_u32 s60, s70, 4096', 's_add_u32 s61, s70, 8192',
              'v_lshlrev_b32 v12, 6, v2', 'v_lshl_add_u32 v12, v3, 4, v12']: st.append((x, 6 if l == 0 else 48))
    if l == 0:
        e = tdone['g'] + 3
        for x in ['v_lshlrev_b32 v31, 2, v3', 'v_sub_u32 v31, v2, v31', 'v_mov_b32 v30, 0']: st.append((x, 6))
        for r in range(4): st += [(f'v_cmp_eq_u32 s[{52+2*r}:{53+2*r}], {r}, v31', 6)]
        st.append(('v_mov_b32 v31, 1.0', 6))
        for r in range(4): st.append((f'v_cndmask_b32 v30, v30, v{GG+r}, s[{52+2*r}:{53+2*r}]', e))
        st.append((f'v_mfma_f32_16x16x4_f32 {V(S2)}, v30, v31, 0', e))
        e = tdone[5] + 3
        for r in range(4): st.append((f'v_mov_b32_dpp v{S1+r}, v{P5+r} quad_perm:[1,1,1,1] row_mask:0xf bank_mask:0xf', e))
        for r in range(4): st.append((f'v_mul_f32 v{S1+r}, {fl(1/640)}, v{S1+r}', e))
        e += 6
    else:
        e = 54
        for r in range(4): st.append((f'v_mul_f32 v{S1+r}, {fl(1/640)}, v{S1+r}', e))
    for r in range(4): st.append((f'v_mul_f32 v{S2+r}, {fl(1/640)}, v{S2+r}', e))
    for r in range(4): st.append((f'v_fma_f32 v{S2+r}, -v{S1+r}, v{S1+r}, v{S2+r}', e))
    for r in range(4): st.append((f'v_max_f32 v{S2+r}, 0, v{S2+r}', e))
    for r in range(4): st.append((f'v_add_f32 v{S2+r}, {fl(1e-5)}, v{S2+r}', e))
    for r in range(4): st.append((f'v_rsq_f32 v{S2+r}, v{S2+r}', e))
    def combine(T):
        p = P0 + 4*T if T < 5 else P5
        e = tdone[T] + 2
        if T < 5:
            for r in range(4): st.append((f'v_fmac_f32 v{p+r}, v29, v{P1+4*T+r}', e))
        for r in range(4): st.append((f'v_mul_f32 v{p+r}, v{p+r}, v{S2+r}', e))
        st.append((f'v_cvt_pk_bf16_f32 v{p}, v{p}, v{p+1}', e)); st.append((f'v_cvt_pk_bf16_f32 v{p+1}, v{p+2}, v{p+3}', e))
        st.append((I(f'ds_write_b64 v9, {V(p,2)} offset:{T*2048}', name=f'XW{l}{T >> 1}'), e))
    FR = A0
    AC = {4: (180, 184), 5: (188, 192), 0: (196, 200), 1: (204, 208), 2: (P0, P0+4), 3: (P1, P1+4)}
    XD_ = opt('xd', 4)
    xrd = lambda part: [I(f'ds_read_b128 {V(FR+4*n)}, v10 offset:{n*1024}', name=f'XR{part}') for n in range(4*part, 4*part+4)]
    def exch(part):
        nm = f'XW{l}{part}'
        st.append((Need([], [nm]), lambda lg: lg.get(nm, 999) + XD_)); st.append(('s_barrier', 0))
        for x in xrd(part): st.append((x, 0))
    def g2(part):
        L = []
        for T in (2*part, 2*part+1):
            t1, t2 = AC[T]
            for kap in range(2):
                f = V(FR + 4*(2*T + kap))
                L.append(f'{MF} {V(t1)}, {f}, {V(M2+4*kap)}, {V(t1) if kap else 0}')
                L.append(f'{MF} {V(t2)}, {f}, {V(M2+8+4*kap)}, {V(t2) if kap else 0}')
        return L
    def zepi(T, pk=True):
        t1, t2 = AC[T]; dst = 16 + 4*(T >> 1) + 2*(T & 1)
        if pk: L = [f'v_pk_add_f32 {V(t1,2)}, {V(t1,2)}, {V(t2+2,2)}', f'v_pk_add_f32 {V(t1+2,2)}, {V(t1+2,2)}, {V(t2,2)} neg_lo:[0,1] neg_hi:[0,1]']
        else: L = [x for rp in range(2) for x in (f'v_add_f32 v{t1+rp}, v{t1+rp}, v{t2+2+rp}', f'v_sub_f32 v{t1+2+rp}, v{t1+2+rp}, v{t2+rp}')]
        L += [f'v_cvt_pk_bf16_f32 v{dst+rp}, v{t1+rp}, v{t1+2+rp}' for rp in range(2)]
        if T & 1: L.append(I(f'buffer_store_dwordx4 {V(16 + 4*(T>>1))}, v12, s[4:7], s{(70, 60, 61)[T >> 1]} offen sc1', name='ZS'))
        return L
    G1 = len(mf)
    deadline = {G1: 'XR2', G1 + 8: 'XR0'}
    mf += g2(2) + g2(0)
    combine(5); combine(4); exch(2); combine(0); combine(1); exch(0); combine(2); combine(3)
    if l == 0:
        for c, (a, b) in enumerate(late):
            fx(G1 + 1 + 4*c, a, True); fx(G1 + 2 + 4*c, b)
    for x in stampL(f'g1m_{l}'): fx(G1 - 1, x)
    align('g')
    if l == 1: k.need(V(A0, 8)); emit(stampL('g1a_1'))
    log = {}
    XT = opt(f'xt{l}', 0)
    left = weave(k, mf, fixed, st, log=log, deadline=deadline, window=opt('win', 30), extra=lambda g: 1 if (XT and g >= tdone[4] and g % XT == 0) else 0)
    print('d1 leftover', left, 'G1', G1, tdone, log)
    if l == 0: assert log['PA2'] < min(W0, PG) - 2
    emit(zepi(4) + zepi(5))
    k.need(names=[f'XW{l}1']); k('s_barrier')
    emit(xrd(1))
    emit(zepi(0) + zepi(1))
    weave(k, g2(1), {}, [(x, 6) for x in zepi(2, False)])
    emit(zepi(3))
    stamp(f'd1x_{l}')

WA = WT; TA = WT + 7; CSO = WT + 12; CSA = 124; RA = WT + 7
def pf_addr():
    return lines(f"""
    s_and_b32 s75, s{sXCD}, 3
    s_mul_i32 s75, s75, 896
    s_bfe_u32 s78, s2, 0x40003
    s_lshl_b32 s78, s78, 2
    s_add_u32 s78, s78, s{sW}
    s_mul_i32 s78, s78, {10*3456}
    s_add_u32 s75, s75, s78
    s_add_u32 s49, s75, {5*3456}
    s_mov_b32 s30, {D*F*2}
    s_mov_b32 s31, 0x00020000
    s_cmp_lt_u32 s{sQ}, 2
    s_cselect_b64 s[28:29], s[16:17], s[20:21]
    v_min_u32 v44, 34, v0
    v_mul_u32_u24 v45, 9363, v44
    v_lshrrev_b32 v45, 16, v45
    v_mul_u32_u24 v45, {3456 - 896}, v45
    v_lshl_add_u32 v{RA+3}, v44, 7, v45
    """)
def pre_addr1():
    L = lines(f"""
    s_and_b32 s{sSIG}, s{sXCD}, 3
    s_lshl_b32 s{sSIG}, s{sSIG}, 3
    s_add_u32 s{sSIG}, s{sSIG}, s{sJ}
    s_and_b32 s46, s{sCS}, 7
    s_lshl_b32 s46, s46, 2
    s_add_u32 s46, s46, s{sW}
    s_lshr_b32 s47, s{sCS}, 3
    s_mul_i32 s72, s47, 28
    s_add_u32 s48, s72, s46
    s_mul_i32 s72, s48, {16*1280}
    s_cmp_lt_u32 s46, 28
    s_cselect_b32 s72, s72, 0x10000000
    s_mul_i32 s73, s{sW}, 2560
    s_add_u32 s73, s73, {L_RAW}
    s_mul_i32 s76, s{sJ}, 80
    s_mul_i32 s77, s{sJ}, 160
    s_sub_u32 s77, 1120, s77
    s_add_u32 s72, s72, s76
    v_mov_b32 v47, s77
    """)
    if opt('z31', 1): L += [f's_cmp_eq_u32 s{sSIG}, 31', 's_cselect_b32 s18, 0, s18', 's_cselect_b32 s22, 0, s22']
    for n in range(3):
        L += [f'v_add_u32 v44, {64*n}, v0', 'v_mul_u32_u24 v45, 6554, v44', 'v_lshrrev_b32 v45, 16, v45', 'v_mul_u32_u24 v46, 10, v45', 'v_sub_u32 v46, v44, v46',
              'v_cmp_lt_u32 vcc, 4, v46', f'v_mul_u32_u24 v{RA+n}, 1280, v45', f'v_lshl_add_u32 v{RA+n}, v46, 4, v{RA+n}', 'v_cndmask_b32 v44, 0, v47, vcc', f'v_add_u32 v{RA+n}, v{RA+n}, v44']
    return L
def res_addr():
    L = lines(f"""
    s_mul_i32 s50, s{sJ}, 5
    s_sub_u32 s51, 35, s50
    s_add_u32 s52, s50, 4
    s_add_u32 s53, s51, 4
    v_lshl_add_u32 v44, v2, 7, s74
    v_add_u32 v13, s50, v3
    v_add_u32 v14, s51, v3
    v_mov_b32 v28, s52
    v_mov_b32 v45, s53
    v_cndmask_b32 v28, v45, v28, s[66:67]
    """)
    for r in (13, 14, 28):
        L += [f'v_xor_b32 v45, v{r}, v2', f'v_lshrrev_b32 v{r}, 3, v{r}', 'v_and_b32 v45, 7, v45', f'v_lshl_add_u32 v{r}, v{r}, 12, v44', f'v_lshl_add_u32 v{r}, v45, 4, v{r}']
    L += ['v_lshrrev_b32 v45, 1, v3', 'v_lshl_add_u32 v28, v45, 11, v28', 'v_and_b32 v45, 1, v3', 'v_lshl_add_u32 v28, v45, 3, v28']
    return L
RS = [WT+16+n for n in range(8)] + [6, 7]
def cold(n):
    if n < 2: return [I(f'buffer_load_dword v15, v{RA+3}, s[28:31], s{(75, 49)[n]} offen', name='WPF')]
    n -= 2
    d = I(f'buffer_load_dwordx4 v{RA+n}, s[24:27], s72 offen lds', name='RAW')
    return [f's_add_u32 m0, s73, {n*1024}'] + (['s_mov_b32 exec_hi, 0', d, 's_mov_b32 exec_hi, -1'] if n == 2 else [d])
COLD = [int(c) for c in o.get('co', '23401')]
def pre_addr2():
    L = []
    for n in range(7):
        L += [f'v_add_u32 v32, {64*n}, v0', 'v_mul_u32_u24 v33, 9363, v32', 'v_lshrrev_b32 v33, 16, v33', f'v_mul_u32_u24 v33, {3456 - 112}, v33', f'v_lshl_add_u32 v{WA+n}, v32, 4, v33']
    L += lines(f"""
    s_mul_i32 s78, s{sW}, {64*3456}
    s_mul_i32 s79, s{sSIG}, 112
    s_add_u32 s78, s78, s79
    s_mul_i32 s79, s{sW}, 14336
    v_bfe_u32 v32, v0, 2, 2
    v_and_b32 v33, 1, v3
    v_lshl_add_u32 v32, v33, 3, v32
    v_mul_u32_u24 v32, 160, v32
    v_add_u32 v32, s73, v32
    v_and_b32 v34, 3, v0
    v_lshrrev_b32 v35, 1, v3
    v_lshl_add_u32 v{R0}, v34, 4, v32
    v_lshl_add_u32 v{R0}, v35, 3, v{R0}
    v_and_b32 v36, 1, v0
    v_lshl_add_u32 v{R0+1}, v36, 3, v32
    v_bfe_u32 v36, v0, 1, 1
    v_mul_u32_u24 v36, 80, v36
    v_add_u32 v{R0+1}, v{R0+1}, v36
    v_lshlrev_b32 v{R0+3}, 4, v2
    v_lshl_add_u32 v{R0+3}, v33, 8, v{R0+3}
    v_lshl_add_u32 v{R0+2}, v35, 10, v{R0+3}
    v_lshl_add_u32 v{R0+3}, v35, 28, v{R0+3}
    s_lshr_b32 s76, s48, 1
    s_mul_i32 s76, s76, 5120
    s_and_b32 s77, s48, 1
    s_lshl_b32 s77, s77, 9
    s_add_u32 s76, s76, s77
    s_mul_i32 s77, s{sJ}, 286720
    s_add_u32 s76, s76, s77
    s_add_u32 s76, s76, {WS_WDF}
    s_cmp_lt_u32 s46, 28
    s_cselect_b32 s76, s76, 0x10000000
    s_add_u32 s77, s76, 4096
    """)
    return grp(L)
def wdma(rd, c):
    mat, n = divmod(c, 7)
    srd = 28 if rd == 3 else 16 + 4*mat
    return [f's_add_u32 m0, s79, {c*1024 + (4*14336 if rd == 2 else 0)}', I(f'buffer_load_dwordx4 v{WA+n}, s[{srd}:{srd+3}], s{80 if rd == 2 else 78} offen lds', name=f'WR{rd}')]
def wd12(c): return wdma(1 + c//14, c % 14)
def tr_addr():
    return lines(f"""
    v_bfe_u32 v32, v0, 2, 2
    v_lshl_add_u32 v32, v3, 3, v32
    v_mul_u32_u24 v32, 112, v32
    s_mul_i32 s50, s{sW}, 14336
    v_add_u32 v32, s50, v32
    v_and_b32 v33, 3, v0
    v_and_b32 v34, 1, v0
    v_bfe_u32 v35, v0, 1, 1
    v_lshl_add_u32 v{TA}, v33, 4, v32
    v_lshl_add_u32 v{TA+1}, v34, 4, v32
    v_lshl_add_u32 v{TA+1}, v35, 3, v{TA+1}
    v_mul_u32_u24 v35, 7168, v35
    v_lshl_add_u32 v{TA+2}, v34, 3, v32
    v_add_u32 v{TA+2}, v{TA+2}, v35
    v_add_u32 v{TA+3}, s50, v1
    """) + [f'v_mov_b32 v{CSO+r}, 0x3f803f80' for r in range(4)]
def relay_rd(F0, kks):
    L = []
    for kk in kks:
        for T in range(7):
            a, off = (0, (T >> 1)*7168 + 8*(T & 1)) if T < 4 else ((1, (T-4)*7168 + 64) if T < 6 else (2, 96))
            for h in range(2): L.append(f'ds_read_b64_tr_b16 {V(F0 + 28*kk + 4*T + 2*h, 2)}, v{TA+a} offset:{off + kk*3584 + h*448}')
    return L
def relay_wr(F0, kks, first):
    L = []
    for kk in kks:
        for T in range(7):
            f = V(F0 + 28*kk + 4*T)
            L += [f'{MF} {V(CSA+4*T)}, {V(CSO)}, {f}, {0 if (first and kk == 0) else V(CSA+4*T)}', f'ds_write_b128 v{TA+3}, {f} offset:{(7*kk + T)*1024}']
    return L

def pub_parts(pk, nm):
    a = pk + 12
    cvt = lambda T: [f'v_cvt_pk_bf16_f32 v{pk+2*T}, v{R0+4*T}, v{R0+4*T+1}', f'v_cvt_pk_bf16_f32 v{pk+2*T+1}, v{R0+4*T+2}, v{R0+4*T+3}']
    store = lambda n: [I((f'buffer_store_dwordx4 {V(pk)}, v1, s[4:7], s57 offen sc1', f'buffer_store_dwordx4 {V(pk+4)}, v1, s[4:7], s58 offen sc1',
                          f'buffer_store_dwordx2 {V(pk+8,2)}, v4, s[4:7], s56 offen sc1')[n], name=nm)]
    dots = lambda T: [x for n in (2*T, 2*T+1) for x in (f'v_dot2c_f32_bf16 v{a}, s60, v{pk+n}', f'v_dot2c_f32_bf16 v{a+1}, v{pk+n}, v{pk+n}')]
    init = [f'v_mov_b32 v{a}, 0', f'v_mov_b32 v{a+1}, 0', f'v_subrev_u32 v{a+2}, 16, v0', f'v_lshrrev_b32 v{a+3}, 5, v{a+2}', f'v_min_u32 v{a+3}, 1, v{a+3}',
            f'v_lshlrev_b32 v{a+3}, 28, v{a+3}', f'v_add_u32 v{a+2}, v{a+3}, v5']
    tail = [f'v_permlane32_swap_b32 v{a}, v{a+1}', f'v_add_f32 v{a}, v{a}, v{a+1}', f'v_mov_b32 v{a+1}, v{a}',
            f'v_permlane16_swap_b32 v{a}, v{a+1}', f'v_add_f32 v{a}, v{a}, v{a+1}', I(f'buffer_store_dword v{a}, v{a+2}, s[4:7], s59 offen sc1', name=nm)]
    return cvt, store, dots, init, tail
def pub_prep(xbase, stbase):
    return [f's_add_u32 s56, s{sXT}, {xbase}', f's_mul_i32 s59, s{sJ}, 1280', 's_add_u32 s57, s56, s59', 's_sub_u32 s58, s56, s59',
            f's_add_u32 s58, s58, {75*256}', f's_lshl_b32 s59, s{sJ}, 7', f's_add_u32 s59, s59, s{sST}', f's_add_u32 s59, s59, {stbase - 64}',
            's_mov_b32 s60, 0x3f803f80']

ML, MU, ZF, AD, ZA = 40, 48, 60, 30, 100
def d2_prep(l):
    L = lines(f"""
    s_and_b32 s50, s{sW}, 1
    s_lshl_b32 s50, s50, 4
    v_add_u32 v104, s50, v2
    s_lshr_b32 s54, s{sW}, 1
    s_or_b32 s51, s54, s{sCLS}
    s_cmp_eq_u32 s51, 0
    s_cselect_b32 s51, 32, 31
    v_sub_u32 v105, s51, v104
    v_cvt_f32_u32 v104, v104
    v_cvt_f32_u32 v105, v105
    v_cvt_f32_u32 v106, v3
    v_mul_f32 v104, {fl(1/32)}, v104
    v_mul_f32 v105, {fl(1/32)}, v105
    v_add_f32 v106, v106, v106
    v_cmp_eq_u32 vcc, 0, v3
    v_mul_f32 v107, v104, v106
    v_mul_f32 v108, v105, v106
    """)
    for (t, b, dst) in ((104, 107, ML), (105, 108, MU)):
        for q_ in range(4):
            kap, jh = q_ >> 1, q_ & 1
            L.append(f'v_fmamk_f32 v{109+q_}, v{t}, {fl(float(8*kap + jh))}, v{b}')
        L.append(f'v_mul_f32 v121, 0x41800000, v{t}')
        for q_ in range(4): L += [f'v_cos_f32 v{113+q_}, v{109+q_}', f'v_sin_f32 v{117+q_}, v{109+q_}']
        L.append('v_cos_f32 v121, v121')
        for q_ in range(4): L.append(f'v_cvt_pk_bf16_f32 v{dst+2*q_}, v{113+q_}, v{117+q_}')
        L.append('v_cndmask_b32 v113, v113, v121, vcc')
        for q_ in range(4): L.append(f'v_cvt_pk_bf16_f32 v{dst+2*q_+1}, v{113+q_}, -v{117+q_}')
    L += lines(f"""
    v_mul_u32_u24 v104, {8*12288}, v3
    s_mul_i32 s50, s{sW}, {64*12288}
    s_mul_i32 s51, s{sJ}, 12288
    s_add_u32 s50, s50, s51
    s_lshr_b32 s51, s{sCS}, 1
    s_lshl_b32 s51, s51, 8
    s_add_u32 s50, s50, s51
    s_add_u32 s70, s50, {WS_Z[l]}
    s_mul_i32 s71, s{sW}, 6144
    """)
    for n, x in enumerate((0, 4, 1, 5)):
        L += [f'v_xor_b32 v105, {x}, v2', f'v_lshl_add_u32 v{ZA+n}, v105, 4, v104']
    n1 = len(L)
    L += lines(f"""
    s_and_b32 s50, s{sCS}, 1
    s_xor_b32 s51, s50, 1
    s_cmp_lt_u32 s{sCS}, 2
    s_cselect_b32 s51, s50, s51
    s_xor_b32 s52, s54, 1
    s_cmp_eq_u32 s{sCS}, 0
    s_cselect_b32 s52, s54, s52
    s_lshl_b32 s50, s50, 7
    s_lshl_b32 s55, s54, 6
    s_add_u32 s50, s50, s55
    s_lshl_b32 s51, s51, 7
    s_lshl_b32 s52, s52, 6
    s_add_u32 s51, s51, s52
    v_lshrrev_b32 v104, 1, v3
    v_mul_u32_u24 v104, 6144, v104
    v_and_b32 v105, 1, v3
    v_lshl_add_u32 v104, v105, 10, v104
    v_add_u32 v104, {L_Z}, v104
    v_lshlrev_b32 v105, 6, v105
    v_xor_b32 v106, s50, v105
    v_xor_b32 v107, s51, v105
    v_add_u32 v106, v106, v104
    v_add_u32 v107, v107, v104
    v_and_b32 v108, 12, v2
    v_add_u32 v108, v108, v2
    """)
    def fin(T, base):
        return ['v_lshrrev_b32 v110, 4, v109', 'v_and_b32 v111, 15, v109', f'v_lshl_add_u32 v{AD+T}, v110, 11, v{base}',
                'v_and_b32 v110, 1, v110', 'v_lshlrev_b32 v110, 2, v110', 'v_xor_b32 v111, v111, v110', f'v_lshl_add_u32 v{AD+T}, v111, 2, v{AD+T}']
    L += ['v_mov_b32 v109, v108'] + fin(0, 106) + [f'v_xor_b32 v{AD+1}, 16, v{AD}']
    for T in (2, 3):
        L += [f'v_sub_u32 v109, {40 - 4*(T-2)}, v108', 'v_cmp_lt_u32 vcc, 31, v109', 'v_and_b32 v110, 6, v109', 'v_add_u32 v110, v110, v109',
              'v_cndmask_b32 v109, v109, v110, vcc']
        if T == 2: L += ['v_cmp_eq_u32 vcc, 0, v2', 'v_nop', 'v_nop', 'v_cndmask_b32 v109, v109, 34, vcc']
        L += fin(T, 107)
    L += ['v_cmp_gt_u32 vcc, 8, v2', 'v_and_b32 v110, 6, v2', 'v_add3_u32 v110, v110, v2, 32', 'v_sub_u32 v109, 16, v2',
          'v_cndmask_b32 v109, v109, v110, vcc', 'v_cndmask_b32 v112, v107, v106, vcc'] + fin(4, 112)
    return L, n1

def wu_dma(f0, f1, sreg_lds, sreg_src, nm='WU'):
    L = []
    for c, n in enumerate(range(f0, f1)):
        if c % 4 == 0: L += [f's_add_u32 m0, s{sreg_lds}, {n*1024}', f's_add_u32 s61, s{sreg_src}, {n*1024}']
        L.append(I(f'buffer_load_dwordx4 v1, s[4:7], s61 offen offset:{(c % 4)*1024} sc1 lds', name=nm or f'WB{n//7}'))
    return L

def d2(l):
    prep, n1 = d2_prep(l)
    prep = grp(prep + pub_prep(WS_X1[l], WS_ST[l]))
    ZP = opt(f'zp{l}', -1)
    def zpf_prep():
        if ZP < 0: return []
        both = opt('zb', 0)
        return lines(f"""
        v_and_b32 v122, 7, v0
        v_mul_u32_u24 v122, {8*12288}, v122
        v_bfe_u32 v123, v0, 3, 2
        v_min_u32 v123, 2, v123
        v_lshl_add_u32 v122, v123, 12, v122
        s_mul_i32 s46, s{sW}, {64*12288}
        s_mul_i32 s47, s{sJ}, 12288
        s_add_u32 s46, s46, s47
        s_lshl_b32 s47, s{sCS}, 7
        s_add_u32 s46, s46, s47
        s_add_u32 s46, s46, {WS_Z[l]}
        """) + (['s_and_b32 s46, s46, 0xffffff7f', 'v_lshrrev_b32 v123, 5, v0', 'v_lshl_add_u32 v122, v123, 7, v122'] if both else [])
    def with_zpf(L):
        return L if ZP < 0 else L[:ZP] + ['buffer_load_dword v123, v122, s[4:7], s46 offen sc1'] + L[ZP:]
    R1N = opt('r1n', 10); R2A = R1N + opt('r2a', 4); R2B = opt('r2b', 24); R2C = opt('r2c', 25)
    if l == 0:
        k('v_and_b32 v14, 3, v0'); k('v_lshlrev_b32 v14, 6, v14')
        k(f's_add_u32 s80, s78, {4*64*3456}')
        k(f's_cmp_lg_u32 s{sW}, 0'); k.begin('w0', 's_cbranch_scc1'); init_issue(); k.end()
        k('s_barrier')
        emit(stampL('zst0'))
        cut = opt('cut0', 50)
        emit(mix(tr_addr() + ids2() + zpf_prep() + vs_prep('Z', f'Z{l}', sgZ, 28), [wd12(c) for c in range(R1N, R2A)]))
        emit(prep[:cut])
        emit(stampL('prep0'))
        k(f's_cmp_lg_u32 s{sW}, 0'); k.begin('w0', 's_cbranch_scc1'); init_check(); k.end()
        k.need(names=['ZS']); k('s_barrier')
    else:
        k(f's_mul_i32 s76, s{sSIG}, 143360'); k(f's_add_u32 s76, s76, {WS_WUF}')
        k(f's_mul_i32 s77, s{sW}, {12*1024}'); k(f's_add_u32 s77, s77, {91*1024}')
        k('s_add_u32 s76, s76, s77')
        cut = opt('cut1', 30)
        emit(vs_prep('Z', f'Z{l}', sgZ, 28) + zpf_prep())
        emit(prep[:cut])
        k.need(names=['ZS'])
    stamp(f'd1e_{l}')
    emit(vs_go('Z', f'Z{l}', sgZ, 28))
    if l == 0:
        PZ = cut + opt('pz0', 90)
        emit(mix(with_zpf(prep[cut:PZ] + poll_issue('Z0') + prep[PZ:]), [wd12(c) for c in range(R2A, R2B)]))
    else:
        PZ = cut + opt('pz1', 150)
        emit(with_zpf(prep[cut:PZ] + poll_issue('Z1') + prep[PZ:]))
    cvt, store, dots, pinit, ptail = pub_parts(12, 'XS')
    emit(pinit)
    if l == 0:
        assert R2B >= 14
        k.need(names=['WR1'])
        emit(relay_rd(152, (0, 1)))
        emit(stampL('rl1'))
    def unpack():
        for n in range(10):
            k(f'v_lshlrev_b32 v{R0+2*n}, 16, v{RS[n]}'); k(f'v_and_b32 v{R0+2*n+1}, 0xffff0000, v{RS[n]}')
    emit(poll_wait(f'Z{l}'))
    stamp(f'd2p_{l}')
    for p in range(3):
        for hh in range(2):
            k(f's_add_u32 m0, s71, {L_Z + p*2048 + hh*1024}')
            k(f's_add_u32 s50, s70, {p*4096 + hh*4*8*12288}')
            k(f'buffer_load_dwordx4 v{ZA + 2*(p & 1) + hh}, s[4:7], s50 offen sc1 lds', name='ZL')
    if l == 0:
        for c in range(R2B, R2C): emit(wd12(c))
        emit(relay_wr(152, (0, 1), True))
        for a in range(4): k(f'v_add_u32 v{TA+a}, {4*14336}, v{TA+a}')
        unpack()
    k.need(names=['ZL']); k('s_barrier')
    stamp(f'd2l_{l}')
    for T in range(5):
        for kap in range(2):
            for h in range(2):
                k(f'ds_read2st64_b32 {V(ZF+8*T+4*kap+2*h, 2)}, v{AD+T} offset0:{48*kap + 2*h} offset1:{48*kap + 2*h + 1}')
    if l == 0:
        for c in range(R2C, 28): emit(wd12(c))
    r4 = V(R0+16)
    mf = [f'{MF} {V(R0+4*T)}, {V(ZF+8*T+4*kap)}, {V((ML if T < 2 else MU) + 4*kap)}, {V(R0+4*T)}' for T in range(4) for kap in range(2)]
    mf += [f'{MF} {V(56)}, {V(ZF+32)}, {V(ML)}, {r4}', f'{MF} {r4}, {V(ZF+32)}, {V(MU)}, {r4}',
           f'{MF} {V(56)}, {V(ZF+36)}, {V(ML+4)}, {V(56)}', f'{MF} {r4}, {V(ZF+36)}, {V(MU+4)}, {r4}']
    weave(k, mf, {4: cvt(0), 6: cvt(1), 7: store(0), 8: cvt(2), 10: cvt(3), 11: store(1)})
    emit(dots(0) + dots(1))
    for r in range(4): k(f'v_cndmask_b32 v{R0+16+r}, v{R0+16+r}, v{56+r}, s[66:67]')
    emit(cvt(4) + store(2) + dots(2) + dots(3) + dots(4) + ptail)
    k('s_barrier')
    cpf(2*l, 30)
    N2 = opt('n2', 6)
    if l == 0:
        k(f"""
        s_lshr_b32 s50, s{sW}, 1
        s_add_u32 s50, s50, 8
        s_mul_i32 s78, s50, {64*3456}
        s_mul_i32 s51, s{sSIG}, 112
        s_add_u32 s78, s78, s51
        s_mul_i32 s79, s{sW}, 7168
        s_add_u32 s79, s79, {8*14336}
        s_bitcmp1_b32 s{sW}, 0
        s_cselect_b64 s[28:29], s[20:21], s[16:17]
        s_mov_b32 s30, s18
        """)
        R3A = opt('r3a', 4)
        for c in range(R3A): emit(wdma(3, c))
        emit(vs_prep('X', f'X1{l}', sgX1, 28))
        RL = opt('rl', 1)
        if RL >= 1: k.need(names=['WR2']); emit(relay_rd(152, (0, 1)))
        if RL >= 2: k('s_waitcnt lgkmcnt(0)'); emit(relay_wr(152, (0, 1), False))
    else:
        emit(wu_dma(0, N2, 77, 76))
        up_prep(l)
        emit(vs_prep('X', f'X1{l}', sgX1, 28))
    k.need(names=['XS']); k('s_barrier')
    stamp(f'd2e_{l}')
    emit(vs_go('X', f'X1{l}', sgX1, 28))
    if l == 0:
        for c in range(R3A, 7): emit(wdma(3, c))
        if RL < 1: emit(relay_rd(152, (0, 1)))
        up_prep(l)
        wl = [wdld(n) for n in range(opt('wp', 16))]
        if RL < 2:
            k('s_waitcnt lgkmcnt(0)')
            rw = relay_wr(152, (0, 1), False); px = opt('px0', 12)
            emit(mix(rw[:px] + poll_issue('X10') + rw[px:], wl))
        else:
            for x in wl: emit(x)
        k(f"""
        s_lshr_b32 s50, s{sW}, 1
        s_sub_u32 s50, s50, s{sW}
        s_add_u32 s50, s50, 4
        s_mul_i32 s50, s50, 14336
        s_and_b32 s51, s{sW}, 1
        s_mul_i32 s51, s51, 3584
        s_add_u32 s50, s50, s51
        v_add_u32 v{TA}, s50, v{TA}
        v_add_u32 v{TA+1}, s50, v{TA+1}
        v_add_u32 v{TA+2}, s50, v{TA+2}
        v_add_u32 v{TA+3}, s79, v1
        """)
    else:
        emit(wu_dma(N2, 13, 77, 76))
        if opt('tch', 0):
            n = opt('tch', 0)
            k(f'v_min_u32 v32, {n-1}, v0'); k(f'v_mul_u32_u24 v32, {S*D*2//n}, v32'); k('buffer_load_dword v33, v32, s[12:15], 0 offen')

ACC = [12, 68]; BRG = 124; XR = 152; XD = 5; K1 = 192; SS = 196; NM = 200; TM = 204
def acc(h, T, mi): return ACC[h] + (2*T + mi)*4
def epi_stream(h, l, e0, npk=None):
    st = []; cnt = [0]; npk = (7 if h else 0) if npk is None else npk
    def grp(G, U, k1, ss, dst):
        cnt[0] += 1
        if cnt[0] == npk + 1: st.append('MARK')
        if cnt[0] <= npk:
            b1, b2 = k1 & 1, ss & 1
            for r in (0, 2): st.append(f'v_pk_mul_f32 {V(U+r,2)}, {V(G+r,2)}, {V(U+r,2)}')
            for r in (0, 2): st.append(f'v_pk_mul_f32 {V(G+r,2)}, {V(G+r,2)}, {V(k1-b1,2)} op_sel:[0,{b1}] op_sel_hi:[1,{b1}]')
            for r in range(4): st.append(f'v_exp_f32 v{G+r}, v{G+r}')
            for r in (0, 2): st.append(f'v_pk_fma_f32 {V(G+r,2)}, {V(G+r,2)}, {V(ss-b2,2)}, {V(ss-b2,2)} op_sel:[0,{b2},{b2}] op_sel_hi:[1,{b2},{b2}]')
            for r in range(4): st.append(f'v_rcp_f32 v{G+r}, v{G+r}')
            for r in (0, 2): st.append(f'v_pk_mul_f32 {V(U+r,2)}, {V(U+r,2)}, {V(G+r,2)}')
            st.append(f'v_cvt_pk_bf16_f32 v{dst}, v{U}, v{U+1}'); st.append(f'v_cvt_pk_bf16_f32 v{dst+1}, v{U+2}, v{U+3}')
            return
        for r in range(4): st.append(f'v_mul_f32 v{U+r}, v{G+r}, v{U+r}')
        for r in range(4): st.append(f'v_mul_f32 v{G+r}, v{G+r}, v{k1}')
        for r in range(4): st.append(f'v_exp_f32 v{G+r}, v{G+r}')
        for r in range(4): st.append(f'v_fma_f32 v{G+r}, v{G+r}, v{ss}, v{ss}')
        for r in range(4): st.append(f'v_rcp_f32 v{G+r}, v{G+r}')
        for r in range(4): st.append(f'v_mul_f32 v{U+r}, v{U+r}, v{G+r}')
        st.append(f'v_cvt_pk_bf16_f32 v{dst}, v{U}, v{U+1}'); st.append(f'v_cvt_pk_bf16_f32 v{dst+1}, v{U+2}, v{U+3}')
    nm = f'H{h}'
    for mi in range(2):
        d = acc(h, 0, mi)
        grp(acc(h, 0, mi), acc(h, 2, mi), K1+2*h+mi, SS+2*h+mi, d)
        grp(acc(h, 1, mi), acc(h, 3, mi), K1+2*h+mi, SS+2*h+mi, d+2)
        st.append(I(f'buffer_store_dwordx4 {V(d)}, v1, s[4:7], s{76+2*h+mi} offen sc1', name=nm))
    d = acc(h, 4, 0)
    grp(acc(h, 4, 0), acc(h, 5, 0), K1+2*h, SS+2*h, d)
    grp(acc(h, 4, 1), acc(h, 5, 1), K1+2*h+1, SS+2*h+1, d+2)
    for r in range(4): st.append(f'v_permlane32_swap_b32 v{acc(h,6,0)+r}, v{acc(h,6,1)+r}')
    st.append(f'v_cndmask_b32 v{TM+2}, v{K1+2*h+1}, v{K1+2*h}, s[66:67]')
    st.append(f'v_cndmask_b32 v{TM+3}, v{SS+2*h+1}, v{SS+2*h}, s[66:67]')
    st.append(f'v_permlane32_swap_b32 v{d}, v{d+2}'); st.append(f'v_permlane32_swap_b32 v{d+1}, v{d+3}')
    st.append(I(f'buffer_store_dwordx4 {V(d)}, v6, s[4:7], s{76+2*h} offen sc1', name=nm))
    d = acc(h, 6, 0)
    grp(d, acc(h, 6, 1), TM+2, TM+3, d)
    st.append(I(f'buffer_store_dwordx2 {V(d,2)}, v7, s[4:7], s{76+2*h} offen sc1', name=nm))
    return [(x, e0) for x in st]

def up_prep(l):
    k(f'v_add_u32 v9, {63*1024}, v1'); k(f'v_add_u32 v10, {126*1024}, v1')
    k(f's_mul_i32 s50, s{sCSU}, {4*20480}')
    if opt('zp', 1): k(f's_cmp_eq_u32 s{sSIG}, 31'); k('s_cselect_b32 s50, 0x10000000, s50')
    for rt in range(4): k(f's_add_u32 s{72+rt}, s50, {WS_X1[l] + rt*20480}')
    k(f's_lshl_b32 s80, s{sCSU}, 12'); k(f's_add_u32 s80, s80, {WS_ST[l]}')
    if l == 0:
        k(f"""
        v_lshrrev_b32 v30, 5, v0
        v_mul_u32_u24 v30, 57344, v30
        v_lshl_add_u32 v30, v2, 4, v30
        v_and_b32 v31, 1, v3
        v_lshl_add_u32 v6, v31, 8, v30
        v_add_u32 v6, 1024, v6
        v_lshl_add_u32 v7, v31, 3, v30
        v_add_u32 v7, 1536, v7
        s_mul_i32 s81, s{sJ}, 286720
        s_mul_i32 s50, s{sW}, {70*1024}
        s_add_u32 s81, s81, s50
        s_add_u32 s81, s81, {WS_WDF}
        """)
        for n in range(3): k(f's_mov_b32 s{16+n}, {4096*(n+1)}')
        k('s_mov_b32 s19, 4096')
        if opt('zp', 1):
            k(f's_cmp_eq_u32 s{sW}, 3'); k('s_cselect_b32 s18, 0x10000000, s18'); k('s_cselect_b32 s19, 0x10000000, s19')
def wdld(n): return [f'buffer_load_dwordx4 {wdreg(n)}, v1, s[4:7], s81 offen offset:{(n % 4)*1024} sc1'] + ([f's_add_u32 s81, s81, {"s19" if n == 59 else 4096}'] if n % 4 == 3 else [])

def up(l):
    def brd(n):
        f = n % 140
        a, off = (1, f) if f < 63 else ((9, f-63) if f < 126 else (10, f-126))
        return f'ds_read_b128 {V(BRG + 4*(n % 7))}, v{a} offset:{off*1024}'
    def xld(n, mi):
        h, ks = divmod(n, 20)
        return f'buffer_load_dwordx4 {V(XR + 8*(n % XD) + 4*mi)}, v1, s[4:7], s{72+2*h+mi} offen offset:{(ks % 4)*1024} {LF}'
    def xadv(n):
        h, ks = divmod(n, 20)
        return [f's_add_u32 s{72+2*h+mi}, s{72+2*h+mi}, 4096' for mi in range(2)] if ks % 4 == 3 else []
    SL = ACC[1]
    def first_loads():
        if l == 1: emit(poll_issue(f'X1{l}'))
        emit(poll_wait(f'X1{l}'))
        stamp(f'upp_{l}')
        for n in range(XD-1):
            for mi in range(2): k(xld(n, mi))
            emit(xadv(n))
    k(f's_mul_i32 s50, s{sCSU}, {4*57344}'); k(f's_mul_i32 s51, s{sSIG}, {7*256}'); k('s_add_u32 s50, s50, s51')
    if opt('zp', 1): k(f's_cmp_eq_u32 s{sSIG}, 31'); k('s_cselect_b32 s50, 0x10000000, s50')
    for rt in range(4): k(f's_add_u32 s{76+rt}, s50, {WS_H[l] + rt*57344}')
    wdn = [0]
    if l == 0:
        wdn[0] = opt('wp', 16)
        k(f's_mul_i32 s50, s{sW}, 448'); k(f's_add_u32 s50, s50, {L_CSP}')
        k(f'v_lshl_add_u32 v{TM+4}, v2, 2, s50')
        k(f'v_min_u32 v{TM+6}, 55, v0'); k(f'v_lshlrev_b32 v{TM+6}, 3, v{TM+6}'); k(f'v_add_u32 v{TM+5}, {L_CSP}, v{TM+6}'); k(f'v_add_u32 v{TM+6}, {L_CS}, v{TM+6}')
        k(f"""
        s_min_u32 s50, s{sGAM}, 6
        s_add_u32 s50, s50, 13
        s_mul_i32 s50, s50, 7168
        s_lshl_b32 s51, s{sW}, 11
        s_min_u32 s51, s51, 5120
        s_add_u32 s50, s50, s51
        v_add_u32 v8, s50, v1
        s_mul_i32 s71, s{sSIG}, 143360
        s_add_u32 s71, s71, {WS_WUF}
        """)
        for T in range(7): k(f'ds_write_b32 v{TM+4}, v{CSA+4*T} offset:{64*T}')
        emit(stampL('rl2'))
        first_loads()
        k('s_barrier')
        for n in range(6): k(brd(n))
    else:
        first_loads()
        for n in range(6): k(brd(n))
        k.need(names=['WU']); k('s_barrier')
    if stampL(f'ux0_{l}'): k.need(V(XR, 8)); emit(stampL(f'ux0_{l}'))
    NWD = [opt('wa', 20), opt('wb', 22)] if l == 0 else [0, 0]
    if opt('nowd', 0): NWD = [0, 0]; wdn[0] = 70
    for h in range(2):
        mf = []; fixed = {}
        def fx(g, x, first=False):
            L = fixed.setdefault(g, [])
            L.insert(0, x) if first else L.append(x)
        for ks in range(20):
            n = 20*h + ks
            for T in range(7):
                g = len(mf); f = 7*n + T
                for mi in ((1, 0) if (opt('sn', 0) and T % 2 == 1) else (0, 1)):
                    a = V(acc(h, T, mi))
                    mf.append(f'{MF} {a}, {V(BRG+4*T)}, {V(XR + 8*(n % XD) + 4*mi)}, {a if (ks or h) else 0}')
                if f + 6 < 280: fx(g, brd(f+6))
                if T % 2 == 0 and f + 1 < 280:
                    nxt = [BRG + 4*((f+1) % 7)] + ([BRG + 4*((f+2) % 7)] if T < 6 else [])
                    fx(g+1, Need([x for b in nxt for x in rr(V(b))]), True)
            g0 = 14*ks
            if n + XD - 1 < 40:
                fx(g0+3, xld(n+XD-1, 0)); fx(g0+7, xld(n+XD-1, 1))
                for q_, x in enumerate(xadv(n+XD-1)): fx(g0+8+2*q_, x, True)
            if n + 1 < 40: fx(g0+12, Need(rr(V(XR + 8*((n+1) % XD), 8))), True)
            if h == 0 and ks < 4:
                for c in range(4): fx(g0 + (1, 5, 9, 13)[c], f'buffer_load_dword v{SL+4*ks+c}, v5, s[4:7], s80 offen offset:{1024*ks + 256*c} sc1')
            k0 = 4 if h == 0 else 0
            if ks >= k0:
                cnt = NWD[h]*(ks-k0+1)//(20-k0) - NWD[h]*(ks-k0)//(20-k0)
            else: cnt = 1 if (l == 0 and opt('we', 1)) else 0
            if True:
                free = [11, 5, 1] + ([3, 7] if n + XD - 1 >= 40 else [])
                for c in range(cnt):
                    w_ = wdld(wdn[0]); wdn[0] += 1
                    fx(g0 + sorted(free[:cnt])[c], w_[0])
                    if len(w_) > 1: fx(g0 + sorted(free[:cnt])[c] + 1, w_[1], True)
        st = []
        if h == 0:
            for rt in range(4):
                b = SL + 4*rt
                st += [(x, 14*(rt+3)) for x in [f'v_add_f32 v{b}, v{b}, v{b+1}', f'v_add_f32 v{b+2}, v{b+2}, v{b+3}', f'v_add_f32 v{b}, v{b}, v{b+2}',
                       f'v_mov_b32 v{b+1}, v{b}', f'v_permlane32_swap_b32 v{b}, v{b+1}', f'v_add_f32 v{b}, v{b}, v{b+1}',
                       f'v_mov_b32 v{b+1}, v{b}', f'v_permlane16_swap_b32 v{b}, v{b+1}',
                       f'v_mul_f32 v{NM+rt}, {fl(-1/640)}, v{b}', f'v_mul_f32 v{b+1}, {fl(1/640)}, v{b+1}',
                       f'v_fma_f32 v{b+1}, -v{NM+rt}, v{NM+rt}, v{b+1}', f'v_max_f32 v{b+1}, 0, v{b+1}',
                       f'v_add_f32 v{SS+rt}, {fl(1e-5)}, v{b+1}', f'v_rsq_f32 v{K1+rt}, v{SS+rt}',
                       f'v_mul_f32 v{K1+rt}, {fl(-1.4426950408889634)}, v{K1+rt}']]
            st = [(f'v_lshlrev_b32 v{TM+7}, 4, v3', 2), (f'v_add_u32 v{TM+7}, {L_CS}, v{TM+7}', 2)] + st
            if l == 0:
                F3 = 84; g = opt('g3', 8)
                fx(g, Need([], ['WR3']), True); fx(g, 's_barrier')
                rdl = relay_rd(F3, (0,))
                for n, x in enumerate(rdl): fx(g + 2 + 2*n, I(x, name='T3'))
                g += 2 + 28 + 6
                fx(g, Need([], ['T3']), True); fx(g, 's_barrier')
                dst = lambda T: (112, 116)[T] if T < 2 else F3 + 4*(T-2)
                for T in range(7):
                    fx(g + 1 + 2*T, I(f'ds_write_b128 v{TA+3}, {V(F3+4*T)} offset:{T*1024}', name='T3W'))
                    fx(g + 1 + 2*T, f'{MF} {V(dst(T))}, {V(CSO)}, {V(F3+4*T)}, 0')
                g += 18
                for T in range(7): fx(g + T, I(f'ds_write_b32 v{TM+4}, v{dst(T)} offset:{1792 + 64*T}', name='T3W'))
                g += 12
                fx(g, Need([], ['T3W']), True); fx(g, 's_barrier')
                for n in range(8): fx(g + 2 + 2*n, f'ds_read_b64 {V(F3+2*n, 2)}, v{TM+5} offset:{448*n}')
                for n in range(2):
                    fx(g + 18 + 2*n, f'ds_read_b128 {V(112+4*n)}, v8 offset:{n*1024}')
                    fx(14*(8+2*n) + 9, f'buffer_store_dwordx4 {V(112+4*n)}, v8, s[4:7], s71 offen offset:{n*1024} sc1')
                assert g + 24 < 14*8 + 9
                g += 24
                for c, (a_, b_) in enumerate(((0, 1), (2, 3), (4, 5), (6, 7), (0, 2), (4, 6), (0, 4))):
                    for hh in range(2): fx(g + 4*c + 2*hh, f'v_add_f32 v{F3+2*a_+hh}, v{F3+2*a_+hh}, v{F3+2*b_+hh}')
                g += 28
                fx(g, f'ds_write_b64 v{TM+6}, {V(F3, 2)}')
                print('cs done at gap', g)
                assert g < 14*11 - 6
            KS0 = 11
            def capg(g): return 2 - sum(slots(x if isinstance(x, I) else I(x)) for x in fixed.get(g, []) if slots(x if isinstance(x, I) else I(x)) >= 1)
            firstcs = None
            for T in range(7):
                g0 = 14*(KS0 + T) + 2*T
                c = acc(1, T, 1)
                gr = g0 - 3
                while capg(gr) < 2: gr -= 1
                x = I(f'ds_read_b128 {V(c)}, v{TM+7} offset:{64*T}')
                if T == 0: firstcs = x
                fx(gr, x)
                ops = [f'v_fmac_f32 v{acc(0,T,mi)+r}, v{NM+mi}, v{c+r}' for mi in range(2) for r in range(4)]
                g = g0 + 4
                while ops:
                    cap = capg(g)
                    while cap >= 1 and ops: fx(g, ops.pop(0)); cap -= 1
                    g += 1
                if g > g0 + 14: print('warn fmac window', T, g - g0)
                st += [(f'v_mul_f32 v{acc(1,T,mi)+r}, v{NM+2+mi}, v{c+r}', g) for mi in range(2) for r in range(4)]
        else:
            EA = opt(f'ea{l}', 0); NBU = opt('nbu', 0) if EA else 0
            ep = epi_stream(0, l, 4, NBU)
            mk = [x for x, e in ep].index('MARK') if NBU < 7 else len(ep)
            emit([x for x, e in ep[:mk]])
            vp = [(x, 0 if EA else 150) for x in vs_prep('H', f'HA{l}', sgH, NM)]
            st = ep[mk+1:] + vp + [(x, 150) for x in down_prep(l)]
            if EA:
                st[len(ep[mk+1:]) + len(vp) - 1] = (I(vp[-1][0], name='VP'), 0)
                SG = opt('sg', 221)
                fx(SG, Need([], ['H0']), True)
                for x in vs_go('H', f'HA{l}', sgH, NM): fx(SG, x)
                for x in poll_issue(f'HA{l}'): fx(opt('pg2', 252), x, True)
        align('u')
        log = {}
        XE = opt('xe', 0) if opt(f'ea{l}', 0) else 0
        left = weave(k, mf, fixed, st, extra=(lambda g: 1 if ((h == 1 and XE and g % XE == 0) or (h == 0 and l == 0 and 80 <= g < 150 and g % opt('xa', 2) == 0)) else 0), log=log)
        if h == 0:
            pos = k.ins.index(firstcs)
            assert all(not (x.text.startswith(f'v_mul_f32 v{K1+rt},')) for x in k.ins[pos:] for rt in range(4)), 'stats not done before cs'
        elif EA: assert log.get('H0', 0) < SG and log['VP'] + 6 < SG
        print('up half', h, 'leftover', left, log)
        stamp(f'up{h}_{l}')
    ep = [x for x, e in epi_stream(1, l, 0)]
    HU[0] = opt('hue', 13) if EA else opt('hu', 7)
    if EA:
        emit(poll_wait(f'HA{l}'))
        stamp(f'dnp_{l}')
        if l == 0:
            while wdn[0] < 70: emit(wdld(wdn[0])); wdn[0] += 1
        c = opt('hm', 60)
        sts = [x for x in ep[:c] if isinstance(x, I)]
        emit(mix([x for x in ep[:c] if not isinstance(x, I)], [[hld(0, n)] for n in range(HU[0])]) + sts + ep[c:])
        stamp(f'upe_{l}')
    else:
        k.need(names=['H0'])
        emit(vs_go('H', f'HA{l}', sgH, NM))
        if l == 0:
            while wdn[0] < 70: emit(wdld(wdn[0])); wdn[0] += 1
        c1 = opt('pa', 100)
        emit(ep[:c1]); emit(poll_issue(f'HA{l}')); emit(ep[c1:])
        stamp(f'upe_{l}')
        emit(poll_wait(f'HA{l}'))
        stamp(f'dnp_{l}')
        emit([hld(0, n) for n in range(HU[0])])

HU = [7]
HR = 124; DA = 12; HVL = [8, 208, 209, 210]
def hld(ps, ks): return f'buffer_load_dwordx4 {V(HR + 4*ks)}, v{HVL[ps]}, s[4:7], {f"s{15 + ks//4}" if ks >= 4 else 0} offen offset:{(ks % 4)*1024} {LF}'
def down_prep(l):
    L = lines(f"""
    s_mul_i32 s50, s{sCS}, {4*57344}
    s_mul_i32 s51, s{sW}, {14*1024}
    s_add_u32 s50, s50, s51
    s_add_u32 s50, s50, {WS_H[l]}
    s_lshr_b32 s54, s{sW}, 1
    s_xor_b32 s54, s54, s{sW}
    s_and_b32 s54, s54, 1
    s_lshl_b32 s51, s{sJ}, 7
    """)
    for p in range(4):
        L += [f's_xor_b32 s55, s54, {(1, 0, 2, 3)[p]}', 's_mul_i32 s52, s55, 57344', 's_add_u32 s52, s50, s52', f'v_add_u32 v{HVL[p]}, s52, v1']
        if opt('spf', 0): L += ['s_add_u32 s52, s52, s51', f's_add_u32 s{22+2*p}, s4, s52', f's_addc_u32 s{23+2*p}, s5, 0']
    return grp(L)
def spf(n):
    p, ks = divmod(n, 14)
    return f's_load_dword s30, s[{22+2*p}:{23+2*p}], {ks*1024}'
def out_addr():
    L = lines(f"""
    s_lshr_b32 s50, s{sW}, 1
    s_lshl_b32 s50, s50, 5
    s_and_b32 s51, s{sW}, 1
    s_lshl_b32 s51, s51, 10
    s_add_u32 s50, s50, s51
    s_add_u32 s50, s50, s{sCLS}
    s_mul_i32 s72, s50, 1280
    s_mul_i32 s51, s{sJ}, 80
    s_add_u32 s72, s72, s51
    s_mul_i32 s51, s{sJ}, 160
    s_sub_u32 s51, 1120, s51
    v_mov_b32 v98, s51
    s_mul_i32 s50, s{sW}, 3072
    v_add_u32 v97, s50, v1
    v_mul_u32_u24 v96, 160, v2
    v_add_u32 v96, s50, v96
    v_lshl_add_u32 v95, v3, 4, v96
    v_and_b32 v99, 1, v3
    v_lshl_add_u32 v96, v99, 3, v96
    v_lshrrev_b32 v99, 1, v3
    v_mul_u32_u24 v112, 80, v99
    v_add_u32 v96, v96, v112
    """)
    for n in range(3):
        L += [f'v_add_u32 v112, {64*n}, v0', 'v_mul_u32_u24 v113, 6554, v112', 'v_lshrrev_b32 v113, 16, v113', 'v_mul_u32_u24 v114, 10, v113', 'v_sub_u32 v114, v112, v114',
              'v_cmp_lt_u32 vcc, 4, v114', f'v_mul_u32_u24 v{92+n}, 81920, v113', f'v_lshl_add_u32 v{92+n}, v114, 4, v{92+n}', 'v_cndmask_b32 v112, 0, v98, vcc', f'v_add_u32 v{92+n}, v{92+n}, v112']
    L.append('v_lshl_add_u32 v94, v99, 28, v94')
    return L
def down_prep2():
    L = []
    for p in range(4):
        L += [f's_xor_b32 s55, s54, {(1, 0, 2, 3)[p]}', 's_mul_i32 s53, s55, 15360',
              f's_sub_u32 s52, s{sW}, s55', 's_sub_u32 s52, s52, 1', 's_and_b32 s52, s52, 3', 's_mul_i32 s52, s52, 5120',
              's_add_u32 s52, s52, s53', f's_add_u32 s52, s52, {L_RED}']
        if p & 1: L += [f's_cmp_eq_u32 s55, s{sW}', f's_cselect_b32 s52, {L_CSP}, s52', f's_cselect_b32 s{20 + (p >> 1)}, 1.0, 0']
        L.append(f'v_add_u32 v{184+p}, s52, v1')
    L += [f's_mul_i32 s52, s{sW}, 15360', f's_add_u32 s52, s52, {L_RED}', 'v_add_u32 v188, s52, v1',
          f's_cmp_eq_u32 s{sW}, 3', 's_cselect_b32 s53, 5120, 0', 's_cselect_b32 s55, 0, 10240',
          'v_add_u32 v189, s53, v188', 'v_add_u32 v190, s55, v188']
    return grp(L)
def down(l):
    EA = opt(f'ea{l}', 0); pB = opt('pbe', 22) if EA else opt('pb', 19); pI = opt('pie', 6) if EA else opt('pi', 8); TMJ = opt('tmj', 7); SB = opt('sb', 10) if EA else 0
    HD = 13
    mf = []; fixed = {}
    def fx(g, x, first=False):
        L = fixed.setdefault(g, [])
        L.insert(0, x) if first else L.append(x)
    started = set()
    def mm(p, ks, T):
        a = V(DA + 20*p + 4*T)
        mf.append(f'{MF} {a}, {wdreg(5*ks+T)}, {V(HR+4*ks)}, {a if (p, T) in started else 0}'); started.add((p, T))
    CH = opt('ch', 1)
    def grp_of(n):
        p, ks = divmod(n, 14); lim = 14 if p < 3 else 14 - TMJ
        if n < opt('ch0', 2): return n, 1
        f = ks - ks % CH
        if p == 0: f = max(f, opt('ch0', 2))
        return 14*p + f, min(ks - ks % CH + CH, lim) - f
    nxt = HU[0]
    for n in range(56 - TMJ):
        p, ks = divmod(n, 14)
        g = 5*n
        gf, gc = grp_of(n)
        if n == gf:
            for T in range(5):
                for c in (range(gc) if T % 2 == 0 else reversed(range(gc))): mm(p, ks + c, T)
        if n == pB - pI:
            for x in poll_issue(f'HB{l}'): fx(g + 1, x, True)
        if n == pB - 1:
            for x in stampL(f'dnb4_{l}') + poll_wait(f'HB{l}') + stampL(f'dnB_{l}'): fx(g + 4, x)
        if n in (27, 41):
            for x in stampL(f'dn{n}_{l}'): fx(g + 4, x)
        for c in range(2):
            if nxt < 56 and nxt <= gf + HD and (nxt < 28 or n >= pB):
                fx(g + 2*c, hld(*divmod(nxt, 14))); nxt += 1
        if n + 1 == gf + gc:
            nf, nc = grp_of(n+1) if n + 1 < 56 - TMJ else (n+1, 1)
            fx(g+3, Need([x for c in range(nc) for x in rr(V(HR + 4*((nf+c) % 14)))]), True)
    assert nxt == 56
    if opt('spf', 0):
        a0, a1, b0, dg = opt('sa0', 8), opt('sa1', 20), opt('sb0', 34), opt('sdg', 2)
        def place(g, ns):
            for n in ns:
                while g % 5 == 3: g += 1
                fx(g, I(spf(n)), True); fixed[g][0].w = []; g += dg
        place(10, range(a1, 28)); place(5*pB, range(b0, 56))
    tdone = {}
    for T in range(5):
        for ks in range(14 - TMJ, 14): mm(3, ks, T)
        tdone[T] = len(mf)
    if opt('vb', 0) and SB:
        fx(5*SB + 1, f's_add_u32 s69, s69, {(PH[f"HB{l}"] - PH[f"HA{l}"]) & 0xffffffff}', True)
        for x in vs_go('H', f'HB{l}', sgH, NM): fx(5*SB + 1, x)
    else:
        for c, x in enumerate(sig_go(f'HB{l}', sgH)): fx(5*SB + (0, 1, 2, 4, 5, 6, 7, 9)[c], x, True)
    if SB: fx(5*SB - 1, Need([], ['H1']), True)
    wr = lambda p, T: f'ds_write_b128 v{184+p}, {V(DA + 20*p + 4*T)} offset:{T*1024}'
    for p in range(3):
        for T in range(5): fx(70*(p+1) + (4 + 2*T if p == 2 else 9 + 5*T), wr(p, T))
    ga = 210 + opt('ga', 18)
    fx(ga, 's_waitcnt lgkmcnt(0)', True); fx(ga, 's_barrier')
    st = [(x if isinstance(x, G) else I(x, name='DP2'), 12) for x in down_prep2()]
    cvt, store, dots, pinit, ptail = pub_parts(100, 'X2S')
    pre = pub_prep(WS_X2, WS_ST[2]) + pinit if l == 0 else (out_addr() if opt('ot', 1) else nat_addr(92, 93, 94, 95))
    st += [(x, 100) for x in pre]
    if l == 0 and opt('bpf', 221):
        st += [(x, 100) for x in [f's_lshl_b32 s50, s{sQ}, 2', f's_add_u32 s50, s50, s{sW}', 's_mul_i32 s50, s50, 3200', f's_mul_i32 s51, s{sJ}, 51200',
               's_add_u32 s50, s50, s51', f's_add_u32 s46, s50, {WS_BF}', 'v_min_u32 v92, 24, v0', I('v_lshlrev_b32 v92, 7, v92', name='FM2')]]
        fx(opt('bpf', 221), 'buffer_load_dword v93, v92, s[4:7], s46 offen sc1')
    for n in range(20): st.append((I(f'v_fmac_f32 v{R0+n}, s20, v{DA+20+n}', name='FM2'), 146))
    for T in range(5):
        for s_ in range(2):
            fx(ga + 1 + 2*T + s_, f'ds_read_b128 {V(DA+20*s_+4*T)}, v189 offset:{s_*5120 + T*1024}')
        for s_ in range(2):
            for r in range(4): st.append((f'v_add_f32 v{R0+4*T+r}, v{R0+4*T+r}, v{DA+20*s_+4*T+r}', ga + 9 + 2*T))
    for T in range(4):
        fx(tdone[T] + 3, wr(3, T))
        for r in range(4): st.append((f'v_fmac_f32 v{R0+4*T+r}, s21, v{DA+60+4*T+r}', tdone[T] + 4))
    if opt('spf', 0):
        for n in range(a0, a1): k(spf(n)); k.ins[-1].w = []
    if not SB: k.need(names=['H1'])
    k('s_barrier')
    k.need(V(HR)); emit(stampL(f'dn0_{l}'))
    align('d')
    X = o.get('exp', '')
    if X and l == 1:
        def keep(x):
            t = x.text if isinstance(x, I) else x
            if 'L' in X and t.startswith('buffer_load') and ' v8,' not in t: return False
            if 'W' in X and t.startswith('ds_write'): return False
            if 'B' in X and t.startswith('s_barrier'): return False
            if 'P' in X and (t.startswith(('s_load', 's_cbranch', 's_cmp', 'POLL', 's_waitcnt', 's_mov_b32 s68', 's_add_u32 s68'))): return False
            if 'A' in X and t.startswith('s_atomic'): return False
            if 'R' in X and t.startswith('ds_read'): return False
            return True
        fixed = {g: [x for x in v if keep(x)] for g, v in fixed.items()}
        if 'H' in X: fixed = {g: [(re.sub(r' v2(08|09|10),', ' v8,', x) if isinstance(x, str) else x) for x in v] for g, v in fixed.items()}
        if 'S' in X: st = [(x, 999) for x, e in st]
    log = {}
    left = weave(k, mf, fixed, st, tail=False, log=log)
    print('down leftover', len(left), log)
    assert log['FM2'] < ga and log['DP2'] < 79
    emit(stampL(f'dn55_{l}'))
    k(wr(3, 4))
    emit([x for x, e in left])
    for r in range(4): k(f'v_fmac_f32 v{R0+16+r}, s21, v{DA+76+r}')
    k('s_waitcnt lgkmcnt(0)'); k('s_barrier')
    for T in range(5): k(f'ds_read_b128 {V(DA+40+4*T)}, v190 offset:{T*1024}')
    add = lambda T: [f'v_pk_add_f32 {V(R0+n,2)}, {V(R0+n,2)}, {V(DA+40+n,2)}' for n in (4*T, 4*T+2)]
    if l == 1:
        store = lambda n: [(f'buffer_store_dwordx4 {V(100)}, v92, s[12:15], 0 offen {OF}', f'buffer_store_dwordx4 {V(104)}, v93, s[12:15], 0 offen {OF}',
                            f'buffer_store_dwordx2 {V(108,2)}, v94, s[12:15], 0 offen {OF}')[n]]
        if opt('ot', 1):
            store = lambda n: [(f'ds_write_b128 v95, {V(100)}', f'ds_write_b128 v95, {V(104)} offset:80', f'ds_write_b64 v96, {V(108,2)} offset:64')[n]]
    emit(add(0) + cvt(0) + add(1) + cvt(1) + store(0) + add(2) + cvt(2) + add(3) + cvt(3) + store(1) + add(4) + cvt(4) + store(2))
    if l == 1 and opt('ot', 1):
        for n in range(3): k(f'ds_read_b128 {V(112+4*n)}, v97 offset:{n*1024}')
        for n in range(3): k(f'buffer_store_dwordx4 {V(112+4*n)}, v{92+n}, s[12:15], s72 offen {OF}')
    if l == 0:
        emit([x for T in range(5) for x in dots(T)] + ptail)
        stamp(f'dnm_{l}')
        cpf(1, 50)
        k('s_barrier')
        k(f's_mul_i32 s51, s{sW}, 37'); k('s_mul_i32 s51, s51, 21846'); k('s_lshr_b32 s51, s51, 16'); k('s_lshl_b32 s51, s51, 10')
        k(f's_mul_i32 s50, s{sJ}, 51200'); k('s_add_u32 s50, s50, s51'); k(f's_add_u32 s50, s50, {WS_BF}'); k(f's_add_u32 s51, s51, {L_B}')
        NB = opt('nb', 6)
        k('s_mov_b32 s76, s50'); k('s_mov_b32 s77, s51')
        if not opt('nobf', 0): emit(wu_dma(0, NB, 77, 76))
        if not opt('m2a', 0): emit(gen_M2())
        emit(vs_prep('Y', 'X20', sgX2, 48))
        k.need(names=['X2S'])
        stamp(f'dne_{l}')
        emit(vs_go('Y', 'X20', sgX2, 48))
        if not opt('nobf', 0): emit(wu_dma(NB, 13, 77, 76))
        if opt('m2a', 0): emit(gen_M2())
    else:
        stamp(f'dne_{l}')
        if DIAG == 'fin' or (STAMP and not o.get('only')): k('s_waitcnt vmcnt(0)'); stamp('fin')

def main():
    prologue()
    k(f's_cmp_lg_u32 s{sW}, 0')
    k.begin('w0', 's_cbranch_scc1')
    k(f'v_lshrrev_b32 v12, 5, v0'); k(f'v_mul_u32_u24 v12, {MBSZ - 512}, v12'); k('v_add_u32 v12, v12, v1')
    for r in range(4): k(f'v_mov_b32 v{16+r}, 0')
    k('s_lshl_b32 s50, s2, 9')
    k('buffer_store_dwordx4 v[16:19], v12, s[4:7], s50 offen sc1', name='CLR')
    k.end()
    setexec(20); k('buffer_load_dword v15, v20, s[8:11], s60 offen'); allexec()
    def adma(m):
        off = (m >> 1)*128 + (m & 1)*640
        L = []
        for hf in range(2):
            L.append([f's_add_u32 m0, s74, {m*2048 + hf*1024 - off}', I(f'buffer_load_dwordx4 v{48+hf}, s[8:11], 0 offen offset:{off} lds', name=f'AD{m}')])
        return L
    NA = opt('na', 3)
    for m in range(NA):
        for g_ in adma(m): emit(g_)
    stamp('iss0')
    k('s_mov_b32 s90, 1'); k('s_mov_b32 s66, -1'); k('s_mov_b32 s67, 0')
    k(f"""
    v_and_b32 v51, 7, v2
    v_xor_b32 v51, v51, v3
    v_lshlrev_b32 v51, 4, v51
    v_lshl_add_u32 v50, v2, 7, v51
    v_add_u32 v50, s74, v50
    v_xor_b32 v51, 64, v50
    """)
    emit(gen_B1())
    stamp('gen1')
    k(f's_cmp_lg_u32 s{sW}, 0')
    k.begin('w0', 's_cbranch_scc1')
    k('s_and_b32 s50, s2, 3'); k('s_lshl_b32 s50, s50, 6'); k('s_add_u32 s50, s32, s50'); k('s_addc_u32 s51, s33, 0')
    k.need(names=['CLR'])
    k('s_atomic_add s90, s[50:51], 0')
    k.end()
    emit(mix(gen_B2() + gen_T5() + pre_addr1() + pf_addr(), [g_ for m in range(NA, 10) for g_ in adma(m)]))
    stamp('issA')
    if opt('b0', 0): k('s_barrier')
    for n in COLD[:opt('c0', 5)]: emit(cold(n))
    stamp('issP')
    emit(gen_M2() + res_addr())
    k(f'v_add_u32 v8, {L_B}, v1')
    k.need(names=['AD0', 'AD1'])
    for m in range(2): emit(a_lds(m))
    k('s_waitcnt lgkmcnt(4)')
    k('s_barrier')
    stamp('ini')
    if stampL('aall'): k.need(names=['AD9']); emit(stampL('aall'))
    for l in range(2):
        if l == 0: d1_body(0, None)
        else:
            emit(gen_T5())
            k(f'v_add_u32 v8, {L_B}, v1')
            k(f's_add_u32 s72, s{sXT}, {WS_X2}'); k(f's_add_u32 s74, s{sST}, {WS_ST[2]}')
            k('v_add_u32 v36, s72, v1'); k('v_add_u32 v37, 10240, v36')
            def ald(n):
                ks, h = n >> 1, n & 1
                return [f'buffer_load_dwordx4 {V(A0 + 4*n)}, v{36+h}, s[4:7], {f"s{15 + ks//4}" if ks >= 4 else 0} offen offset:{(ks % 4)*1024} sc1']
            emit(poll_issue('X20')); emit(poll_wait('X20'))
            stamp('d1p_1')
            NUP = opt('nup', 8)
            for n in range(NUP): emit(ald(n))
            for n in range(4): k(f'buffer_load_dword v{32+n}, v5, s[4:7], s74 offen offset:{256*n} sc1')
            k.need(names=['WU']); k('s_barrier')
            stamp('d1b_1')
            d1_body(1, (NUP, ald))
        stop(f'd1_{l}')
        d2(l); stop(f'd2_{l}')
        up(l); stop(f'up_{l}')
        down(l); stop(f'dn_{l}')
try: main()
except Stop: pass
finish()
k('END:'); k('s_endpgm'); k('CODE_END:')
k.finish()
open(sys.argv[1], 'w').write(build([k], [(k.name, 256, 256, LDS)], single=True))
import json
json.dump(dict(WS_BF=WS_BF, stamps=stampnames, WS_TS=WS_TS, WS_WUF=WS_WUF, WS_WDF=WS_WDF, WS_Z=WS_Z, WS_X1=WS_X1, WS_X2=WS_X2, WS_ST=WS_ST, WS_H=WS_H), open(sys.argv[1] + '.json', 'w'))
print('insts', len(k.ins), 'hi', k.hi, 'nops', sum(1 for i in k.ins if i.kind == 'nop'))
```

```python
import sys, struct, re
from asmx import *
from asmlib import build
o = dict(a.split('=') for a in sys.argv[2:])
STOP = o.get('stop', '')
STAMP = int(o.get('stamp', 0))
def opt(n, d): return int(o.get(n, d))
S, D, F = 2048, 640, 1728
def fl(x): return hex(struct.unpack('<I', struct.pack('<f', x))[0])
MBSZ = 256*4*128
PH = {n: (i & 1)*MBSZ + (i >> 1)*4 for i, n in enumerate(['Z0', 'X10', 'HA0', 'HB0', 'X20', 'Z1', 'X11', 'HA1', 'HB1'])}
WS_TS = 11*MBSZ
WS_WUF = 2 << 20
WS_WDF = WS_WUF + 32*143360
WS_Z = [WS_WDF + 8*286720 + l*3145728 for l in range(2)]
WS_X1 = [WS_Z[1] + 3145728 + l*2621440 for l in range(2)]
WS_X2 = WS_X1[1] + 2621440
WS_ST = [WS_X2 + 2621440 + l*131072 for l in range(3)]
WS_H = [WS_ST[2] + 131072 + l*7340032 for l in range(2)]
WS_BF = WS_H[1] + 7340032
WS_END = WS_BF + 8*51200
L_XCH = 93184
L_B = L_XCH + 12288
L_Z = 132096
L_RED = 93184
L_RAW = 81920
L_CSP = 156672
L_CS = 163328
LDS = 163840
sW, sXCD, sQ, sJ, sCS, sCLS, sSIG, sGAM, sCSU, sMB = range(36, 46)
sXT, sST = 64, 65
sgZ, sgX1, sgH, sgX2 = 82, 84, 86, 88
R0 = 212; WT = 232
def V(a, n=4): return f'v[{a}:{a+n-1}]'
def wdreg(n): return f'a[{4*n}:{4*n+3}]' if n < 64 else V(WT + 4*(n-64))
MF = 'v_mfma_f32_16x16x32_bf16'
k = K(NAME + '_kernel')
nstamp = [0]; stampnames = []
DIAG = o.get('diag')
def stamp(name):
    if o.get('from') == name:
        k('s_memrealtime s[100:101]'); k('s_waitcnt lgkmcnt(0)'); k('s_mov_b32 s98, s100')
    if DIAG == name:
        k('s_memrealtime s[100:101]'); k('s_waitcnt lgkmcnt(0)')
    if not STAMP: return
    if o.get('only') and name not in o['only'].split(':'): return
    if name in stampnames: n = stampnames.index(name)
    else: n = len(stampnames); stampnames.append(name)
    k('s_memrealtime s[62:63]' if STAMP == 1 else 's_memtime s[62:63]'); k('s_waitcnt lgkmcnt(0)')
    k(f'v_writelane_b32 v11, s62, {n}')
def stampL(name):
    if DIAG == name: return ['s_memrealtime s[100:101]', 's_waitcnt lgkmcnt(0)']
    if not STAMP or not (o.get('fine') or name in o.get('only', '').split(':')): return []
    if name in stampnames: n = stampnames.index(name)
    else: n = len(stampnames); stampnames.append(name)
    return ['s_memrealtime s[62:63]' if STAMP == 1 else 's_memtime s[62:63]', 's_waitcnt lgkmcnt(0)', f'v_writelane_b32 v11, s62, {n}']
def finish():
    if DIAG:
        op = o.get('red', 'max')
        k(f's_cmp_lg_u32 s{sW}, 0'); k('s_cbranch_scc1 END')
        if o.get('from'): k('s_sub_u32 s100, s100, s98')
        k('v_mov_b32 v12, s100'); k('s_lshl_b32 s48, s2, 2'); k(f's_add_u32 s48, s48, {WS_TS}')
        setexec(1); k('buffer_store_dword v12, off, s[4:7], s48 sc1'); allexec()
        k('s_cmp_lg_u32 s2, 0'); k('s_cbranch_scc1 END')
        k('PADL:'); k('s_memrealtime s[62:63]'); k('s_waitcnt lgkmcnt(0)')
        k('s_sub_u32 s62, s62, s99'); k('s_cmp_lt_u32 s62, 8000'); k('s_cbranch_scc1 PADL')
        k(f's_mov_b32 s48, {WS_TS}')
        k('buffer_load_dwordx4 v[12:15], v1, s[4:7], s48 offen sc1')
        if not o.get('from'):
            for r in range(4): k(f'v_subrev_u32 v{12+r}, s99, v{12+r}')
        k(f'v_{op}_i32 v12, v12, v13'); k(f'v_{op}_i32 v14, v14, v15'); k(f'v_{op}_i32 v12, v12, v14')
        k('v_readlane_b32 s50, v12, 0')
        for n in range(1, 64):
            k(f'v_readlane_b32 s51, v12, {n}'); k(f's_{op}_i32 s50, s50, s51')
        k(f's_mul_i32 s50, s50, {100 if o.get("from") else 10}'); k('s_add_u32 s50, s50, 20000'); k('s_min_u32 s50, s50, 100000')
        k('PADM:'); k('s_memrealtime s[62:63]'); k('s_waitcnt lgkmcnt(0)')
        k('s_sub_u32 s62, s62, s99'); k('s_cmp_lt_u32 s62, s50'); k('s_cbranch_scc1 PADM')
    if STAMP:
        k(f's_lshl_b32 s48, s{sMB}, 1'); k(f's_add_u32 s48, s48, {WS_TS}')
        k('v_lshlrev_b32 v12, 2, v0')
        k('buffer_store_dword v11, v12, s[4:7], s48 offen')
    k('s_endpgm')
class Stop(Exception): pass
def stop(name):
    if STOP == name:
        k('s_waitcnt vmcnt(0) lgkmcnt(0)'); raise Stop()
def setexec(n, lo=0):
    m = ((1 << n) - 1) << lo
    k(f's_mov_b32 exec_lo, {hex(m & 0xffffffff)}'); k(f's_mov_b32 exec_hi, {hex(m >> 32)}')
def allexec(): k('s_mov_b64 exec, -1')
def align(nm):
    a = opt('al', 0)
    if a:
        k(f'.p2align {a}')
        for n in range(opt('al' + nm, 0)): k('s_nop 0')
def cpf(bit, t=28):
    if not (opt('cpf', 6) >> bit) & 1: return
    k(f"""
    s_lshr_b32 s50, s2, 3
    s_lshl_b32 s50, s50, 2
    s_add_u32 s50, s50, s{sW}
    s_lshl_b32 s50, s50, 9
    v_lshl_add_u32 v{t}, v3, 7, s50
    v_min_u32 v{t}, CODE_END-PC0-4, v{t}
    global_load_dword v{t+1}, v{t}, s[94:95] sc1
    """)
def lines(s): return [l.strip() for l in s.strip().split('\n') if l.strip()]
def emit(L):
    for x in L: k(x)
MAXPOLL = 40000
LF = {'x': '', '1': 'sc1', 'n': 'nt', '1n': 'sc1 nt', '01': 'sc0 sc1'}[o.get('lf', '1')]
OF = {'x': '', '1': 'sc1', 'n': 'nt', '01': 'sc0 sc1'}[o.get('of', 'x')]
def poll_issue(ph): return [f's_load_dword s91, s[92:93], {PH[ph]} glc']
def poll_wait(ph):
    L = k.label('POLL'); X = k.label('POLLX')
    return ['s_waitcnt lgkmcnt(0)', 's_cmp_ge_u32 s91, 8', f's_cbranch_scc1 {X}', 's_mov_b32 s68, 0', f'{L}:',
            f's_load_dword s91, s[92:93], {PH[ph]} glc', 's_add_u32 s68, s68, 1', 's_waitcnt lgkmcnt(0)',
            's_cmp_ge_u32 s91, 8', f's_cbranch_scc1 {X}', f's_cmp_lt_u32 s68, {MAXPOLL}', f's_cbranch_scc1 {L}', f'{X}:']
SIGOFF = {sgZ: lambda l: (l >> 2)*512 + (l & 3)*32768, sgX1: lambda l: l*4096, sgH: lambda l: l*4096, sgX2: lambda l: l*4096}
def sig_go(ph, sg): return [f's_atomic_add s90, s[{sg}:{sg+1}], {SIGOFF[sg](l) + PH[ph]}' for l in range(8)]
VS = o.get('vs', 'ZXYH')
def vs_prep(key, ph, sg, va):
    if key not in VS: return []
    if sg == sgZ: L = [f'v_and_b32 v{va}, 3, v0', f'v_bfe_u32 v{va+1}, v0, 2, 1', f'v_lshlrev_b32 v{va}, 15, v{va}', f'v_lshl_add_u32 v{va}, v{va+1}, 9, v{va}']
    else: L = [f'v_and_b32 v{va}, 7, v0', f'v_lshlrev_b32 v{va}, 12, v{va}']
    return L + [f'v_lshrrev_b32 v{va+1}, 3, v0', f'v_lshl_add_u32 v{va}, v{va+1}, 28, v{va}', f'v_mov_b32 v{va+1}, 1',
                f's_sub_u32 s69, s{sg}, s4', f's_add_u32 s69, s69, {PH[ph]}']
def vs_go(key, ph, sg, va):
    if key not in VS: return sig_go(ph, sg)
    return [f'buffer_atomic_add v{va+1}, v{va}, s[4:7], s69 offen sc1']
def mix(a, b):
    a = grp(a); out = []; nb = len(b); done = 0
    for n, x in enumerate(a):
        while done < nb and done*len(a) <= n*nb: out += b[done]; done += 1
        out.append(x)
    for g_ in b[done:]: out += g_
    return out

def prologue():
    k('s_cmp_ge_u32 s2, 256'); k('s_cbranch_scc1 END')
    k('s_getpc_b64 s[94:95]')
    k('PC0:')
    for s_, a in ((4, 'ws'), (16, 'wg'), (20, 'wu'), (24, 'wd'), (8, 'x'), (12, 'out'), (32, 'dbg')):
        k(f's_load_dwordx2 s[{s_}:{s_+1}], s[0:1], {KA[a]}')
    if STAMP: k('s_memrealtime s[62:63]' if STAMP == 1 else 's_memtime s[62:63]')
    if DIAG: k('s_memrealtime s[100:101]')
    k(f"""
    s_lshr_b32 s50, s2, 3
    s_lshl_b32 s50, s50, 11
    v_lshrrev_b32 v12, 4, v0
    v_lshl_add_u32 v12, v12, 7, s50
    v_min_u32 v12, CODE_END-PC0-4, v12
    global_load_dword v13, v12, s[94:95]
    v_lshrrev_b32 v3, 6, v0
    v_and_b32 v0, 63, v0
    v_readfirstlane_b32 s{sW}, v3
    """)
    for s_, n in ((4, 1 << 28), (16, D*F*2), (20, D*F*2), (24, D*F*2), (8, S*D*2), (12, S*D*2), (32, 256)):
        k(f's_mov_b32 s{s_+2}, {n}'); k(f's_mov_b32 s{s_+3}, 0x00020000')
    k(f"""
    v_lshlrev_b32 v1, 4, v0
    v_and_b32 v2, 15, v0
    v_lshrrev_b32 v3, 4, v0
    s_and_b32 s{sXCD}, s2, 7
    s_lshr_b32 s{sQ}, s2, 6
    s_bfe_u32 s{sJ}, s2, 0x30003
    s_lshl_b32 s{sCS}, s{sXCD}, 2
    s_add_u32 s{sCS}, s{sCS}, s{sQ}
    s_lshr_b32 s{sCLS}, s{sCS}, 1
    s_sub_u32 s50, 32, s{sCLS}
    s_cmp_eq_u32 s{sCS}, 1
    s_cselect_b32 s50, 16, s50
    s_bitcmp1_b32 s{sCS}, 0
    s_cselect_b32 s{sCLS}, s50, s{sCLS}
    """)
    k(f"""
    s_lshl_b32 s50, s{sJ}, 3
    s_lshl_b32 s51, s{sW}, 1
    s_add_u32 s50, s50, s51
    s_lshr_b32 s51, s50, 5
    s_lshl_b32 s51, s51, 5
    s_and_b32 s50, s50, 31
    s_lshl_b32 s50, s50, 6
    s_add_u32 s50, s50, s51
    s_add_u32 s50, s50, s{sCLS}
    s_mul_i32 s60, s50, 1280
    v_cmp_lt_u32 vcc, 9, v0
    v_mov_b32 v21, {64*1280 - 1280}
    s_lshr_b32 s50, s{sW}, 1
    s_lshl_b32 s50, s50, 5
    v_cndmask_b32 v20, 0, v21, vcc
    v_lshl_add_u32 v20, v0, 7, v20
    s_and_b32 s51, s{sW}, 1
    s_lshl_b32 s51, s51, 10
    s_add_u32 s50, s50, s51
    s_add_u32 s50, s50, s{sCLS}
    s_mul_i32 s50, s50, 1280
    v_lshrrev_b32 v50, 3, v0
    v_and_b32 v51, 7, v0
    v_xor_b32 v51, v51, v50
    v_mul_u32_u24 v48, 81920, v50
    v_lshl_add_u32 v48, v51, 4, v48
    v_add_u32 v48, s50, v48
    v_add_u32 v49, {8*81920}, v48
    s_mul_i32 s74, s{sW}, 20480
    """)
    if STAMP: k('v_mov_b32 v11, 0')
    k('s_waitcnt lgkmcnt(0)')
    if DIAG: k('s_mov_b32 s99, s100')
    if STAMP:
        k('v_writelane_b32 v11, s62, 0'); stampnames.append('start')

def ids2():
    return lines(f"""
    s_and_b32 s{sGAM}, s{sXCD}, 4
    s_add_u32 s{sGAM}, s{sGAM}, s{sQ}
    s_lshl_b32 s{sCSU}, s{sGAM}, 2
    s_add_u32 s{sCSU}, s{sCSU}, s{sW}
    s_lshl_b32 s{sMB}, s2, 2
    s_add_u32 s{sMB}, s{sMB}, s{sW}
    s_lshl_b32 s{sMB}, s{sMB}, 7
    s_add_u32 s92, s4, s{sMB}
    s_addc_u32 s93, s5, 0
    s_lshl_b32 s50, s{sCS}, 2
    s_add_u32 s50, s50, s{sW}
    s_mul_i32 s{sXT}, s50, 20480
    s_lshl_b32 s{sST}, s50, 10
    s_lshl_b32 s50, s{sW}, 10
    s_lshl_b32 s51, s{sJ}, 12
    s_add_u32 s50, s50, s51
    s_lshr_b32 s51, s{sCS}, 3
    s_lshl_b32 s51, s51, 7
    s_add_u32 s{sgZ}, s50, s51
    s_and_b32 s50, s{sXCD}, 4
    s_and_b32 s51, s{sXCD}, 3
    s_lshl_b32 s51, s51, 6
    s_add_u32 s50, s50, s51
    s_add_u32 s50, s50, s{sW}
    s_lshl_b32 s50, s50, 2
    s_add_u32 s50, s50, s{sQ}
    s_lshl_b32 s{sgX1}, s50, 7
    s_lshl_b32 s50, s{sW}, 6
    s_add_u32 s50, s50, s{sGAM}
    s_lshl_b32 s50, s50, 2
    s_and_b32 s51, s{sXCD}, 3
    s_add_u32 s50, s50, s51
    s_lshl_b32 s{sgH}, s50, 7
    s_lshl_b32 s50, s{sQ}, 6
    s_add_u32 s50, s50, s{sXCD}
    s_lshl_b32 s50, s50, 2
    s_add_u32 s50, s50, s{sW}
    s_lshl_b32 s{sgX2}, s50, 7
    s_mul_i32 s50, s{sJ}, 1280
    s_add_u32 s51, s50, 1024
    s_sub_u32 s52, {79*256}, s50
    v_mov_b32 v12, s51
    v_mov_b32 v13, s52
    v_cndmask_b32 v4, v13, v12, s[66:67]
    v_and_b32 v12, 1, v3
    v_lshl_add_u32 v4, v12, 3, v4
    v_lshl_add_u32 v4, v2, 4, v4
    v_lshlrev_b32 v5, 2, v0
    """) + [x for sg in (sgZ, sgX1, sgH, sgX2) for x in (f's_add_u32 s{sg}, s4, s{sg}', f's_addc_u32 s{sg+1}, s5, 0')]

def nat_addr(a01, a23, a4, t):
    return lines(f"""
    s_lshr_b32 s50, s{sW}, 1
    s_lshl_b32 s50, s50, 5
    s_and_b32 s51, s{sW}, 1
    s_lshl_b32 s51, s51, 10
    s_add_u32 s50, s50, s51
    s_add_u32 s50, s50, s{sCLS}
    v_lshl_add_u32 v{t}, v2, 6, s50
    v_mul_u32_u24 v{t}, 1280, v{t}
    s_mul_i32 s50, s{sJ}, 80
    s_sub_u32 s51, 1200, s50
    v_lshl_add_u32 v{a4}, v3, 4, v{t}
    v_add_u32 v{a01}, s50, v{a4}
    v_add_u32 v{a23}, s51, v{a4}
    s_add_u32 s50, s50, 64
    s_add_u32 s51, s51, 48
    v_mov_b32 v{t+1}, s50
    v_mov_b32 v{t+2}, s51
    v_cndmask_b32 v{a4}, v{t+2}, v{t+1}, s[66:67]
    v_lshl_add_u32 v{a4}, v3, 3, v{a4}
    v_add_u32 v{a4}, v{a4}, v{t}
    """)

A0 = 132; P0 = 88; P1 = 108; P5 = 128; BR = 72; B5 = 68; M2 = 52
def gen_vals(t, ef, base):
    L = []
    for jj in range(1, 8): L.append(f'v_fmamk_f32 v{t+jj}, v{ef}, {fl(float(jj))}, v{base}')
    L.append(f'v_cos_f32 v{t}, v{base}')
    for jj in range(1, 8): L.append(f'v_cos_f32 v{t+jj}, v{t+jj}')
    return L
def pack8(dst, t): return [f'v_cvt_pk_bf16_f32 v{dst+p}, v{t+2*p}, v{t+2*p+1}' for p in range(4)]
def gen_setup(e, ef, base, t, zero_dc):
    L = [f'v_and_b32 v{t}, 2, v0', f'v_cvt_f32_u32 v{ef}, v{e}', f'v_cvt_f32_u32 v{t}, v{t}', f'v_mul_f32 v{t}, 0x3e000000, v{t}']
    if zero_dc: L += [f'v_cmp_eq_u32 vcc, 0, v{e}', f'v_mov_b32 v{t+1}, 0x3e800000', f'v_mul_f32 v{ef}, {fl(1/640)}, v{ef}', f'v_cndmask_b32 v{t}, v{t}, v{t+1}, vcc']
    else: L += [f'v_mul_f32 v{ef}, {fl(1/640)}, v{ef}']
    L += [f'v_lshlrev_b32 v{t+1}, 3, v3', f'v_cvt_f32_u32 v{t+1}, v{t+1}', f'v_fma_f32 v{base}, v{ef}, v{t+1}, v{t}']
    return L
def gen_T5():
    return [f's_mul_i32 s53, s{sJ}, 40', 's_add_u32 s53, s53, 40', 'v_and_b32 v20, 1, v0', 'v_sub_u32 v22, 1, v20', 'v_mul_u32_u24 v22, s53, v22'] \
        + gen_setup(22, 23, 24, 26, False) + gen_vals(26, 23, 24) + pack8(B5, 26)
def gen_run(nfr, C0, C1, PK):
    L = gen_vals(C0, 23, 24) + [f'v_fmamk_f32 v24, v23, {fl(32.0)}, v24', f'v_mul_f32 v34, {fl(32.0)}, v23'] + gen_vals(C1, 23, 24) + ['v_cos_f32 v34, v34']
    for n in range(nfr):
        c, o_ = (C0, C1) if n % 2 == 0 else (C1, C0)
        if n == 2: L.append('v_add_f32 v34, v34, v34')
        if n >= 2:
            for p in range(4): L.append(f'v_pk_fma_f32 {V(c+2*p,2)}, {V(o_+2*p,2)}, v[34:35], {V(c+2*p,2)} op_sel_hi:[1,0,1] neg_lo:[0,0,1] neg_hi:[0,0,1]')
        pk = PK + 4*(n % 2)
        if nfr == 3 and n == 2: L.append('v_add_u32 v25, s57, v1')
        L += pack8(pk, c) + [f'ds_write_b128 v25, {V(pk)} offset:{n*5120}']
    return L
def gen_B1():
    return lines(f"""
    s_mul_i32 s52, s{sJ}, 40
    s_lshr_b32 s53, s{sW}, 1
    s_lshl_b32 s53, s53, 4
    s_and_b32 s54, s{sW}, 1
    s_lshl_b32 s55, s54, 1
    s_add_u32 s53, s53, s55
    s_add_u32 s53, s53, s52
    v_and_b32 v20, 1, v0
    v_and_b32 v21, 12, v0
    v_add3_u32 v22, v20, v21, s53
    s_lshl_b32 s56, s{sW}, 10
    s_add_u32 s56, s56, {L_B}
    v_add_u32 v25, s56, v1
    v_mov_b32 v35, 0
    """) + gen_setup(22, 23, 24, 26, True) + gen_run(10, 88, 96, 104)
def gen_B2():
    return lines(f"""
    s_add_u32 s53, s52, 32
    v_lshrrev_b32 v21, 1, v21
    v_add3_u32 v22, v20, v21, s53
    s_mul_i32 s55, s{sW}, 3
    s_min_u32 s55, s55, 8
    s_mul_i32 s56, s55, 5120
    s_add_u32 s56, s56, {L_B + 4096}
    s_cmp_lt_u32 s{sW}, 2
    s_cselect_b32 s57, s56, {L_CSP - 10240}
    s_lshl_b32 s55, s55, 5
    v_add_u32 v25, s56, v1
    """) + gen_setup(22, 23, 24, 26, False) + ['v_cvt_f32_u32 v26, s55', 'v_fma_f32 v24, v26, v23, v24', 'v_fract_f32 v24, v24'] + gen_run(3, 88, 96, 104)

def gen_M2(tmap=None):
    L = lines(f"""
    s_lshl_b32 s50, s{sW}, 3
    v_lshrrev_b32 v20, 1, v2
    v_add_u32 v20, s50, v20
    v_lshrrev_b32 v21, 1, v20
    v_cmp_eq_u32 vcc, 1, v20
    v_sub_u32 v22, 32, v21
    v_and_b32 v23, 2, v0
    v_cndmask_b32 v22, v22, 16, vcc
    v_cmp_ne_u32 vcc, 0, v23
    v_and_b32 v20, 1, v0
    v_lshl_add_u32 v23, v3, 8, s{sCLS}
    v_cndmask_b32 v21, v21, v22, vcc
    v_lshl_add_u32 v21, v20, 5, v21
    v_mul_u32_u24 v22, v21, v23
    v_and_b32 v22, 2047, v22
    v_bfe_i32 v20, v21, 0, 1
    v_and_b32 v20, 0x80008000, v20
    v_cvt_f32_u32 v21, v21
    v_cvt_f32_u32 v22, v22
    v_mul_f32 v21, {fl(1/64)}, v21
    v_mul_f32 v22, {fl(1/2048)}, v22
    """)
    for kap in range(2):
        for jp in range(2):
            for h in range(2): L.append(f'v_fmamk_f32 v{23+h}, v21, {fl(float(kap + 2*(2*jp + h)))}, v22')
            L += ['v_cos_f32 v25, v23', 'v_cos_f32 v26, v24', 'v_sin_f32 v27, v23', 'v_sin_f32 v28, v24']
            L.append(f'v_cvt_pk_bf16_f32 v{M2 + 4*kap + jp}, v25, v26')
            L.append(f'v_cvt_pk_bf16_f32 v{M2 + 8 + 4*kap + jp}, v27, v28')
            L.append(f'v_xor_b32 v{M2 + 4*kap + jp + 2}, v20, v{M2 + 4*kap + jp}')
            L.append(f'v_xor_b32 v{M2 + 8 + 4*kap + jp + 2}, v20, v{M2 + 8 + 4*kap + jp}')
    if tmap: L = [re.sub(r'\bv(2[0-8])\b', lambda m_: f'v{tmap[int(m_.group(1))-20]}', x).replace('s50', 's69') for x in L]
    return L

def a_lds(m):
    return [f'ds_read_b128 {V(A0 + 8*(2*(m >> 1) + od) + 4*(m & 1))}, v{50+od} offset:{m*2048}' for od in range(2)]
def init_issue():
    k('buffer_load_dword v38, v14, s[32:35], 0 offen sc1')
def init_check():
    L = k.label('INI'); X = k.label('INIX')
    k('s_mov_b32 s68, 0')
    k.need('v38')
    k(f'{L}:')
    k('v_cmp_gt_u32 s[96:97], 64, v38')
    k('s_cmp_eq_u64 s[96:97], 0')
    k(f's_cbranch_scc1 {X}')
    k('s_sleep 10')
    k('buffer_load_dword v38, v14, s[32:35], 0 offen sc1')
    k.ins[-1].kind = 'salu'; k.ins[-1].w = []
    k('s_add_u32 s68, s68, 1')
    k('s_waitcnt vmcnt(0)'); k.ins[-1].kind = 'salu'
    k(f's_cmp_lt_u32 s68, {MAXPOLL}'); k(f's_cbranch_scc1 {L}')
    k(f'{X}:')

PSO = [76, 77, 78, 79, 80, 81, 46, 47, 48, 49]
def d1_body(l, aload):
    S1, S2 = 40, 44
    BRL = [72, 76, 80, 84, 16, 20, 24]; NB = len(BRL)
    XB = L_XCH
    mf = []; fixed = {}
    def fx(g, x, first=False):
        L = fixed.setdefault(g, [])
        L.insert(0, x) if first else L.append(x)
    def p5(ks):
        mf.append(f'{MF} {V(P5)}, {V(A0 + 8*ks)}, {V(B5)}, {V(P5) if ks else 0}')
        mf.append(f'{MF} {V(P5)}, {V(A0 + 8*ks + 4)}, {V(B5)}, {V(P5)}')
    GG = R0 + 16; AF = opt('af', 0)
    TK = opt(f'tk{l}', 3)
    border = [(ks, T) for ks in range(10 - TK) for T in range(5)] + [(ks, T) for T in (4, 0, 1, 2, 3) for ks in range(10 - TK, 10)]
    rd = lambda n: f'ds_read_b128 {V(BRL[n % NB])}, v8 offset:{(border[n][0]*5 + border[n][1])*1024}'
    for n in range(NB-1): k(rd(n))
    tdone = {}; kstart = {}
    def head(ks):
        g0 = len(mf); kstart[ks] = g0
        if l == 0:
            if ks < 5:
                for c in range(4): mf.append(f'{MF} {V(GG)}, {V(A0+16*ks+4*c)}, {V(A0+16*ks+4*c)}, {V(GG) if (ks or c) else 0}')
                tdone['g'] = len(mf)
                p5(2*ks); p5(2*ks+1); tdone[5] = len(mf)
            for q_, kp in enumerate([2*ks+1, 2*ks+2] if AF else [ks+1]):
                if kp < 5:
                    fx(g0 + 4*q_, Need([], [f'AD{2*kp}', f'AD{2*kp+1}']), True)
                    for c, x in enumerate(a_lds(2*kp) + a_lds(2*kp+1)): fx(g0 + 4*q_ + c, x)
        else:
            if ks: fx(g0-2, Need(rr(V(A0 + 8*ks, 8))), True)
            p5(ks); tdone[5] = len(mf)
            for c in range(3):
                n = aload[0] + 3*ks + c
                if n < 20:
                    for x in aload[1](n): fx(g0 + (0, 3, 7)[c], x)
    for n, (ks, T) in enumerate(border):
        if n < 5*(10-TK):
            if T == 0: head(ks)
        elif n == 5*(10-TK):
            for k2 in range(10-TK, 10): head(k2)
        b = V(BRL[n % NB])
        fx(len(mf)-1, Need(rr(b)), True)
        if n + NB - 1 < 50: fx(len(mf), rd(n+NB-1))
        mf.append(f'{MF} {V(P0+4*T)}, {V(A0 + 8*ks)}, {b}, {V(P0+4*T) if ks else 0}')
        mf.append(f'{MF} {V(P1+4*T)}, {V(A0 + 8*ks + 4)}, {b}, {V(P1+4*T) if ks else 0}')
        if ks == 9: tdone[T] = len(mf)
    st = []
    if l == 0:
        isfree = lambda g: all((x if isinstance(x, I) else I(x)).kind == 'need' for x in fixed.get(g, []))
        st += [(x, 0) for x in lines(f"""
        s_lshl_b32 s50, s{sCS}, 2
        s_add_u32 s50, s50, s{sW}
        s_min_u32 s50, s50, 99
        s_lshl_b32 s50, s50, 9
        v_add_u32 v38, s50, v8
        s_mul_i32 s51, s{sJ}, 51200
        s_add_u32 s50, s50, s51
        s_add_u32 s71, s50, {WS_BF}
        v_mov_b32 v39, 0x10000000
        v_cndmask_b32 v39, v39, v1, s[66:67]
        ds_read_b128 {V(40)}, v38
        """)]
        st.append((f'buffer_store_dwordx4 {V(40)}, v39, s[4:7], s71 offen sc1', 24))
        if opt('m2w', 0): st += [(x, 0) for x in gen_M2([28, 32, 33, 34, 35, 36, 13, 14, 38])]
        pa2 = pre_addr2(); NW_ = 39
        wpre = opt('wpre', 0)
        emit(pa2[:wpre])
        st = [(I(x, name='PA1'), 0) for x in pa2[wpre:NW_]] + st + [(x if isinstance(x, G) else I(x, name='PA2'), 0) for x in pa2[NW_:]]
        for c, x in enumerate((f'ds_read_b128 {V(RS[0])}, v13', f'ds_read_b128 {V(RS[4])}, v14 offset:2048', f'ds_read_b64 {V(6,2)}, v28')):
            fx((kstart[1] + 9 + 2*c) if AF else (kstart[3] + 4 + c), I(x, name='RSL'))
        MB_ = kstart[2] + 1 if AF else kstart[3] + 14; fx(MB_, 's_barrier', True); fx(MB_, Need([], ['RSL']), True)
        late = []
        def put(g, items):
            while g < len(mf) and not isfree(g): g += 1
            if g >= len(mf): late.append(items); return None
            for x in items: fx(g, x)
            return g
        for c, n in enumerate(COLD[opt('c0', 5):opt('c1', 8)]): put(opt('rg', 30) + opt('rs', 20)*c, cold(n))
        PG = opt('pg', 84)
        for x in stampL('rawb'): fx(PG-2, x)
        fx(PG-1, Need([], ['RAW']), True)
        for x in stampL('raw'): fx(PG-1, x)
        for p in range(3):
            put(PG, [f'ds_read_b64_tr_b16 {V(R0+4+4*p+2*h, 2)}, v{R0 + (p >> 1)} offset:{(80 if p == 1 else 64 if p == 2 else 0) + 640*h}' for h in range(2)])
        for p in range(3):
            put(PG + 10 + 8*p, [f'buffer_store_dwordx4 {V(R0+4+4*p)}, v{R0 + 2 + (p >> 1)}, s[4:7], s{76 + (p >> 1)} offen offset:{2048*(p & 1)} sc1'])
        assert not late
        W0, WS_ = opt('w0', 76), opt('ws', 8)
        assert W0 > MB_ + 1
        for x in stampL('wpfb') + ([Need([], ['WPF'])] + stampL('wpf') if stampL('wpf') else []): fx(opt('wpg', 40), x)
        for c in range(opt('r1n', 10)):
            a, b = wdma(1, c)
            g = put(W0 + WS_*c, [b])
            if g is None: late[-1] = [a, b]
            else: fx(g-1, a, True)
        print('round1 late', len(late))
    else:
        for x in ['v_add_f32 v32, v32, v33', 'v_add_f32 v34, v34, v35', 'v_add_f32 v32, v32, v34',
                  'v_and_b32 v33, 1, v3', 'v_cvt_f32_u32 v33, v33', 'v_sub_f32 v34, 1.0, v33']: st.append((x, 30))
        fx(47, f'v_mfma_f32_16x16x4_f32 {V(S1)}, v32, v34, 0'); fx(47, f'v_mfma_f32_16x16x4_f32 {V(S2)}, v32, v33, 0')
    for x in ['v_and_b32 v29, 1, v0', 'v_cvt_f32_u32 v29, v29', 'v_fma_f32 v29, v29, -2.0, 1.0',
              f's_and_b32 s50, s{sW}, 1', 's_lshl_b32 s50, s50, 3', f's_lshr_b32 s51, s{sW}, 1', 's_lshl_b32 s51, s51, 10',
              's_add_u32 s50, s50, s51', f'v_add_u32 v10, {XB}, v1', 'v_add_u32 v9, s50, v10',
              f's_lshl_b32 s50, s{sCS}, 3', f's_add_u32 s50, s50, s{sJ}', 's_mul_i32 s50, s50, 12288',
              f's_lshl_b32 s51, s{sW}, 10', 's_add_u32 s50, s50, s51', f's_add_u32 s70, s50, {WS_Z[l]}', 's_add_u32 s60, s70, 4096', 's_add_u32 s61, s70, 8192',
              'v_lshlrev_b32 v12, 6, v2', 'v_lshl_add_u32 v12, v3, 4, v12']: st.append((x, 6 if l == 0 else 48))
    if l == 0:
        e = tdone['g'] + 3
        for x in ['v_lshlrev_b32 v31, 2, v3', 'v_sub_u32 v31, v2, v31', 'v_mov_b32 v30, 0']: st.append((x, 6))
        for r in range(4): st += [(f'v_cmp_eq_u32 s[{52+2*r}:{53+2*r}], {r}, v31', 6)]
        st.append(('v_mov_b32 v31, 1.0', 6))
        for r in range(4): st.append((f'v_cndmask_b32 v30, v30, v{GG+r}, s[{52+2*r}:{53+2*r}]', e))
        st.append((f'v_mfma_f32_16x16x4_f32 {V(S2)}, v30, v31, 0', e))
        e = tdone[5] + 3
        for r in range(4): st.append((f'v_mov_b32_dpp v{S1+r}, v{P5+r} quad_perm:[1,1,1,1] row_mask:0xf bank_mask:0xf', e))
        for r in range(4): st.append((f'v_mul_f32 v{S1+r}, {fl(1/640)}, v{S1+r}', e))
        e += 6
    else:
        e = 54
        for r in range(4): st.append((f'v_mul_f32 v{S1+r}, {fl(1/640)}, v{S1+r}', e))
    for r in range(4): st.append((f'v_mul_f32 v{S2+r}, {fl(1/640)}, v{S2+r}', e))
    for r in range(4): st.append((f'v_fma_f32 v{S2+r}, -v{S1+r}, v{S1+r}, v{S2+r}', e))
    for r in range(4): st.append((f'v_max_f32 v{S2+r}, 0, v{S2+r}', e))
    for r in range(4): st.append((f'v_add_f32 v{S2+r}, {fl(1e-5)}, v{S2+r}', e))
    for r in range(4): st.append((f'v_rsq_f32 v{S2+r}, v{S2+r}', e))
    def combine(T):
        p = P0 + 4*T if T < 5 else P5
        e = tdone[T] + 2
        if T < 5:
            for r in range(4): st.append((f'v_fmac_f32 v{p+r}, v29, v{P1+4*T+r}', e))
        for r in range(4): st.append((f'v_mul_f32 v{p+r}, v{p+r}, v{S2+r}', e))
        st.append((f'v_cvt_pk_bf16_f32 v{p}, v{p}, v{p+1}', e)); st.append((f'v_cvt_pk_bf16_f32 v{p+1}, v{p+2}, v{p+3}', e))
        st.append((I(f'ds_write_b64 v9, {V(p,2)} offset:{T*2048}', name=f'XW{l}{T >> 1}'), e))
    FR = A0
    AC = {4: (180, 184), 5: (188, 192), 0: (196, 200), 1: (204, 208), 2: (P0, P0+4), 3: (P1, P1+4)}
    XD_ = opt('xd', 4)
    xrd = lambda part: [I(f'ds_read_b128 {V(FR+4*n)}, v10 offset:{n*1024}', name=f'XR{part}') for n in range(4*part, 4*part+4)]
    def exch(part):
        nm = f'XW{l}{part}'
        st.append((Need([], [nm]), lambda lg: lg.get(nm, 999) + XD_)); st.append(('s_barrier', 0))
        for x in xrd(part): st.append((x, 0))
    def g2(part):
        L = []
        for T in (2*part, 2*part+1):
            t1, t2 = AC[T]
            for kap in range(2):
                f = V(FR + 4*(2*T + kap))
                L.append(f'{MF} {V(t1)}, {f}, {V(M2+4*kap)}, {V(t1) if kap else 0}')
                L.append(f'{MF} {V(t2)}, {f}, {V(M2+8+4*kap)}, {V(t2) if kap else 0}')
        return L
    def zepi(T, pk=True):
        t1, t2 = AC[T]; dst = 16 + 4*(T >> 1) + 2*(T & 1)
        if pk: L = [f'v_pk_add_f32 {V(t1,2)}, {V(t1,2)}, {V(t2+2,2)}', f'v_pk_add_f32 {V(t1+2,2)}, {V(t1+2,2)}, {V(t2,2)} neg_lo:[0,1] neg_hi:[0,1]']
        else: L = [x for rp in range(2) for x in (f'v_add_f32 v{t1+rp}, v{t1+rp}, v{t2+2+rp}', f'v_sub_f32 v{t1+2+rp}, v{t1+2+rp}, v{t2+rp}')]
        L += [f'v_cvt_pk_bf16_f32 v{dst+rp}, v{t1+rp}, v{t1+2+rp}' for rp in range(2)]
        if T & 1: L.append(I(f'buffer_store_dwordx4 {V(16 + 4*(T>>1))}, v12, s[4:7], s{(70, 60, 61)[T >> 1]} offen sc1', name='ZS'))
        return L
    G1 = len(mf)
    deadline = {G1: 'XR2', G1 + 8: 'XR0'}
    mf += g2(2) + g2(0)
    combine(5); combine(4); exch(2); combine(0); combine(1); exch(0); combine(2); combine(3)
    if l == 0:
        for c, (a, b) in enumerate(late):
            fx(G1 + 1 + 4*c, a, True); fx(G1 + 2 + 4*c, b)
    for x in stampL(f'g1m_{l}'): fx(G1 - 1, x)
    align('g')
    if l == 1: k.need(V(A0, 8)); emit(stampL('g1a_1'))
    log = {}
    XT = opt(f'xt{l}', 0)
    left = weave(k, mf, fixed, st, log=log, deadline=deadline, window=opt('win', 30), extra=lambda g: 1 if (XT and g >= tdone[4] and g % XT == 0) else 0)
    print('d1 leftover', left, 'G1', G1, tdone, log)
    if l == 0: assert log['PA2'] < PG - 2 and log['PA1'] < W0 - 2
    emit(zepi(4) + zepi(5))
    k.need(names=[f'XW{l}1']); k('s_barrier')
    emit(xrd(1))
    emit(zepi(0) + zepi(1))
    weave(k, g2(1), {}, [(x, 6) for x in zepi(2, False)])
    emit(zepi(3))
    stamp(f'd1x_{l}')

WA = WT; TA = WT + 7; CSO = WT + 12; CSA = 124; RA = WT + 7; PFA = WT + 11
def pf_addr():
    return lines(f"""
    s_and_b32 s75, s{sXCD}, 3
    s_mul_i32 s75, s75, 896
    s_bfe_u32 s78, s2, 0x40003
    s_lshl_b32 s78, s78, 2
    s_add_u32 s78, s78, s{sW}
    s_mul_i32 s78, s78, {2*3456}
    s_add_u32 s75, s75, s78
    s_mov_b32 s30, {D*F*2}
    s_mov_b32 s31, 0x00020000
    s_cmp_lt_u32 s{sQ}, 2
    s_cselect_b64 s[28:29], s[16:17], s[20:21]
    v_min_u32 v44, 13, v0
    v_mul_u32_u24 v45, 9363, v44
    v_lshrrev_b32 v45, 16, v45
    v_mul_u32_u24 v45, {3456 - 896}, v45
    v_lshl_add_u32 v{PFA}, v44, 7, v45
    """)
def pre_addr1():
    L = lines(f"""
    s_and_b32 s{sSIG}, s{sXCD}, 3
    s_lshl_b32 s{sSIG}, s{sSIG}, 3
    s_add_u32 s{sSIG}, s{sSIG}, s{sJ}
    s_and_b32 s46, s{sCS}, 7
    s_lshl_b32 s46, s46, 2
    s_add_u32 s46, s46, s{sW}
    s_lshr_b32 s47, s{sCS}, 3
    s_mul_i32 s72, s47, 28
    s_add_u32 s48, s72, s46
    s_mul_i32 s72, s48, {16*1280}
    s_cmp_lt_u32 s46, 28
    s_cselect_b32 s72, s72, 0x10000000
    s_mul_i32 s73, s{sW}, 2560
    s_add_u32 s73, s73, {L_RAW}
    s_mul_i32 s76, s{sJ}, 80
    s_mul_i32 s77, s{sJ}, 160
    s_sub_u32 s77, 1120, s77
    s_add_u32 s72, s72, s76
    v_mov_b32 v47, s77
    """)
    if opt('z31', 1): L += [f's_cmp_eq_u32 s{sSIG}, 31', 's_cselect_b32 s18, 0, s18', 's_cselect_b32 s22, 0, s22']
    for n in range(3):
        L += [f'v_add_u32 v44, {64*n}, v0', 'v_mul_u32_u24 v45, 6554, v44', 'v_lshrrev_b32 v45, 16, v45', 'v_mul_u32_u24 v46, 10, v45', 'v_sub_u32 v46, v44, v46',
              'v_cmp_lt_u32 vcc, 4, v46', f'v_mul_u32_u24 v{RA+n}, 1280, v45', f'v_lshl_add_u32 v{RA+n}, v46, 4, v{RA+n}', 'v_cndmask_b32 v44, 0, v47, vcc', f'v_add_u32 v{RA+n}, v{RA+n}, v44']
    return L
def res_addr():
    L = lines(f"""
    s_mul_i32 s50, s{sJ}, 5
    s_sub_u32 s51, 35, s50
    s_add_u32 s52, s50, 4
    s_add_u32 s53, s51, 4
    v_lshl_add_u32 v44, v2, 7, s74
    v_add_u32 v13, s50, v3
    v_add_u32 v14, s51, v3
    v_mov_b32 v28, s52
    v_mov_b32 v45, s53
    v_cndmask_b32 v28, v45, v28, s[66:67]
    """)
    for r in (13, 14, 28):
        L += [f'v_xor_b32 v45, v{r}, v2', f'v_lshrrev_b32 v{r}, 3, v{r}', 'v_and_b32 v45, 7, v45', f'v_lshl_add_u32 v{r}, v{r}, 12, v44', f'v_lshl_add_u32 v{r}, v45, 4, v{r}']
    L += ['v_lshrrev_b32 v45, 1, v3', 'v_lshl_add_u32 v28, v45, 11, v28', 'v_and_b32 v45, 1, v3', 'v_lshl_add_u32 v28, v45, 3, v28']
    return L
RS = [WT+16+n for n in range(8)] + [6, 7]
def cold(n):
    if n < 5: return [f's_add_u32 s49, s75, {n*128*3456}', I(f'buffer_load_dword v15, v{PFA}, s[28:31], s49 offen', name='WPF')]
    n -= 5
    d = I(f'buffer_load_dwordx4 v{RA+n}, s[24:27], s72 offen lds', name='RAW')
    return [f's_add_u32 m0, s73, {n*1024}'] + (['s_mov_b32 exec_hi, 0', d, 's_mov_b32 exec_hi, -1'] if n == 2 else [d])
COLD = [int(c) for c in o.get('co', '01567234')]
def pre_addr2():
    L = []
    for n in range(7):
        L += [f'v_add_u32 v32, {64*n}, v0', 'v_mul_u32_u24 v33, 9363, v32', 'v_lshrrev_b32 v33, 16, v33', f'v_mul_u32_u24 v33, {3456 - 112}, v33', f'v_lshl_add_u32 v{WA+n}, v32, 4, v33']
    L += lines(f"""
    s_mul_i32 s78, s{sW}, {64*3456}
    s_mul_i32 s79, s{sSIG}, 112
    s_add_u32 s78, s78, s79
    s_mul_i32 s79, s{sW}, 14336
    v_bfe_u32 v32, v0, 2, 2
    v_and_b32 v33, 1, v3
    v_lshl_add_u32 v32, v33, 3, v32
    v_mul_u32_u24 v32, 160, v32
    v_add_u32 v32, s73, v32
    v_and_b32 v34, 3, v0
    v_lshrrev_b32 v35, 1, v3
    v_lshl_add_u32 v{R0}, v34, 4, v32
    v_lshl_add_u32 v{R0}, v35, 3, v{R0}
    v_and_b32 v36, 1, v0
    v_lshl_add_u32 v{R0+1}, v36, 3, v32
    v_bfe_u32 v36, v0, 1, 1
    v_mul_u32_u24 v36, 80, v36
    v_add_u32 v{R0+1}, v{R0+1}, v36
    v_lshlrev_b32 v{R0+3}, 4, v2
    v_lshl_add_u32 v{R0+3}, v33, 8, v{R0+3}
    v_lshl_add_u32 v{R0+2}, v35, 10, v{R0+3}
    v_lshl_add_u32 v{R0+3}, v35, 28, v{R0+3}
    s_lshr_b32 s76, s48, 1
    s_mul_i32 s76, s76, 5120
    s_and_b32 s77, s48, 1
    s_lshl_b32 s77, s77, 9
    s_add_u32 s76, s76, s77
    s_mul_i32 s77, s{sJ}, 286720
    s_add_u32 s76, s76, s77
    s_add_u32 s76, s76, {WS_WDF}
    s_cmp_lt_u32 s46, 28
    s_cselect_b32 s76, s76, 0x10000000
    s_add_u32 s77, s76, 4096
    """)
    return grp(L)
def wdma(rd, c):
    if rd == 3:
        mat, n = divmod(c, 4)
        d = I(f'buffer_load_dwordx4 v{WA+n}, s[{16+4*mat}:{19+4*mat}], s78 offen lds', name='WR3')
        return [f's_add_u32 m0, s79, {mat*3584 + n*1024}'] + (['s_mov_b32 exec_hi, 0', d, 's_mov_b32 exec_hi, -1'] if n == 3 else [d])
    mat, n = divmod(c, 7)
    srd = 16 + 4*mat
    return [f's_add_u32 m0, s79, {c*1024 + (4*14336 if rd == 2 else 0)}', I(f'buffer_load_dwordx4 v{WA+n}, s[{srd}:{srd+3}], s{80 if rd == 2 else 78} offen lds', name=f'WR{rd}')]
def wd12(c): return wdma(1 + c//14, c % 14)
def tr_addr():
    return lines(f"""
    v_bfe_u32 v32, v0, 2, 2
    v_lshl_add_u32 v32, v3, 3, v32
    v_mul_u32_u24 v32, 112, v32
    s_mul_i32 s50, s{sW}, 14336
    v_add_u32 v32, s50, v32
    v_and_b32 v33, 3, v0
    v_and_b32 v34, 1, v0
    v_bfe_u32 v35, v0, 1, 1
    v_lshl_add_u32 v{TA}, v33, 4, v32
    v_lshl_add_u32 v{TA+1}, v34, 4, v32
    v_lshl_add_u32 v{TA+1}, v35, 3, v{TA+1}
    v_mul_u32_u24 v35, 7168, v35
    v_lshl_add_u32 v{TA+2}, v34, 3, v32
    v_add_u32 v{TA+2}, v{TA+2}, v35
    v_add_u32 v{TA+3}, s50, v1
    """) + [f'v_mov_b32 v{CSO+r}, 0x3f803f80' for r in range(4)]
def relay_rd(F0, kks, ms=7168):
    L = []
    for kk in kks:
        for T in range(7):
            a, off = (0, (T >> 1)*ms + 8*(T & 1)) if T < 4 else ((1, (T-4)*ms + 64) if T < 6 else (2, 96))
            for h in range(2): L.append(f'ds_read_b64_tr_b16 {V(F0 + 28*kk + 4*T + 2*h, 2)}, v{TA+a} offset:{off + kk*3584 + h*448}')
    return L
def relay_wr(F0, kks, first):
    L = []
    for kk in kks:
        for T in range(7):
            f = V(F0 + 28*kk + 4*T)
            L += [f'{MF} {V(CSA+4*T)}, {V(CSO)}, {f}, {0 if (first and kk == 0) else V(CSA+4*T)}', f'ds_write_b128 v{TA+3}, {f} offset:{(7*kk + T)*1024}']
    return L

def pub_parts(pk, nm):
    a = pk + 12
    cvt = lambda T: [f'v_cvt_pk_bf16_f32 v{pk+2*T}, v{R0+4*T}, v{R0+4*T+1}', f'v_cvt_pk_bf16_f32 v{pk+2*T+1}, v{R0+4*T+2}, v{R0+4*T+3}']
    store = lambda n: [I((f'buffer_store_dwordx4 {V(pk)}, v1, s[4:7], s57 offen sc1', f'buffer_store_dwordx4 {V(pk+4)}, v1, s[4:7], s58 offen sc1',
                          f'buffer_store_dwordx2 {V(pk+8,2)}, v4, s[4:7], s56 offen sc1')[n], name=nm)]
    dots = lambda T: [x for n in (2*T, 2*T+1) for x in (f'v_dot2c_f32_bf16 v{a}, s60, v{pk+n}', f'v_dot2c_f32_bf16 v{a+1}, v{pk+n}, v{pk+n}')]
    init = [f'v_mov_b32 v{a}, 0', f'v_mov_b32 v{a+1}, 0', f'v_subrev_u32 v{a+2}, 16, v0', f'v_lshrrev_b32 v{a+3}, 5, v{a+2}', f'v_min_u32 v{a+3}, 1, v{a+3}',
            f'v_lshlrev_b32 v{a+3}, 28, v{a+3}', f'v_add_u32 v{a+2}, v{a+3}, v5']
    tail = [f'v_permlane32_swap_b32 v{a}, v{a+1}', f'v_add_f32 v{a}, v{a}, v{a+1}', f'v_mov_b32 v{a+1}, v{a}',
            f'v_permlane16_swap_b32 v{a}, v{a+1}', f'v_add_f32 v{a}, v{a}, v{a+1}', I(f'buffer_store_dword v{a}, v{a+2}, s[4:7], s59 offen sc1', name=nm)]
    return cvt, store, dots, init, tail
def pub_prep(xbase, stbase):
    return [f's_add_u32 s56, s{sXT}, {xbase}', f's_mul_i32 s59, s{sJ}, 1280', 's_add_u32 s57, s56, s59', 's_sub_u32 s58, s56, s59',
            f's_add_u32 s58, s58, {75*256}', f's_lshl_b32 s59, s{sJ}, 7', f's_add_u32 s59, s59, s{sST}', f's_add_u32 s59, s59, {stbase - 64}',
            's_mov_b32 s60, 0x3f803f80']

ML, MU, ZF, AD, ZA = 40, 48, 60, 30, 100
def d2_prep(l):
    L = lines(f"""
    s_and_b32 s50, s{sW}, 1
    s_lshl_b32 s50, s50, 4
    v_add_u32 v104, s50, v2
    s_lshr_b32 s54, s{sW}, 1
    s_or_b32 s51, s54, s{sCLS}
    s_cmp_eq_u32 s51, 0
    s_cselect_b32 s51, 32, 31
    v_sub_u32 v105, s51, v104
    v_cvt_f32_u32 v104, v104
    v_cvt_f32_u32 v105, v105
    v_cvt_f32_u32 v106, v3
    v_mul_f32 v104, {fl(1/32)}, v104
    v_mul_f32 v105, {fl(1/32)}, v105
    v_add_f32 v106, v106, v106
    v_cmp_eq_u32 vcc, 0, v3
    v_mul_f32 v107, v104, v106
    v_mul_f32 v108, v105, v106
    """)
    for (t, b, dst) in ((104, 107, ML), (105, 108, MU)):
        for q_ in range(4):
            kap, jh = q_ >> 1, q_ & 1
            L.append(f'v_fmamk_f32 v{109+q_}, v{t}, {fl(float(8*kap + jh))}, v{b}')
        L.append(f'v_mul_f32 v121, 0x41800000, v{t}')
        for q_ in range(4): L += [f'v_cos_f32 v{113+q_}, v{109+q_}', f'v_sin_f32 v{117+q_}, v{109+q_}']
        L.append('v_cos_f32 v121, v121')
        for q_ in range(4): L.append(f'v_cvt_pk_bf16_f32 v{dst+2*q_}, v{113+q_}, v{117+q_}')
        L.append('v_cndmask_b32 v113, v113, v121, vcc')
        for q_ in range(4): L.append(f'v_cvt_pk_bf16_f32 v{dst+2*q_+1}, v{113+q_}, -v{117+q_}')
    L += lines(f"""
    v_mul_u32_u24 v104, {8*12288}, v3
    s_mul_i32 s50, s{sW}, {64*12288}
    s_mul_i32 s51, s{sJ}, 12288
    s_add_u32 s50, s50, s51
    s_lshr_b32 s51, s{sCS}, 1
    s_lshl_b32 s51, s51, 8
    s_add_u32 s50, s50, s51
    s_add_u32 s70, s50, {WS_Z[l]}
    s_mul_i32 s71, s{sW}, 6144
    """)
    for n, x in enumerate((0, 4, 1, 5)):
        L += [f'v_xor_b32 v105, {x}, v2', f'v_lshl_add_u32 v{ZA+n}, v105, 4, v104']
    n1 = len(L)
    L += lines(f"""
    s_and_b32 s50, s{sCS}, 1
    s_xor_b32 s51, s50, 1
    s_cmp_lt_u32 s{sCS}, 2
    s_cselect_b32 s51, s50, s51
    s_xor_b32 s52, s54, 1
    s_cmp_eq_u32 s{sCS}, 0
    s_cselect_b32 s52, s54, s52
    s_lshl_b32 s50, s50, 7
    s_lshl_b32 s55, s54, 6
    s_add_u32 s50, s50, s55
    s_lshl_b32 s51, s51, 7
    s_lshl_b32 s52, s52, 6
    s_add_u32 s51, s51, s52
    v_lshrrev_b32 v104, 1, v3
    v_mul_u32_u24 v104, 6144, v104
    v_and_b32 v105, 1, v3
    v_lshl_add_u32 v104, v105, 10, v104
    v_add_u32 v104, {L_Z}, v104
    v_lshlrev_b32 v105, 6, v105
    v_xor_b32 v106, s50, v105
    v_xor_b32 v107, s51, v105
    v_add_u32 v106, v106, v104
    v_add_u32 v107, v107, v104
    v_and_b32 v108, 12, v2
    v_add_u32 v108, v108, v2
    """)
    def fin(T, base):
        return ['v_lshrrev_b32 v110, 4, v109', 'v_and_b32 v111, 15, v109', f'v_lshl_add_u32 v{AD+T}, v110, 11, v{base}',
                'v_and_b32 v110, 1, v110', 'v_lshlrev_b32 v110, 2, v110', 'v_xor_b32 v111, v111, v110', f'v_lshl_add_u32 v{AD+T}, v111, 2, v{AD+T}']
    L += ['v_mov_b32 v109, v108'] + fin(0, 106) + [f'v_xor_b32 v{AD+1}, 16, v{AD}']
    for T in (2, 3):
        L += [f'v_sub_u32 v109, {40 - 4*(T-2)}, v108', 'v_cmp_lt_u32 vcc, 31, v109', 'v_and_b32 v110, 6, v109', 'v_add_u32 v110, v110, v109',
              'v_cndmask_b32 v109, v109, v110, vcc']
        if T == 2: L += ['v_cmp_eq_u32 vcc, 0, v2', 'v_nop', 'v_nop', 'v_cndmask_b32 v109, v109, 34, vcc']
        L += fin(T, 107)
    L += ['v_cmp_gt_u32 vcc, 8, v2', 'v_and_b32 v110, 6, v2', 'v_add3_u32 v110, v110, v2, 32', 'v_sub_u32 v109, 16, v2',
          'v_cndmask_b32 v109, v109, v110, vcc', 'v_cndmask_b32 v112, v107, v106, vcc'] + fin(4, 112)
    return L, n1

def wu_dma(f0, f1, sreg_lds, sreg_src, nm='WU'):
    L = []
    for c, n in enumerate(range(f0, f1)):
        if c % 4 == 0: L += [f's_add_u32 m0, s{sreg_lds}, {n*1024}', f's_add_u32 s61, s{sreg_src}, {n*1024}']
        L.append(I(f'buffer_load_dwordx4 v1, s[4:7], s61 offen offset:{(c % 4)*1024} sc1 lds', name=nm or f'WB{n//7}'))
    return L

def d2(l):
    prep, n1 = d2_prep(l)
    prep = grp(prep + pub_prep(WS_X1[l], WS_ST[l]))
    ZP = opt(f'zp{l}', -1)
    def zpf_prep():
        if ZP < 0: return []
        both = opt('zb', 0)
        return lines(f"""
        v_and_b32 v122, 7, v0
        v_mul_u32_u24 v122, {8*12288}, v122
        v_bfe_u32 v123, v0, 3, 2
        v_min_u32 v123, 2, v123
        v_lshl_add_u32 v122, v123, 12, v122
        s_mul_i32 s46, s{sW}, {64*12288}
        s_mul_i32 s47, s{sJ}, 12288
        s_add_u32 s46, s46, s47
        s_lshl_b32 s47, s{sCS}, 7
        s_add_u32 s46, s46, s47
        s_add_u32 s46, s46, {WS_Z[l]}
        """) + (['s_and_b32 s46, s46, 0xffffff7f', 'v_lshrrev_b32 v123, 5, v0', 'v_lshl_add_u32 v122, v123, 7, v122'] if both else [])
    def with_zpf(L):
        return L if ZP < 0 else L[:ZP] + ['buffer_load_dword v123, v122, s[4:7], s46 offen sc1'] + L[ZP:]
    R1N = opt('r1n', 10); R2A = R1N + opt('r2a', 4); R2B = opt('r2b', 24); R2C = opt('r2c', 25)
    if l == 0:
        k('v_and_b32 v14, 3, v0'); k('v_lshlrev_b32 v14, 6, v14')
        k(f's_add_u32 s80, s78, {4*64*3456}')
        k(f's_cmp_lg_u32 s{sW}, 0'); k.begin('w0', 's_cbranch_scc1'); init_issue(); k.end()
        k('s_barrier')
        emit(stampL('zst0'))
        cut = opt('cut0', 50)
        emit(mix(tr_addr() + ids2() + zpf_prep() + vs_prep('Z', f'Z{l}', sgZ, 28), [cold(n) for n in COLD[opt('c1', 8):]] + [wd12(c) for c in range(R1N, R2A)]))
        emit(prep[:cut])
        emit(stampL('prep0'))
        k(f's_cmp_lg_u32 s{sW}, 0'); k.begin('w0', 's_cbranch_scc1'); init_check(); k.end()
        k.need(names=['ZS']); k('s_barrier')
    else:
        k(f's_mul_i32 s76, s{sSIG}, 143360'); k(f's_add_u32 s76, s76, {WS_WUF}')
        k(f's_mul_i32 s77, s{sW}, {12*1024}'); k(f's_add_u32 s77, s77, {91*1024}')
        k('s_add_u32 s76, s76, s77')
        cut = opt('cut1', 30)
        emit(vs_prep('Z', f'Z{l}', sgZ, 28) + zpf_prep())
        emit(prep[:cut])
        k.need(names=['ZS'])
    stamp(f'd1e_{l}')
    emit(vs_go('Z', f'Z{l}', sgZ, 28))
    if l == 0:
        PZ = cut + opt('pz0', 90)
        emit(mix(with_zpf(prep[cut:PZ] + poll_issue('Z0') + prep[PZ:]), [wd12(c) for c in range(R2A, R2B)]))
    else:
        PZ = cut + opt('pz1', 150)
        emit(with_zpf(prep[cut:PZ] + poll_issue('Z1') + prep[PZ:]))
    cvt, store, dots, pinit, ptail = pub_parts(12, 'XS')
    emit(pinit)
    if l == 0:
        assert R2B >= 14
        k.need(names=['WR1'])
        emit(relay_rd(152, (0, 1)))
        emit(stampL('rl1'))
    def unpack():
        for n in range(10):
            k(f'v_lshlrev_b32 v{R0+2*n}, 16, v{RS[n]}'); k(f'v_and_b32 v{R0+2*n+1}, 0xffff0000, v{RS[n]}')
    emit(poll_wait(f'Z{l}'))
    stamp(f'd2p_{l}')
    for p in range(3):
        for hh in range(2):
            k(f's_add_u32 m0, s71, {L_Z + p*2048 + hh*1024}')
            k(f's_add_u32 s50, s70, {p*4096 + hh*4*8*12288}')
            k(f'buffer_load_dwordx4 v{ZA + 2*(p & 1) + hh}, s[4:7], s50 offen sc1 lds', name='ZL')
    if l == 0:
        for c in range(R2B, R2C): emit(wd12(c))
        emit(relay_wr(152, (0, 1), True))
        for a in range(4): k(f'v_add_u32 v{TA+a}, {4*14336}, v{TA+a}')
        unpack()
    k.need(names=['ZL']); k('s_barrier')
    stamp(f'd2l_{l}')
    for T in range(5):
        for kap in range(2):
            for h in range(2):
                k(f'ds_read2st64_b32 {V(ZF+8*T+4*kap+2*h, 2)}, v{AD+T} offset0:{48*kap + 2*h} offset1:{48*kap + 2*h + 1}')
    if l == 0:
        for c in range(R2C, 28): emit(wd12(c))
    r4 = V(R0+16)
    mf = [f'{MF} {V(R0+4*T)}, {V(ZF+8*T+4*kap)}, {V((ML if T < 2 else MU) + 4*kap)}, {V(R0+4*T)}' for T in range(4) for kap in range(2)]
    mf += [f'{MF} {V(56)}, {V(ZF+32)}, {V(ML)}, {r4}', f'{MF} {r4}, {V(ZF+32)}, {V(MU)}, {r4}',
           f'{MF} {V(56)}, {V(ZF+36)}, {V(ML+4)}, {V(56)}', f'{MF} {r4}, {V(ZF+36)}, {V(MU+4)}, {r4}']
    weave(k, mf, {4: cvt(0), 6: cvt(1), 7: store(0), 8: cvt(2), 10: cvt(3), 11: store(1)})
    emit(dots(0) + dots(1))
    for r in range(4): k(f'v_cndmask_b32 v{R0+16+r}, v{R0+16+r}, v{56+r}, s[66:67]')
    emit(cvt(4) + store(2) + dots(2) + dots(3) + dots(4) + ptail)
    k('s_barrier')
    cpf(2*l, 30)
    N2 = opt('n2', 6)
    if l == 0:
        k(f"""
        s_add_u32 s50, s{sW}, 16
        s_mul_i32 s78, s50, {32*3456}
        s_mul_i32 s51, s{sSIG}, 112
        s_add_u32 s78, s78, s51
        s_mul_i32 s79, s50, 7168
        """)
        R3A = opt('r3a', 6)
        for c in range(R3A): emit(wdma(3, c))
        emit(vs_prep('X', f'X1{l}', sgX1, 28))
        k.need(names=['WR2']); emit(relay_rd(152, (0, 1)))
    else:
        emit(wu_dma(0, N2, 77, 76))
        up_prep(l)
        emit(vs_prep('X', f'X1{l}', sgX1, 28))
    k.need(names=['XS']); k('s_barrier')
    stamp(f'd2e_{l}')
    emit(vs_go('X', f'X1{l}', sgX1, 28))
    if l == 0:
        for c in range(R3A, 8): emit(wdma(3, c))
        up_prep(l)
        wl = [wdld(n) for n in range(opt('wp', 16))]; W1 = opt('wp1', 8)
        k(f"""
        s_mul_i32 s50, s{sW}, 7168
        s_sub_u32 s50, {16*7168 - 4*14336}, s50
        v_bfe_u32 v32, v0, 1, 1
        v_mul_u32_u24 v32, 3584, v32
        v_add_u32 v{TA}, s50, v{TA}
        v_add_u32 v{TA+1}, s50, v{TA+1}
        v_add_u32 v{TA+2}, s50, v{TA+2}
        v_sub_u32 v{TA+2}, v{TA+2}, v32
        s_mul_i32 s50, s{sW}, 448
        s_add_u32 s50, s50, {L_CSP}
        v_lshl_add_u32 v{TM+4}, v2, 2, s50
        s_waitcnt lgkmcnt(0)
        """)
        emit(mix(relay_wr(152, (0, 1), False), wl[:W1]))
        k(f'v_add_u32 v{TA+3}, s79, v1')
        PX = opt('px', 1)
        if PX == 0: emit(poll_issue('X10'))
        k.need(names=['WR3'])
        emit(relay_rd(40, (0,), 3584))
        for x in wl[W1:]: emit(x)
        if PX == 1: k('s_waitcnt lgkmcnt(0)'); emit(poll_issue('X10')); emit(relay_wr(40, (0,), False))
    else:
        emit(wu_dma(N2, 13, 77, 76))
        if opt('tch', 0):
            n = opt('tch', 0)
            k(f'v_min_u32 v32, {n-1}, v0'); k(f'v_mul_u32_u24 v32, {S*D*2//n}, v32'); k('buffer_load_dword v33, v32, s[12:15], 0 offen')

ACC = [12, 68]; BRG = 124; XR = 152; XD = 5; K1 = 192; SS = 196; NM = 200; TM = 204
def acc(h, T, mi): return ACC[h] + (2*T + mi)*4
def epi_stream(h, l, e0, npk=None):
    st = []; cnt = [0]; npk = (7 if h else 0) if npk is None else npk
    def grp(G, U, k1, ss, dst):
        cnt[0] += 1
        if cnt[0] == npk + 1: st.append('MARK')
        if cnt[0] <= npk:
            b1, b2 = k1 & 1, ss & 1
            for r in (0, 2): st.append(f'v_pk_mul_f32 {V(U+r,2)}, {V(G+r,2)}, {V(U+r,2)}')
            for r in (0, 2): st.append(f'v_pk_mul_f32 {V(G+r,2)}, {V(G+r,2)}, {V(k1-b1,2)} op_sel:[0,{b1}] op_sel_hi:[1,{b1}]')
            for r in range(4): st.append(f'v_exp_f32 v{G+r}, v{G+r}')
            for r in (0, 2): st.append(f'v_pk_fma_f32 {V(G+r,2)}, {V(G+r,2)}, {V(ss-b2,2)}, {V(ss-b2,2)} op_sel:[0,{b2},{b2}] op_sel_hi:[1,{b2},{b2}]')
            for r in range(4): st.append(f'v_rcp_f32 v{G+r}, v{G+r}')
            for r in (0, 2): st.append(f'v_pk_mul_f32 {V(U+r,2)}, {V(U+r,2)}, {V(G+r,2)}')
            st.append(f'v_cvt_pk_bf16_f32 v{dst}, v{U}, v{U+1}'); st.append(f'v_cvt_pk_bf16_f32 v{dst+1}, v{U+2}, v{U+3}')
            return
        for r in range(4): st.append(f'v_mul_f32 v{U+r}, v{G+r}, v{U+r}')
        for r in range(4): st.append(f'v_mul_f32 v{G+r}, v{G+r}, v{k1}')
        for r in range(4): st.append(f'v_exp_f32 v{G+r}, v{G+r}')
        for r in range(4): st.append(f'v_fma_f32 v{G+r}, v{G+r}, v{ss}, v{ss}')
        for r in range(4): st.append(f'v_rcp_f32 v{G+r}, v{G+r}')
        for r in range(4): st.append(f'v_mul_f32 v{U+r}, v{U+r}, v{G+r}')
        st.append(f'v_cvt_pk_bf16_f32 v{dst}, v{U}, v{U+1}'); st.append(f'v_cvt_pk_bf16_f32 v{dst+1}, v{U+2}, v{U+3}')
    nm = f'H{h}'
    for mi in range(2):
        d = acc(h, 0, mi)
        grp(acc(h, 0, mi), acc(h, 2, mi), K1+2*h+mi, SS+2*h+mi, d)
        grp(acc(h, 1, mi), acc(h, 3, mi), K1+2*h+mi, SS+2*h+mi, d+2)
        st.append(I(f'buffer_store_dwordx4 {V(d)}, v1, s[4:7], s{76+2*h+mi} offen sc1', name=nm))
    d = acc(h, 4, 0)
    grp(acc(h, 4, 0), acc(h, 5, 0), K1+2*h, SS+2*h, d)
    grp(acc(h, 4, 1), acc(h, 5, 1), K1+2*h+1, SS+2*h+1, d+2)
    for r in range(4): st.append(f'v_permlane32_swap_b32 v{acc(h,6,0)+r}, v{acc(h,6,1)+r}')
    st.append(f'v_cndmask_b32 v{TM+2}, v{K1+2*h+1}, v{K1+2*h}, s[66:67]')
    st.append(f'v_cndmask_b32 v{TM+3}, v{SS+2*h+1}, v{SS+2*h}, s[66:67]')
    st.append(f'v_permlane32_swap_b32 v{d}, v{d+2}'); st.append(f'v_permlane32_swap_b32 v{d+1}, v{d+3}')
    st.append(I(f'buffer_store_dwordx4 {V(d)}, v6, s[4:7], s{76+2*h} offen sc1', name=nm))
    d = acc(h, 6, 0)
    grp(d, acc(h, 6, 1), TM+2, TM+3, d)
    st.append(I(f'buffer_store_dwordx2 {V(d,2)}, v7, s[4:7], s{76+2*h} offen sc1', name=nm))
    return [(x, e0) for x in st]

def up_prep(l):
    k(f'v_add_u32 v9, {63*1024}, v1'); k(f'v_add_u32 v10, {126*1024}, v1')
    k(f's_mul_i32 s50, s{sCSU}, {4*20480}')
    if opt('zp', 1): k(f's_cmp_eq_u32 s{sSIG}, 31'); k('s_cselect_b32 s50, 0x10000000, s50')
    for rt in range(4): k(f's_add_u32 s{72+rt}, s50, {WS_X1[l] + rt*20480}')
    k(f's_lshl_b32 s80, s{sCSU}, 12'); k(f's_add_u32 s80, s80, {WS_ST[l]}')
    if l == 0:
        k(f"""
        v_lshrrev_b32 v30, 5, v0
        v_mul_u32_u24 v30, 57344, v30
        v_lshl_add_u32 v30, v2, 4, v30
        v_and_b32 v31, 1, v3
        v_lshl_add_u32 v6, v31, 8, v30
        v_add_u32 v6, 1024, v6
        v_lshl_add_u32 v7, v31, 3, v30
        v_add_u32 v7, 1536, v7
        s_mul_i32 s81, s{sJ}, 286720
        s_mul_i32 s50, s{sW}, {70*1024}
        s_add_u32 s81, s81, s50
        s_add_u32 s81, s81, {WS_WDF}
        """)
        for n in range(3): k(f's_mov_b32 s{16+n}, {4096*(n+1)}')
        k('s_mov_b32 s19, 4096')
        if opt('zp', 1):
            k(f's_cmp_eq_u32 s{sW}, 3'); k('s_cselect_b32 s18, 0x10000000, s18'); k('s_cselect_b32 s19, 0x10000000, s19')
def wdld(n): return [f'buffer_load_dwordx4 {wdreg(n)}, v1, s[4:7], s81 offen offset:{(n % 4)*1024} sc1'] + ([f's_add_u32 s81, s81, {"s19" if n == 59 else 4096}'] if n % 4 == 3 else [])

def up(l):
    def brd(n):
        f = n % 140
        a, off = (1, f) if f < 63 else ((9, f-63) if f < 126 else (10, f-126))
        return f'ds_read_b128 {V(BRG + 4*(n % 7))}, v{a} offset:{off*1024}'
    def xld(n, mi):
        h, ks = divmod(n, 20)
        return f'buffer_load_dwordx4 {V(XR + 8*(n % XD) + 4*mi)}, v1, s[4:7], s{72+2*h+mi} offen offset:{(ks % 4)*1024} {LF}'
    def xadv(n):
        h, ks = divmod(n, 20)
        return [f's_add_u32 s{72+2*h+mi}, s{72+2*h+mi}, 4096' for mi in range(2)] if ks % 4 == 3 else []
    SL = ACC[1]
    def first_loads():
        if l == 1: emit(poll_issue(f'X1{l}'))
        emit(poll_wait(f'X1{l}'))
        stamp(f'upp_{l}')
        for n in range(XD-1):
            for mi in range(2): k(xld(n, mi))
            emit(xadv(n))
    k(f's_mul_i32 s50, s{sCSU}, {4*57344}'); k(f's_mul_i32 s51, s{sSIG}, {7*256}'); k('s_add_u32 s50, s50, s51')
    if opt('zp', 1): k(f's_cmp_eq_u32 s{sSIG}, 31'); k('s_cselect_b32 s50, 0x10000000, s50')
    for rt in range(4): k(f's_add_u32 s{76+rt}, s50, {WS_H[l] + rt*57344}')
    wdn = [0]
    if l == 0:
        wdn[0] = opt('wp', 16)
        k(f'v_min_u32 v{TM+6}, 55, v0'); k(f'v_lshlrev_b32 v{TM+6}, 3, v{TM+6}'); k(f'v_add_u32 v{TM+5}, {L_CSP}, v{TM+6}'); k(f'v_add_u32 v{TM+6}, {L_CS}, v{TM+6}')
        if opt('px', 1) == 0: first_loads(); emit(relay_wr(40, (0,), False))
        for T in range(7): k(f'ds_write_b32 v{TM+4}, v{CSA+4*T} offset:{64*T}')
        if opt('px', 1) == 1: first_loads()
        k('s_waitcnt lgkmcnt(0)')
        k('s_barrier')
        for n in range(6): k(brd(n))
    else:
        first_loads()
        for n in range(6): k(brd(n))
        k.need(names=['WU']); k('s_barrier')
    if stampL(f'ux0_{l}'): k.need(V(XR, 8)); emit(stampL(f'ux0_{l}'))
    NWD = [opt('wa', 22), opt('wb', 22)] if l == 0 else [0, 0]
    if opt('nowd', 0): NWD = [0, 0]; wdn[0] = 70
    for h in range(2):
        mf = []; fixed = {}
        def fx(g, x, first=False):
            L = fixed.setdefault(g, [])
            L.insert(0, x) if first else L.append(x)
        for ks in range(20):
            n = 20*h + ks
            for T in range(7):
                g = len(mf); f = 7*n + T
                for mi in ((1, 0) if (opt('sn', 0) and T % 2 == 1) else (0, 1)):
                    a = V(acc(h, T, mi))
                    mf.append(f'{MF} {a}, {V(BRG+4*T)}, {V(XR + 8*(n % XD) + 4*mi)}, {a if (ks or h) else 0}')
                if f + 6 < 280: fx(g, brd(f+6))
                if T % 2 == 0 and f + 1 < 280:
                    nxt = [BRG + 4*((f+1) % 7)] + ([BRG + 4*((f+2) % 7)] if T < 6 else [])
                    fx(g+1, Need([x for b in nxt for x in rr(V(b))]), True)
            g0 = 14*ks
            if n + XD - 1 < 40:
                fx(g0+3, xld(n+XD-1, 0)); fx(g0+7, xld(n+XD-1, 1))
                for q_, x in enumerate(xadv(n+XD-1)): fx(g0+8+2*q_, x, True)
            if n + 1 < 40: fx(g0+12, Need(rr(V(XR + 8*((n+1) % XD), 8))), True)
            if h == 0 and ks < 4:
                for c in range(4): fx(g0 + (1, 5, 9, 13)[c], f'buffer_load_dword v{SL+4*ks+c}, v5, s[4:7], s80 offen offset:{1024*ks + 256*c} sc1')
            k0 = 4 if h == 0 else 0
            if ks >= k0:
                cnt = NWD[h]*(ks-k0+1)//(20-k0) - NWD[h]*(ks-k0)//(20-k0)
            else: cnt = 1 if (l == 0 and opt('we', 1)) else 0
            if True:
                free = [11, 5, 1] + ([3, 7] if n + XD - 1 >= 40 else [])
                for c in range(cnt):
                    w_ = wdld(wdn[0]); wdn[0] += 1
                    fx(g0 + sorted(free[:cnt])[c], w_[0])
                    if len(w_) > 1: fx(g0 + sorted(free[:cnt])[c] + 1, w_[1], True)
        st = []
        if h == 0:
            for rt in range(4):
                b = SL + 4*rt
                st += [(x, 14*(rt+opt('sd', 4)) + opt('so', 0)) for x in [Need(rr(V(b))), f'v_add_f32 v{b}, v{b}, v{b+1}', f'v_add_f32 v{b+2}, v{b+2}, v{b+3}', f'v_add_f32 v{b}, v{b}, v{b+2}',
                       f'v_mov_b32 v{b+1}, v{b}', f'v_permlane32_swap_b32 v{b}, v{b+1}', f'v_add_f32 v{b}, v{b}, v{b+1}',
                       f'v_mov_b32 v{b+1}, v{b}', f'v_permlane16_swap_b32 v{b}, v{b+1}',
                       f'v_mul_f32 v{NM+rt}, {fl(-1/640)}, v{b}', f'v_mul_f32 v{b+1}, {fl(1/640)}, v{b+1}',
                       f'v_fma_f32 v{b+1}, -v{NM+rt}, v{NM+rt}, v{b+1}', f'v_max_f32 v{b+1}, 0, v{b+1}',
                       f'v_add_f32 v{SS+rt}, {fl(1e-5)}, v{b+1}', f'v_rsq_f32 v{K1+rt}, v{SS+rt}',
                       f'v_mul_f32 v{K1+rt}, {fl(-1.4426950408889634)}, v{K1+rt}']]
            st = [(f'v_lshlrev_b32 v{TM+7}, 4, v3', 2), (f'v_add_u32 v{TM+7}, {L_CS}, v{TM+7}', 2)] + st
            if l == 0:
                for n in range(4): fx(2*n, f'ds_read_b64 {V(88+2*n, 2)}, v{TM+5} offset:{448*n}')
                for hh in range(2):
                    for c, x in enumerate((f'v_add_f32 v{88+hh}, v{88+hh}, v{90+hh}', f'v_add_f32 v{92+hh}, v{92+hh}, v{94+hh}', f'v_add_f32 v{88+hh}, v{88+hh}, v{92+hh}')): fx(16 + 4*c + 2*hh, x)
                fx(28, f'ds_write_b64 v{TM+6}, v[88:89]')
            KS0 = opt(f'ks{l}', 11)
            def capg(g): return 2 - sum(slots(x if isinstance(x, I) else I(x)) for x in fixed.get(g, []) if slots(x if isinstance(x, I) else I(x)) >= 1)
            firstcs = None
            for T in range(7):
                g0 = 14*(KS0 + T) + 2*T
                c = acc(1, T, 1)
                gr = g0 - 3
                while capg(gr) < 2: gr -= 1
                x = I(f'ds_read_b128 {V(c)}, v{TM+7} offset:{64*T}')
                if T == 0: firstcs = x
                fx(gr, x)
                ops = [f'v_fmac_f32 v{acc(0,T,mi)+r}, v{NM+mi}, v{c+r}' for mi in range(2) for r in range(4)]
                g = g0 + 4
                fx(g0 + 2, Need(rr(V(c))), True)
                while ops:
                    cap = capg(g)
                    while cap >= 1 and ops: fx(g, ops.pop(0)); cap -= 1
                    g += 1
                if g > g0 + 14: print('warn fmac window', T, g - g0)
                st += [(f'v_mul_f32 v{acc(1,T,mi)+r}, v{NM+2+mi}, v{c+r}', g) for mi in range(2) for r in range(4)]
        else:
            EA = opt(f'ea{l}', 0); NBU = opt('nbu', 0) if EA else 0
            ep = epi_stream(0, l, 4, NBU)
            mk = [x for x, e in ep].index('MARK') if NBU < 7 else len(ep)
            emit([x for x, e in ep[:mk]])
            vp = [(x, 0 if EA else 150) for x in vs_prep('H', f'HA{l}', sgH, NM)]
            st = ep[mk+1:] + vp + [(x, 150) for x in down_prep(l)]
            if EA:
                st[len(ep[mk+1:]) + len(vp) - 1] = (I(vp[-1][0], name='VP'), 0)
                SG = opt('sg', 221)
                fx(SG, Need([], ['H0']), True)
                for x in vs_go('H', f'HA{l}', sgH, NM): fx(SG, x)
                for x in poll_issue(f'HA{l}'): fx(opt('pg2', 252), x, True)
        align('u')
        log = {}
        XE = opt('xe', 0) if opt(f'ea{l}', 0) else 0
        left = weave(k, mf, fixed, st, extra=(lambda g: 1 if ((h == 1 and XE and g % XE == 0)) else 0), log=log)
        if h == 0:
            pos = k.ins.index(firstcs)
            assert all(not (x.text.startswith(f'v_mul_f32 v{K1+rt},')) for x in k.ins[pos:] for rt in range(4)), 'stats not done before cs'
        elif EA: assert log.get('H0', 0) < SG and log['VP'] + 6 < SG
        print('up half', h, 'leftover', left, log)
        stamp(f'up{h}_{l}')
    ep = [x for x, e in epi_stream(1, l, 0)]
    HU[0] = opt('hue', 13) if EA else opt('hu', 7)
    if EA:
        emit(poll_wait(f'HA{l}'))
        stamp(f'dnp_{l}')
        if l == 0:
            while wdn[0] < 70: emit(wdld(wdn[0])); wdn[0] += 1
        c = opt('hm', 60)
        sts = [x for x in ep[:c] if isinstance(x, I)]
        emit(mix([x for x in ep[:c] if not isinstance(x, I)], [[hld(0, n)] for n in range(HU[0])]) + sts + ep[c:])
        stamp(f'upe_{l}')
    else:
        k.need(names=['H0'])
        emit(vs_go('H', f'HA{l}', sgH, NM))
        if l == 0:
            while wdn[0] < 70: emit(wdld(wdn[0])); wdn[0] += 1
        c1 = opt('pa', 100)
        emit(ep[:c1]); emit(poll_issue(f'HA{l}')); emit(ep[c1:])
        stamp(f'upe_{l}')
        emit(poll_wait(f'HA{l}'))
        stamp(f'dnp_{l}')
        emit([hld(0, n) for n in range(HU[0])])

HU = [7]
HR = 124; DA = 12; HVL = [8, 208, 209, 210]
def hld(ps, ks): return f'buffer_load_dwordx4 {V(HR + 4*ks)}, v{HVL[ps]}, s[4:7], {f"s{15 + ks//4}" if ks >= 4 else 0} offen offset:{(ks % 4)*1024} {LF}'
def down_prep(l):
    L = lines(f"""
    s_mul_i32 s50, s{sCS}, {4*57344}
    s_mul_i32 s51, s{sW}, {14*1024}
    s_add_u32 s50, s50, s51
    s_add_u32 s50, s50, {WS_H[l]}
    s_lshr_b32 s54, s{sW}, 1
    s_xor_b32 s54, s54, s{sW}
    s_and_b32 s54, s54, 1
    s_lshl_b32 s51, s{sJ}, 7
    """)
    for p in range(4):
        L += [f's_xor_b32 s55, s54, {(1, 0, 2, 3)[p]}', 's_mul_i32 s52, s55, 57344', 's_add_u32 s52, s50, s52', f'v_add_u32 v{HVL[p]}, s52, v1']
        if opt('spf', 0): L += ['s_add_u32 s52, s52, s51', f's_add_u32 s{22+2*p}, s4, s52', f's_addc_u32 s{23+2*p}, s5, 0']
    return grp(L)
def spf(n):
    p, ks = divmod(n, 14)
    return f's_load_dword s30, s[{22+2*p}:{23+2*p}], {ks*1024}'
def out_addr():
    L = lines(f"""
    s_lshr_b32 s50, s{sW}, 1
    s_lshl_b32 s50, s50, 5
    s_and_b32 s51, s{sW}, 1
    s_lshl_b32 s51, s51, 10
    s_add_u32 s50, s50, s51
    s_add_u32 s50, s50, s{sCLS}
    s_mul_i32 s72, s50, 1280
    s_mul_i32 s51, s{sJ}, 80
    s_add_u32 s72, s72, s51
    s_mul_i32 s51, s{sJ}, 160
    s_sub_u32 s51, 1120, s51
    v_mov_b32 v98, s51
    s_mul_i32 s50, s{sW}, 3072
    v_add_u32 v97, s50, v1
    v_mul_u32_u24 v96, 160, v2
    v_add_u32 v96, s50, v96
    v_lshl_add_u32 v95, v3, 4, v96
    v_and_b32 v99, 1, v3
    v_lshl_add_u32 v96, v99, 3, v96
    v_lshrrev_b32 v99, 1, v3
    v_mul_u32_u24 v112, 80, v99
    v_add_u32 v96, v96, v112
    """)
    for n in range(3):
        L += [f'v_add_u32 v112, {64*n}, v0', 'v_mul_u32_u24 v113, 6554, v112', 'v_lshrrev_b32 v113, 16, v113', 'v_mul_u32_u24 v114, 10, v113', 'v_sub_u32 v114, v112, v114',
              'v_cmp_lt_u32 vcc, 4, v114', f'v_mul_u32_u24 v{92+n}, 81920, v113', f'v_lshl_add_u32 v{92+n}, v114, 4, v{92+n}', 'v_cndmask_b32 v112, 0, v98, vcc', f'v_add_u32 v{92+n}, v{92+n}, v112']
    L.append('v_lshl_add_u32 v94, v99, 28, v94')
    return L
def down_prep2():
    L = []
    for p in range(4):
        L += [f's_xor_b32 s55, s54, {(1, 0, 2, 3)[p]}', 's_mul_i32 s53, s55, 15360',
              f's_sub_u32 s52, s{sW}, s55', 's_sub_u32 s52, s52, 1', 's_and_b32 s52, s52, 3', 's_mul_i32 s52, s52, 5120',
              's_add_u32 s52, s52, s53', f's_add_u32 s52, s52, {L_RED}']
        if p & 1: L += [f's_cmp_eq_u32 s55, s{sW}', f's_cselect_b32 s52, {L_CSP}, s52', f's_cselect_b32 s{20 + (p >> 1)}, 1.0, 0']
        L.append(f'v_add_u32 v{184+p}, s52, v1')
    L += [f's_mul_i32 s52, s{sW}, 15360', f's_add_u32 s52, s52, {L_RED}', 'v_add_u32 v188, s52, v1',
          f's_cmp_eq_u32 s{sW}, 3', 's_cselect_b32 s53, 5120, 0', 's_cselect_b32 s55, 0, 10240',
          'v_add_u32 v189, s53, v188', 'v_add_u32 v190, s55, v188']
    return grp(L)
def down(l):
    EA = opt(f'ea{l}', 0); pB = opt('pbe', 22) if EA else opt('pb', 19); pI = opt('pie', 6) if EA else opt('pi', 8); TMJ = opt('tmj', 7); SB = opt('sb', 10) if EA else 0
    HD = 13
    mf = []; fixed = {}
    def fx(g, x, first=False):
        L = fixed.setdefault(g, [])
        L.insert(0, x) if first else L.append(x)
    started = set()
    def mm(p, ks, T):
        a = V(DA + 20*p + 4*T)
        mf.append(f'{MF} {a}, {wdreg(5*ks+T)}, {V(HR+4*ks)}, {a if (p, T) in started else 0}'); started.add((p, T))
    CH = opt('ch', 2)
    def grp_of(n):
        p, ks = divmod(n, 14); lim = 14 if p < 3 else 14 - TMJ
        if n < opt('ch0', 2): return n, 1
        f = ks - ks % CH
        if p == 0: f = max(f, opt('ch0', 2))
        return 14*p + f, min(ks - ks % CH + CH, lim) - f
    nxt = HU[0]
    for n in range(56 - TMJ):
        p, ks = divmod(n, 14)
        g = 5*n
        gf, gc = grp_of(n)
        if n == gf:
            for T in range(5):
                for c in (range(gc) if T % 2 == 0 else reversed(range(gc))): mm(p, ks + c, T)
        if n == pB - pI:
            for x in poll_issue(f'HB{l}'): fx(g + 1, x, True)
        if n == pB - 1:
            for x in stampL(f'dnb4_{l}') + poll_wait(f'HB{l}') + stampL(f'dnB_{l}'): fx(g + 4, x)
        if n in (27, 41):
            for x in stampL(f'dn{n}_{l}'): fx(g + 4, x)
        for c in range(2):
            if nxt < 56 and nxt <= gf + HD and (nxt < 28 or n >= pB):
                fx(g + 2*c, hld(*divmod(nxt, 14))); nxt += 1
        if n + 1 == gf + gc:
            nf, nc = grp_of(n+1) if n + 1 < 56 - TMJ else (n+1, 1)
            fx(g+3, Need([x for c in range(nc) for x in rr(V(HR + 4*((nf+c) % 14)))]), True)
    assert nxt == 56
    if opt('spf', 0):
        a0, a1, b0, dg = opt('sa0', 8), opt('sa1', 20), opt('sb0', 34), opt('sdg', 2)
        def place(g, ns):
            for n in ns:
                while g % 5 == 3: g += 1
                fx(g, I(spf(n)), True); fixed[g][0].w = []; g += dg
        place(10, range(a1, 28)); place(5*pB, range(b0, 56))
    tdone = {}
    for T in range(5):
        for ks in range(14 - TMJ, 14): mm(3, ks, T)
        tdone[T] = len(mf)
    if opt('vb', 0) and SB:
        fx(5*SB + 1, f's_add_u32 s69, s69, {(PH[f"HB{l}"] - PH[f"HA{l}"]) & 0xffffffff}', True)
        for x in vs_go('H', f'HB{l}', sgH, NM): fx(5*SB + 1, x)
    else:
        for c, x in enumerate(sig_go(f'HB{l}', sgH)): fx(5*SB + (0, 1, 2, 4, 5, 6, 7, 9)[c], x, True)
    if SB: fx(5*SB - 1, Need([], ['H1']), True)
    wr = lambda p, T: f'ds_write_b128 v{184+p}, {V(DA + 20*p + 4*T)} offset:{T*1024}'
    for p in range(3):
        for T in range(5): fx(70*(p+1) + (4 + 2*T if p == 2 else 9 + 5*T), wr(p, T))
    ga = 210 + opt('ga', 18)
    fx(ga, 's_waitcnt lgkmcnt(0)', True); fx(ga, 's_barrier')
    st = [(x if isinstance(x, G) else I(x, name='DP2'), 12) for x in down_prep2()]
    cvt, store, dots, pinit, ptail = pub_parts(100, 'X2S')
    pre = pub_prep(WS_X2, WS_ST[2]) + pinit if l == 0 else (out_addr() if opt('ot', 1) else nat_addr(92, 93, 94, 95))
    st += [(x, 100) for x in pre]
    if l == 0 and opt('bpf', 221):
        st += [(x, 100) for x in [f's_lshl_b32 s50, s{sQ}, 2', f's_add_u32 s50, s50, s{sW}', 's_mul_i32 s50, s50, 3200', f's_mul_i32 s51, s{sJ}, 51200',
               's_add_u32 s50, s50, s51', f's_add_u32 s46, s50, {WS_BF}', 'v_min_u32 v92, 24, v0', I('v_lshlrev_b32 v92, 7, v92', name='FM2')]]
        fx(opt('bpf', 221), 'buffer_load_dword v93, v92, s[4:7], s46 offen sc1')
    for n in range(20): st.append((I(f'v_fmac_f32 v{R0+n}, s20, v{DA+20+n}', name='FM2'), 146))
    for T in range(5):
        for s_ in range(2):
            fx(ga + 1 + 2*T + s_, f'ds_read_b128 {V(DA+20*s_+4*T)}, v189 offset:{s_*5120 + T*1024}')
        for s_ in range(2):
            for r in range(4): st.append((f'v_add_f32 v{R0+4*T+r}, v{R0+4*T+r}, v{DA+20*s_+4*T+r}', ga + 9 + 2*T))
    for T in range(4):
        fx(tdone[T] + 3, wr(3, T))
        for r in range(4): st.append((f'v_fmac_f32 v{R0+4*T+r}, s21, v{DA+60+4*T+r}', tdone[T] + 4))
    if opt('spf', 0):
        for n in range(a0, a1): k(spf(n)); k.ins[-1].w = []
    if l == 0:
        k(f"""
        s_min_u32 s50, s{sGAM}, 6
        s_add_u32 s50, s50, 13
        s_mul_i32 s50, s50, 7168
        s_lshl_b32 s51, s{sW}, 11
        s_min_u32 s51, s51, 5120
        s_add_u32 s50, s50, s51
        v_add_u32 v191, s50, v1
        s_mul_i32 s71, s{sSIG}, 143360
        s_add_u32 s71, s71, {WS_WUF}
        ds_read_b128 v[192:195], v191
        ds_read_b128 v[196:199], v191 offset:1024
        s_waitcnt lgkmcnt(0)
        """)
        for n in range(2): fx(opt('svg', 213) + 2*n, f'buffer_store_dwordx4 {V(192+4*n)}, v191, s[4:7], s71 offen offset:{n*1024} sc1')
    if not SB: k.need(names=['H1'])
    k('s_barrier')
    k.need(V(HR)); emit(stampL(f'dn0_{l}'))
    align('d')
    X = o.get('exp', '')
    if X and l == 1:
        def keep(x):
            t = x.text if isinstance(x, I) else x
            if 'L' in X and t.startswith('buffer_load') and ' v8,' not in t: return False
            if 'W' in X and t.startswith('ds_write'): return False
            if 'B' in X and t.startswith('s_barrier'): return False
            if 'P' in X and (t.startswith(('s_load', 's_cbranch', 's_cmp', 'POLL', 's_waitcnt', 's_mov_b32 s68', 's_add_u32 s68'))): return False
            if 'A' in X and t.startswith('s_atomic'): return False
            if 'R' in X and t.startswith('ds_read'): return False
            return True
        fixed = {g: [x for x in v if keep(x)] for g, v in fixed.items()}
        if 'H' in X: fixed = {g: [(re.sub(r' v2(08|09|10),', ' v8,', x) if isinstance(x, str) else x) for x in v] for g, v in fixed.items()}
        if 'S' in X: st = [(x, 999) for x, e in st]
    log = {}
    left = weave(k, mf, fixed, st, tail=False, log=log)
    print('down leftover', len(left), log)
    assert log['FM2'] < ga and log['DP2'] < 79
    emit(stampL(f'dn55_{l}'))
    k(wr(3, 4))
    emit([x for x, e in left])
    for r in range(4): k(f'v_fmac_f32 v{R0+16+r}, s21, v{DA+76+r}')
    k('s_waitcnt lgkmcnt(0)'); k('s_barrier')
    for T in range(5): k(f'ds_read_b128 {V(DA+40+4*T)}, v190 offset:{T*1024}')
    add = lambda T: [f'v_pk_add_f32 {V(R0+n,2)}, {V(R0+n,2)}, {V(DA+40+n,2)}' for n in (4*T, 4*T+2)]
    if l == 1:
        store = lambda n: [(f'buffer_store_dwordx4 {V(100)}, v92, s[12:15], 0 offen {OF}', f'buffer_store_dwordx4 {V(104)}, v93, s[12:15], 0 offen {OF}',
                            f'buffer_store_dwordx2 {V(108,2)}, v94, s[12:15], 0 offen {OF}')[n]]
        if opt('ot', 1):
            store = lambda n: [(f'ds_write_b128 v95, {V(100)}', f'ds_write_b128 v95, {V(104)} offset:80', f'ds_write_b64 v96, {V(108,2)} offset:64')[n]]
    emit(add(0) + cvt(0) + add(1) + cvt(1) + store(0) + add(2) + cvt(2) + add(3) + cvt(3) + store(1) + add(4) + cvt(4) + store(2))
    if l == 1 and opt('ot', 1):
        for n in range(3): k(f'ds_read_b128 {V(112+4*n)}, v97 offset:{n*1024}')
        for n in range(3): k(f'buffer_store_dwordx4 {V(112+4*n)}, v{92+n}, s[12:15], s72 offen {OF}')
    if l == 0:
        emit([x for T in range(5) for x in dots(T)] + ptail)
        stamp(f'dnm_{l}')
        cpf(1, 50)
        k('s_barrier')
        k(f's_mul_i32 s51, s{sW}, 37'); k('s_mul_i32 s51, s51, 21846'); k('s_lshr_b32 s51, s51, 16'); k('s_lshl_b32 s51, s51, 10')
        k(f's_mul_i32 s50, s{sJ}, 51200'); k('s_add_u32 s50, s50, s51'); k(f's_add_u32 s50, s50, {WS_BF}'); k(f's_add_u32 s51, s51, {L_B}')
        NB = opt('nb', 6)
        k('s_mov_b32 s76, s50'); k('s_mov_b32 s77, s51')
        if not opt('nobf', 0): emit(wu_dma(0, NB, 77, 76))
        if not opt('m2a', 0): emit(gen_M2())
        emit(vs_prep('Y', 'X20', sgX2, 48))
        k.need(names=['X2S'])
        stamp(f'dne_{l}')
        emit(vs_go('Y', 'X20', sgX2, 48))
        if not opt('nobf', 0): emit(wu_dma(NB, 13, 77, 76))
        if opt('m2a', 0): emit(gen_M2())
    else:
        stamp(f'dne_{l}')
        if DIAG == 'fin' or (STAMP and not o.get('only')): k('s_waitcnt vmcnt(0)'); stamp('fin')

def main():
    prologue()
    k(f's_cmp_lg_u32 s{sW}, 0')
    k.begin('w0', 's_cbranch_scc1')
    k(f'v_lshrrev_b32 v12, 5, v0'); k(f'v_mul_u32_u24 v12, {MBSZ - 512}, v12'); k('v_add_u32 v12, v12, v1')
    for r in range(4): k(f'v_mov_b32 v{16+r}, 0')
    k('s_lshl_b32 s50, s2, 9')
    k('buffer_store_dwordx4 v[16:19], v12, s[4:7], s50 offen sc1', name='CLR')
    k.end()
    setexec(20); k('buffer_load_dword v15, v20, s[8:11], s60 offen'); allexec()
    def adma(m):
        off = (m >> 1)*128 + (m & 1)*640
        L = []
        for hf in range(2):
            L.append([f's_add_u32 m0, s74, {m*2048 + hf*1024 - off}', I(f'buffer_load_dwordx4 v{48+hf}, s[8:11], 0 offen offset:{off} lds', name=f'AD{m}')])
        return L
    NA = opt('na', 3)
    for m in range(NA):
        for g_ in adma(m): emit(g_)
    stamp('iss0')
    k('s_mov_b32 s90, 1'); k('s_mov_b32 s66, -1'); k('s_mov_b32 s67, 0')
    k(f"""
    v_and_b32 v51, 7, v2
    v_xor_b32 v51, v51, v3
    v_lshlrev_b32 v51, 4, v51
    v_lshl_add_u32 v50, v2, 7, v51
    v_add_u32 v50, s74, v50
    v_xor_b32 v51, 64, v50
    """)
    emit(gen_B1())
    stamp('gen1')
    k(f's_cmp_lg_u32 s{sW}, 0')
    k.begin('w0', 's_cbranch_scc1')
    k('s_and_b32 s50, s2, 3'); k('s_lshl_b32 s50, s50, 6'); k('s_add_u32 s50, s32, s50'); k('s_addc_u32 s51, s33, 0')
    k.need(names=['CLR'])
    k('s_atomic_add s90, s[50:51], 0')
    k.end()
    work = grp(pre_addr1() + pf_addr() + gen_B2() + gen_T5()); SW = opt('sw', 999)
    emit(mix(work[:SW], [g_ for m in range(NA, 10) for g_ in adma(m)]))
    stamp('issA')
    if opt('b0', 0): k('s_barrier')
    for n in COLD[:opt('c0', 5)]: emit(cold(n))
    stamp('issP')
    emit(work[SW:] + gen_M2() + res_addr())
    k(f'v_add_u32 v8, {L_B}, v1')
    k.need(names=['AD0', 'AD1'])
    for m in range(2): emit(a_lds(m))
    k('s_waitcnt lgkmcnt(4)')
    k('s_barrier')
    stamp('ini')
    if stampL('aall'): k.need(names=['AD9']); emit(stampL('aall'))
    for l in range(2):
        if l == 0: d1_body(0, None)
        else:
            emit(gen_T5())
            k(f'v_add_u32 v8, {L_B}, v1')
            k(f's_add_u32 s72, s{sXT}, {WS_X2}'); k(f's_add_u32 s74, s{sST}, {WS_ST[2]}')
            k('v_add_u32 v36, s72, v1'); k('v_add_u32 v37, 10240, v36')
            def ald(n):
                ks, h = n >> 1, n & 1
                return [f'buffer_load_dwordx4 {V(A0 + 4*n)}, v{36+h}, s[4:7], {f"s{15 + ks//4}" if ks >= 4 else 0} offen offset:{(ks % 4)*1024} sc1']
            emit(poll_issue('X20')); emit(poll_wait('X20'))
            stamp('d1p_1')
            NUP = opt('nup', 8)
            for n in range(NUP): emit(ald(n))
            for n in range(4): k(f'buffer_load_dword v{32+n}, v5, s[4:7], s74 offen offset:{256*n} sc1')
            k.need(names=['WU']); k('s_barrier')
            stamp('d1b_1')
            d1_body(1, (NUP, ald))
        stop(f'd1_{l}')
        d2(l); stop(f'd2_{l}')
        up(l); stop(f'up_{l}')
        down(l); stop(f'dn_{l}')
try: main()
except Stop: pass
finish()
k('END:'); k('s_endpgm'); k('CODE_END:')
k.finish()
DOC = """;
"""
txt = build([k], [(k.name, 256, 256, LDS)], single=True)
txt = txt.replace('; @launch', DOC + '; @launch', 1)
open(sys.argv[1], 'w').write(txt)
import json
json.dump(dict(WS_BF=WS_BF, stamps=stampnames, WS_TS=WS_TS, WS_WUF=WS_WUF, WS_WDF=WS_WDF, WS_Z=WS_Z, WS_X1=WS_X1, WS_X2=WS_X2, WS_ST=WS_ST, WS_H=WS_H), open(sys.argv[1] + '.json', 'w'))
print('insts', len(k.ins), 'hi', k.hi, 'nops', sum(1 for i in k.ins if i.kind == 'nop'))
```

```python
import sys, struct, re
from asmx import *
from asmlib import build
o = dict(a.split('=') for a in sys.argv[2:])
STOP = o.get('stop', '')
STAMP = int(o.get('stamp', 0))
def opt(n, d): return int(o.get(n, d))
S, D, F = 2048, 640, 1728
def fl(x): return hex(struct.unpack('<I', struct.pack('<f', x))[0])
MBSZ = 256*4*128
PH = {n: (i & 1)*MBSZ + (i >> 1)*4 for i, n in enumerate(['Z0', 'X10', 'HA0', 'HB0', 'X20', 'Z1', 'X11', 'HA1', 'HB1'])}
WS_TS = 11*MBSZ
WS_WUF = 2 << 20
WS_WDF = WS_WUF + 32*143360
WS_Z = [WS_WDF + 8*286720 + l*3145728 for l in range(2)]
WS_X1 = [WS_Z[1] + 3145728 + l*2621440 for l in range(2)]
WS_X2 = WS_X1[1] + 2621440
WS_ST = [WS_X2 + 2621440 + l*131072 for l in range(3)]
WS_H = [WS_ST[2] + 131072 + l*7340032 for l in range(2)]
WS_BF = WS_H[1] + 7340032
WS_END = WS_BF + 8*51200
L_XCH = 93184
L_B = L_XCH + 12288
L_Z = 132096
L_RED = 93184
L_RAW = 81920
L_CSP = 156672
L_CS = 163328
LDS = 163840
sW, sXCD, sQ, sJ, sCS, sCLS, sSIG, sGAM, sCSU, sMB = range(36, 46)
sXT, sST = 64, 65
sgZ, sgX1, sgH, sgX2 = 82, 84, 86, 88
R0 = 212; WT = 232
def V(a, n=4): return f'v[{a}:{a+n-1}]'
def wdreg(n): return f'a[{4*n}:{4*n+3}]' if n < 64 else V(WT + 4*(n-64))
MF = 'v_mfma_f32_16x16x32_bf16'
k = K(NAME + '_kernel')
nstamp = [0]; stampnames = []
DIAG = o.get('diag')
def stamp(name):
    if o.get('from') == name:
        k('s_memrealtime s[100:101]'); k('s_waitcnt lgkmcnt(0)'); k('s_mov_b32 s98, s100')
    if DIAG == name:
        k('s_memrealtime s[100:101]'); k('s_waitcnt lgkmcnt(0)')
    if not STAMP: return
    if o.get('only') and name not in o['only'].split(':'): return
    if name in stampnames: n = stampnames.index(name)
    else: n = len(stampnames); stampnames.append(name)
    k('s_memrealtime s[62:63]' if STAMP == 1 else 's_memtime s[62:63]'); k('s_waitcnt lgkmcnt(0)')
    k(f'v_writelane_b32 v11, s62, {n}')
def stampL(name):
    if DIAG == name: return ['s_memrealtime s[100:101]', 's_waitcnt lgkmcnt(0)']
    if not STAMP or not (o.get('fine') or name in o.get('only', '').split(':')): return []
    if name in stampnames: n = stampnames.index(name)
    else: n = len(stampnames); stampnames.append(name)
    return ['s_memrealtime s[62:63]' if STAMP == 1 else 's_memtime s[62:63]', 's_waitcnt lgkmcnt(0)', f'v_writelane_b32 v11, s62, {n}']
def finish():
    if DIAG:
        op = o.get('red', 'max')
        k(f's_cmp_lg_u32 s{sW}, 0'); k('s_cbranch_scc1 END')
        if o.get('from'): k('s_sub_u32 s100, s100, s98')
        k('v_mov_b32 v12, s100'); k('s_lshl_b32 s48, s2, 2'); k(f's_add_u32 s48, s48, {WS_TS}')
        setexec(1); k('buffer_store_dword v12, off, s[4:7], s48 sc1'); allexec()
        k('s_cmp_lg_u32 s2, 0'); k('s_cbranch_scc1 END')
        k('PADL:'); k('s_memrealtime s[62:63]'); k('s_waitcnt lgkmcnt(0)')
        k('s_sub_u32 s62, s62, s99'); k('s_cmp_lt_u32 s62, 8000'); k('s_cbranch_scc1 PADL')
        k(f's_mov_b32 s48, {WS_TS}')
        k('buffer_load_dwordx4 v[12:15], v1, s[4:7], s48 offen sc1')
        if not o.get('from'):
            for r in range(4): k(f'v_subrev_u32 v{12+r}, s99, v{12+r}')
        k(f'v_{op}_i32 v12, v12, v13'); k(f'v_{op}_i32 v14, v14, v15'); k(f'v_{op}_i32 v12, v12, v14')
        k('v_readlane_b32 s50, v12, 0')
        for n in range(1, 64):
            k(f'v_readlane_b32 s51, v12, {n}'); k(f's_{op}_i32 s50, s50, s51')
        k(f's_mul_i32 s50, s50, {100 if o.get("from") else 10}'); k('s_add_u32 s50, s50, 20000'); k('s_min_u32 s50, s50, 100000')
        k('PADM:'); k('s_memrealtime s[62:63]'); k('s_waitcnt lgkmcnt(0)')
        k('s_sub_u32 s62, s62, s99'); k('s_cmp_lt_u32 s62, s50'); k('s_cbranch_scc1 PADM')
    if STAMP:
        k(f's_lshl_b32 s48, s{sMB}, 1'); k(f's_add_u32 s48, s48, {WS_TS}')
        k('v_lshlrev_b32 v12, 2, v0')
        k('buffer_store_dword v11, v12, s[4:7], s48 offen')
    k('s_endpgm')
class Stop(Exception): pass
def stop(name):
    if STOP == name:
        k('s_waitcnt vmcnt(0) lgkmcnt(0)'); raise Stop()
def setexec(n, lo=0):
    m = ((1 << n) - 1) << lo
    k(f's_mov_b32 exec_lo, {hex(m & 0xffffffff)}'); k(f's_mov_b32 exec_hi, {hex(m >> 32)}')
def allexec(): k('s_mov_b64 exec, -1')
def align(nm):
    a = opt('al', 0)
    if a:
        k(f'.p2align {a}')
        for n in range(opt('al' + nm, 0)): k('s_nop 0')
def cpf(bit, t=28):
    if not (opt('cpf', 6) >> bit) & 1: return
    k(f"""
    s_lshr_b32 s50, s2, 3
    s_lshl_b32 s50, s50, 2
    s_add_u32 s50, s50, s{sW}
    s_lshl_b32 s50, s50, 9
    v_lshl_add_u32 v{t}, v3, 7, s50
    v_min_u32 v{t}, CODE_END-PC0-4, v{t}
    global_load_dword v{t+1}, v{t}, s[94:95] sc1
    """)
def lines(s): return [l.strip() for l in s.strip().split('\n') if l.strip()]
def emit(L):
    for x in L: k(x)
MAXPOLL = 400000
LF = {'x': '', '1': 'sc1', 'n': 'nt', '1n': 'sc1 nt', '01': 'sc0 sc1'}[o.get('lf', '1')]
OF = {'x': '', '1': 'sc1', 'n': 'nt', '01': 'sc0 sc1'}[o.get('of', 'x')]
def poll_issue(ph): return [f's_load_dword s91, s[92:93], {PH[ph]} glc']
def poll_wait(ph):
    L = k.label('POLL'); X = k.label('POLLX')
    return ['s_waitcnt lgkmcnt(0)', 's_cmp_ge_u32 s91, 8', f's_cbranch_scc1 {X}', 's_mov_b32 s68, 0', f'{L}:',
            f's_load_dword s91, s[92:93], {PH[ph]} glc', 's_add_u32 s68, s68, 1', 's_waitcnt lgkmcnt(0)',
            's_cmp_ge_u32 s91, 8', f's_cbranch_scc1 {X}', f's_cmp_lt_u32 s68, {MAXPOLL}', f's_cbranch_scc1 {L}', f'{X}:']
SIGOFF = {sgZ: lambda l: (l >> 2)*512 + (l & 3)*32768, sgX1: lambda l: l*4096, sgH: lambda l: l*4096, sgX2: lambda l: l*4096}
def sig_go(ph, sg): return [f's_atomic_add s90, s[{sg}:{sg+1}], {SIGOFF[sg](l) + PH[ph]}' for l in range(8)]
VS = o.get('vs', 'ZXYH')
def vs_prep(key, ph, sg, va):
    if key not in VS: return []
    if sg == sgZ: L = [f'v_and_b32 v{va}, 3, v0', f'v_bfe_u32 v{va+1}, v0, 2, 1', f'v_lshlrev_b32 v{va}, 15, v{va}', f'v_lshl_add_u32 v{va}, v{va+1}, 9, v{va}']
    else: L = [f'v_and_b32 v{va}, 7, v0', f'v_lshlrev_b32 v{va}, 12, v{va}']
    return L + [f'v_lshrrev_b32 v{va+1}, 3, v0', f'v_lshl_add_u32 v{va}, v{va+1}, 28, v{va}', f'v_mov_b32 v{va+1}, 1',
                f's_sub_u32 s69, s{sg}, s4', f's_add_u32 s69, s69, {PH[ph]}']
def vs_go(key, ph, sg, va):
    if key not in VS: return sig_go(ph, sg)
    return [f'buffer_atomic_add v{va+1}, v{va}, s[4:7], s69 offen sc1']
def mix(a, b):
    a = grp(a); out = []; nb = len(b); done = 0
    for n, x in enumerate(a):
        while done < nb and done*len(a) <= n*nb: out += b[done]; done += 1
        out.append(x)
    for g_ in b[done:]: out += g_
    return out

def prologue():
    k('s_cmp_ge_u32 s2, 256'); k('s_cbranch_scc1 END')
    k('s_getpc_b64 s[94:95]')
    k('PC0:')
    for s_, a in ((4, 'ws'), (16, 'wg'), (20, 'wu'), (24, 'wd'), (8, 'x'), (12, 'out'), (32, 'dbg')):
        k(f's_load_dwordx2 s[{s_}:{s_+1}], s[0:1], {KA[a]}')
    if STAMP: k('s_memrealtime s[62:63]' if STAMP == 1 else 's_memtime s[62:63]')
    if DIAG: k('s_memrealtime s[100:101]')
    k(f"""
    s_lshr_b32 s50, s2, 3
    s_lshl_b32 s50, s50, 11
    v_lshrrev_b32 v12, 4, v0
    v_lshl_add_u32 v12, v12, 7, s50
    v_min_u32 v12, CODE_END-PC0-4, v12
    global_load_dword v13, v12, s[94:95]
    v_lshrrev_b32 v3, 6, v0
    v_and_b32 v0, 63, v0
    v_readfirstlane_b32 s{sW}, v3
    """)
    for s_, n in ((4, 1 << 28), (16, D*F*2), (20, D*F*2), (24, D*F*2), (8, S*D*2), (12, S*D*2), (32, 256)):
        k(f's_mov_b32 s{s_+2}, {n}'); k(f's_mov_b32 s{s_+3}, 0x00020000')
    k(f"""
    v_lshlrev_b32 v1, 4, v0
    v_and_b32 v2, 15, v0
    v_lshrrev_b32 v3, 4, v0
    s_and_b32 s{sXCD}, s2, 7
    s_lshr_b32 s{sQ}, s2, 6
    s_bfe_u32 s{sJ}, s2, 0x30003
    s_lshl_b32 s{sCS}, s{sXCD}, 2
    s_add_u32 s{sCS}, s{sCS}, s{sQ}
    s_lshr_b32 s{sCLS}, s{sCS}, 1
    s_sub_u32 s50, 32, s{sCLS}
    s_cmp_eq_u32 s{sCS}, 1
    s_cselect_b32 s50, 16, s50
    s_bitcmp1_b32 s{sCS}, 0
    s_cselect_b32 s{sCLS}, s50, s{sCLS}
    """)
    k(f"""
    s_lshl_b32 s50, s{sJ}, 3
    s_lshl_b32 s51, s{sW}, 1
    s_add_u32 s50, s50, s51
    s_lshr_b32 s51, s50, 5
    s_lshl_b32 s51, s51, 5
    s_and_b32 s50, s50, 31
    s_lshl_b32 s50, s50, 6
    s_add_u32 s50, s50, s51
    s_add_u32 s50, s50, s{sCLS}
    s_mul_i32 s60, s50, 1280
    v_cmp_lt_u32 vcc, 9, v0
    v_mov_b32 v21, {64*1280 - 1280}
    s_lshr_b32 s50, s{sW}, 1
    s_lshl_b32 s50, s50, 5
    v_cndmask_b32 v20, 0, v21, vcc
    v_lshl_add_u32 v20, v0, 7, v20
    s_and_b32 s51, s{sW}, 1
    s_lshl_b32 s51, s51, 10
    s_add_u32 s50, s50, s51
    s_add_u32 s50, s50, s{sCLS}
    s_mul_i32 s50, s50, 1280
    v_lshrrev_b32 v50, 3, v0
    v_and_b32 v51, 7, v0
    v_xor_b32 v51, v51, v50
    v_mul_u32_u24 v48, 81920, v50
    v_lshl_add_u32 v48, v51, 4, v48
    v_add_u32 v48, s50, v48
    v_add_u32 v49, {8*81920}, v48
    s_mul_i32 s74, s{sW}, 20480
    """)
    if STAMP: k('v_mov_b32 v11, 0')
    k('s_waitcnt lgkmcnt(0)')
    if DIAG: k('s_mov_b32 s99, s100')
    if STAMP:
        k('v_writelane_b32 v11, s62, 0'); stampnames.append('start')

def ids2():
    return lines(f"""
    s_and_b32 s{sGAM}, s{sXCD}, 4
    s_add_u32 s{sGAM}, s{sGAM}, s{sQ}
    s_lshl_b32 s{sCSU}, s{sGAM}, 2
    s_add_u32 s{sCSU}, s{sCSU}, s{sW}
    s_lshl_b32 s{sMB}, s2, 2
    s_add_u32 s{sMB}, s{sMB}, s{sW}
    s_lshl_b32 s{sMB}, s{sMB}, 7
    s_add_u32 s92, s4, s{sMB}
    s_addc_u32 s93, s5, 0
    s_lshl_b32 s50, s{sCS}, 2
    s_add_u32 s50, s50, s{sW}
    s_mul_i32 s{sXT}, s50, 20480
    s_lshl_b32 s{sST}, s50, 10
    s_lshl_b32 s50, s{sW}, 10
    s_lshl_b32 s51, s{sJ}, 12
    s_add_u32 s50, s50, s51
    s_lshr_b32 s51, s{sCS}, 3
    s_lshl_b32 s51, s51, 7
    s_add_u32 s{sgZ}, s50, s51
    s_and_b32 s50, s{sXCD}, 4
    s_and_b32 s51, s{sXCD}, 3
    s_lshl_b32 s51, s51, 6
    s_add_u32 s50, s50, s51
    s_add_u32 s50, s50, s{sW}
    s_lshl_b32 s50, s50, 2
    s_add_u32 s50, s50, s{sQ}
    s_lshl_b32 s{sgX1}, s50, 7
    s_lshl_b32 s50, s{sW}, 6
    s_add_u32 s50, s50, s{sGAM}
    s_lshl_b32 s50, s50, 2
    s_and_b32 s51, s{sXCD}, 3
    s_add_u32 s50, s50, s51
    s_lshl_b32 s{sgH}, s50, 7
    s_lshl_b32 s50, s{sQ}, 6
    s_add_u32 s50, s50, s{sXCD}
    s_lshl_b32 s50, s50, 2
    s_add_u32 s50, s50, s{sW}
    s_lshl_b32 s{sgX2}, s50, 7
    s_mul_i32 s50, s{sJ}, 1280
    s_add_u32 s51, s50, 1024
    s_sub_u32 s52, {79*256}, s50
    v_mov_b32 v12, s51
    v_mov_b32 v13, s52
    v_cndmask_b32 v4, v13, v12, s[66:67]
    v_and_b32 v12, 1, v3
    v_lshl_add_u32 v4, v12, 3, v4
    v_lshl_add_u32 v4, v2, 4, v4
    v_lshlrev_b32 v5, 2, v0
    """) + [x for sg in (sgZ, sgX1, sgH, sgX2) for x in (f's_add_u32 s{sg}, s4, s{sg}', f's_addc_u32 s{sg+1}, s5, 0')]

def nat_addr(a01, a23, a4, t):
    return lines(f"""
    s_lshr_b32 s50, s{sW}, 1
    s_lshl_b32 s50, s50, 5
    s_and_b32 s51, s{sW}, 1
    s_lshl_b32 s51, s51, 10
    s_add_u32 s50, s50, s51
    s_add_u32 s50, s50, s{sCLS}
    v_lshl_add_u32 v{t}, v2, 6, s50
    v_mul_u32_u24 v{t}, 1280, v{t}
    s_mul_i32 s50, s{sJ}, 80
    s_sub_u32 s51, 1200, s50
    v_lshl_add_u32 v{a4}, v3, 4, v{t}
    v_add_u32 v{a01}, s50, v{a4}
    v_add_u32 v{a23}, s51, v{a4}
    s_add_u32 s50, s50, 64
    s_add_u32 s51, s51, 48
    v_mov_b32 v{t+1}, s50
    v_mov_b32 v{t+2}, s51
    v_cndmask_b32 v{a4}, v{t+2}, v{t+1}, s[66:67]
    v_lshl_add_u32 v{a4}, v3, 3, v{a4}
    v_add_u32 v{a4}, v{a4}, v{t}
    """)

A0 = 132; P0 = 88; P1 = 108; P5 = 128; BR = 72; B5 = 68; M2 = 52
def gen_vals(t, ef, base):
    L = []
    for jj in range(1, 8): L.append(f'v_fmamk_f32 v{t+jj}, v{ef}, {fl(float(jj))}, v{base}')
    L.append(f'v_cos_f32 v{t}, v{base}')
    for jj in range(1, 8): L.append(f'v_cos_f32 v{t+jj}, v{t+jj}')
    return L
def pack8(dst, t): return [f'v_cvt_pk_bf16_f32 v{dst+p}, v{t+2*p}, v{t+2*p+1}' for p in range(4)]
def gen_setup(e, ef, base, t, zero_dc):
    L = [f'v_and_b32 v{t}, 2, v0', f'v_cvt_f32_u32 v{ef}, v{e}', f'v_cvt_f32_u32 v{t}, v{t}', f'v_mul_f32 v{t}, 0x3e000000, v{t}']
    if zero_dc: L += [f'v_cmp_eq_u32 vcc, 0, v{e}', f'v_mov_b32 v{t+1}, 0x3e800000', f'v_mul_f32 v{ef}, {fl(1/640)}, v{ef}', f'v_cndmask_b32 v{t}, v{t}, v{t+1}, vcc']
    else: L += [f'v_mul_f32 v{ef}, {fl(1/640)}, v{ef}']
    L += [f'v_lshlrev_b32 v{t+1}, 3, v3', f'v_cvt_f32_u32 v{t+1}, v{t+1}', f'v_fma_f32 v{base}, v{ef}, v{t+1}, v{t}']
    return L
def gen_T5():
    return [f's_mul_i32 s53, s{sJ}, 40', 's_add_u32 s53, s53, 40', 'v_and_b32 v20, 1, v0', 'v_sub_u32 v22, 1, v20', 'v_mul_u32_u24 v22, s53, v22'] \
        + gen_setup(22, 23, 24, 26, False) + gen_vals(26, 23, 24) + pack8(B5, 26)
def gen_run(nfr, C0, C1, PK):
    L = gen_vals(C0, 23, 24) + [f'v_fmamk_f32 v24, v23, {fl(32.0)}, v24', f'v_mul_f32 v34, {fl(32.0)}, v23'] + gen_vals(C1, 23, 24) + ['v_cos_f32 v34, v34']
    for n in range(nfr):
        c, o_ = (C0, C1) if n % 2 == 0 else (C1, C0)
        if n == 2: L.append('v_add_f32 v34, v34, v34')
        if n >= 2:
            for p in range(4): L.append(f'v_pk_fma_f32 {V(c+2*p,2)}, {V(o_+2*p,2)}, v[34:35], {V(c+2*p,2)} op_sel_hi:[1,0,1] neg_lo:[0,0,1] neg_hi:[0,0,1]')
        pk = PK + 4*(n % 2)
        if nfr == 3 and n == 2: L.append('v_add_u32 v25, s57, v1')
        L += pack8(pk, c) + [f'ds_write_b128 v25, {V(pk)} offset:{n*5120}']
    return L
def gen_B1():
    return lines(f"""
    s_mul_i32 s52, s{sJ}, 40
    s_lshr_b32 s53, s{sW}, 1
    s_lshl_b32 s53, s53, 4
    s_and_b32 s54, s{sW}, 1
    s_lshl_b32 s55, s54, 1
    s_add_u32 s53, s53, s55
    s_add_u32 s53, s53, s52
    v_and_b32 v20, 1, v0
    v_and_b32 v21, 12, v0
    v_add3_u32 v22, v20, v21, s53
    s_lshl_b32 s56, s{sW}, 10
    s_add_u32 s56, s56, {L_B}
    v_add_u32 v25, s56, v1
    v_mov_b32 v35, 0
    """) + gen_setup(22, 23, 24, 26, True) + gen_run(10, 88, 96, 104)
def gen_B2():
    return lines(f"""
    s_add_u32 s53, s52, 32
    v_lshrrev_b32 v21, 1, v21
    v_add3_u32 v22, v20, v21, s53
    s_mul_i32 s55, s{sW}, 3
    s_min_u32 s55, s55, 8
    s_mul_i32 s56, s55, 5120
    s_add_u32 s56, s56, {L_B + 4096}
    s_cmp_lt_u32 s{sW}, 2
    s_cselect_b32 s57, s56, {L_CSP - 10240}
    s_lshl_b32 s55, s55, 5
    v_add_u32 v25, s56, v1
    """) + gen_setup(22, 23, 24, 26, False) + ['v_cvt_f32_u32 v26, s55', 'v_fma_f32 v24, v26, v23, v24', 'v_fract_f32 v24, v24'] + gen_run(3, 88, 96, 104)

def gen_M2(tmap=None):
    L = lines(f"""
    s_lshl_b32 s50, s{sW}, 3
    v_lshrrev_b32 v20, 1, v2
    v_add_u32 v20, s50, v20
    v_lshrrev_b32 v21, 1, v20
    v_cmp_eq_u32 vcc, 1, v20
    v_sub_u32 v22, 32, v21
    v_and_b32 v23, 2, v0
    v_cndmask_b32 v22, v22, 16, vcc
    v_cmp_ne_u32 vcc, 0, v23
    v_and_b32 v20, 1, v0
    v_lshl_add_u32 v23, v3, 8, s{sCLS}
    v_cndmask_b32 v21, v21, v22, vcc
    v_lshl_add_u32 v21, v20, 5, v21
    v_mul_u32_u24 v22, v21, v23
    v_and_b32 v22, 2047, v22
    v_bfe_i32 v20, v21, 0, 1
    v_and_b32 v20, 0x80008000, v20
    v_cvt_f32_u32 v21, v21
    v_cvt_f32_u32 v22, v22
    v_mul_f32 v21, {fl(1/64)}, v21
    v_mul_f32 v22, {fl(1/2048)}, v22
    """)
    for kap in range(2):
        for jp in range(2):
            for h in range(2): L.append(f'v_fmamk_f32 v{23+h}, v21, {fl(float(kap + 2*(2*jp + h)))}, v22')
            L += ['v_cos_f32 v25, v23', 'v_cos_f32 v26, v24', 'v_sin_f32 v27, v23', 'v_sin_f32 v28, v24']
            L.append(f'v_cvt_pk_bf16_f32 v{M2 + 4*kap + jp}, v25, v26')
            L.append(f'v_cvt_pk_bf16_f32 v{M2 + 8 + 4*kap + jp}, v27, v28')
            L.append(f'v_xor_b32 v{M2 + 4*kap + jp + 2}, v20, v{M2 + 4*kap + jp}')
            L.append(f'v_xor_b32 v{M2 + 8 + 4*kap + jp + 2}, v20, v{M2 + 8 + 4*kap + jp}')
    if tmap: L = [re.sub(r'\bv(2[0-8])\b', lambda m_: f'v{tmap[int(m_.group(1))-20]}', x).replace('s50', 's69') for x in L]
    return L

def a_lds(m):
    return [f'ds_read_b128 {V(A0 + 8*(2*(m >> 1) + od) + 4*(m & 1))}, v{50+od} offset:{m*2048}' for od in range(2)]
def init_issue():
    k('buffer_load_dword v38, v14, s[32:35], 0 offen sc1')
def init_check():
    L = k.label('INI'); X = k.label('INIX')
    k('s_mov_b32 s68, 0')
    k.need('v38')
    k(f'{L}:')
    k(f'v_cmp_gt_u32 s[96:97], {opt("cl", 64)//4}, v38')
    k('s_cmp_eq_u64 s[96:97], 0')
    k(f's_cbranch_scc1 {X}')
    k('buffer_load_dword v38, v14, s[32:35], 0 offen sc1')
    k.ins[-1].kind = 'salu'; k.ins[-1].w = []
    k('s_add_u32 s68, s68, 1')
    k('s_waitcnt vmcnt(0)'); k.ins[-1].kind = 'salu'
    k(f's_cmp_lt_u32 s68, {MAXPOLL}'); k(f's_cbranch_scc1 {L}')
    k(f'{X}:')

PSO = [76, 77, 78, 79, 80, 81, 46, 47, 48, 49]
def d1_body(l, aload):
    S1, S2 = 40, 44
    BRL = [72, 76, 80, 84, 16, 20, 24]; NB = len(BRL)
    XB = L_XCH
    mf = []; fixed = {}
    def fx(g, x, first=False):
        L = fixed.setdefault(g, [])
        L.insert(0, x) if first else L.append(x)
    def p5(ks):
        mf.append(f'{MF} {V(P5)}, {V(A0 + 8*ks)}, {V(B5)}, {V(P5) if ks else 0}')
        mf.append(f'{MF} {V(P5)}, {V(A0 + 8*ks + 4)}, {V(B5)}, {V(P5)}')
    GG = R0 + 16; AF = opt('af', 0)
    TK = opt(f'tk{l}', 3)
    border = [(ks, T) for ks in range(10 - TK) for T in range(5)] + [(ks, T) for T in (4, 0, 1, 2, 3) for ks in range(10 - TK, 10)]
    rd = lambda n: f'ds_read_b128 {V(BRL[n % NB])}, v8 offset:{(border[n][0]*5 + border[n][1])*1024}'
    for n in range(NB-1): k(rd(n))
    tdone = {}; kstart = {}
    def head(ks):
        g0 = len(mf); kstart[ks] = g0
        if l == 0:
            if ks < 5:
                for c in range(4): mf.append(f'{MF} {V(GG)}, {V(A0+16*ks+4*c)}, {V(A0+16*ks+4*c)}, {V(GG) if (ks or c) else 0}')
                tdone['g'] = len(mf)
                p5(2*ks); p5(2*ks+1); tdone[5] = len(mf)
            for q_, kp in enumerate([2*ks+1, 2*ks+2] if AF else [ks+1]):
                if kp < 5:
                    fx(g0 + 4*q_, Need([], [f'AD{2*kp}', f'AD{2*kp+1}']), True)
                    for c, x in enumerate(a_lds(2*kp) + a_lds(2*kp+1)): fx(g0 + 4*q_ + c, x)
        else:
            if ks: fx(g0-2, Need(rr(V(A0 + 8*ks, 8))), True)
            p5(ks); tdone[5] = len(mf)
            for c in range(3):
                n = aload[0] + 3*ks + c
                if n < 20:
                    for x in aload[1](n): fx(g0 + (0, 3, 7)[c], x)
    for n, (ks, T) in enumerate(border):
        if n < 5*(10-TK):
            if T == 0: head(ks)
        elif n == 5*(10-TK):
            for k2 in range(10-TK, 10): head(k2)
        b = V(BRL[n % NB])
        fx(len(mf)-1, Need(rr(b)), True)
        if n + NB - 1 < 50: fx(len(mf), rd(n+NB-1))
        mf.append(f'{MF} {V(P0+4*T)}, {V(A0 + 8*ks)}, {b}, {V(P0+4*T) if ks else 0}')
        mf.append(f'{MF} {V(P1+4*T)}, {V(A0 + 8*ks + 4)}, {b}, {V(P1+4*T) if ks else 0}')
        if ks == 9: tdone[T] = len(mf)
    st = []
    if l == 0:
        isfree = lambda g: all((x if isinstance(x, I) else I(x)).kind == 'need' for x in fixed.get(g, []))
        st += [(x, 0) for x in lines(f"""
        s_lshl_b32 s50, s{sCS}, 2
        s_add_u32 s50, s50, s{sW}
        s_min_u32 s50, s50, 99
        s_lshl_b32 s50, s50, 9
        v_add_u32 v38, s50, v8
        s_mul_i32 s51, s{sJ}, 51200
        s_add_u32 s50, s50, s51
        s_add_u32 s71, s50, {WS_BF}
        v_mov_b32 v39, 0x10000000
        v_cndmask_b32 v39, v39, v1, s[66:67]
        ds_read_b128 {V(40)}, v38
        """)]
        st.append((f'buffer_store_dwordx4 {V(40)}, v39, s[4:7], s71 offen sc1', 24))
        if opt('m2w', 0): st += [(x, 0) for x in gen_M2([28, 32, 33, 34, 35, 36, 13, 14, 38])]
        pa2 = pre_addr2(); NW_ = 39
        wpre = opt('wpre', 0)
        emit(pa2[:wpre])
        st = [(I(x, name='PA1'), 0) for x in pa2[wpre:NW_]] + st + [(x if isinstance(x, G) else I(x, name='PA2'), 0) for x in pa2[NW_:]]
        for c, x in enumerate((f'ds_read_b128 {V(RS[0])}, v13', f'ds_read_b128 {V(RS[4])}, v14 offset:2048', f'ds_read_b64 {V(6,2)}, v28')):
            fx((kstart[1] + 9 + 2*c) if AF else (kstart[3] + 4 + c), I(x, name='RSL'))
        MB_ = kstart[2] + 1 if AF else kstart[3] + 14; fx(MB_, 's_barrier', True); fx(MB_, Need([], ['RSL']), True)
        late = []
        def put(g, items):
            while g < len(mf) and not isfree(g): g += 1
            if g >= len(mf): late.append(items); return None
            for x in items: fx(g, x)
            return g
        for c, n in enumerate(COLD[opt('c0', 5):opt('c1', 8)]): put(opt('rg', 30) + opt('rs', 20)*c, cold(n))
        PG = opt('pg', 84)
        for x in stampL('rawb'): fx(PG-2, x)
        fx(PG-1, Need([], ['RAW']), True)
        for x in stampL('raw'): fx(PG-1, x)
        for p in range(3):
            put(PG, [f'ds_read_b64_tr_b16 {V(R0+4+4*p+2*h, 2)}, v{R0 + (p >> 1)} offset:{(80 if p == 1 else 64 if p == 2 else 0) + 640*h}' for h in range(2)])
        for p in range(3):
            put(PG + 10 + 8*p, [f'buffer_store_dwordx4 {V(R0+4+4*p)}, v{R0 + 2 + (p >> 1)}, s[4:7], s{76 + (p >> 1)} offen offset:{2048*(p & 1)} sc1'])
        assert not late
        W0, WS_ = opt('w0', 76), opt('ws', 8)
        assert W0 > MB_ + 1
        for x in stampL('wpfb') + ([Need([], ['WPF'])] + stampL('wpf') if stampL('wpf') else []): fx(opt('wpg', 40), x)
        for c in range(opt('r1n', 10)):
            a, b = wdma(1, c)
            g = put(W0 + WS_*c, [b])
            if g is None: late[-1] = [a, b]
            else: fx(g-1, a, True)
        print('round1 late', len(late))
    else:
        for x in ['v_add_f32 v32, v32, v33', 'v_add_f32 v34, v34, v35', 'v_add_f32 v32, v32, v34',
                  'v_and_b32 v33, 1, v3', 'v_cvt_f32_u32 v33, v33', 'v_sub_f32 v34, 1.0, v33']: st.append((x, 30))
        fx(47, f'v_mfma_f32_16x16x4_f32 {V(S1)}, v32, v34, 0'); fx(47, f'v_mfma_f32_16x16x4_f32 {V(S2)}, v32, v33, 0')
    for x in ['v_and_b32 v29, 1, v0', 'v_cvt_f32_u32 v29, v29', 'v_fma_f32 v29, v29, -2.0, 1.0',
              f's_and_b32 s50, s{sW}, 1', 's_lshl_b32 s50, s50, 3', f's_lshr_b32 s51, s{sW}, 1', 's_lshl_b32 s51, s51, 10',
              's_add_u32 s50, s50, s51', f'v_add_u32 v10, {XB}, v1', 'v_add_u32 v9, s50, v10',
              f's_lshl_b32 s50, s{sCS}, 3', f's_add_u32 s50, s50, s{sJ}', 's_mul_i32 s50, s50, 12288',
              f's_lshl_b32 s51, s{sW}, 10', 's_add_u32 s50, s50, s51', f's_add_u32 s70, s50, {WS_Z[l]}', 's_add_u32 s60, s70, 4096', 's_add_u32 s61, s70, 8192',
              'v_lshlrev_b32 v12, 6, v2', 'v_lshl_add_u32 v12, v3, 4, v12']: st.append((x, 6 if l == 0 else 48))
    if l == 0:
        e = tdone['g'] + 3
        for x in ['v_lshlrev_b32 v31, 2, v3', 'v_sub_u32 v31, v2, v31', 'v_mov_b32 v30, 0']: st.append((x, 6))
        for r in range(4): st += [(f'v_cmp_eq_u32 s[{52+2*r}:{53+2*r}], {r}, v31', 6)]
        st.append(('v_mov_b32 v31, 1.0', 6))
        for r in range(4): st.append((f'v_cndmask_b32 v30, v30, v{GG+r}, s[{52+2*r}:{53+2*r}]', e))
        st.append((f'v_mfma_f32_16x16x4_f32 {V(S2)}, v30, v31, 0', e))
        e = tdone[5] + 3
        for r in range(4): st.append((f'v_mov_b32_dpp v{S1+r}, v{P5+r} quad_perm:[1,1,1,1] row_mask:0xf bank_mask:0xf', e))
        for r in range(4): st.append((f'v_mul_f32 v{S1+r}, {fl(1/640)}, v{S1+r}', e))
        e += 6
    else:
        e = 54
        for r in range(4): st.append((f'v_mul_f32 v{S1+r}, {fl(1/640)}, v{S1+r}', e))
    for r in range(4): st.append((f'v_mul_f32 v{S2+r}, {fl(1/640)}, v{S2+r}', e))
    for r in range(4): st.append((f'v_fma_f32 v{S2+r}, -v{S1+r}, v{S1+r}, v{S2+r}', e))
    for r in range(4): st.append((f'v_max_f32 v{S2+r}, 0, v{S2+r}', e))
    for r in range(4): st.append((f'v_add_f32 v{S2+r}, {fl(1e-5)}, v{S2+r}', e))
    for r in range(4): st.append((f'v_rsq_f32 v{S2+r}, v{S2+r}', e))
    def combine(T):
        p = P0 + 4*T if T < 5 else P5
        e = tdone[T] + 2
        if T < 5:
            for r in range(4): st.append((f'v_fmac_f32 v{p+r}, v29, v{P1+4*T+r}', e))
        for r in range(4): st.append((f'v_mul_f32 v{p+r}, v{p+r}, v{S2+r}', e))
        st.append((f'v_cvt_pk_bf16_f32 v{p}, v{p}, v{p+1}', e)); st.append((f'v_cvt_pk_bf16_f32 v{p+1}, v{p+2}, v{p+3}', e))
        st.append((I(f'ds_write_b64 v9, {V(p,2)} offset:{T*2048}', name=f'XW{l}{T >> 1}'), e))
    FR = A0
    AC = {4: (180, 184), 5: (188, 192), 0: (196, 200), 1: (204, 208), 2: (P0, P0+4), 3: (P1, P1+4)}
    XD_ = opt('xd', 4)
    xrd = lambda part: [I(f'ds_read_b128 {V(FR+4*n)}, v10 offset:{n*1024}', name=f'XR{part}') for n in range(4*part, 4*part+4)]
    def exch(part):
        nm = f'XW{l}{part}'
        st.append((Need([], [nm]), lambda lg: lg.get(nm, 999) + XD_)); st.append(('s_barrier', 0))
        for x in xrd(part): st.append((x, 0))
    def g2(part):
        L = []
        for T in (2*part, 2*part+1):
            t1, t2 = AC[T]
            for kap in range(2):
                f = V(FR + 4*(2*T + kap))
                L.append(f'{MF} {V(t1)}, {f}, {V(M2+4*kap)}, {V(t1) if kap else 0}')
                L.append(f'{MF} {V(t2)}, {f}, {V(M2+8+4*kap)}, {V(t2) if kap else 0}')
        return L
    def zepi(T, pk=True):
        t1, t2 = AC[T]; dst = 16 + 4*(T >> 1) + 2*(T & 1)
        if pk: L = [f'v_pk_add_f32 {V(t1,2)}, {V(t1,2)}, {V(t2+2,2)}', f'v_pk_add_f32 {V(t1+2,2)}, {V(t1+2,2)}, {V(t2,2)} neg_lo:[0,1] neg_hi:[0,1]']
        else: L = [x for rp in range(2) for x in (f'v_add_f32 v{t1+rp}, v{t1+rp}, v{t2+2+rp}', f'v_sub_f32 v{t1+2+rp}, v{t1+2+rp}, v{t2+rp}')]
        L += [f'v_cvt_pk_bf16_f32 v{dst+rp}, v{t1+rp}, v{t1+2+rp}' for rp in range(2)]
        if T & 1: L.append(I(f'buffer_store_dwordx4 {V(16 + 4*(T>>1))}, v12, s[4:7], s{(70, 60, 61)[T >> 1]} offen sc1', name='ZS'))
        return L
    G1 = len(mf)
    deadline = {G1: 'XR2', G1 + 8: 'XR0'}
    mf += g2(2) + g2(0)
    combine(5); combine(4); exch(2); combine(0); combine(1); exch(0); combine(2); combine(3)
    if l == 0:
        for c, (a, b) in enumerate(late):
            fx(G1 + 1 + 4*c, a, True); fx(G1 + 2 + 4*c, b)
    for x in stampL(f'g1m_{l}'): fx(G1 - 1, x)
    align('g')
    if l == 1: k.need(V(A0, 8)); emit(stampL('g1a_1'))
    log = {}
    XT = opt(f'xt{l}', 0)
    left = weave(k, mf, fixed, st, log=log, deadline=deadline, window=opt('win', 30), extra=lambda g: 1 if (XT and g >= tdone[4] and g % XT == 0) else 0)
    print('d1 leftover', left, 'G1', G1, tdone, log)
    if l == 0: assert log['PA2'] < PG - 2 and log['PA1'] < W0 - 2
    emit(zepi(4) + zepi(5))
    k.need(names=[f'XW{l}1']); k('s_barrier')
    emit(xrd(1))
    emit(zepi(0) + zepi(1))
    weave(k, g2(1), {}, [(x, 6) for x in zepi(2, False)])
    emit(zepi(3))
    stamp(f'd1x_{l}')

WA = WT; TA = WT + 7; CSO = WT + 12; CSA = 124; RA = WT + 7; PFA = WT + 11
def pf_addr():
    return lines(f"""
    s_and_b32 s75, s{sXCD}, 3
    s_mul_i32 s75, s75, 896
    s_bfe_u32 s78, s2, 0x40003
    s_lshl_b32 s78, s78, 2
    s_add_u32 s78, s78, s{sW}
    s_mul_i32 s78, s78, {2*3456}
    s_add_u32 s75, s75, s78
    s_mov_b32 s30, {D*F*2}
    s_mov_b32 s31, 0x00020000
    s_cmp_lt_u32 s{sQ}, 2
    s_cselect_b64 s[28:29], s[16:17], s[20:21]
    v_min_u32 v44, 13, v0
    v_mul_u32_u24 v45, 9363, v44
    v_lshrrev_b32 v45, 16, v45
    v_mul_u32_u24 v45, {3456 - 896}, v45
    v_lshl_add_u32 v{PFA}, v44, 7, v45
    """)
def pre_addr1():
    L = lines(f"""
    s_and_b32 s{sSIG}, s{sXCD}, 3
    s_lshl_b32 s{sSIG}, s{sSIG}, 3
    s_add_u32 s{sSIG}, s{sSIG}, s{sJ}
    s_and_b32 s46, s{sCS}, 7
    s_lshl_b32 s46, s46, 2
    s_add_u32 s46, s46, s{sW}
    s_lshr_b32 s47, s{sCS}, 3
    s_mul_i32 s72, s47, 28
    s_add_u32 s48, s72, s46
    s_mul_i32 s72, s48, {16*1280}
    s_cmp_lt_u32 s46, 28
    s_cselect_b32 s72, s72, 0x10000000
    s_mul_i32 s73, s{sW}, 2560
    s_add_u32 s73, s73, {L_RAW}
    s_mul_i32 s76, s{sJ}, 80
    s_mul_i32 s77, s{sJ}, 160
    s_sub_u32 s77, 1120, s77
    s_add_u32 s72, s72, s76
    v_mov_b32 v47, s77
    """)
    if opt('z31', 1): L += [f's_cmp_eq_u32 s{sSIG}, 31', 's_cselect_b32 s18, 0, s18', 's_cselect_b32 s22, 0, s22']
    for n in range(3):
        L += [f'v_add_u32 v44, {64*n}, v0', 'v_mul_u32_u24 v45, 6554, v44', 'v_lshrrev_b32 v45, 16, v45', 'v_mul_u32_u24 v46, 10, v45', 'v_sub_u32 v46, v44, v46',
              'v_cmp_lt_u32 vcc, 4, v46', f'v_mul_u32_u24 v{RA+n}, 1280, v45', f'v_lshl_add_u32 v{RA+n}, v46, 4, v{RA+n}', 'v_cndmask_b32 v44, 0, v47, vcc', f'v_add_u32 v{RA+n}, v{RA+n}, v44']
    return L
def res_addr():
    L = lines(f"""
    s_mul_i32 s50, s{sJ}, 5
    s_sub_u32 s51, 35, s50
    s_add_u32 s52, s50, 4
    s_add_u32 s53, s51, 4
    v_lshl_add_u32 v44, v2, 7, s74
    v_add_u32 v13, s50, v3
    v_add_u32 v14, s51, v3
    v_mov_b32 v28, s52
    v_mov_b32 v45, s53
    v_cndmask_b32 v28, v45, v28, s[66:67]
    """)
    for r in (13, 14, 28):
        L += [f'v_xor_b32 v45, v{r}, v2', f'v_lshrrev_b32 v{r}, 3, v{r}', 'v_and_b32 v45, 7, v45', f'v_lshl_add_u32 v{r}, v{r}, 12, v44', f'v_lshl_add_u32 v{r}, v45, 4, v{r}']
    L += ['v_lshrrev_b32 v45, 1, v3', 'v_lshl_add_u32 v28, v45, 11, v28', 'v_and_b32 v45, 1, v3', 'v_lshl_add_u32 v28, v45, 3, v28']
    return L
RS = [WT+16+n for n in range(8)] + [6, 7]
def cold(n):
    if n < 5: return [f's_add_u32 s49, s75, {n*128*3456}', I(f'buffer_load_dword v15, v{PFA}, s[28:31], s49 offen', name='WPF')]
    n -= 5
    d = I(f'buffer_load_dwordx4 v{RA+n}, s[24:27], s72 offen lds', name='RAW')
    return [f's_add_u32 m0, s73, {n*1024}'] + (['s_mov_b32 exec_hi, 0', d, 's_mov_b32 exec_hi, -1'] if n == 2 else [d])
COLD = [int(c) for c in o.get('co', '01567234')]
def pre_addr2():
    L = []
    for n in range(7):
        L += [f'v_add_u32 v32, {64*n}, v0', 'v_mul_u32_u24 v33, 9363, v32', 'v_lshrrev_b32 v33, 16, v33', f'v_mul_u32_u24 v33, {3456 - 112}, v33', f'v_lshl_add_u32 v{WA+n}, v32, 4, v33']
    L += lines(f"""
    s_mul_i32 s78, s{sW}, {64*3456}
    s_mul_i32 s79, s{sSIG}, 112
    s_add_u32 s78, s78, s79
    s_mul_i32 s79, s{sW}, 14336
    v_bfe_u32 v32, v0, 2, 2
    v_and_b32 v33, 1, v3
    v_lshl_add_u32 v32, v33, 3, v32
    v_mul_u32_u24 v32, 160, v32
    v_add_u32 v32, s73, v32
    v_and_b32 v34, 3, v0
    v_lshrrev_b32 v35, 1, v3
    v_lshl_add_u32 v{R0}, v34, 4, v32
    v_lshl_add_u32 v{R0}, v35, 3, v{R0}
    v_and_b32 v36, 1, v0
    v_lshl_add_u32 v{R0+1}, v36, 3, v32
    v_bfe_u32 v36, v0, 1, 1
    v_mul_u32_u24 v36, 80, v36
    v_add_u32 v{R0+1}, v{R0+1}, v36
    v_lshlrev_b32 v{R0+3}, 4, v2
    v_lshl_add_u32 v{R0+3}, v33, 8, v{R0+3}
    v_lshl_add_u32 v{R0+2}, v35, 10, v{R0+3}
    v_lshl_add_u32 v{R0+3}, v35, 28, v{R0+3}
    s_lshr_b32 s76, s48, 1
    s_mul_i32 s76, s76, 5120
    s_and_b32 s77, s48, 1
    s_lshl_b32 s77, s77, 9
    s_add_u32 s76, s76, s77
    s_mul_i32 s77, s{sJ}, 286720
    s_add_u32 s76, s76, s77
    s_add_u32 s76, s76, {WS_WDF}
    s_cmp_lt_u32 s46, 28
    s_cselect_b32 s76, s76, 0x10000000
    s_add_u32 s77, s76, 4096
    """)
    return grp(L)
def wdma(rd, c):
    if rd == 3:
        mat, n = divmod(c, 4)
        d = I(f'buffer_load_dwordx4 v{WA+n}, s[{16+4*mat}:{19+4*mat}], s78 offen lds', name='WR3')
        return [f's_add_u32 m0, s79, {mat*3584 + n*1024}'] + (['s_mov_b32 exec_hi, 0', d, 's_mov_b32 exec_hi, -1'] if n == 3 else [d])
    mat, n = divmod(c, 7)
    srd = 16 + 4*mat
    return [f's_add_u32 m0, s79, {c*1024 + (4*14336 if rd == 2 else 0)}', I(f'buffer_load_dwordx4 v{WA+n}, s[{srd}:{srd+3}], s{80 if rd == 2 else 78} offen lds', name=f'WR{rd}')]
def wd12(c): return wdma(1 + c//14, c % 14)
def tr_addr():
    return lines(f"""
    v_bfe_u32 v32, v0, 2, 2
    v_lshl_add_u32 v32, v3, 3, v32
    v_mul_u32_u24 v32, 112, v32
    s_mul_i32 s50, s{sW}, 14336
    v_add_u32 v32, s50, v32
    v_and_b32 v33, 3, v0
    v_and_b32 v34, 1, v0
    v_bfe_u32 v35, v0, 1, 1
    v_lshl_add_u32 v{TA}, v33, 4, v32
    v_lshl_add_u32 v{TA+1}, v34, 4, v32
    v_lshl_add_u32 v{TA+1}, v35, 3, v{TA+1}
    v_mul_u32_u24 v35, 7168, v35
    v_lshl_add_u32 v{TA+2}, v34, 3, v32
    v_add_u32 v{TA+2}, v{TA+2}, v35
    v_add_u32 v{TA+3}, s50, v1
    """) + [f'v_mov_b32 v{CSO+r}, 0x3f803f80' for r in range(4)]
def relay_rd(F0, kks, ms=7168):
    L = []
    for kk in kks:
        for T in range(7):
            a, off = (0, (T >> 1)*ms + 8*(T & 1)) if T < 4 else ((1, (T-4)*ms + 64) if T < 6 else (2, 96))
            for h in range(2): L.append(f'ds_read_b64_tr_b16 {V(F0 + 28*kk + 4*T + 2*h, 2)}, v{TA+a} offset:{off + kk*3584 + h*448}')
    return L
def relay_wr(F0, kks, first):
    L = []
    for kk in kks:
        for T in range(7):
            f = V(F0 + 28*kk + 4*T)
            L += [f'{MF} {V(CSA+4*T)}, {V(CSO)}, {f}, {0 if (first and kk == 0) else V(CSA+4*T)}', f'ds_write_b128 v{TA+3}, {f} offset:{(7*kk + T)*1024}']
    return L

def pub_parts(pk, nm):
    a = pk + 12
    cvt = lambda T: [f'v_cvt_pk_bf16_f32 v{pk+2*T}, v{R0+4*T}, v{R0+4*T+1}', f'v_cvt_pk_bf16_f32 v{pk+2*T+1}, v{R0+4*T+2}, v{R0+4*T+3}']
    store = lambda n: [I((f'buffer_store_dwordx4 {V(pk)}, v1, s[4:7], s57 offen sc1', f'buffer_store_dwordx4 {V(pk+4)}, v1, s[4:7], s58 offen sc1',
                          f'buffer_store_dwordx2 {V(pk+8,2)}, v4, s[4:7], s56 offen sc1')[n], name=nm)]
    dots = lambda T: [x for n in (2*T, 2*T+1) for x in (f'v_dot2c_f32_bf16 v{a}, s60, v{pk+n}', f'v_dot2c_f32_bf16 v{a+1}, v{pk+n}, v{pk+n}')]
    init = [f'v_mov_b32 v{a}, 0', f'v_mov_b32 v{a+1}, 0', f'v_subrev_u32 v{a+2}, 16, v0', f'v_lshrrev_b32 v{a+3}, 5, v{a+2}', f'v_min_u32 v{a+3}, 1, v{a+3}',
            f'v_lshlrev_b32 v{a+3}, 28, v{a+3}', f'v_add_u32 v{a+2}, v{a+3}, v5']
    tail = [f'v_permlane32_swap_b32 v{a}, v{a+1}', f'v_add_f32 v{a}, v{a}, v{a+1}', f'v_mov_b32 v{a+1}, v{a}',
            f'v_permlane16_swap_b32 v{a}, v{a+1}', f'v_add_f32 v{a}, v{a}, v{a+1}', I(f'buffer_store_dword v{a}, v{a+2}, s[4:7], s59 offen sc1', name=nm)]
    return cvt, store, dots, init, tail
def pub_prep(xbase, stbase):
    return [f's_add_u32 s56, s{sXT}, {xbase}', f's_mul_i32 s59, s{sJ}, 1280', 's_add_u32 s57, s56, s59', 's_sub_u32 s58, s56, s59',
            f's_add_u32 s58, s58, {75*256}', f's_lshl_b32 s59, s{sJ}, 7', f's_add_u32 s59, s59, s{sST}', f's_add_u32 s59, s59, {stbase - 64}',
            's_mov_b32 s60, 0x3f803f80']

ML, MU, ZF, AD, ZA = 40, 48, 60, 30, 100
def d2_prep(l):
    L = lines(f"""
    s_and_b32 s50, s{sW}, 1
    s_lshl_b32 s50, s50, 4
    v_add_u32 v104, s50, v2
    s_lshr_b32 s54, s{sW}, 1
    s_or_b32 s51, s54, s{sCLS}
    s_cmp_eq_u32 s51, 0
    s_cselect_b32 s51, 32, 31
    v_sub_u32 v105, s51, v104
    v_cvt_f32_u32 v104, v104
    v_cvt_f32_u32 v105, v105
    v_cvt_f32_u32 v106, v3
    v_mul_f32 v104, {fl(1/32)}, v104
    v_mul_f32 v105, {fl(1/32)}, v105
    v_add_f32 v106, v106, v106
    v_cmp_eq_u32 vcc, 0, v3
    v_mul_f32 v107, v104, v106
    v_mul_f32 v108, v105, v106
    """)
    for (t, b, dst) in ((104, 107, ML), (105, 108, MU)):
        for q_ in range(4):
            kap, jh = q_ >> 1, q_ & 1
            L.append(f'v_fmamk_f32 v{109+q_}, v{t}, {fl(float(8*kap + jh))}, v{b}')
        L.append(f'v_mul_f32 v121, 0x41800000, v{t}')
        for q_ in range(4): L += [f'v_cos_f32 v{113+q_}, v{109+q_}', f'v_sin_f32 v{117+q_}, v{109+q_}']
        L.append('v_cos_f32 v121, v121')
        for q_ in range(4): L.append(f'v_cvt_pk_bf16_f32 v{dst+2*q_}, v{113+q_}, v{117+q_}')
        L.append('v_cndmask_b32 v113, v113, v121, vcc')
        for q_ in range(4): L.append(f'v_cvt_pk_bf16_f32 v{dst+2*q_+1}, v{113+q_}, -v{117+q_}')
    L += lines(f"""
    v_mul_u32_u24 v104, {8*12288}, v3
    s_mul_i32 s50, s{sW}, {64*12288}
    s_mul_i32 s51, s{sJ}, 12288
    s_add_u32 s50, s50, s51
    s_lshr_b32 s51, s{sCS}, 1
    s_lshl_b32 s51, s51, 8
    s_add_u32 s50, s50, s51
    s_add_u32 s70, s50, {WS_Z[l]}
    s_mul_i32 s71, s{sW}, 6144
    """)
    for n, x in enumerate((0, 4, 1, 5)):
        L += [f'v_xor_b32 v105, {x}, v2', f'v_lshl_add_u32 v{ZA+n}, v105, 4, v104']
    n1 = len(L)
    L += lines(f"""
    s_and_b32 s50, s{sCS}, 1
    s_xor_b32 s51, s50, 1
    s_cmp_lt_u32 s{sCS}, 2
    s_cselect_b32 s51, s50, s51
    s_xor_b32 s52, s54, 1
    s_cmp_eq_u32 s{sCS}, 0
    s_cselect_b32 s52, s54, s52
    s_lshl_b32 s50, s50, 7
    s_lshl_b32 s55, s54, 6
    s_add_u32 s50, s50, s55
    s_lshl_b32 s51, s51, 7
    s_lshl_b32 s52, s52, 6
    s_add_u32 s51, s51, s52
    v_lshrrev_b32 v104, 1, v3
    v_mul_u32_u24 v104, 6144, v104
    v_and_b32 v105, 1, v3
    v_lshl_add_u32 v104, v105, 10, v104
    v_add_u32 v104, {L_Z}, v104
    v_lshlrev_b32 v105, 6, v105
    v_xor_b32 v106, s50, v105
    v_xor_b32 v107, s51, v105
    v_add_u32 v106, v106, v104
    v_add_u32 v107, v107, v104
    v_and_b32 v108, 12, v2
    v_add_u32 v108, v108, v2
    """)
    def fin(T, base):
        return ['v_lshrrev_b32 v110, 4, v109', 'v_and_b32 v111, 15, v109', f'v_lshl_add_u32 v{AD+T}, v110, 11, v{base}',
                'v_and_b32 v110, 1, v110', 'v_lshlrev_b32 v110, 2, v110', 'v_xor_b32 v111, v111, v110', f'v_lshl_add_u32 v{AD+T}, v111, 2, v{AD+T}']
    L += ['v_mov_b32 v109, v108'] + fin(0, 106) + [f'v_xor_b32 v{AD+1}, 16, v{AD}']
    for T in (2, 3):
        L += [f'v_sub_u32 v109, {40 - 4*(T-2)}, v108', 'v_cmp_lt_u32 vcc, 31, v109', 'v_and_b32 v110, 6, v109', 'v_add_u32 v110, v110, v109',
              'v_cndmask_b32 v109, v109, v110, vcc']
        if T == 2: L += ['v_cmp_eq_u32 vcc, 0, v2', 'v_nop', 'v_nop', 'v_cndmask_b32 v109, v109, 34, vcc']
        L += fin(T, 107)
    L += ['v_cmp_gt_u32 vcc, 8, v2', 'v_and_b32 v110, 6, v2', 'v_add3_u32 v110, v110, v2, 32', 'v_sub_u32 v109, 16, v2',
          'v_cndmask_b32 v109, v109, v110, vcc', 'v_cndmask_b32 v112, v107, v106, vcc'] + fin(4, 112)
    return L, n1

def wu_dma(f0, f1, sreg_lds, sreg_src, nm='WU'):
    L = []
    for c, n in enumerate(range(f0, f1)):
        if c % 4 == 0: L += [f's_add_u32 m0, s{sreg_lds}, {n*1024}', f's_add_u32 s61, s{sreg_src}, {n*1024}']
        L.append(I(f'buffer_load_dwordx4 v1, s[4:7], s61 offen offset:{(c % 4)*1024} sc1 lds', name=nm or f'WB{n//7}'))
    return L

def d2(l):
    prep, n1 = d2_prep(l)
    prep = grp(prep + pub_prep(WS_X1[l], WS_ST[l]))
    ZP = opt(f'zp{l}', -1)
    def zpf_prep():
        if ZP < 0: return []
        both = opt('zb', 0)
        return lines(f"""
        v_and_b32 v122, 7, v0
        v_mul_u32_u24 v122, {8*12288}, v122
        v_bfe_u32 v123, v0, 3, 2
        v_min_u32 v123, 2, v123
        v_lshl_add_u32 v122, v123, 12, v122
        s_mul_i32 s46, s{sW}, {64*12288}
        s_mul_i32 s47, s{sJ}, 12288
        s_add_u32 s46, s46, s47
        s_lshl_b32 s47, s{sCS}, 7
        s_add_u32 s46, s46, s47
        s_add_u32 s46, s46, {WS_Z[l]}
        """) + (['s_and_b32 s46, s46, 0xffffff7f', 'v_lshrrev_b32 v123, 5, v0', 'v_lshl_add_u32 v122, v123, 7, v122'] if both else [])
    def with_zpf(L):
        return L if ZP < 0 else L[:ZP] + ['buffer_load_dword v123, v122, s[4:7], s46 offen sc1'] + L[ZP:]
    R1N = opt('r1n', 10); R2A = R1N + opt('r2a', 4); R2B = opt('r2b', 24); R2C = opt('r2c', 25)
    if l == 0:
        k('v_and_b32 v14, 3, v0'); k('v_lshlrev_b32 v14, 6, v14')
        k(f's_add_u32 s80, s78, {4*64*3456}')
        k(f's_cmp_lg_u32 s{sW}, 0'); k.begin('w0', 's_cbranch_scc1'); init_issue(); k.end()
        k('s_barrier')
        emit(stampL('zst0'))
        cut = opt('cut0', 50)
        emit(mix(tr_addr() + ids2() + zpf_prep() + vs_prep('Z', f'Z{l}', sgZ, 28), [cold(n) for n in COLD[opt('c1', 8):]] + [wd12(c) for c in range(R1N, R2A)]))
        emit(prep[:cut])
        emit(stampL('prep0'))
        k(f's_cmp_lg_u32 s{sW}, 0'); k.begin('w0', 's_cbranch_scc1'); init_check(); k.end()
        k.need(names=['ZS']); k('s_barrier')
    else:
        k(f's_mul_i32 s76, s{sSIG}, 143360'); k(f's_add_u32 s76, s76, {WS_WUF}')
        k(f's_mul_i32 s77, s{sW}, {12*1024}'); k(f's_add_u32 s77, s77, {91*1024}')
        k('s_add_u32 s76, s76, s77')
        cut = opt('cut1', 60)
        emit(vs_prep('Z', f'Z{l}', sgZ, 28) + zpf_prep())
        emit(prep[:cut])
        k.need(names=['ZS'])
    stamp(f'd1e_{l}')
    emit(vs_go('Z', f'Z{l}', sgZ, 28))
    if l == 0:
        PZ = cut + opt('pz0', 90)
        emit(mix(with_zpf(prep[cut:PZ] + poll_issue('Z0') + prep[PZ:]), [wd12(c) for c in range(R2A, R2B)]))
    else:
        PZ = cut + opt('pz1', 150)
        emit(with_zpf(prep[cut:PZ] + poll_issue('Z1') + prep[PZ:]))
    cvt, store, dots, pinit, ptail = pub_parts(12, 'XS')
    emit(pinit)
    if l == 0:
        assert R2B >= 14
        k.need(names=['WR1'])
        emit(relay_rd(152, (0, 1)))
        emit(stampL('rl1'))
    def unpack():
        for n in range(10):
            k(f'v_lshlrev_b32 v{R0+2*n}, 16, v{RS[n]}'); k(f'v_and_b32 v{R0+2*n+1}, 0xffff0000, v{RS[n]}')
    emit(poll_wait(f'Z{l}'))
    stamp(f'd2p_{l}')
    for p in range(3):
        for hh in range(2):
            k(f's_add_u32 m0, s71, {L_Z + p*2048 + hh*1024}')
            k(f's_add_u32 s50, s70, {p*4096 + hh*4*8*12288}')
            k(f'buffer_load_dwordx4 v{ZA + 2*(p & 1) + hh}, s[4:7], s50 offen sc1 lds', name='ZL')
    if l == 0:
        for c in range(R2B, R2C): emit(wd12(c))
        emit(relay_wr(152, (0, 1), True))
        for a in range(4): k(f'v_add_u32 v{TA+a}, {4*14336}, v{TA+a}')
        unpack()
    k.need(names=['ZL']); k('s_barrier')
    stamp(f'd2l_{l}')
    for T in range(5):
        for kap in range(2):
            for h in range(2):
                k(f'ds_read2st64_b32 {V(ZF+8*T+4*kap+2*h, 2)}, v{AD+T} offset0:{48*kap + 2*h} offset1:{48*kap + 2*h + 1}')
    if l == 0:
        for c in range(R2C, 28): emit(wd12(c))
    r4 = V(R0+16)
    mf = [f'{MF} {V(R0+4*T)}, {V(ZF+8*T+4*kap)}, {V((ML if T < 2 else MU) + 4*kap)}, {V(R0+4*T)}' for T in range(4) for kap in range(2)]
    mf += [f'{MF} {V(56)}, {V(ZF+32)}, {V(ML)}, {r4}', f'{MF} {r4}, {V(ZF+32)}, {V(MU)}, {r4}',
           f'{MF} {V(56)}, {V(ZF+36)}, {V(ML+4)}, {V(56)}', f'{MF} {r4}, {V(ZF+36)}, {V(MU+4)}, {r4}']
    weave(k, mf, {4: cvt(0), 6: cvt(1), 7: store(0), 8: cvt(2), 10: cvt(3), 11: store(1)})
    emit(dots(0) + dots(1))
    for r in range(4): k(f'v_cndmask_b32 v{R0+16+r}, v{R0+16+r}, v{56+r}, s[66:67]')
    emit(cvt(4) + store(2) + dots(2) + dots(3) + dots(4) + ptail)
    k('s_barrier')
    cpf(2*l, 30)
    N2 = opt('n2', 6)
    if l == 0:
        k(f"""
        s_add_u32 s50, s{sW}, 16
        s_mul_i32 s78, s50, {32*3456}
        s_mul_i32 s51, s{sSIG}, 112
        s_add_u32 s78, s78, s51
        s_mul_i32 s79, s50, 7168
        """)
        R3A = opt('r3a', 6)
        for c in range(R3A): emit(wdma(3, c))
        emit(vs_prep('X', f'X1{l}', sgX1, 28))
        k.need(names=['WR2']); emit(relay_rd(152, (0, 1)))
    else:
        emit(wu_dma(0, N2, 77, 76))
        up_prep(l)
        emit(vs_prep('X', f'X1{l}', sgX1, 28))
    k.need(names=['XS']); k('s_barrier')
    stamp(f'd2e_{l}')
    emit(vs_go('X', f'X1{l}', sgX1, 28))
    if l == 0:
        for c in range(R3A, 8): emit(wdma(3, c))
        up_prep(l)
        wl = [wdld(n) for n in range(opt('wp', 16))]; W1 = opt('wp1', 8)
        k(f"""
        s_mul_i32 s50, s{sW}, 7168
        s_sub_u32 s50, {16*7168 - 4*14336}, s50
        v_bfe_u32 v32, v0, 1, 1
        v_mul_u32_u24 v32, 3584, v32
        v_add_u32 v{TA}, s50, v{TA}
        v_add_u32 v{TA+1}, s50, v{TA+1}
        v_add_u32 v{TA+2}, s50, v{TA+2}
        v_sub_u32 v{TA+2}, v{TA+2}, v32
        s_mul_i32 s50, s{sW}, 448
        s_add_u32 s50, s50, {L_CSP}
        v_lshl_add_u32 v{TM+4}, v2, 2, s50
        s_waitcnt lgkmcnt(0)
        """)
        emit(mix(relay_wr(152, (0, 1), False), wl[:W1]))
        k(f'v_add_u32 v{TA+3}, s79, v1')
        PX = opt('px', 1)
        if PX == 0: emit(poll_issue('X10'))
        k.need(names=['WR3'])
        emit(relay_rd(40, (0,), 3584))
        for x in wl[W1:]: emit(x)
        if PX == 1: k('s_waitcnt lgkmcnt(0)'); emit(poll_issue('X10')); emit(relay_wr(40, (0,), False))
    else:
        emit(wu_dma(N2, 13, 77, 76))
        if opt('tch', 0):
            n = opt('tch', 0)
            k(f'v_min_u32 v32, {n-1}, v0'); k(f'v_mul_u32_u24 v32, {S*D*2//n}, v32'); k('buffer_load_dword v33, v32, s[12:15], 0 offen')

ACC = [12, 68]; BRG = 124; XR = 152; XD = 5; K1 = 192; SS = 196; NM = 200; TM = 204
def acc(h, T, mi): return ACC[h] + (2*T + mi)*4
def epi_stream(h, l, e0, npk=None):
    st = []; cnt = [0]; npk = (7 if h else 0) if npk is None else npk
    def grp(G, U, k1, ss, dst):
        cnt[0] += 1
        if cnt[0] == npk + 1: st.append('MARK')
        if cnt[0] <= npk:
            b1, b2 = k1 & 1, ss & 1
            for r in (0, 2): st.append(f'v_pk_mul_f32 {V(U+r,2)}, {V(G+r,2)}, {V(U+r,2)}')
            for r in (0, 2): st.append(f'v_pk_mul_f32 {V(G+r,2)}, {V(G+r,2)}, {V(k1-b1,2)} op_sel:[0,{b1}] op_sel_hi:[1,{b1}]')
            for r in range(4): st.append(f'v_exp_f32 v{G+r}, v{G+r}')
            for r in (0, 2): st.append(f'v_pk_fma_f32 {V(G+r,2)}, {V(G+r,2)}, {V(ss-b2,2)}, {V(ss-b2,2)} op_sel:[0,{b2},{b2}] op_sel_hi:[1,{b2},{b2}]')
            for r in range(4): st.append(f'v_rcp_f32 v{G+r}, v{G+r}')
            for r in (0, 2): st.append(f'v_pk_mul_f32 {V(U+r,2)}, {V(U+r,2)}, {V(G+r,2)}')
            st.append(f'v_cvt_pk_bf16_f32 v{dst}, v{U}, v{U+1}'); st.append(f'v_cvt_pk_bf16_f32 v{dst+1}, v{U+2}, v{U+3}')
            return
        for r in range(4): st.append(f'v_mul_f32 v{U+r}, v{G+r}, v{U+r}')
        for r in range(4): st.append(f'v_mul_f32 v{G+r}, v{G+r}, v{k1}')
        for r in range(4): st.append(f'v_exp_f32 v{G+r}, v{G+r}')
        for r in range(4): st.append(f'v_fma_f32 v{G+r}, v{G+r}, v{ss}, v{ss}')
        for r in range(4): st.append(f'v_rcp_f32 v{G+r}, v{G+r}')
        for r in range(4): st.append(f'v_mul_f32 v{U+r}, v{U+r}, v{G+r}')
        st.append(f'v_cvt_pk_bf16_f32 v{dst}, v{U}, v{U+1}'); st.append(f'v_cvt_pk_bf16_f32 v{dst+1}, v{U+2}, v{U+3}')
    nm = f'H{h}'
    for mi in range(2):
        d = acc(h, 0, mi)
        grp(acc(h, 0, mi), acc(h, 2, mi), K1+2*h+mi, SS+2*h+mi, d)
        grp(acc(h, 1, mi), acc(h, 3, mi), K1+2*h+mi, SS+2*h+mi, d+2)
        st.append(I(f'buffer_store_dwordx4 {V(d)}, v1, s[4:7], s{76+2*h+mi} offen sc1', name=nm))
    d = acc(h, 4, 0)
    grp(acc(h, 4, 0), acc(h, 5, 0), K1+2*h, SS+2*h, d)
    grp(acc(h, 4, 1), acc(h, 5, 1), K1+2*h+1, SS+2*h+1, d+2)
    for r in range(4): st.append(f'v_permlane32_swap_b32 v{acc(h,6,0)+r}, v{acc(h,6,1)+r}')
    st.append(f'v_cndmask_b32 v{TM+2}, v{K1+2*h+1}, v{K1+2*h}, s[66:67]')
    st.append(f'v_cndmask_b32 v{TM+3}, v{SS+2*h+1}, v{SS+2*h}, s[66:67]')
    st.append(f'v_permlane32_swap_b32 v{d}, v{d+2}'); st.append(f'v_permlane32_swap_b32 v{d+1}, v{d+3}')
    st.append(I(f'buffer_store_dwordx4 {V(d)}, v6, s[4:7], s{76+2*h} offen sc1', name=nm))
    d = acc(h, 6, 0)
    grp(d, acc(h, 6, 1), TM+2, TM+3, d)
    st.append(I(f'buffer_store_dwordx2 {V(d,2)}, v7, s[4:7], s{76+2*h} offen sc1', name=nm))
    return [(x, e0) for x in st]

def up_prep(l):
    k(f'v_add_u32 v9, {63*1024}, v1'); k(f'v_add_u32 v10, {126*1024}, v1')
    k(f's_mul_i32 s50, s{sCSU}, {4*20480}')
    if opt('zp', 1): k(f's_cmp_eq_u32 s{sSIG}, 31'); k('s_cselect_b32 s50, 0x10000000, s50')
    for rt in range(4): k(f's_add_u32 s{72+rt}, s50, {WS_X1[l] + rt*20480}')
    k(f's_lshl_b32 s80, s{sCSU}, 12'); k(f's_add_u32 s80, s80, {WS_ST[l]}')
    if l == 0:
        k(f"""
        v_lshrrev_b32 v30, 5, v0
        v_mul_u32_u24 v30, 57344, v30
        v_lshl_add_u32 v30, v2, 4, v30
        v_and_b32 v31, 1, v3
        v_lshl_add_u32 v6, v31, 8, v30
        v_add_u32 v6, 1024, v6
        v_lshl_add_u32 v7, v31, 3, v30
        v_add_u32 v7, 1536, v7
        s_mul_i32 s81, s{sJ}, 286720
        s_mul_i32 s50, s{sW}, {70*1024}
        s_add_u32 s81, s81, s50
        s_add_u32 s81, s81, {WS_WDF}
        """)
        for n in range(3): k(f's_mov_b32 s{16+n}, {4096*(n+1)}')
        k('s_mov_b32 s19, 4096')
        if opt('zp', 1):
            k(f's_cmp_eq_u32 s{sW}, 3'); k('s_cselect_b32 s18, 0x10000000, s18'); k('s_cselect_b32 s19, 0x10000000, s19')
def wdld(n): return [f'buffer_load_dwordx4 {wdreg(n)}, v1, s[4:7], s81 offen offset:{(n % 4)*1024} sc1'] + ([f's_add_u32 s81, s81, {"s19" if n == 59 else 4096}'] if n % 4 == 3 else [])

def up(l):
    def brd(n):
        f = n % 140
        a, off = (1, f) if f < 63 else ((9, f-63) if f < 126 else (10, f-126))
        return f'ds_read_b128 {V(BRG + 4*(n % 7))}, v{a} offset:{off*1024}'
    def xld(n, mi):
        h, ks = divmod(n, 20)
        return f'buffer_load_dwordx4 {V(XR + 8*(n % XD) + 4*mi)}, v1, s[4:7], s{72+2*h+mi} offen offset:{(ks % 4)*1024} {LF}'
    def xadv(n):
        h, ks = divmod(n, 20)
        return [f's_add_u32 s{72+2*h+mi}, s{72+2*h+mi}, 4096' for mi in range(2)] if ks % 4 == 3 else []
    SL = ACC[1]
    def first_loads():
        if l == 1: emit(poll_issue(f'X1{l}'))
        emit(poll_wait(f'X1{l}'))
        stamp(f'upp_{l}')
        for n in range(XD-1):
            for mi in range(2): k(xld(n, mi))
            emit(xadv(n))
    k(f's_mul_i32 s50, s{sCSU}, {4*57344}'); k(f's_mul_i32 s51, s{sSIG}, {7*256}'); k('s_add_u32 s50, s50, s51')
    if opt('zp', 1): k(f's_cmp_eq_u32 s{sSIG}, 31'); k('s_cselect_b32 s50, 0x10000000, s50')
    for rt in range(4): k(f's_add_u32 s{76+rt}, s50, {WS_H[l] + rt*57344}')
    wdn = [0]
    if l == 0:
        wdn[0] = opt('wp', 16)
        k(f'v_min_u32 v{TM+6}, 55, v0'); k(f'v_lshlrev_b32 v{TM+6}, 3, v{TM+6}'); k(f'v_add_u32 v{TM+5}, {L_CSP}, v{TM+6}'); k(f'v_add_u32 v{TM+6}, {L_CS}, v{TM+6}')
        if opt('px', 1) == 0: first_loads(); emit(relay_wr(40, (0,), False))
        for T in range(7): k(f'ds_write_b32 v{TM+4}, v{CSA+4*T} offset:{64*T}')
        if opt('px', 1) == 1: first_loads()
        k('s_waitcnt lgkmcnt(0)')
        k('s_barrier')
        for n in range(6): k(brd(n))
    else:
        first_loads()
        for n in range(6): k(brd(n))
        k.need(names=['WU']); k('s_barrier')
    if stampL(f'ux0_{l}'): k.need(V(XR, 8)); emit(stampL(f'ux0_{l}'))
    NWD = [opt('wa', 22), opt('wb', 22)] if l == 0 else [0, 0]
    if opt('nowd', 0): NWD = [0, 0]; wdn[0] = 70
    for h in range(2):
        mf = []; fixed = {}
        def fx(g, x, first=False):
            L = fixed.setdefault(g, [])
            L.insert(0, x) if first else L.append(x)
        for ks in range(20):
            n = 20*h + ks
            for T in range(7):
                g = len(mf); f = 7*n + T
                for mi in ((1, 0) if (opt('sn', 0) and T % 2 == 1) else (0, 1)):
                    a = V(acc(h, T, mi))
                    mf.append(f'{MF} {a}, {V(BRG+4*T)}, {V(XR + 8*(n % XD) + 4*mi)}, {a if (ks or h) else 0}')
                if f + 6 < 280: fx(g, brd(f+6))
                if T % 2 == 0 and f + 1 < 280:
                    nxt = [BRG + 4*((f+1) % 7)] + ([BRG + 4*((f+2) % 7)] if T < 6 else [])
                    fx(g+1, Need([x for b in nxt for x in rr(V(b))]), True)
            g0 = 14*ks
            if n + XD - 1 < 40:
                fx(g0+3, xld(n+XD-1, 0)); fx(g0+7, xld(n+XD-1, 1))
                for q_, x in enumerate(xadv(n+XD-1)): fx(g0+8+2*q_, x, True)
            if n + 1 < 40: fx(g0+12, Need(rr(V(XR + 8*((n+1) % XD), 8))), True)
            if h == 0 and ks < 4:
                for c in range(4): fx(g0 + (1, 5, 9, 13)[c], f'buffer_load_dword v{SL+4*ks+c}, v5, s[4:7], s80 offen offset:{1024*ks + 256*c} sc1')
            k0 = 4 if h == 0 else 0
            if ks >= k0:
                cnt = NWD[h]*(ks-k0+1)//(20-k0) - NWD[h]*(ks-k0)//(20-k0)
            else: cnt = 1 if (l == 0 and opt('we', 1)) else 0
            if True:
                free = [11, 5, 1] + ([3, 7] if n + XD - 1 >= 40 else [])
                for c in range(cnt):
                    w_ = wdld(wdn[0]); wdn[0] += 1
                    fx(g0 + sorted(free[:cnt])[c], w_[0])
                    if len(w_) > 1: fx(g0 + sorted(free[:cnt])[c] + 1, w_[1], True)
        st = []
        if h == 0:
            for rt in range(4):
                b = SL + 4*rt
                st += [(x, 14*(rt+opt('sd', 4)) + opt('so', 0)) for x in [Need(rr(V(b))), f'v_add_f32 v{b}, v{b}, v{b+1}', f'v_add_f32 v{b+2}, v{b+2}, v{b+3}', f'v_add_f32 v{b}, v{b}, v{b+2}',
                       f'v_mov_b32 v{b+1}, v{b}', f'v_permlane32_swap_b32 v{b}, v{b+1}', f'v_add_f32 v{b}, v{b}, v{b+1}',
                       f'v_mov_b32 v{b+1}, v{b}', f'v_permlane16_swap_b32 v{b}, v{b+1}',
                       f'v_mul_f32 v{NM+rt}, {fl(-1/640)}, v{b}', f'v_mul_f32 v{b+1}, {fl(1/640)}, v{b+1}',
                       f'v_fma_f32 v{b+1}, -v{NM+rt}, v{NM+rt}, v{b+1}', f'v_max_f32 v{b+1}, 0, v{b+1}',
                       f'v_add_f32 v{SS+rt}, {fl(1e-5)}, v{b+1}', f'v_rsq_f32 v{K1+rt}, v{SS+rt}',
                       f'v_mul_f32 v{K1+rt}, {fl(-1.4426950408889634)}, v{K1+rt}']]
            st = [(f'v_lshlrev_b32 v{TM+7}, 4, v3', 2), (f'v_add_u32 v{TM+7}, {L_CS}, v{TM+7}', 2)] + st
            if l == 0:
                for n in range(4): fx(2*n, f'ds_read_b64 {V(88+2*n, 2)}, v{TM+5} offset:{448*n}')
                for hh in range(2):
                    for c, x in enumerate((f'v_add_f32 v{88+hh}, v{88+hh}, v{90+hh}', f'v_add_f32 v{92+hh}, v{92+hh}, v{94+hh}', f'v_add_f32 v{88+hh}, v{88+hh}, v{92+hh}')): fx(16 + 4*c + 2*hh, x)
                fx(28, f'ds_write_b64 v{TM+6}, v[88:89]')
            KS0 = opt(f'ks{l}', 11)
            def capg(g): return 2 - sum(slots(x if isinstance(x, I) else I(x)) for x in fixed.get(g, []) if slots(x if isinstance(x, I) else I(x)) >= 1)
            firstcs = None
            for T in range(7):
                g0 = 14*(KS0 + T) + 2*T
                c = acc(1, T, 1)
                gr = g0 - 3
                while capg(gr) < 2: gr -= 1
                x = I(f'ds_read_b128 {V(c)}, v{TM+7} offset:{64*T}')
                if T == 0: firstcs = x
                fx(gr, x)
                ops = [f'v_fmac_f32 v{acc(0,T,mi)+r}, v{NM+mi}, v{c+r}' for mi in range(2) for r in range(4)]
                g = g0 + 4
                fx(g0 + 2, Need(rr(V(c))), True)
                while ops:
                    cap = capg(g)
                    while cap >= 1 and ops: fx(g, ops.pop(0)); cap -= 1
                    g += 1
                if g > g0 + 14: print('warn fmac window', T, g - g0)
                st += [(f'v_mul_f32 v{acc(1,T,mi)+r}, v{NM+2+mi}, v{c+r}', g) for mi in range(2) for r in range(4)]
        else:
            EA = opt(f'ea{l}', 0); NBU = opt('nbu', 0) if EA else 0
            ep = epi_stream(0, l, 4, NBU)
            mk = [x for x, e in ep].index('MARK') if NBU < 7 else len(ep)
            emit([x for x, e in ep[:mk]])
            vp = [(x, 0 if EA else 150) for x in vs_prep('H', f'HA{l}', sgH, NM)]
            st = ep[mk+1:] + vp + [(x, 150) for x in down_prep(l)]
            if EA:
                st[len(ep[mk+1:]) + len(vp) - 1] = (I(vp[-1][0], name='VP'), 0)
                SG = opt('sg', 221)
                fx(SG, Need([], ['H0']), True)
                for x in vs_go('H', f'HA{l}', sgH, NM): fx(SG, x)
                for x in poll_issue(f'HA{l}'): fx(opt('pg2', 252), x, True)
        align('u')
        log = {}
        XE = opt('xe', 0) if opt(f'ea{l}', 0) else 0
        left = weave(k, mf, fixed, st, extra=(lambda g: 1 if ((h == 1 and XE and g % XE == 0)) else 0), log=log)
        if h == 0:
            pos = k.ins.index(firstcs)
            assert all(not (x.text.startswith(f'v_mul_f32 v{K1+rt},')) for x in k.ins[pos:] for rt in range(4)), 'stats not done before cs'
        elif EA: assert log.get('H0', 0) < SG and log['VP'] + 6 < SG
        print('up half', h, 'leftover', left, log)
        stamp(f'up{h}_{l}')
    ep = [x for x, e in epi_stream(1, l, 0)]
    HU[0] = opt('hue', 13) if EA else opt('hu', 7)
    if EA:
        emit(poll_wait(f'HA{l}'))
        stamp(f'dnp_{l}')
        if l == 0:
            while wdn[0] < 70: emit(wdld(wdn[0])); wdn[0] += 1
        c = opt('hm', 60)
        sts = [x for x in ep[:c] if isinstance(x, I)]
        emit(mix([x for x in ep[:c] if not isinstance(x, I)], [[hld(0, n)] for n in range(HU[0])]) + sts + ep[c:])
        stamp(f'upe_{l}')
    else:
        k.need(names=['H0'])
        emit(vs_go('H', f'HA{l}', sgH, NM))
        if l == 0:
            while wdn[0] < 70: emit(wdld(wdn[0])); wdn[0] += 1
        c1 = opt('pa', 70)
        emit(ep[:c1]); emit(poll_issue(f'HA{l}')); emit(ep[c1:])
        stamp(f'upe_{l}')
        emit(poll_wait(f'HA{l}'))
        stamp(f'dnp_{l}')
        emit([hld(0, n) for n in range(HU[0])])

HU = [7]
HR = 124; DA = 12; HVL = [8, 208, 209, 210]
def hld(ps, ks): return f'buffer_load_dwordx4 {V(HR + 4*ks)}, v{HVL[ps]}, s[4:7], {f"s{15 + ks//4}" if ks >= 4 else 0} offen offset:{(ks % 4)*1024} {LF}'
def down_prep(l):
    L = lines(f"""
    s_mul_i32 s50, s{sCS}, {4*57344}
    s_mul_i32 s51, s{sW}, {14*1024}
    s_add_u32 s50, s50, s51
    s_add_u32 s50, s50, {WS_H[l]}
    s_lshr_b32 s54, s{sW}, 1
    s_xor_b32 s54, s54, s{sW}
    s_and_b32 s54, s54, 1
    s_lshl_b32 s51, s{sJ}, 7
    """)
    for p in range(4):
        L += [f's_xor_b32 s55, s54, {(1, 0, 2, 3)[p]}', 's_mul_i32 s52, s55, 57344', 's_add_u32 s52, s50, s52', f'v_add_u32 v{HVL[p]}, s52, v1']
        if opt('spf', 0): L += ['s_add_u32 s52, s52, s51', f's_add_u32 s{22+2*p}, s4, s52', f's_addc_u32 s{23+2*p}, s5, 0']
    return grp(L)
def spf(n):
    p, ks = divmod(n, 14)
    return f's_load_dword s30, s[{22+2*p}:{23+2*p}], {ks*1024}'
def out_addr():
    L = lines(f"""
    s_lshr_b32 s50, s{sW}, 1
    s_lshl_b32 s50, s50, 5
    s_and_b32 s51, s{sW}, 1
    s_lshl_b32 s51, s51, 10
    s_add_u32 s50, s50, s51
    s_add_u32 s50, s50, s{sCLS}
    s_mul_i32 s72, s50, 1280
    s_mul_i32 s51, s{sJ}, 80
    s_add_u32 s72, s72, s51
    s_mul_i32 s51, s{sJ}, 160
    s_sub_u32 s51, 1120, s51
    v_mov_b32 v98, s51
    s_mul_i32 s50, s{sW}, 3072
    v_add_u32 v97, s50, v1
    v_mul_u32_u24 v96, 160, v2
    v_add_u32 v96, s50, v96
    v_lshl_add_u32 v95, v3, 4, v96
    v_and_b32 v99, 1, v3
    v_lshl_add_u32 v96, v99, 3, v96
    v_lshrrev_b32 v99, 1, v3
    v_mul_u32_u24 v112, 80, v99
    v_add_u32 v96, v96, v112
    """)
    for n in range(3):
        L += [f'v_add_u32 v112, {64*n}, v0', 'v_mul_u32_u24 v113, 6554, v112', 'v_lshrrev_b32 v113, 16, v113', 'v_mul_u32_u24 v114, 10, v113', 'v_sub_u32 v114, v112, v114',
              'v_cmp_lt_u32 vcc, 4, v114', f'v_mul_u32_u24 v{92+n}, 81920, v113', f'v_lshl_add_u32 v{92+n}, v114, 4, v{92+n}', 'v_cndmask_b32 v112, 0, v98, vcc', f'v_add_u32 v{92+n}, v{92+n}, v112']
    L.append('v_lshl_add_u32 v94, v99, 28, v94')
    return L
def down_prep2():
    L = []
    for p in range(4):
        L += [f's_xor_b32 s55, s54, {(1, 0, 2, 3)[p]}', 's_mul_i32 s53, s55, 15360',
              f's_sub_u32 s52, s{sW}, s55', 's_sub_u32 s52, s52, 1', 's_and_b32 s52, s52, 3', 's_mul_i32 s52, s52, 5120',
              's_add_u32 s52, s52, s53', f's_add_u32 s52, s52, {L_RED}']
        if p & 1: L += [f's_cmp_eq_u32 s55, s{sW}', f's_cselect_b32 s52, {L_CSP}, s52', f's_cselect_b32 s{20 + (p >> 1)}, 1.0, 0']
        L.append(f'v_add_u32 v{184+p}, s52, v1')
    L += [f's_mul_i32 s52, s{sW}, 15360', f's_add_u32 s52, s52, {L_RED}', 'v_add_u32 v188, s52, v1',
          f's_cmp_eq_u32 s{sW}, 3', 's_cselect_b32 s53, 5120, 0', 's_cselect_b32 s55, 0, 10240',
          'v_add_u32 v189, s53, v188', 'v_add_u32 v190, s55, v188']
    return grp(L)
def down(l):
    EA = opt(f'ea{l}', 0); pB = opt('pbe', 22) if EA else opt('pb', 19); pI = opt('pie', 6) if EA else opt('pi', 8); TMJ = opt('tmj', 7); SB = opt('sb', 10) if EA else 0
    HD = 13
    mf = []; fixed = {}
    def fx(g, x, first=False):
        L = fixed.setdefault(g, [])
        L.insert(0, x) if first else L.append(x)
    started = set()
    def mm(p, ks, T):
        a = V(DA + 20*p + 4*T)
        mf.append(f'{MF} {a}, {wdreg(5*ks+T)}, {V(HR+4*ks)}, {a if (p, T) in started else 0}'); started.add((p, T))
    CH = opt('ch', 2)
    def grp_of(n):
        p, ks = divmod(n, 14); lim = 14 if p < 3 else 14 - TMJ
        if n < opt('ch0', 2): return n, 1
        f = ks - ks % CH
        if p == 0: f = max(f, opt('ch0', 2))
        return 14*p + f, min(ks - ks % CH + CH, lim) - f
    nxt = HU[0]
    for n in range(56 - TMJ):
        p, ks = divmod(n, 14)
        g = 5*n
        gf, gc = grp_of(n)
        if n == gf:
            for T in range(5):
                for c in (range(gc) if T % 2 == 0 else reversed(range(gc))): mm(p, ks + c, T)
        if n == pB - pI:
            for x in poll_issue(f'HB{l}'): fx(g + 1, x, True)
        if n == pB - 1:
            for x in stampL(f'dnb4_{l}') + poll_wait(f'HB{l}') + stampL(f'dnB_{l}'): fx(g + 4, x)
        if n in (27, 41):
            for x in stampL(f'dn{n}_{l}'): fx(g + 4, x)
        for c in range(2):
            if nxt < 56 and nxt <= gf + HD and (nxt < 28 or n >= pB):
                fx(g + 2*c, hld(*divmod(nxt, 14))); nxt += 1
        if n + 1 == gf + gc:
            nf, nc = grp_of(n+1) if n + 1 < 56 - TMJ else (n+1, 1)
            fx(g+3, Need([x for c in range(nc) for x in rr(V(HR + 4*((nf+c) % 14)))]), True)
    assert nxt == 56
    if opt('spf', 0):
        a0, a1, b0, dg = opt('sa0', 8), opt('sa1', 20), opt('sb0', 34), opt('sdg', 2)
        def place(g, ns):
            for n in ns:
                while g % 5 == 3: g += 1
                fx(g, I(spf(n)), True); fixed[g][0].w = []; g += dg
        place(10, range(a1, 28)); place(5*pB, range(b0, 56))
    tdone = {}
    for T in range(5):
        for ks in range(14 - TMJ, 14): mm(3, ks, T)
        tdone[T] = len(mf)
    if opt('vb', 0) and SB:
        fx(5*SB + 1, f's_add_u32 s69, s69, {(PH[f"HB{l}"] - PH[f"HA{l}"]) & 0xffffffff}', True)
        for x in vs_go('H', f'HB{l}', sgH, NM): fx(5*SB + 1, x)
    else:
        for c, x in enumerate(sig_go(f'HB{l}', sgH)): fx(5*SB + (0, 1, 2, 4, 5, 6, 7, 9)[c], x, True)
    if SB: fx(5*SB - 1, Need([], ['H1']), True)
    wr = lambda p, T: f'ds_write_b128 v{184+p}, {V(DA + 20*p + 4*T)} offset:{T*1024}'
    for p in range(3):
        for T in range(5): fx(70*(p+1) + (4 + 2*T if p == 2 else 9 + 5*T), wr(p, T))
    ga = 210 + opt('ga', 18)
    fx(ga, 's_waitcnt lgkmcnt(0)', True); fx(ga, 's_barrier')
    st = [(x if isinstance(x, G) else I(x, name='DP2'), 12) for x in down_prep2()]
    cvt, store, dots, pinit, ptail = pub_parts(100, 'X2S')
    pre = pub_prep(WS_X2, WS_ST[2]) + pinit if l == 0 else (out_addr() if opt('ot', 1) else nat_addr(92, 93, 94, 95))
    st += [(x, 100) for x in pre]
    if l == 0 and opt('bpf', 221):
        st += [(x, 100) for x in [f's_lshl_b32 s50, s{sQ}, 2', f's_add_u32 s50, s50, s{sW}', 's_mul_i32 s50, s50, 3200', f's_mul_i32 s51, s{sJ}, 51200',
               's_add_u32 s50, s50, s51', f's_add_u32 s46, s50, {WS_BF}', 'v_min_u32 v92, 24, v0', I('v_lshlrev_b32 v92, 7, v92', name='FM2')]]
        fx(opt('bpf', 221), 'buffer_load_dword v93, v92, s[4:7], s46 offen sc1')
    for n in range(20): st.append((I(f'v_fmac_f32 v{R0+n}, s20, v{DA+20+n}', name='FM2'), 146))
    for T in range(5):
        for s_ in range(2):
            fx(ga + 1 + 2*T + s_, f'ds_read_b128 {V(DA+20*s_+4*T)}, v189 offset:{s_*5120 + T*1024}')
        for s_ in range(2):
            for r in range(4): st.append((f'v_add_f32 v{R0+4*T+r}, v{R0+4*T+r}, v{DA+20*s_+4*T+r}', ga + 9 + 2*T))
    for T in range(4):
        fx(tdone[T] + 3, wr(3, T))
        for r in range(4): st.append((f'v_fmac_f32 v{R0+4*T+r}, s21, v{DA+60+4*T+r}', tdone[T] + 4))
    if opt('spf', 0):
        for n in range(a0, a1): k(spf(n)); k.ins[-1].w = []
    if l == 0:
        k(f"""
        s_min_u32 s50, s{sGAM}, 6
        s_add_u32 s50, s50, 13
        s_mul_i32 s50, s50, 7168
        s_lshl_b32 s51, s{sW}, 11
        s_min_u32 s51, s51, 5120
        s_add_u32 s50, s50, s51
        v_add_u32 v191, s50, v1
        s_mul_i32 s71, s{sSIG}, 143360
        s_add_u32 s71, s71, {WS_WUF}
        ds_read_b128 v[192:195], v191
        ds_read_b128 v[196:199], v191 offset:1024
        s_waitcnt lgkmcnt(0)
        """)
        for n in range(2): fx(opt('svg', 213) + 2*n, f'buffer_store_dwordx4 {V(192+4*n)}, v191, s[4:7], s71 offen offset:{n*1024} sc1')
    if not SB: k.need(names=['H1'])
    k('s_barrier')
    k.need(V(HR)); emit(stampL(f'dn0_{l}'))
    align('d')
    X = o.get('exp', '')
    if X and l == 1:
        def keep(x):
            t = x.text if isinstance(x, I) else x
            if 'L' in X and t.startswith('buffer_load') and ' v8,' not in t: return False
            if 'W' in X and t.startswith('ds_write'): return False
            if 'B' in X and t.startswith('s_barrier'): return False
            if 'P' in X and (t.startswith(('s_load', 's_cbranch', 's_cmp', 'POLL', 's_waitcnt', 's_mov_b32 s68', 's_add_u32 s68'))): return False
            if 'A' in X and t.startswith('s_atomic'): return False
            if 'R' in X and t.startswith('ds_read'): return False
            return True
        fixed = {g: [x for x in v if keep(x)] for g, v in fixed.items()}
        if 'H' in X: fixed = {g: [(re.sub(r' v2(08|09|10),', ' v8,', x) if isinstance(x, str) else x) for x in v] for g, v in fixed.items()}
        if 'S' in X: st = [(x, 999) for x, e in st]
    log = {}
    left = weave(k, mf, fixed, st, tail=False, log=log)
    print('down leftover', len(left), log)
    assert log['FM2'] < ga and log['DP2'] < 79
    emit(stampL(f'dn55_{l}'))
    k(wr(3, 4))
    emit([x for x, e in left])
    for r in range(4): k(f'v_fmac_f32 v{R0+16+r}, s21, v{DA+76+r}')
    k('s_waitcnt lgkmcnt(0)'); k('s_barrier')
    for T in range(5): k(f'ds_read_b128 {V(DA+40+4*T)}, v190 offset:{T*1024}')
    add = lambda T: [f'v_pk_add_f32 {V(R0+n,2)}, {V(R0+n,2)}, {V(DA+40+n,2)}' for n in (4*T, 4*T+2)]
    if l == 1:
        store = lambda n: [(f'buffer_store_dwordx4 {V(100)}, v92, s[12:15], 0 offen {OF}', f'buffer_store_dwordx4 {V(104)}, v93, s[12:15], 0 offen {OF}',
                            f'buffer_store_dwordx2 {V(108,2)}, v94, s[12:15], 0 offen {OF}')[n]]
        if opt('ot', 1):
            store = lambda n: [(f'ds_write_b128 v95, {V(100)}', f'ds_write_b128 v95, {V(104)} offset:80', f'ds_write_b64 v96, {V(108,2)} offset:64')[n]]
    emit(add(0) + cvt(0) + add(1) + cvt(1) + store(0) + add(2) + cvt(2) + add(3) + cvt(3) + store(1) + add(4) + cvt(4) + store(2))
    if l == 1 and opt('ot', 1):
        for n in range(3): k(f'ds_read_b128 {V(112+4*n)}, v97 offset:{n*1024}')
        for n in range(3): k(f'buffer_store_dwordx4 {V(112+4*n)}, v{92+n}, s[12:15], s72 offen {OF}')
    if l == 0:
        emit([x for T in range(5) for x in dots(T)] + ptail)
        stamp(f'dnm_{l}')
        cpf(1, 50)
        k('s_barrier')
        k(f's_mul_i32 s51, s{sW}, 37'); k('s_mul_i32 s51, s51, 21846'); k('s_lshr_b32 s51, s51, 16'); k('s_lshl_b32 s51, s51, 10')
        k(f's_mul_i32 s50, s{sJ}, 51200'); k('s_add_u32 s50, s50, s51'); k(f's_add_u32 s50, s50, {WS_BF}'); k(f's_add_u32 s51, s51, {L_B}')
        NB = opt('nb', 6)
        k('s_mov_b32 s76, s50'); k('s_mov_b32 s77, s51')
        if not opt('nobf', 0): emit(wu_dma(0, NB, 77, 76))
        if not opt('m2a', 1): emit(gen_M2())
        emit(vs_prep('Y', 'X20', sgX2, 48))
        k.need(names=['X2S'])
        stamp(f'dne_{l}')
        emit(vs_go('Y', 'X20', sgX2, 48))
        if not opt('nobf', 0): emit(wu_dma(NB, 13, 77, 76))
        if opt('m2a', 1): emit(gen_M2())
    else:
        stamp(f'dne_{l}')
        if DIAG == 'fin' or (STAMP and not o.get('only')): k('s_waitcnt vmcnt(0)'); stamp('fin')

def main():
    prologue()
    NCL = opt('cl', 64); CW = opt('cw', 0)
    k(f's_xor_b32 s81, s{sW}, {CW}'); k('s_lshl_b32 s81, s81, 8'); k('s_add_u32 s81, s81, s2')
    k(f's_cmp_ge_u32 s81, {NCL}')
    k.begin('c0', 's_cbranch_scc1')
    for r in range(4): k(f'v_mov_b32 v{16+r}, 0')
    k(f's_mul_i32 s50, s2, {2*MBSZ//NCL}')
    for n in range(256//NCL):
        if n == 4: k('s_add_u32 s50, s50, 4096')
        k(f'buffer_store_dwordx4 v[16:19], v1, s[4:7], s50 offen offset:{(n % 4)*1024} sc1', name='CLR')
    k.end()
    setexec(20); k('buffer_load_dword v15, v20, s[8:11], s60 offen'); allexec()
    def adma(m):
        off = (m >> 1)*128 + (m & 1)*640
        L = []
        for hf in range(2):
            L.append([f's_add_u32 m0, s74, {m*2048 + hf*1024 - off}', I(f'buffer_load_dwordx4 v{48+hf}, s[8:11], 0 offen offset:{off} lds', name=f'AD{m}')])
        return L
    NA = opt('na', 3)
    for m in range(NA):
        for g_ in adma(m): emit(g_)
    stamp('iss0')
    k('s_mov_b32 s90, 1'); k('s_mov_b32 s66, -1'); k('s_mov_b32 s67, 0')
    k(f"""
    v_and_b32 v51, 7, v2
    v_xor_b32 v51, v51, v3
    v_lshlrev_b32 v51, 4, v51
    v_lshl_add_u32 v50, v2, 7, v51
    v_add_u32 v50, s74, v50
    v_xor_b32 v51, 64, v50
    """)
    emit(gen_B1())
    stamp('gen1')
    k(f's_cmp_ge_u32 s81, {NCL}')
    k.begin('c0', 's_cbranch_scc1')
    k('s_and_b32 s50, s2, 3'); k('s_lshl_b32 s50, s50, 6'); k('s_add_u32 s50, s32, s50'); k('s_addc_u32 s51, s33, 0')
    k.need(names=['CLR'])
    k('s_atomic_add s90, s[50:51], 0')
    k.end()
    work = grp(pre_addr1() + pf_addr() + gen_B2() + gen_T5()); SW = opt('sw', 999)
    emit(mix(work[:SW], [g_ for m in range(NA, 10) for g_ in adma(m)]))
    stamp('issA')
    if opt('b0', 0): k('s_barrier')
    for n in COLD[:opt('c0', 5)]: emit(cold(n))
    stamp('issP')
    emit(work[SW:] + gen_M2() + res_addr())
    k(f'v_add_u32 v8, {L_B}, v1')
    k.need(names=['AD0', 'AD1'])
    for m in range(2): emit(a_lds(m))
    k('s_waitcnt lgkmcnt(4)')
    k('s_barrier')
    stamp('ini')
    if stampL('aall'): k.need(names=['AD9']); emit(stampL('aall'))
    for l in range(2):
        if l == 0: d1_body(0, None)
        else:
            emit(gen_T5())
            k(f'v_add_u32 v8, {L_B}, v1')
            k(f's_add_u32 s72, s{sXT}, {WS_X2}'); k(f's_add_u32 s74, s{sST}, {WS_ST[2]}')
            k('v_add_u32 v36, s72, v1'); k('v_add_u32 v37, 10240, v36')
            def ald(n):
                ks, h = n >> 1, n & 1
                return [f'buffer_load_dwordx4 {V(A0 + 4*n)}, v{36+h}, s[4:7], {f"s{15 + ks//4}" if ks >= 4 else 0} offen offset:{(ks % 4)*1024} sc1']
            emit(poll_issue('X20')); emit(poll_wait('X20'))
            stamp('d1p_1')
            NUP = opt('nup', 8)
            for n in range(NUP): emit(ald(n))
            for n in range(4): k(f'buffer_load_dword v{32+n}, v5, s[4:7], s74 offen offset:{256*n} sc1')
            k.need(names=['WU']); k('s_barrier')
            stamp('d1b_1')
            d1_body(1, (NUP, ald))
        stop(f'd1_{l}')
        d2(l); stop(f'd2_{l}')
        up(l); stop(f'up_{l}')
        down(l); stop(f'dn_{l}')
try: main()
except Stop: pass
finish()
k('END:'); k('s_endpgm'); k('CODE_END:')
k.finish()
DOC = """;
"""
txt = build([k], [(k.name, 256, 256, LDS)], single=True)
txt = txt.replace('; @launch', DOC + '; @launch', 1)
open(sys.argv[1], 'w').write(txt)
import json
json.dump(dict(WS_BF=WS_BF, stamps=stampnames, WS_TS=WS_TS, WS_WUF=WS_WUF, WS_WDF=WS_WDF, WS_Z=WS_Z, WS_X1=WS_X1, WS_X2=WS_X2, WS_ST=WS_ST, WS_H=WS_H), open(sys.argv[1] + '.json', 'w'))
print('insts', len(k.ins), 'hi', k.hi, 'nops', sum(1 for i in k.ins if i.kind == 'nop'))
```
